```python
import torch

def _softmax(x, axis=-1):
    return torch.softmax(x, dim=axis)
def _gelu(x):
    return torch.nn.functional.gelu(x, approximate="tanh")
def _silu(x):
    return torch.nn.functional.silu(x)
def _sigmoid(x):
    return torch.sigmoid(x)
def _layernorm(x, axis=-1, eps=1e-5):
    m = x.mean(dim=axis, keepdim=True)
    v = x.var(dim=axis, keepdim=True, unbiased=False)
    return (x - m) / torch.sqrt(v + eps)
def _scatter_add(tgt, idx, src, axis=0):
    return tgt.clone().index_add_(axis, idx, src)
def _segment_sum(src, seg, n):
    out = torch.zeros((n,) + src.shape[1:], dtype=src.dtype)
    return out.index_add_(0, seg, src)
def _pad(x, pw):
    flat = tuple(v for pair in reversed(pw) for v in pair)
    return torch.nn.functional.pad(x, flat)

kernel_name = 'gated_mix__sliding_block__sliding_block__prompt'

def setup_inputs():

    _w = (lambda a: (lambda t: t.to(torch.bfloat16) if t.is_floating_point() else t)(torch.as_tensor(a)))
    def _A_setup():
        B, S, D = 1, 2048, 512
        return {
            "x": _w((lambda *s: torch.randn(*s, dtype=torch.bfloat16) * 0.05)(B, S, D)),
            "wqkv": _w((lambda *s: torch.randn(*s, dtype=torch.bfloat16) * 1.6)(D, 3 * D)),
            "wo": _w((lambda *s: torch.randn(*s, dtype=torch.bfloat16) * 0.05)(D, D)),
        }
    _A_in = _A_setup()

    def _B_setup():
        B, S, D = 1, 2048, 512
        return {
            "x": _w((lambda *s: torch.randn(*s, dtype=torch.bfloat16) * 0.05)(B, S, D)),
            "wqkv": _w((lambda *s: torch.randn(*s, dtype=torch.bfloat16) * 1.6)(D, 3 * D)),
            "wo": _w((lambda *s: torch.randn(*s, dtype=torch.bfloat16) * 0.05)(D, D)),
        }
    _B_in = _B_setup()

    return {
        "A_x": _A_in["x"],
        "A_wqkv": _A_in["wqkv"],
        "A_wo": _A_in["wo"],
        "B_x": _B_in["x"],
        "B_wqkv": _B_in["wqkv"],
        "B_wo": _B_in["wo"],
        "gate_w": _w((lambda *s: torch.randn(*s, dtype=torch.bfloat16) * 0.05)(512) * 16.0),
    }

def reference(A_x, A_wqkv, A_wo, B_x, B_wqkv, B_wo, gate_w):
    def _A_ref(x, wqkv, wo):
        B, S, D = x.shape
        H = 32; Dh = D // H; W = 256
        qkv = (lambda x, *d: x.permute(*d))((x @ wqkv).reshape(B, S, 3, H, Dh), 2, 0, 3, 1, 4)
        q, k, v = qkv[0], qkv[1], qkv[2]
        scores = torch.einsum("bhqd,bhkd->bhqk", q, k) * (Dh ** -0.5)
        idx = torch.arange(S)
        mask = (idx[:, None] - idx[None, :] >= 0) & (idx[:, None] - idx[None, :] < W)
        scores = torch.where(mask[None, None], scores, -1e9)
        p = _softmax(scores, axis=-1)
        o = torch.einsum("bhqk,bhkd->bhqd", p, v)
        return (lambda x, *d: x.permute(*d))(o, 0, 2, 1, 3).reshape(B, S, D) @ wo

    def _B_ref(x, wqkv, wo):
        B, S, D = x.shape
        H = 32; Dh = D // H; W = 256
        qkv = (lambda x, *d: x.permute(*d))((x @ wqkv).reshape(B, S, 3, H, Dh), 2, 0, 3, 1, 4)
        q, k, v = qkv[0], qkv[1], qkv[2]
        scores = torch.einsum("bhqd,bhkd->bhqk", q, k) * (Dh ** -0.5)
        idx = torch.arange(S)
        mask = (idx[:, None] - idx[None, :] >= 0) & (idx[:, None] - idx[None, :] < W)
        scores = torch.where(mask[None, None], scores, -1e9)
        p = _softmax(scores, axis=-1)
        o = torch.einsum("bhqk,bhkd->bhqd", p, v)
        return (lambda x, *d: x.permute(*d))(o, 0, 2, 1, 3).reshape(B, S, D) @ wo

    x = A_x
    g = _sigmoid((x * gate_w).sum(-1, keepdims=True))
    a = _A_ref(x, A_wqkv, A_wo)
    b = _B_ref(x, B_wqkv, B_wo)
    return g * a + (1 - g) * b
```

```python
import sys, argparse, math, struct

KNAME = "gated_mix__sliding_block__sliding_block__prompt_kernel"

WS_NONCE = 0
WS_OF = 0x1000
WS_KVF = 0x4000
WS_KV = 0x100000
WS_O = 0x1000000
WS_STAMP = 0x1800000
WS_SIZE = 0x2000000

LDS_W = 65536
LDS_TOTAL = 163840
LDS_GATE = 131072
LDS_RB = 0

S_X, S_W, S_WOA, S_WOB, S_WS, S_OUT, S_GW, S_DBG = 8, 12, 16, 20, 24, 28, 32, 36
sW, sTAU, sC, sBH, sBR, sHG, sTT, sT3, sN3, sTAG, sJ = 60, 61, 62, 63, 64, 65, 66, 67, 68, 69, 70
sT0, sT1, sT2, sT3x, sT4, sT5 = 71, 72, 73, 74, 75, 76
sCNT, sSPIN, sFAIL = 77, 80, 81
sVM = 78
sKVO = 82
sH = 83
sSTAMP0 = 84
STREG = list(range(84,98)) + [3, 6, 7]
sTM = 98

def srd(b): return f"s[{b}:{b+3}]"
def vr(b, n=1): return f"v{b}" if n == 1 else f"v[{b}:{b+n-1}]"

class Asm:
    def __init__(self):
        self.lines = []
        self.vm = []
        self.lg = []
        self.nlab = 0
    def e(self, s): self.lines.append("  " + s)
    def c(self, s): self.lines.append("  ; " + s)
    def lab(self, s): self.lines.append(s + ":")
    def newlab(self, p):
        self.nlab += 1
        return f"L_{p}_{self.nlab}"
    def vmop(self, s, tag):
        self.e(s); self.vm.append(tag)
    def lgop(self, s, tag):
        self.e(s); self.lg.append(tag)
    def _wait(self, q, tag, mx):
        idx = max(i for i, t in enumerate(q) if t == tag)
        n = len(q) - 1 - idx
        return min(n, mx), idx
    def vmwait(self, tag):
        if tag not in self.vm: return
        n, idx = self._wait(self.vm, tag, 63)
        self.e(f"s_waitcnt vmcnt({n})")
        self.vm = self.vm[len(self.vm) - n:] if n > 0 else []
    def lgwait(self, tag):
        if tag not in self.lg: return
        n, idx = self._wait(self.lg, tag, 15)
        self.e(f"s_waitcnt lgkmcnt({n})")
        self.lg = self.lg[len(self.lg) - n:] if n > 0 else []
    def vmall(self):
        self.e("s_waitcnt vmcnt(0)"); self.vm = []
    def lgall(self):
        self.e("s_waitcnt lgkmcnt(0)"); self.lg = []
    def text(self): return "\n".join(self.lines) + "\n"

def f32bits(x): return struct.unpack("<I", struct.pack("<f", x))[0]

def mfma(a, D, A, B, C):
    cs = C if isinstance(C, str) else vr(C, 16)
    a.e(f"v_mfma_f32_32x32x16_bf16 {vr(D,16)}, {vr(A,4)}, {vr(B,4)}, {cs}")

def gen(opt):
    a = Asm()
    NQA = opt.nqa
    STAMPS = opt.stamps
    nst = [0]
    def stamp(name):
        if not STAMPS: return
        i = nst[0]; nst[0] += 1
        assert i < len(STREG)
        a.c(f"stamp {i}: {name}")
        a.e(f"s_waitcnt lgkmcnt(0)")
        a.lg = []
        a.e(f"s_memrealtime s[{sTM}:{sTM+1}]")
        a.e("s_waitcnt lgkmcnt(0)")
        a.e(f"s_mov_b32 s{STREG[i]}, s{sTM}")
        opt.stamp_names.append(name)

    vLANE = 0
    vXO = 1
    vXR = 5
    vWO = 9
    vWRA, vWRB = 10, 11
    vL16 = 12
    vD0, vD1, vT = 13, 14, 15
    X = 16
    AQ, AK, AV = 144, 160, 176
    WF = 192
    def WFK(b): return WF + 8 * b
    def WFV(b): return WF + 8 * b + 4
    def WFQ(b): return WF + 16 + 4 * b
    OA = 216
    QF = 248
    MK = 160; VF = 176
    SS = 16; PP = 48; KF = 56; HT = 64
    vK, vV = 1, 2

    a.lab(KNAME)
    a.e("s_cmp_ge_u32 s2, 256")
    a.e("s_cbranch_scc1 L_END")
    if STAMPS:
        stamp("entry")
    a.e("s_getpc_b64 s[4:5]")
    a.lab("L_PC")
    a.e("v_lshlrev_b32 v13, 6, v0")
    a.e("s_load_dwordx4 s[40:43], s[0:1], 0")
    a.e("s_load_dwordx2 s[44:45], s[0:1], 16")
    a.e("s_load_dwordx4 s[48:51], s[0:1], 32")
    a.e("s_load_dwordx4 s[52:55], s[0:1], 48")
    a.e("s_load_dwordx4 s[56:59], s[0:1], 64")
    a.e("v_min_u32 v13, L_CODE_END-L_PC-4, v13")
    if opt.codepf:
        a.vmop("global_load_dword v16, v13, s[4:5]", "pfc")
    a.e("v_lshrrev_b32 v15, 6, v0")
    a.e("v_and_b32 v0, 63, v0")
    a.e(f"s_and_b32 s{sT0}, s2, 7")
    a.e(f"v_readfirstlane_b32 s{sW}, v15")
    a.e(f"s_lshr_b32 s{sJ}, s2, 3")
    a.e(f"s_and_b32 s{sT1}, s{sT0}, 1")
    a.e(f"s_lshl_b32 s{sT1}, s{sT1}, 2")
    a.e(f"s_and_b32 s{sT2}, s{sJ}, 3")
    a.e(f"s_add_u32 s{sC}, s{sT1}, s{sT2}")
    a.e(f"s_lshr_b32 s{sT1}, s{sT0}, 1")
    a.e(f"s_lshl_b32 s{sT1}, s{sT1}, 3")
    a.e(f"s_lshr_b32 s{sN3}, s{sJ}, 2")
    a.e(f"s_add_u32 s{sBH}, s{sT1}, s{sN3}")
    a.e(f"s_lshr_b32 s{sBR}, s{sBH}, 4")
    a.e(f"s_and_b32 s{sHG}, s{sBH}, 15")
    a.e(f"s_lshl_b32 s{sT3}, s{sT0}, 2")
    a.e(f"s_add_u32 s{sT3}, s{sT3}, s{sT2}")
    a.e(f"s_sub_u32 s{sT1}, 11, s{sW}")
    a.e(f"s_cmp_lt_u32 s{sW}, 4")
    a.e(f"s_cselect_b32 s{sTAU}, s{sW}, s{sT1}")
    a.e(f"s_lshl_b32 s{sTT}, s{sC}, 3")
    a.e(f"s_add_u32 s{sTT}, s{sTT}, s{sTAU}")
    a.e(f"v_lshlrev_b32 v{vL16}, 4, v0")
    a.e(f"v_lshrrev_b32 v13, 3, v0")
    a.e(f"v_lshlrev_b32 v13, 10, v13")
    a.e(f"s_lshl_b32 s{sT1}, s{sTT}, 15")
    a.e(f"v_add_u32 v13, s{sT1}, v13")
    a.e(f"v_lshrrev_b32 v15, 4, v0")
    a.e(f"v_xor_b32 v15, v15, v0")
    a.e(f"v_and_b32 v15, 7, v15")
    a.e(f"v_lshl_add_u32 v{vXO}, v15, 4, v13")
    a.e(f"v_xor_b32 v{vXO+1}, 64, v{vXO}")
    a.e(f"v_add_u32 v{vXO+2}, 14336, v{vXO}")
    a.e(f"v_add_u32 v{vXO+3}, 21504, v{vXO+1}")
    a.e(f"v_add_u32 v{vXO+1}, 7168, v{vXO+1}")
    a.e(f"v_lshrrev_b32 v13, 2, v0")
    a.e(f"v_mul_u32_u24 v13, 3072, v13")
    a.e(f"v_and_b32 v15, 3, v0")
    a.e(f"v_lshl_add_u32 v13, v15, 4, v13")
    a.e(f"s_lshl_b32 s{sT1}, s{sHG}, 6")
    a.e(f"v_add_u32 v{vWO}, s{sT1}, v13")
    a.e(f"v_and_b32 v13, 31, v0")
    a.e(f"v_lshrrev_b32 v15, 5, v0")
    a.e(f"v_bfe_u32 v{vXR+1}, v13, 1, 3")
    a.e(f"v_xor_b32 v15, v15, v{vXR+1}")
    a.e(f"v_lshlrev_b32 v15, 4, v15")
    a.e(f"v_lshl_add_u32 v15, v13, 7, v15")
    a.e(f"s_lshl_b32 s{sT1}, s{sTAU}, 13")
    a.e(f"v_add_u32 v{vXR}, s{sT1}, v15")
    for s in range(1, 4):
        a.e(f"v_xor_b32 v{vXR+s}, {s<<5}, v{vXR}")
    a.e(f"v_lshrrev_b32 v13, 5, v0")
    a.e(f"v_lshlrev_b32 v13, 9, v13")
    a.e(f"v_bfe_u32 v15, v0, 2, 2")
    a.e(f"v_lshl_add_u32 v13, v15, 6, v13")
    a.e(f"v_bfe_u32 v15, v0, 4, 1")
    a.e(f"v_lshl_add_u32 v13, v15, 5, v13")
    a.e(f"v_and_b32 v15, 3, v0")
    a.e(f"v_lshl_add_u32 v13, v15, 3, v13")
    a.e(f"v_add_u32 v{vWRA}, {LDS_W}, v13")
    a.e(f"v_add_u32 v{vWRB}, {LDS_W+65536}, v13")
    a.e(f"v_lshrrev_b32 v13, 1, v0")
    a.e(f"v_lshlrev_b32 v13, 10, v13")
    a.e(f"v_and_b32 v15, 1, v0")
    a.e(f"v_lshl_add_u32 v15, v15, 6, v13")
    a.e(f"s_lshl_b32 s{sT1}, s{sC}, 18")
    a.e(f"s_lshl_b32 s{sT2}, s{sW}, 15")
    a.e(f"s_add_u32 s{sT1}, s{sT1}, s{sT2}")
    a.e(f"s_lshl_b32 s{sT2}, s{sN3}, 7")
    a.e(f"s_add_u32 s{sT1}, s{sT1}, s{sT2}")
    a.e(f"v_add_u32 v15, s{sT1}, v15")
    a.e("s_waitcnt lgkmcnt(0)")
    def mk(b, lo, hi, size):
        a.e(f"s_mov_b32 s{b}, s{lo}"); a.e(f"s_mov_b32 s{b+1}, s{hi}")
        a.e(f"s_mov_b32 s{b+2}, {size}"); a.e(f"s_mov_b32 s{b+3}, 0x00020000")
    mk(S_X, 40, 41, 2097152)
    a.e(f"s_cmp_eq_u32 s{sBR}, 0")
    a.e(f"s_cselect_b32 s{S_W}, s42, s48")
    a.e(f"s_cselect_b32 s{S_W+1}, s43, s49")
    a.e(f"s_mov_b32 s{S_W+2}, 1572864"); a.e(f"s_mov_b32 s{S_W+3}, 0x00020000")
    if opt.xpf:
        a.vmop(f"buffer_load_dword v17, v15, {srd(S_X)}, 0 offen", "pfx")
    mk(S_WS, 58, 59, WS_SIZE)
    mk(S_DBG, 56, 57, 256)
    QM, KM, VM_ = 0, 1, 2
    Wl = {KM: LDS_W, VM_: LDS_W + 32768, QM: LDS_W + 65536}
    a.e(f"s_mul_i32 s{sT0}, s{sW}, {16*3072}")
    a.e(f"s_lshl_b32 s{sT1}, s{sW}, 10")
    def wdma(m, p):
        a.e(f"s_add_u32 s{sT2}, s{sT1}, {Wl[m] + p*8192}")
        a.e(f"s_add_u32 s{sT3x}, s{sT0}, {p*128*3072 + m*1024}")
        a.e(f"s_mov_b32 m0, s{sT2}")
        a.e("s_nop 0")
        a.vmop(f"buffer_load_dwordx4 v{vWO}, {srd(S_W)}, s{sT3x} offen lds", f"w{m}_{p}")
    a.e(f"s_lshl_b32 s{sT4}, s{sTAU}, 13")
    def xdma(kc):
        a.e(f"s_add_u32 s{sT2}, s{sT4}, {(kc&1)*4096}")
        a.e(f"s_mov_b32 s{sT3x}, {kc*128}")
        a.e(f"s_mov_b32 m0, s{sT2}")
        a.e("s_nop 0")
        for i in range(4):
            a.vmop(f"buffer_load_dwordx4 v{vXO+i}, {srd(S_X)}, s{sT3x} offen offset:{i*1024} lds", f"x{kc}")
    def wpart(p):
        wdma(KM, p); wdma(VM_, p)
        if p * 8 < NQA: wdma(QM, p)
    wpart(0)
    xdma(0); xdma(1)
    a.e(f"s_or_b32 s{sT5}, s2, s{sW}")
    a.e(f"s_cmp_lg_u32 s{sT5}, 0")
    a.e("s_cbranch_scc1 L_NONCE_SKIP0")
    a.e(f"v_mov_b32 v13, 0")
    a.e(f"buffer_load_dword v14, v13, {srd(S_WS)}, 0 offen sc1")
    a.lab("L_NONCE_SKIP0")
    for p in range(1, 4): wpart(p)
    for p in range(4):
        if p * 8 >= NQA: wdma(QM, p)
    mk(S_WOA, 44, 45, 524288)
    mk(S_WOB, 50, 51, 524288)
    mk(S_OUT, 54, 55, 2097152)
    mk(S_GW, 52, 53, 1024)
    a.e(f"s_mov_b32 s{sVM}, 0x0000ffff")
    a.e(f"s_mov_b32 s{sVM+1}, 0x0000ffff")
    a.e(f"s_mov_b32 s{sFAIL}, 0")
    for i in range(32): a.e(f"v_mov_b32 v{OA+i}, 0")
    stamp("issued")
    def last_w_tag(p):
        return f"w{QM}_{p}" if p * 8 < NQA else f"w{VM_}_{p}"
    def xread(kc):
        for s in range(4):
            a.lgop(f"ds_read_b128 {vr(X+16*kc+4*s,4)}, v{vXR+s} offset:{(kc&1)*4096}", f"xr{kc}")
    def wread(t):
        b = t & 1
        for u in range(2):
            a.lgop(f"ds_read_b64_tr_b16 {vr(WFK(b)+2*u,2)}, v{vWRA} offset:{t*1024+u*256}", f"wf{t}")
        for u in range(2):
            a.lgop(f"ds_read_b64_tr_b16 {vr(WFV(b)+2*u,2)}, v{vWRA} offset:{32768+t*1024+u*256}", f"wf{t}")
        if t < NQA:
            for u in range(2):
                a.lgop(f"ds_read_b64_tr_b16 {vr(WFQ(b)+2*u,2)}, v{vWRB} offset:{t*1024+u*256}", f"wf{t}")
    a.vmwait(last_w_tag(0))
    a.e("s_barrier")
    a.vmwait("x0")
    stamp("first data")
    a.e(f"s_cmp_lg_u32 s{sT5}, 0")
    a.e("s_cbranch_scc1 L_NONCE_SKIP1")
    a.e("s_waitcnt vmcnt(0)")
    a.e(f"v_readfirstlane_b32 s{sT2}, v14")
    a.e(f"v_mov_b32 v13, 0")
    a.e("s_nop 3")
    a.e(f"s_add_u32 s{sT2}, s{sT2}, 1")
    a.e(f"s_max_u32 s{sT2}, s{sT2}, 1")
    a.e(f"v_mov_b32 v14, s{sT2}")
    a.e(f"buffer_store_dword v14, v13, {srd(S_DBG)}, 0 offen sc1")
    a.e(f"buffer_store_dword v14, v13, {srd(S_WS)}, 0 offen sc1")
    a.lab("L_NONCE_SKIP1")
    xread(0)
    wread(0)
    for t in range(32):
        kc, s = t >> 2, t & 3
        if s == 0 and kc + 1 <= 7:
            a.vmwait(f"x{kc+1}")
            xread(kc + 1)
        if t + 1 < 32:
            if (t + 1) % 8 == 0:
                a.vmwait(last_w_tag((t + 1) // 8))
                a.e("s_barrier")
            wread(t + 1)
        a.lgwait(f"wf{t}")
        if t == 0:
            xdma(2)
        if s == 1 and kc + 3 <= 7:
            xdma(kc + 3)
            if kc + 3 == 7:
                a.e(f"v_mov_b32 v13, 0")
                a.vmop(f"buffer_load_dword v{vD1}, v13, {srd(S_DBG)}, 0 offen sc1", "tag")
                if opt.wopf:
                    a.e(f"s_and_b32 s{sT2}, s{sJ}, 15")
                    a.e(f"s_lshl_b32 s{sT2}, s{sT2}, 15")
                    a.e(f"s_lshl_b32 s{sT3x}, s{sW}, 12")
                    a.e(f"s_add_u32 s{sT2}, s{sT2}, s{sT3x}")
                    a.e(f"v_lshlrev_b32 v15, 6, v0")
                    a.e(f"s_cmp_lt_u32 s{sJ}, 16")
                    a.e("s_cbranch_scc1 L_WOPF_A")
                    a.e(f"buffer_load_dword v1, v15, {srd(S_WOB)}, s{sT2} offen")
                    a.e("s_branch L_WOPF_E")
                    a.lab("L_WOPF_A")
                    a.e(f"buffer_load_dword v1, v15, {srd(S_WOA)}, s{sT2} offen")
                    a.lab("L_WOPF_E")
                    a.vm.append("wopf")
        b = t & 1
        C = (lambda r: "0") if t == 0 else (lambda r: r)
        mfma(a, AK, WFK(b), X + 4 * t, C(AK))
        mfma(a, AV, X + 4 * t, WFV(b), C(AV))
        if t < NQA:
            mfma(a, AQ, WFQ(b), X + 4 * t, C(AQ))
    stamp("phase A mfma done")
    epi = []
    TK = WF
    def cvt(dst, s0, s1): return f"v_cvt_pk_bf16_f32 v{dst}, v{s0}, v{s1}"
    for i in range(8): epi.append(("e", cvt(TK + i, AK + 2 * i, AK + 2 * i + 1)))
    for i in range(8): epi.append(("e", cvt(TK + 8 + i, AV + 2 * i, AV + 2 * i + 1)))
    pre = [f"s_lshl_b32 s{sT2}, s{sTAU}, 13", f"v_add_u32 v13, s{sT2}, v{vL16}",
           f"s_lshl_b32 s{sKVO}, s{sBH}, 6", f"s_add_u32 s{sKVO}, s{sKVO}, s{sTT}",
           f"s_lshl_b32 s{sKVO}, s{sKVO}, 12", f"s_add_u32 s{sKVO}, s{sKVO}, {WS_KV}"]
    for i in range(4):
        epi.append(("lg", f"ds_write_b128 v13, {vr(TK+4*i,4)} offset:{i*1024}", "kvw"))
    for i in range(4):
        epi.append(("vm", f"buffer_store_dwordx4 {vr(TK+4*i,4)}, v{vL16}, {srd(S_WS)}, s{sKVO} offen offset:{i*1024} sc1", "kvs"))
    init2 = []
    init2.append(f"v_and_b32 v15, 31, v0")
    init2.append(f"v_lshrrev_b32 v{vWO}, 5, v0")
    init2.append(f"v_lshlrev_b32 v{vWO}, 2, v{vWO}")
    init2.append(f"v_sub_u32 v15, v15, v{vWO}")
    for r in range(16):
        kk = (r & 3) + 8 * (r >> 2)
        init2.append(f"v_subrev_u32 v{MK+r}, {kk}, v15")
        init2.append(f"v_ashrrev_i32 v{MK+r}, 31, v{MK+r}")
        init2.append(f"v_and_b32 v{MK+r}, 0xff800000, v{MK+r}")
    for i in range(16): init2.append(f"v_mov_b32 v{VF+i}, 0x3f803f80")
    def emit_item(it):
        if it[0] == "e": a.e(it[1])
        elif it[0] == "lg": a.lgop(it[1], it[2])
        elif it[0] == "vm": a.vmop(it[1], it[2])
    for l in pre: a.e(l)
    nB = 32 - NQA
    def qread(t):
        b = t & 1
        for u in range(2):
            a.lgop(f"ds_read_b64_tr_b16 {vr(WFQ(b)+2*u,2)}, v{vWRB} offset:{t*1024+u*256}", f"wq{t}")
    if nB > 0:
        a.vmwait(f"w{QM}_3")
        a.e("s_barrier")
        qread(NQA)
        work = epi + [("e", l) for l in init2]
        per = max(1, -(-len(work) // max(1, nB - 2)))
        wi = 0
        for t in range(NQA, 32):
            if t + 1 < 32: qread(t + 1)
            a.lgwait(f"wq{t}")
            mfma(a, AQ, WFQ(t & 1), X + 4 * t, "0" if t == 0 else AQ)
            if t >= NQA + 2 or t == 31:
                if t == NQA + 2 or (nB <= 2 and t == 31):
                    a.e("s_nop 7"); a.e("s_nop 3")
                n = per if t < 31 else len(work) - wi
                for it in work[wi:wi + n]: emit_item(it)
                wi += n
        assert wi == len(work)
    else:
        a.e("s_nop 7"); a.e("s_nop 7")
        for it in epi: emit_item(it)
        for l in init2: a.e(l)
    stamp("phase B mfma done")
    a.vmwait("tag")
    a.e(f"v_readfirstlane_b32 s{sTAG}, v{vD1}")
    a.e(f"s_mov_b32 s{sSPIN}, 0")
    a.e("s_nop 2")
    a.lab("L_TAG_LOOP")
    a.e(f"s_cmp_lg_u32 s{sTAG}, 0")
    a.e("s_cbranch_scc1 L_TAG_OK")
    a.e(f"s_add_u32 s{sSPIN}, s{sSPIN}, 1")
    a.e(f"s_cmp_gt_u32 s{sSPIN}, {opt.spin}")
    a.e("s_cbranch_scc1 L_TAG_OK")
    a.e(f"v_mov_b32 v15, 0")
    a.e(f"buffer_load_dword v{vD1}, v15, {srd(S_DBG)}, 0 offen sc1")
    a.e("s_waitcnt vmcnt(0)")
    a.e(f"v_readfirstlane_b32 s{sTAG}, v{vD1}")
    a.e("s_nop 3")
    a.e("s_branch L_TAG_LOOP")
    a.lab("L_TAG_OK")
    cq = 0.25 * math.log2(math.e)
    a.e(f"s_mov_b32 s{sT2}, {hex(f32bits(cq))}")
    a.e("s_nop 7")
    for i in range(16): a.e(f"v_mul_f32 v{AQ+i}, s{sT2}, v{AQ+i}")
    for i in range(8): a.e(cvt(QF + i, AQ + 2 * i, AQ + 2 * i + 1))
    a.vmall()
    a.e(f"s_lshl_b32 s{sT2}, s{sC}, 5")
    a.e(f"s_add_u32 s{sT2}, s{sT2}, s{sBH}")
    a.e(f"s_lshl_b32 s{sT2}, s{sT2}, 7")
    a.e(f"s_lshl_b32 s{sT3x}, s{sTAU}, 2")
    a.e(f"s_add_u32 s{sT2}, s{sT2}, s{sT3x}")
    a.e(f"s_add_u32 s{sT2}, s{sT2}, {WS_KVF}")
    a.e(f"v_mov_b32 v13, 0")
    a.e(f"v_mov_b32 v14, s{sTAG}")
    a.e("s_mov_b64 exec, 1")
    a.e(f"buffer_store_dword v14, v13, {srd(S_WS)}, s{sT2} offen sc1")
    a.e("s_mov_b64 exec, -1")
    a.lgall()
    a.e("s_barrier")
    stamp("B1")

    def vaddr_init(base_expr_s):
        a.e(f"v_add_u32 v{vK}, s{base_expr_s}, v{vL16}")
        a.e(f"v_and_b32 v{vV}, 15, v0")
        a.e(f"v_lshrrev_b32 v15, 5, v0")
        a.e(f"v_lshlrev_b32 v15, 5, v15")
        a.e(f"v_add_u32 v{vV}, v{vV}, v15")
        a.e(f"v_lshlrev_b32 v{vV}, 4, v{vV}")
        a.e(f"v_add_u32 v{vV}, s{base_expr_s}, v{vV}")
    def kread(h, extra=0): a.e(f"ds_read_b128 {vr(KF+4*h,4)}, v{vK} offset:{h*1024+extra}")
    def vread(h):
        a.e(f"s_mov_b64 exec, s[{sVM}:{sVM+1}]")
        for s in range(2):
            a.e(f"ds_read_b128 {vr(VF+8*h+4*s,4)}, v{vV} offset:{2048+s*1024+h*256}")
        a.e("s_mov_b64 exec, -1")
    def seg(h, last):
        S = SS + 16 * h; O = OA + 16 * h
        for i in range(8): a.e(f"v_exp_f32 v{S+i}, v{S+i}")
        for i in range(4): a.e(cvt(PP + i, S + 2 * i, S + 2 * i + 1))
        for i in range(8, 10): a.e(f"v_exp_f32 v{S+i}, v{S+i}")
        mfma(a, O, VF + 8 * h, PP, O)
        for i in range(10, 16): a.e(f"v_exp_f32 v{S+i}, v{S+i}")
        for i in range(4, 8): a.e(cvt(PP + i, S + 2 * i, S + 2 * i + 1))
        if last:
            if h == 0:
                a.e("s_waitcnt lgkmcnt(0)")
                a.e("s_nop 0")
            else:
                a.e("s_nop 1")
            mfma(a, O, VF + 8 * h + 4, PP + 4, O)
        else:
            if h == 0: kread(1)
            else: kread(0, 8192)
            a.e("s_waitcnt lgkmcnt(1)")
            mfma(a, O, VF + 8 * h + 4, PP + 4, O)
            mfma(a, S, KF + 4 * h, QF + 4 * h, "0")
            vread(h)
    def part(name, first_s, rest_s, cnt_s):
        a.c(f"---- attention part {name} ----")
        vaddr_init(first_s)
        kread(0); kread(1); vread(0); vread(1)
        a.e(f"s_sub_u32 s{sT2}, s{rest_s}, s{first_s}")
        a.e("s_waitcnt lgkmcnt(4)")
        mfma(a, SS, KF, QF, MK)
        mfma(a, SS + 16, KF + 4, QF + 4, MK)
        a.e(f"v_add_u32 v{vK}, s{sT2}, v{vK}")
        a.e(f"v_add_u32 v{vV}, s{sT2}, v{vV}")
        kread(0)
        a.e(f"s_mov_b32 s{sCNT}, s{cnt_s}")
        a.e("s_nop 6")
        a.e("s_waitcnt lgkmcnt(1)")
        a.e(f"s_cmp_eq_u32 s{sCNT}, 0")
        a.e(f"s_cbranch_scc1 L_{name}_DRAIN")
        a.lab(f"L_{name}_LOOP")
        seg(0, False)
        seg(1, False)
        a.e(f"v_add_u32 v{vK}, 0x2000, v{vK}")
        a.e(f"v_add_u32 v{vV}, 0x2000, v{vV}")
        a.e(f"s_sub_u32 s{sCNT}, s{sCNT}, 1")
        a.e(f"s_cmp_lg_u32 s{sCNT}, 0")
        a.e(f"s_cbranch_scc1 L_{name}_LOOP")
        a.lab(f"L_{name}_DRAIN")
        seg(0, True)
        seg(1, True)
    a.e(f"s_lshl_b32 s{sT0}, s{sTAU}, 13")
    a.e(f"s_mov_b32 s{sT1}, 0")
    part("OWN", sT0, sT1, sTAU)
    stamp("own done")
    a.e(f"s_cmp_eq_u32 s{sC}, 0")
    a.e("s_cbranch_scc1 L_P2_EPI")
    a.e(f"s_cmp_gt_u32 s{sTAU}, 1")
    a.e("s_cbranch_scc1 L_HALO_BAR")
    a.e(f"s_sub_u32 s{sT2}, s{sC}, 1")
    a.e(f"s_lshl_b32 s{sT3x}, s{sT2}, 5")
    a.e(f"s_add_u32 s{sT3x}, s{sT3x}, s{sBH}")
    a.e(f"s_lshl_b32 s{sT3x}, s{sT3x}, 7")
    a.e(f"s_lshl_b32 s{sT4}, s{sTAU}, 4")
    a.e(f"s_add_u32 s{sT3x}, s{sT3x}, s{sT4}")
    a.e(f"s_add_u32 s{sT3x}, s{sT3x}, {WS_KVF}")
    a.e(f"v_and_b32 v13, 3, v0")
    a.e(f"v_lshlrev_b32 v13, 2, v13")
    a.e(f"s_mov_b32 s{sSPIN}, 0")
    a.lab("L_KVF_LOOP")
    a.e(f"buffer_load_dword v14, v13, {srd(S_WS)}, s{sT3x} offen sc1")
    a.e(f"s_add_u32 s{sSPIN}, s{sSPIN}, 1")
    a.e("s_waitcnt vmcnt(0)")
    a.e(f"v_cmp_ne_u32 vcc, s{sTAG}, v14")
    a.e(f"s_cmp_gt_u32 s{sSPIN}, {opt.spin}")
    a.e("s_cbranch_scc1 L_KVF_OK")
    a.e("s_cbranch_vccnz L_KVF_LOOP")
    a.lab("L_KVF_OK")
    a.e(f"s_lshl_b32 s{sT3x}, s{sBH}, 6")
    a.e(f"s_lshl_b32 s{sT2}, s{sT2}, 3")
    a.e(f"s_add_u32 s{sT3x}, s{sT3x}, s{sT2}")
    a.e(f"s_lshl_b32 s{sT2}, s{sTAU}, 2")
    a.e(f"s_add_u32 s{sT3x}, s{sT3x}, s{sT2}")
    a.e(f"s_lshl_b32 s{sT3x}, s{sT3x}, 12")
    a.e(f"s_add_u32 s{sT3x}, s{sT3x}, {WS_KV}")
    for j in range(4):
        for i in range(4):
            a.e(f"buffer_load_dwordx4 {vr(HT+16*j+4*i,4)}, v{vL16}, {srd(S_WS)}, s{sT3x} offen offset:{i*1024} sc1")
        if j < 3: a.e(f"s_add_u32 s{sT3x}, s{sT3x}, 4096")
    a.e(f"s_lshl_b32 s{sT2}, s{sTAU}, 15")
    a.e(f"s_add_u32 s{sT2}, s{sT2}, 4096")
    a.e(f"v_add_u32 v13, s{sT2}, v{vL16}")
    for j in range(4):
        a.e(f"s_waitcnt vmcnt({12-4*j})")
        for i in range(4):
            a.e(f"ds_write_b128 v13, {vr(HT+16*j+4*i,4)} offset:{j*8192+i*1024}")
    a.e("s_waitcnt lgkmcnt(0)")
    a.lab("L_HALO_BAR")
    a.e(f"s_mov_b32 s{sT2}, 0xff800000")
    for r in range(16): a.e(f"v_xor_b32 v{MK+r}, s{sT2}, v{MK+r}")
    a.e("s_barrier")
    stamp("B2")
    a.e(f"s_lshl_b32 s{sT0}, s{sTAU}, 13")
    a.e(f"s_add_u32 s{sT0}, s{sT0}, 4096")
    a.e(f"s_add_u32 s{sT1}, s{sT0}, 8192")
    a.e(f"s_sub_u32 s{sT4}, 7, s{sTAU}")
    part("HALO", sT0, sT1, sT4)
    a.lab("L_P2_EPI")
    stamp("attn done")
    a.e("s_nop 7"); a.e("s_nop 7")
    lo, hi = f32bits(2.0 ** -64), f32bits(2.0 ** 64)
    a.e(f"s_mov_b32 s{sT0}, {hex(lo)}")
    a.e(f"s_mov_b32 s{sT1}, {hex(hi)}")
    if opt.fallback:
        for h in range(2):
            O = OA + 16 * h
            a.e(f"v_mul_f32 v13, 0, v{O}")
            for i in range(1, 8): a.e(f"v_fmac_f32 v13, 0, v{O+i}")
            a.e(f"v_cmp_nle_f32 vcc, s{sT0}, v{O+8}")
            a.e(f"s_mov_b64 s[74:75], vcc")
            a.e(f"v_cmp_nge_f32 vcc, s{sT1}, v{O+8}")
            a.e("s_or_b64 s[74:75], s[74:75], vcc")
            a.e(f"v_cmp_u_f32 vcc, v13, v13")
            a.e("s_or_b64 s[74:75], s[74:75], vcc")
            a.e("s_cmp_lg_u64 s[74:75], 0")
            a.e(f"s_cselect_b32 s{sT2}, {1<<h}, 0")
            a.e(f"s_or_b32 s{sFAIL}, s{sFAIL}, s{sT2}")
        a.e(f"s_cmp_eq_u32 s{sFAIL}, 0")
        a.e("s_cbranch_scc1 L_NOFB")
        fallback(a, opt, dict(SS=SS, PP=PP, KF=KF, VF=VF, MK=MK, OA=OA, QF=QF, vK=vK, vV=vV, vL16=vL16, HT=HT))
        a.lab("L_NOFB")
    TO = SS
    for h in range(2):
        O = OA + 16 * h
        a.e(f"v_rcp_f32 v13, v{O+8}")
        a.e("s_nop 0")
        for i in range(8): a.e(f"v_mul_f32 v{O+i}, v{O+i}, v13")
        for i in range(4): a.e(cvt(TO + 4 * h + i, O + 2 * i, O + 2 * i + 1))
    a.e(f"s_lshl_b32 s{sT2}, s{sTT}, 1")
    a.e(f"s_add_u32 s{sT2}, s{sT2}, s{sBR}")
    a.e(f"s_lshl_b32 s{sT2}, s{sT2}, 5")
    a.e(f"s_lshl_b32 s{sT3x}, s{sHG}, 1")
    a.e(f"s_add_u32 s{sT2}, s{sT2}, s{sT3x}")
    a.e(f"s_lshl_b32 s{sT2}, s{sT2}, 10")
    a.e(f"s_add_u32 s{sT2}, s{sT2}, {WS_O}")
    for h in range(2):
        a.e(f"buffer_store_dwordx4 {vr(TO+4*h,4)}, v{vL16}, {srd(S_WS)}, s{sT2} offen offset:{h*1024} sc1")
    a.e("s_waitcnt vmcnt(0)")
    a.e(f"s_lshl_b32 s{sT2}, s{sTT}, 5")
    a.e(f"s_add_u32 s{sT2}, s{sT2}, s{sBH}")
    a.e(f"s_lshl_b32 s{sT2}, s{sT2}, 2")
    a.e(f"s_add_u32 s{sT2}, s{sT2}, {WS_OF}")
    a.e(f"v_mov_b32 v13, 0")
    a.e(f"v_mov_b32 v14, s{sTAG}")
    a.e("s_mov_b64 exec, 1")
    a.e(f"buffer_store_dword v14, v13, {srd(S_WS)}, s{sT2} offen sc1")
    a.e("s_mov_b64 exec, -1")
    a.vm = []; a.lg = []
    stamp("O published")

    WF3, OF3, AC3 = 16, 144, 208
    GX, GG = 144, 176
    a.e(f"v_lshrrev_b32 v13, 3, v0")
    a.e(f"v_lshlrev_b32 v13, 10, v13")
    a.e(f"v_and_b32 v15, 7, v0")
    a.e(f"v_lshlrev_b32 v15, 4, v15")
    a.e(f"v_add_u32 v13, v13, v15")
    a.e(f"s_lshl_b32 s{sT2}, s{sT3}, 16")
    a.e(f"s_lshl_b32 s{sT3x}, s{sW}, 13")
    a.e(f"s_add_u32 s{sT2}, s{sT2}, s{sT3x}")
    for i in range(8):
        a.vmop(f"buffer_load_dwordx4 {vr(GX+4*i,4)}, v13, {srd(S_X)}, s{sT2} offen offset:{i*128}", "gx")
    for i in range(8):
        a.vmop(f"buffer_load_dwordx4 {vr(GG+4*i,4)}, v15, {srd(S_GW)}, 0 offen offset:{i*128}", "gg")
    a.e("s_barrier")
    stamp("B3")
    a.e(f"v_lshrrev_b32 v1, 2, v0")
    a.e(f"v_lshlrev_b32 v1, 10, v1")
    a.e(f"v_and_b32 v2, 3, v0")
    a.e(f"v_lshl_add_u32 v1, v2, 4, v1")
    a.e(f"s_lshl_b32 s{sT0}, s{sW}, 14")
    a.e(f"s_lshl_b32 s{sT1}, s{sN3}, 7")
    a.e(f"s_add_u32 s{sT0}, s{sT0}, s{sT1}")
    a.e(f"s_lshl_b32 s{sT1}, s{sW}, 10")
    for br in range(2):
        for ct in range(2):
            for i in range(4):
                a.e(f"s_add_u32 s{sT2}, s{sT1}, {(2*br+ct)*32768 + i*8192}")
                a.e(f"s_add_u32 s{sT3x}, s{sT0}, {i*128*1024 + ct*64}")
                a.e(f"s_mov_b32 m0, s{sT2}")
                a.e("s_nop 0")
                a.vmop(f"buffer_load_dwordx4 v1, {srd(S_WOA if br == 0 else S_WOB)}, s{sT3x} offen lds", "wo")
    a.vmwait("gg")
    a.e(f"v_mov_b32 v13, 0")
    for i in range(32):
        a.e(f"v_dot2_f32_bf16 v13, v{GX+i}, v{GG+i}, v13")
    a.e("s_nop 4")
    a.e("v_add_f32_dpp v13, v13, v13 quad_perm:[1,0,3,2] row_mask:0xf bank_mask:0xf")
    a.e("s_nop 1")
    a.e("v_add_f32_dpp v13, v13, v13 quad_perm:[2,3,0,1] row_mask:0xf bank_mask:0xf")
    a.e("s_nop 1")
    a.e("v_add_f32_dpp v13, v13, v13 row_half_mirror row_mask:0xf bank_mask:0xf")
    a.e("v_cvt_pk_bf16_f32 v13, v13, v13")
    a.e("v_and_b32 v13, 0xffff0000, v13")
    a.e(f"v_mul_f32 v13, {hex(f32bits(-math.log2(math.e)))}, v13")
    a.e("v_exp_f32 v13, v13")
    a.e("s_nop 0")
    a.e("v_add_f32 v13, 1.0, v13")
    a.e("v_rcp_f32 v13, v13")
    a.e("s_nop 0")
    a.e("v_cvt_pk_bf16_f32 v13, v13, v13")
    a.e("v_and_b32 v13, 0xffff0000, v13")
    a.e("v_sub_f32 v14, 1.0, v13")
    a.e("v_cvt_pk_bf16_f32 v14, v14, v14")
    a.e("v_and_b32 v14, 0xffff0000, v14")
    a.e(f"v_lshrrev_b32 v15, 3, v0")
    a.e(f"s_lshl_b32 s{sT2}, s{sW}, 3")
    a.e(f"v_add_u32 v15, s{sT2}, v15")
    a.e(f"v_lshlrev_b32 v15, 2, v15")
    a.e(f"v_add_u32 v15, {LDS_GATE}, v15")
    a.e(f"ds_write_b32 v15, v13")
    a.e(f"ds_write_b32 v15, v14 offset:256")
    a.vmall()
    a.lgall()
    a.e("s_barrier")
    stamp("B4")
    sTQ, sQ, sB3, sKH = sC, sBH, sBR, sHG
    a.e(f"s_lshr_b32 s{sTQ}, s{sW}, 2")
    a.e(f"s_and_b32 s{sQ}, s{sW}, 3")
    a.e(f"s_lshr_b32 s{sB3}, s{sQ}, 1")
    a.e(f"s_and_b32 s{sKH}, s{sQ}, 1")
    a.e(f"v_lshrrev_b32 v1, 5, v0")
    a.e(f"v_lshlrev_b32 v1, 8, v1")
    a.e(f"v_bfe_u32 v2, v0, 2, 2")
    a.e(f"v_lshl_add_u32 v1, v2, 6, v1")
    a.e(f"v_bfe_u32 v2, v0, 4, 1")
    a.e(f"v_lshl_add_u32 v1, v2, 5, v1")
    a.e(f"v_and_b32 v2, 3, v0")
    a.e(f"v_lshl_add_u32 v1, v2, 3, v1")
    a.e(f"s_lshl_b32 s{sT2}, s{sKH}, 14")
    a.e(f"s_lshl_b32 s{sT3x}, s{sB3}, 16")
    a.e(f"s_add_u32 s{sT2}, s{sT2}, s{sT3x}")
    a.e(f"v_add_u32 v1, s{sT2}, v1")
    for i in range(16):
        for ct in range(2):
            for u in range(2):
                a.e(f"ds_read_b64_tr_b16 {vr(WF3+8*i+4*ct+2*u,2)}, v1 offset:{ct*32768+i*1024+u*512}")
    a.e(f"v_and_b32 v2, 31, v0")
    a.e(f"s_lshl_b32 s{sT2}, s{sTQ}, 5")
    a.e(f"s_lshl_b32 s{sT3x}, s{sB3}, 6")
    a.e(f"s_add_u32 s{sT2}, s{sT2}, s{sT3x}")
    a.e(f"v_add_u32 v2, s{sT2}, v2")
    a.e(f"v_lshlrev_b32 v2, 2, v2")
    a.e(f"v_add_u32 v2, {LDS_GATE}, v2")
    a.e(f"ds_read_b32 v3, v2")
    a.e("s_waitcnt lgkmcnt(0)")
    a.e("s_barrier")
    stamp("B5")
    a.e(f"s_lshl_b32 s{sTT}, s{sT3}, 1")
    a.e(f"s_add_u32 s{sTT}, s{sTT}, s{sTQ}")
    a.e(f"s_lshl_b32 s{sT2}, s{sTT}, 5")
    a.e(f"s_lshl_b32 s{sT3x}, s{sQ}, 3")
    a.e(f"s_add_u32 s{sT2}, s{sT2}, s{sT3x}")
    a.e(f"s_lshl_b32 s{sT2}, s{sT2}, 2")
    a.e(f"s_add_u32 s{sT2}, s{sT2}, {WS_OF}")
    a.e(f"v_and_b32 v13, 7, v0")
    a.e(f"v_lshlrev_b32 v13, 2, v13")
    a.e(f"s_mov_b32 s{sSPIN}, 0")
    a.lab("L_OF_LOOP")
    a.e(f"buffer_load_dword v14, v13, {srd(S_WS)}, s{sT2} offen sc1")
    a.e(f"s_add_u32 s{sSPIN}, s{sSPIN}, 1")
    a.e("s_waitcnt vmcnt(0)")
    a.e(f"v_cmp_ne_u32 vcc, s{sTAG}, v14")
    a.e(f"s_cmp_gt_u32 s{sSPIN}, {opt.spin}")
    a.e("s_cbranch_scc1 L_OF_OK")
    a.e("s_cbranch_vccnz L_OF_LOOP")
    a.lab("L_OF_OK")
    stamp("O flags seen")
    a.e(f"s_lshl_b32 s{sT2}, s{sTT}, 1")
    a.e(f"s_add_u32 s{sT2}, s{sT2}, s{sB3}")
    a.e(f"s_lshl_b32 s{sT2}, s{sT2}, 5")
    a.e(f"s_lshl_b32 s{sT3x}, s{sKH}, 4")
    a.e(f"s_add_u32 s{sT2}, s{sT2}, s{sT3x}")
    a.e(f"s_lshl_b32 s{sT2}, s{sT2}, 10")
    a.e(f"s_add_u32 s{sT2}, s{sT2}, {WS_O}")
    for i in range(16):
        a.e(f"buffer_load_dwordx4 {vr(OF3+4*i,4)}, v{vL16}, {srd(S_WS)}, s{sT2} offen offset:{(i&3)*1024} sc1")
        if (i & 3) == 3 and i < 15: a.e(f"s_add_u32 s{sT2}, s{sT2}, 4096")
    for i in range(16):
        a.e(f"s_waitcnt vmcnt({15-i})")
        for ct in range(2):
            mfma(a, AC3 + 16 * ct, WF3 + 8 * i + 4 * ct, OF3 + 4 * i, "0" if i == 0 else AC3 + 16 * ct)
    a.e(f"s_lshl_b32 s{sT2}, s{sTQ}, 15")
    a.e(f"s_lshl_b32 s{sT3x}, s{sQ}, 11")
    a.e(f"s_add_u32 s{sT3x}, s{sT3x}, s{sT2}")
    a.e(f"v_add_u32 v1, s{sT3x}, v{vL16}")
    a.e(f"s_lshl_b32 s{sT3x}, s{sQ}, 13")
    a.e(f"s_add_u32 s{sT3x}, s{sT3x}, s{sT2}")
    a.e(f"v_add_u32 v2, s{sT3x}, v{vL16}")
    a.e("s_nop 7"); a.e("s_nop 1")
    for i in range(32): a.e(f"v_mul_f32 v{AC3+i}, v{AC3+i}, v3")
    for qq in range(4):
        for hf in range(2):
            a.e(f"ds_write_b128 v1, {vr(AC3+8*qq+4*hf,4)} offset:{LDS_RB+qq*8192+hf*1024}")
    a.e("s_waitcnt lgkmcnt(0)")
    a.e("s_barrier")
    R = 144
    for src in range(4):
        for hf in range(2):
            a.e(f"ds_read_b128 {vr(R+8*src+4*hf,4)}, v2 offset:{LDS_RB+src*2048+hf*1024}")
    a.e(f"v_and_b32 v4, 31, v0")
    a.e(f"v_lshlrev_b32 v4, 10, v4")
    a.e(f"v_lshrrev_b32 v5, 5, v0")
    a.e(f"v_lshl_add_u32 v4, v5, 4, v4")
    a.e(f"s_lshl_b32 s{sT2}, s{sTT}, 15")
    a.e(f"s_lshl_b32 s{sT3x}, s{sN3}, 7")
    a.e(f"s_add_u32 s{sT2}, s{sT2}, s{sT3x}")
    a.e(f"s_lshl_b32 s{sT3x}, s{sQ}, 5")
    a.e(f"s_add_u32 s{sT2}, s{sT2}, s{sT3x}")
    a.e("s_waitcnt lgkmcnt(4)")
    for i in range(8): a.e(f"v_add_f32 v{R+i}, v{R+i}, v{R+8+i}")
    a.e("s_waitcnt lgkmcnt(0)")
    for i in range(8): a.e(f"v_add_f32 v{R+16+i}, v{R+16+i}, v{R+24+i}")
    for i in range(8): a.e(f"v_add_f32 v{R+i}, v{R+i}, v{R+16+i}")
    for i in range(4): a.e(cvt(R + 32 + i, R + 2 * i, R + 2 * i + 1))
    a.e("s_nop 1")
    a.e(f"v_permlane32_swap_b32 v{R+32}, v{R+34}")
    a.e(f"v_permlane32_swap_b32 v{R+33}, v{R+35}")
    a.e(f"buffer_store_dwordx4 {vr(R+32,4)}, v4, {srd(S_OUT)}, s{sT2} offen")
    if STAMPS:
        stamp("end")
        n = nst[0]
        a.e(f"s_lshl_b32 s{sT2}, s2, 3")
        a.e(f"s_add_u32 s{sT2}, s{sT2}, s{sW}")
        a.e(f"s_lshl_b32 s{sT2}, s{sT2}, 6")
        a.e(f"s_add_u32 s{sT2}, s{sT2}, {WS_STAMP}")
        a.e("v_mov_b32 v13, 0")
        a.e("s_mov_b64 exec, 1")
        for i in range(n):
            a.e(f"v_mov_b32 v14, s{STREG[i]}")
            a.e(f"buffer_store_dword v14, v13, {srd(S_WS)}, s{sT2} offen offset:{4*i}")
            a.e("s_nop 0")
        a.e("s_mov_b64 exec, -1")
    a.e("s_waitcnt vmcnt(0)")
    a.lab("L_END")
    a.e("s_endpgm")
    a.lab("L_CODE_END")
    return a

def fallback(a, opt, R):
    SS, PP, KF, VF, MK, OA, QF, vK, vV, vL16, HT = (R[k] for k in "SS PP KF VF MK OA QF vK vV vL16 HT".split())
    TQ = HT
    TM = HT + 4
    TB = HT + 5
    TO = HT + 8
    TV = HT + 24
    TC = HT + 32
    S = SS
    sHH, sPASS, sPART, sTILE, sN = sH, 40, 41, 42, 43
    assert not opt.stamps or True
    a.c("==== fallback: true max ====")
    a.e(f"s_mov_b32 s{sHH}, 0")
    a.lab("L_FB_H")
    a.e(f"s_lshr_b32 s{sT2}, s{sFAIL}, s{sHH}")
    a.e(f"s_and_b32 s{sT2}, s{sT2}, 1")
    a.e(f"s_cmp_eq_u32 s{sT2}, 0")
    a.e("s_cbranch_scc1 L_FB_NEXT")
    a.e(f"s_cmp_eq_u32 s{sHH}, 0")
    a.e("s_cbranch_scc0 L_FB_Q1")
    for i in range(4): a.e(f"v_mov_b32 v{TQ+i}, v{QF+i}")
    a.e("s_branch L_FB_Q2")
    a.lab("L_FB_Q1")
    for i in range(4): a.e(f"v_mov_b32 v{TQ+i}, v{QF+4+i}")
    a.lab("L_FB_Q2")
    a.e(f"v_mov_b32 v{TM}, 0xff800000")
    for i in range(16): a.e(f"v_mov_b32 v{TO+i}, 0")
    for i in range(8): a.e(f"v_mov_b32 v{TV+i}, 0x3f803f80")
    a.e(f"s_mov_b32 s{sPASS}, 0")
    a.lab("L_FB_PASS")
    a.e(f"s_mov_b32 s{sPART}, 0")
    a.lab("L_FB_PART")
    a.e(f"s_cmp_eq_u32 s{sPART}, 0")
    a.e(f"s_cselect_b32 s{sTILE}, 0, s{sTAU}")
    a.e(f"s_cselect_b32 s{sN}, s{sTAU}, 7")
    a.lab("L_FB_TILE")
    a.e(f"s_cmp_eq_u32 s{sTILE}, s{sTAU}")
    a.e("s_cbranch_scc1 L_FB_MASK")
    for i in range(16): a.e(f"v_mov_b32 v{TC+i}, 0")
    a.e("s_branch L_FB_C")
    a.lab("L_FB_MASK")
    a.e(f"v_and_b32 v13, 31, v0")
    a.e(f"v_lshrrev_b32 v14, 5, v0")
    a.e(f"v_lshlrev_b32 v14, 2, v14")
    a.e(f"v_sub_u32 v13, v13, v14")
    a.e(f"s_cmp_eq_u32 s{sPART}, 0")
    a.e(f"s_cselect_b32 s{sT2}, 0, 0xff800000")
    for r in range(16):
        kk = (r & 3) + 8 * (r >> 2)
        a.e(f"v_subrev_u32 v{TC+r}, {kk}, v13")
        a.e(f"v_ashrrev_i32 v{TC+r}, 31, v{TC+r}")
        a.e(f"v_and_b32 v{TC+r}, 0xff800000, v{TC+r}")
        a.e(f"v_xor_b32 v{TC+r}, s{sT2}, v{TC+r}")
    a.lab("L_FB_C")
    a.e(f"s_lshl_b32 s{sT2}, s{sTILE}, 13")
    a.e(f"s_lshl_b32 s{sT3x}, s{sPART}, 12")
    a.e(f"s_add_u32 s{sT2}, s{sT2}, s{sT3x}")
    a.e(f"s_lshl_b32 s{sT3x}, s{sHH}, 10")
    a.e(f"s_add_u32 s{sT3x}, s{sT3x}, s{sT2}")
    a.e(f"v_add_u32 v13, s{sT3x}, v{vL16}")
    a.e(f"s_lshl_b32 s{sT3x}, s{sHH}, 8")
    a.e(f"s_add_u32 s{sT3x}, s{sT3x}, s{sT2}")
    a.e(f"v_and_b32 v14, 15, v0")
    a.e(f"v_lshrrev_b32 v15, 5, v0")
    a.e(f"v_lshlrev_b32 v15, 5, v15")
    a.e(f"v_add_u32 v14, v14, v15")
    a.e(f"v_lshlrev_b32 v14, 4, v14")
    a.e(f"v_add_u32 v14, s{sT3x}, v14")
    a.e(f"ds_read_b128 {vr(KF,4)}, v13")
    a.e(f"s_mov_b64 exec, s[{sVM}:{sVM+1}]")
    a.e(f"ds_read_b128 {vr(TV,4)}, v14 offset:2048")
    a.e(f"ds_read_b128 {vr(TV+4,4)}, v14 offset:3072")
    a.e("s_mov_b64 exec, -1")
    a.e("s_waitcnt lgkmcnt(0)")
    mfma(a, S, KF, TQ, TC)
    a.e("s_nop 7"); a.e("s_nop 7")
    a.e(f"s_cmp_eq_u32 s{sPASS}, 0")
    a.e("s_cbranch_scc0 L_FB_P2")
    for i in range(8): a.e(f"v_max3_f32 v{TM}, v{TM}, v{S+2*i}, v{S+2*i+1}")
    a.e("s_branch L_FB_TNEXT")
    a.lab("L_FB_P2")
    for i in range(16): a.e(f"v_sub_f32 v{S+i}, v{S+i}, v{TM}")
    for i in range(16): a.e(f"v_exp_f32 v{S+i}, v{S+i}")
    a.e("s_nop 0")
    for i in range(8): a.e(f"v_cvt_pk_bf16_f32 v{PP+i}, v{S+2*i}, v{S+2*i+1}")
    a.e("s_nop 1")
    mfma(a, TO, TV, PP, TO)
    mfma(a, TO, TV + 4, PP + 4, TO)
    a.e("s_nop 7"); a.e("s_nop 7")
    a.lab("L_FB_TNEXT")
    a.e(f"s_add_u32 s{sTILE}, s{sTILE}, 1")
    a.e(f"s_cmp_le_u32 s{sTILE}, s{sN}")
    a.e("s_cbranch_scc1 L_FB_TILE")
    a.e(f"s_cmp_eq_u32 s{sC}, 0")
    a.e("s_cbranch_scc1 L_FB_PDONE")
    a.e(f"s_add_u32 s{sPART}, s{sPART}, 1")
    a.e(f"s_cmp_lt_u32 s{sPART}, 2")
    a.e("s_cbranch_scc1 L_FB_PART")
    a.lab("L_FB_PDONE")
    a.e(f"s_cmp_eq_u32 s{sPASS}, 0")
    a.e("s_cbranch_scc0 L_FB_STORE")
    a.e(f"v_mov_b32 v{TB}, v{TM}")
    a.e("s_nop 1")
    a.e(f"v_permlane32_swap_b32 v{TM}, v{TB}")
    a.e("s_nop 1")
    a.e(f"v_max_f32 v{TM}, v{TM}, v{TB}")
    a.e(f"s_mov_b32 s{sPASS}, 1")
    a.e("s_branch L_FB_PASS")
    a.lab("L_FB_STORE")
    a.e(f"s_cmp_eq_u32 s{sHH}, 0")
    a.e("s_cbranch_scc0 L_FB_S1")
    for i in range(16): a.e(f"v_mov_b32 v{OA+i}, v{TO+i}")
    a.e("s_branch L_FB_NEXT")
    a.lab("L_FB_S1")
    for i in range(16): a.e(f"v_mov_b32 v{OA+16+i}, v{TO+i}")
    a.lab("L_FB_NEXT")
    a.e(f"s_add_u32 s{sHH}, s{sHH}, 1")
    a.e(f"s_cmp_lt_u32 s{sHH}, 2")
    a.e("s_cbranch_scc1 L_FB_H")

def build(opt):
    opt.stamp_names = []
    a = gen(opt)
    hdr = []
    hdr.append(f"; @launch grid=(256,1,1) block=(512,1,1) lds={LDS_TOTAL}")
    hdr.append('.amdgcn_target "amdgcn-amd-amdhsa--gfx950"')
    hdr.append(".text")
    hdr.append(f".globl {KNAME}")
    hdr.append(".p2align 8")
    hdr.append(f".type {KNAME},@function")
    tail = f""".section .rodata,"a"
.p2align 6
.amdhsa_kernel {KNAME}
  .amdhsa_next_free_vgpr 256
  .amdhsa_next_free_sgpr 102
  .amdhsa_accum_offset 256
  .amdhsa_group_segment_fixed_size 0
  .amdhsa_kernarg_size 80
  .amdhsa_user_sgpr_count 2
  .amdhsa_user_sgpr_kernarg_segment_ptr 1
  .amdhsa_system_sgpr_workgroup_id_x 1
  .amdhsa_float_denorm_mode_32 3
.end_amdhsa_kernel
"""
    return "\n".join(hdr) + "\n" + a.text() + tail

def parse(argv=None):
    p = argparse.ArgumentParser()
    p.add_argument("-o", default="gated_mix__sliding_block__sliding_block__prompt.s")
    p.add_argument("--nqa", type=int, default=0)
    p.add_argument("--stamps", type=int, default=0)
    p.add_argument("--codepf", type=int, default=1)
    p.add_argument("--xpf", type=int, default=1)
    p.add_argument("--wopf", type=int, default=1)
    p.add_argument("--fallback", type=int, default=1)
    p.add_argument("--spin", type=int, default=20000)
    return p.parse_args(argv)

if __name__ == "__main__":
    opt = parse()
    s = build(opt)
    open(opt.o, "w").write(s)
    if opt.stamps:
        open(opt.o + ".stamps", "w").write("\n".join(opt.stamp_names))
    print("wrote", opt.o, len(s), "bytes")
```

```python
import sys, argparse, math, struct

KNAME = "gated_mix__sliding_block__sliding_block__prompt_kernel"

WS_NONCE = 0
WS_OF = 0x1000
WS_KVF = 0x4000
WS_KV = 0x100000
WS_O = 0x1000000
WS_STAMP = 0x1800000
WS_SIZE = 0x2000000

REG = 12288
LDS_W = 8 * REG
WPART = 24576
LDS_TOTAL = 163840
LDS_A0, LDS_A1 = 98304, 131072
LDS_GATE = 4096
LDS_RB = 98304

S_X, S_W, S_WOA, S_WOB, S_WS, S_OUT, S_GW, S_DBG = 8, 12, 16, 20, 24, 28, 32, 36
sW, sTAU, sC, sBH, sBR, sHG, sTT, sT3, sN3, sTAG, sJ = 60, 61, 62, 63, 64, 65, 66, 67, 68, 69, 70
sT0, sT1, sT2, sT3x, sT4, sT5 = 71, 72, 73, 74, 75, 76
sCNT, sSPIN, sFAIL = 77, 80, 81
sVM = 78
sKVO = 82
sH = 83
STREG = list(range(84, 98)) + [3, 6, 7, 46, 47]
sTM = 98
sXB, sWG, sWL = 40, 41, 42

def srd(b): return f"s[{b}:{b+3}]"
def vr(b, n=1): return f"v{b}" if n == 1 else f"v[{b}:{b+n-1}]"

class Asm:
    def __init__(self):
        self.lines = []; self.vm = []; self.lg = []
    def e(self, s): self.lines.append("  " + s)
    def c(self, s): self.lines.append("  ; " + s)
    def lab(self, s): self.lines.append(s + ":")
    def vmop(self, s, tag): self.e(s); self.vm.append(tag)
    def lgop(self, s, tag): self.e(s); self.lg.append(tag)
    def _n(self, q, tag, mx):
        idx = max(i for i, t in enumerate(q) if t == tag)
        return min(len(q) - 1 - idx, mx)
    def vmwait(self, tag):
        if tag not in self.vm: return
        n = self._n(self.vm, tag, 63)
        self.e(f"s_waitcnt vmcnt({n})")
        self.vm = self.vm[len(self.vm) - n:] if n > 0 else []
    def lgwait(self, tag):
        if tag not in self.lg: return
        n = self._n(self.lg, tag, 15)
        self.e(f"s_waitcnt lgkmcnt({n})")
        self.lg = self.lg[len(self.lg) - n:] if n > 0 else []
    def vmall(self): self.e("s_waitcnt vmcnt(0)"); self.vm = []
    def lgall(self): self.e("s_waitcnt lgkmcnt(0)"); self.lg = []
    def text(self): return "\n".join(self.lines) + "\n"

def f32bits(x): return struct.unpack("<I", struct.pack("<f", x))[0]
def mfma_s(D, A, B, C):
    cs = C if isinstance(C, str) else vr(C, 16)
    return f"v_mfma_f32_32x32x16_bf16 {vr(D,16)}, {vr(A,4)}, {vr(B,4)}, {cs}"
def cvt(dst, s0, s1): return f"v_cvt_pk_bf16_f32 v{dst}, v{s0}, v{s1}"

def gen(opt):
    a = Asm()
    e = a.e
    mfma = lambda D, A, B, C: e(mfma_s(D, A, B, C))
    STAMPS = opt.stamps
    nst = [0]
    def stamp(name):
        if not STAMPS: return
        if STAMPS == 3 and name in ("own done", "B2", "attn done", "O published", "B3", "B4", "O flags seen", "P3 mfma", "roleA", "roleB"): return
        if STAMPS == 2 and name in ("own done", "B2", "attn done", "O published", "B3", "B4", "O flags seen", "P3 mfma"): return
        if name in opt.stamp_names:
            i = opt.stamp_names.index(name)
            e("s_waitcnt lgkmcnt(0)")
            e(f"{'s_memtime' if opt.cyc else 's_memrealtime'} s[{sTM}:{sTM+1}]")
            e("s_waitcnt lgkmcnt(0)")
            e(f"s_mov_b32 s{STREG[i]}, s{sTM}")
            return
        i = nst[0]; nst[0] += 1
        assert i < len(STREG)
        a.c(f"stamp {i}: {name}")
        e("s_waitcnt lgkmcnt(0)"); a.lg = []
        e(f"{'s_memtime' if opt.cyc else 's_memrealtime'} s[{sTM}:{sTM+1}]")
        e("s_waitcnt lgkmcnt(0)")
        e(f"s_mov_b32 s{STREG[i]}, s{sTM}")
        opt.stamp_names.append(name)

    vXO = 1; vXR = 5; vWO = 9; vWR = 10; vL16 = 12
    XF = 16
    WF = 48
    AQ, AK, AV = 84, 100, 116
    TK = 132
    def XFr(kc, s): return XF + 16 * (kc & 1) + 4 * s
    def WFr(t, m): return WF + 12 * (t % 3) + 4 * m
    OA = 216; QF = 248; MK = 160; VF = 176
    SS = 16; PP = 48; KF = 56; HT = 64
    vK = 1
    vD = 150
    GX = 128
    GW = 192

    a.lab(KNAME)
    e("s_cmp_ge_u32 s2, 256")
    e("s_cbranch_scc1 L_END")
    if STAMPS:
        e("s_memtime s[100:101]")
        stamp("entry")
    e("s_getpc_b64 s[4:5]")
    a.lab("L_PC")
    e("s_load_dwordx4 s[40:43], s[0:1], 0")
    e("s_load_dwordx4 s[48:51], s[0:1], 32")
    e("v_lshlrev_b32 v13, 6, v0")
    e("s_load_dwordx2 s[44:45], s[0:1], 16")
    e("s_load_dwordx4 s[52:55], s[0:1], 48")
    e("s_load_dwordx4 s[56:59], s[0:1], 64")
    e("v_min_u32 v13, L_CODE_END-L_PC-4, v13")
    if opt.codepf:
        a.vmop(f"global_load_dword v{TK+3}, v13, s[4:5]", "pfc")
    e("v_lshrrev_b32 v15, 6, v0")
    e("v_and_b32 v0, 63, v0")
    e(f"s_and_b32 s{sT0}, s2, 7")
    e(f"v_readfirstlane_b32 s{sW}, v15")
    e(f"s_lshr_b32 s{sJ}, s2, 3")
    e(f"s_and_b32 s{sT1}, s{sT0}, 1")
    e(f"s_lshl_b32 s{sT1}, s{sT1}, 2")
    e(f"s_and_b32 s{sT2}, s{sJ}, 3")
    e(f"s_add_u32 s{sC}, s{sT1}, s{sT2}")
    e(f"s_lshr_b32 s{sT1}, s{sT0}, 1")
    e(f"s_lshl_b32 s{sT1}, s{sT1}, 3")
    e(f"s_lshr_b32 s{sN3}, s{sJ}, 2")
    e(f"s_add_u32 s{sBH}, s{sT1}, s{sN3}")
    e(f"s_lshr_b32 s{sBR}, s{sBH}, 4")
    e(f"s_and_b32 s{sHG}, s{sBH}, 15")
    e(f"s_lshl_b32 s{sT3}, s{sT0}, 2")
    e(f"s_add_u32 s{sT3}, s{sT3}, s{sT2}")
    e(f"s_sub_u32 s{sT1}, 11, s{sW}")
    e(f"s_cmp_lt_u32 s{sW}, 4")
    e(f"s_cselect_b32 s{sTAU}, s{sW}, s{sT1}")
    e(f"s_lshl_b32 s{sTT}, s{sC}, 3")
    e(f"s_add_u32 s{sTT}, s{sTT}, s{sTAU}")
    e(f"v_lshlrev_b32 v{vL16}, 4, v0")
    e(f"v_lshrrev_b32 v13, 2, v0")
    e(f"v_mul_u32_u24 v13, 3072, v13")
    e(f"v_and_b32 v15, 3, v0")
    e(f"v_lshl_add_u32 v13, v15, 4, v13")
    e(f"s_lshl_b32 s{sT1}, s{sHG}, 6")
    e(f"v_add_u32 v{vWO}, s{sT1}, v13")
    e(f"v_lshrrev_b32 v13, 3, v0")
    e(f"v_lshlrev_b32 v13, 10, v13")
    e(f"s_lshl_b32 s{sT1}, s{sTT}, 15")
    e(f"v_add_u32 v13, s{sT1}, v13")
    e(f"v_lshrrev_b32 v15, 4, v0")
    e(f"v_xor_b32 v15, v15, v0")
    e(f"v_and_b32 v15, 7, v15")
    e(f"v_lshl_add_u32 v{vXO}, v15, 4, v13")
    e(f"v_xor_b32 v{vXO+1}, 64, v{vXO}")
    e(f"v_add_u32 v{vXO+2}, 14336, v{vXO}")
    e(f"v_add_u32 v{vXO+3}, 21504, v{vXO+1}")
    e(f"v_add_u32 v{vXO+1}, 7168, v{vXO+1}")
    SXB, SWG, SWL = sT4, sT5, sH
    sP0, sXK, sWP = 52, 53, 54
    e(f"s_mul_i32 s{SXB}, s{sTAU}, {REG}")
    e(f"s_mul_i32 s{SWG}, s{sW}, {16*3072}")
    e(f"s_lshl_b32 s{SWL}, s{sW}, 10")
    e(f"s_add_u32 s{SWL}, s{SWL}, {LDS_W}")
    e(f"s_and_b32 s{sT1}, s{sJ}, 3")
    e(f"s_add_u32 s{sT1}, s{sT1}, s{sN3}")
    e(f"s_and_b32 s{sT0}, s{sT1}, {3 if opt.rot else 0}")
    if opt.stamps == 3: stamp("pre-karg")
    e("s_waitcnt lgkmcnt(0)")
    if opt.stamps == 3: stamp("karg")
    def mk(b, lo, hi, size):
        e(f"s_mov_b32 s{b}, s{lo}"); e(f"s_mov_b32 s{b+1}, s{hi}")
        e(f"s_mov_b32 s{b+2}, {size}"); e(f"s_mov_b32 s{b+3}, 0x00020000")
    e(f"s_cmp_eq_u32 s{sBR}, 0")
    e(f"s_cselect_b32 s{S_W}, s42, s48")
    e(f"s_cselect_b32 s{S_W+1}, s43, s49")
    e(f"s_mov_b32 s{S_W+2}, 1572864"); e(f"s_mov_b32 s{S_W+3}, 0x00020000")
    mk(S_X, 40, 41, 2097152)
    mk(S_OUT, 54, 55, 2097152)
    mk(S_GW, 52, 53, 1024)
    e(f"s_mov_b32 s{sP0}, s{sT0}")
    e(f"s_mul_i32 s{sWP}, s{sP0}, {128*3072}")
    e(f"s_add_u32 s{sWP}, s{sWP}, s{SWG}")
    e(f"s_lshl_b32 s{sXK}, s{sP0}, 8")
    MCOL = {0: 1, 1: 2, 2: 0}
    def w_items(lp):
        it = []
        for m in range(3):
            pre = []
            if m == 0 and lp > 0:
                pre += [f"s_add_u32 s{sWP}, s{sP0}, {lp}", f"s_and_b32 s{sWP}, s{sWP}, 3",
                        f"s_mul_i32 s{sWP}, s{sWP}, {128*3072}", f"s_add_u32 s{sWP}, s{sWP}, s{SWG}"]
            pre += [f"s_add_u32 s{sT3x}, s{sWP}, {MCOL[m]*1024}",
                    f"s_add_u32 m0, s{SWL}, {(lp&1)*WPART + m*8192}"]
            it.append((pre, f"buffer_load_dwordx4 v{vWO}, {srd(S_W)}, s{sT3x} offen lds", f"w{lp}"))
        return it
    def x_items(lc):
        it = []
        for i in range(4):
            pre = []
            if i == 0 and lc > 0:
                pre += [f"s_add_u32 s{sXK}, s{sXK}, 128", f"s_and_b32 s{sXK}, s{sXK}, 1023"]
            pre += [f"s_add_u32 m0, s{SXB}, {(lc%3)*4096}"]
            it.append((pre, f"buffer_load_dwordx4 v{vXO+i}, {srd(S_X)}, s{sXK} offen offset:{i*1024} lds", f"x{lc}"))
        return it
    def issue(item):
        pre, ld, tag = item
        for l in pre: e(l)
        e("s_nop 0")
        a.vmop(ld, tag)
    if opt.pf:
        e(f"s_cmp_ge_u32 s{sW}, 4")
        e("s_cbranch_scc1 L_PF_W")
        e(f"s_lshl_b32 s{sT1}, s{sC}, 18")
        e(f"s_lshl_b32 s{sT2}, s{sW}, 16")
        e(f"s_add_u32 s{sT1}, s{sT1}, s{sT2}")
        e(f"s_lshl_b32 s{sT2}, s{sN3}, 7")
        e(f"s_add_u32 s{sT1}, s{sT1}, s{sT2}")
        e(f"v_lshlrev_b32 v15, 10, v0")
        e(f"buffer_load_dword v149, v15, {srd(S_X)}, s{sT1} offen")
        e("s_branch L_PF_E")
        a.lab("L_PF_W")
        e(f"s_cmp_ge_u32 s{sW}, 7")
        e("s_cbranch_scc1 L_PF_E")
        e(f"s_mul_i32 s{sT1}, s{sJ}, {16*3072}")
        e(f"s_sub_u32 s{sT2}, s{sW}, 4")
        e(f"s_lshl_b32 s{sT2}, s{sT2}, 10")
        e(f"s_add_u32 s{sT1}, s{sT1}, s{sT2}")
        e(f"s_and_b32 s{sT2}, s{sHG}, 8")
        e(f"s_lshl_b32 s{sT2}, s{sT2}, 6")
        e(f"s_add_u32 s{sT1}, s{sT1}, s{sT2}")
        e(f"v_lshrrev_b32 v13, 2, v0")
        e(f"v_mul_u32_u24 v13, 3072, v13")
        e(f"v_and_b32 v15, 3, v0")
        e(f"v_lshl_add_u32 v15, v15, 7, v13")
        e(f"buffer_load_dword v149, v15, {srd(S_W)}, s{sT1} offen")
        a.lab("L_PF_E")
    for it in w_items(0) + x_items(0): issue(it)
    if opt.stamps == 3: stamp("dma0")
    if opt.bar0: e("s_barrier")
    for it in x_items(1): issue(it)
    if opt.stamps == 3: stamp("dma1")
    mk(S_WS, 58, 59, WS_SIZE)
    mk(S_DBG, 56, 57, 256)
    e(f"s_or_b32 s{sT1}, s2, s{sW}")
    e(f"s_cmp_lg_u32 s{sT1}, 0")
    e("s_cbranch_scc1 L_NONCE_SKIP0")
    e(f"v_mov_b32 v13, 0")
    e(f"buffer_load_dword v14, v13, {srd(S_WS)}, 0 offen sc1")
    a.lab("L_NONCE_SKIP0")
    mk(S_WOA, 44, 45, 524288)
    mk(S_WOB, 50, 51, 524288)
    e(f"s_mov_b32 s{sVM}, 0x0000ffff")
    e(f"s_mov_b32 s{sVM+1}, 0x0000ffff")
    e(f"s_mov_b32 s{sFAIL}, 0")
    e(f"v_and_b32 v13, 31, v0")
    e(f"v_lshrrev_b32 v15, 5, v0")
    e(f"v_bfe_u32 v{vXR+1}, v13, 1, 3")
    e(f"v_xor_b32 v15, v15, v{vXR+1}")
    e(f"v_lshlrev_b32 v15, 4, v15")
    e(f"v_lshl_add_u32 v15, v13, 7, v15")
    e(f"v_add_u32 v{vXR}, s{SXB}, v15")
    for s in range(1, 4):
        e(f"v_xor_b32 v{vXR+s}, {s<<5}, v{vXR}")
    e(f"v_lshrrev_b32 v13, 5, v0")
    e(f"v_lshlrev_b32 v13, 9, v13")
    e(f"v_bfe_u32 v15, v0, 2, 2")
    e(f"v_lshl_add_u32 v13, v15, 6, v13")
    e(f"v_bfe_u32 v15, v0, 4, 1")
    e(f"v_lshl_add_u32 v13, v15, 5, v13")
    e(f"v_and_b32 v15, 3, v0")
    e(f"v_lshl_add_u32 v13, v15, 3, v13")
    e(f"v_add_u32 v{vWR}, {LDS_W}, v13")
    initq = []
    initq += [f"v_and_b32 v{vD}, 31, v0", f"v_lshrrev_b32 v{vD+1}, 5, v0", f"v_lshlrev_b32 v{vD+1}, 2, v{vD+1}", f"v_sub_u32 v{vD}, v{vD}, v{vD+1}"]
    for r in range(16):
        kk = (r & 3) + 8 * (r >> 2)
        initq += [f"v_subrev_u32 v{MK+r}, {kk}, v{vD}", f"v_ashrrev_i32 v{MK+r}, 31, v{MK+r}", f"v_and_b32 v{MK+r}, 0xff800000, v{MK+r}"]
    initq += [f"v_mov_b32 v{OA+i}, 0" for i in range(32)]
    initq += [f"v_mov_b32 v{VF+i}, 0x3f803f80" for i in range(16)]
    stamp("issued")
    def xread1(kc, s):
        a.lgop(f"ds_read_b128 {vr(XFr(kc,s),4)}, v{vXR+s} offset:{(kc%3)*4096}", f"xr{kc}_{s}")
    def wread1(t, m, u):
        p = t >> 3; tt = t & 7
        a.lgop(f"ds_read_b64_tr_b16 {vr(WFr(t,m)+2*u,2)}, v{vWR} offset:{(p&1)*WPART+m*8192+tt*1024+u*256}", f"wf{t}")
    def wread(t):
        for m in range(3):
            for u in range(2): wread1(t, m, u)
    a.vmwait("w0")
    e("s_barrier")
    wread(0); wread(1)
    a.vmwait("x0")
    stamp("first data")
    for s_ in range(4): xread1(0, s_)
    e(f"s_or_b32 s{sT1}, s2, s{sW}")
    e(f"s_cmp_lg_u32 s{sT1}, 0")
    e("s_cbranch_scc1 L_NONCE_SKIP1")
    e("s_waitcnt vmcnt(0)")
    e(f"v_readfirstlane_b32 s{sT2}, v14")
    e(f"v_mov_b32 v13, 0")
    e("s_nop 3")
    e(f"s_add_u32 s{sT2}, s{sT2}, 1")
    e(f"s_max_u32 s{sT2}, s{sT2}, 1")
    e(f"v_mov_b32 v14, s{sT2}")
    e(f"buffer_store_dword v14, v13, {srd(S_DBG)}, 0 offen sc1")
    e(f"buffer_store_dword v14, v13, {srd(S_WS)}, 0 offen sc1")
    a.lab("L_NONCE_SKIP1")
    queue = []
    for (avail, items) in [(0, x_items(2)), (0, w_items(1)), (0, x_items(3)), (5, x_items(4)), (6, w_items(2)),
                           (7, x_items(5)), (11, x_items(6)), (14, w_items(3)), (15, x_items(7))]:
        for it in items: queue.append((avail, it))
    issued = 0
    pace = opt.pace
    for t in range(32):
        kc, s_ = t >> 2, t & 3
        if opt.stamps == 2 and t in (4, 8, 12, 16, 20, 24, 28): stamp(f"t{t}")
        if t in (6, 14, 22):
            p1 = (t + 2) // 8
            a.lgall()
            a.vmwait(f"w{p1}")
            e("s_barrier")
        xs0 = 2 if kc == 0 else 0
        if s_ == xs0 and kc + 1 <= 7:
            a.vmwait(f"x{kc+1}")
        a.lgwait(f"wf{t}")
        a.lgwait(f"xr{kc}_{s_}")
        if s_ == 3 and 1 <= kc <= 6:
            a.lgwait(f"xr{kc+1}_3")
        if t == 5:
            a.lgwait("xr1_3")
        if t == 0:
            a.lgwait("xr0_3")
        want = min(len(queue), int(round(pace * (t + 1))) - issued) if True else 0
        items = []
        while want > 0 and queue and queue[0][0] <= t:
            items.append(queue.pop(0)[1]); want -= 1; issued += 1
        xf = XFr(kc, s_)
        C = (lambda r: "0") if t == 0 else (lambda r: r)
        R = [(t + 2, m, u) for m in range(3) for u in range(2)] if t + 2 < 32 else []
        X = []
        if kc + 1 <= 7 and s_ in (xs0, xs0 + 1): X = [(kc + 1, 2 * (s_ - xs0)), (kc + 1, 2 * (s_ - xs0) + 1)]
        def dma(k):
            if k < len(items):
                pre, ld, tag = items[k]
                if opt.dbg == 1: return
                a.vmop(ld, tag)
        def dma_pre(k):
            if k < len(items):
                for l in items[k][0]: e(l)
        if opt.dbg == 2:
            _m = mfma
            mfma = lambda *x: None
        dma_pre(0)
        mfma(AK, WFr(t, 0), xf, C(AK))
        dma(0)
        for r in R[0:3]: wread1(*r)
        dma_pre(1)
        mfma(AV, xf, WFr(t, 1), C(AV))
        dma(1)
        for r in R[3:6]: wread1(*r)
        dma_pre(2)
        mfma(AQ, WFr(t, 2), xf, C(AQ))
        dma(2)
        if t >= 2:
            for _ in range(4):
                if initq: e(initq.pop(0))
        for x in X: xread1(*x)
        if opt.dbg == 2: mfma = _m
        for k in range(3, len(items)):
            dma_pre(k); e("s_nop 0"); dma(k)
        if not queue and issued < 1000:
            issued = 1000
            e(f"v_mov_b32 v13, 0")
            a.vmop(f"buffer_load_dword v14, v13, {srd(S_DBG)}, 0 offen sc1", "tag")
            if opt.wopf:
                e(f"s_and_b32 s{sT2}, s{sJ}, 15")
                e(f"s_lshl_b32 s{sT2}, s{sT2}, 15")
                e(f"s_lshl_b32 s{sT3x}, s{sW}, 12")
                e(f"s_add_u32 s{sT2}, s{sT2}, s{sT3x}")
                e(f"v_lshlrev_b32 v15, 6, v0")
                e(f"s_cmp_lt_u32 s{sJ}, 16")
                e("s_cbranch_scc1 L_WOPF_A")
                e(f"buffer_load_dword v148, v15, {srd(S_WOB)}, s{sT2} offen")
                e("s_branch L_WOPF_E")
                a.lab("L_WOPF_A")
                e(f"buffer_load_dword v148, v15, {srd(S_WOA)}, s{sT2} offen")
                a.lab("L_WOPF_E")
                a.vm.append("wopf")
    assert not queue
    while initq: e(initq.pop(0))
    stamp("gemm done")
    e(f"s_lshl_b32 s{sKVO}, s{sBH}, 6")
    e(f"s_add_u32 s{sKVO}, s{sKVO}, s{sTT}")
    e(f"s_lshl_b32 s{sKVO}, s{sKVO}, 12")
    e(f"s_add_u32 s{sKVO}, s{sKVO}, {WS_KV}")
    e(f"v_add_u32 v{vK}, s{SXB}, v{vL16}")
    cq = 0.25 * math.log2(math.e)
    e(f"s_mov_b32 s{sT2}, {hex(f32bits(cq))}")
    e("s_nop 3")
    for i in range(8): e(cvt(TK + i, AK + 2 * i, AK + 2 * i + 1))
    for i in range(2):
        a.vmop(f"buffer_store_dwordx4 {vr(TK+4*i,4)}, v{vL16}, {srd(S_WS)}, s{sKVO} offen offset:{i*1024} sc1", "kvs")
    for i in range(8): e(cvt(TK + 8 + i, AV + 2 * i, AV + 2 * i + 1))
    for i in range(2, 4):
        a.vmop(f"buffer_store_dwordx4 {vr(TK+4*i,4)}, v{vL16}, {srd(S_WS)}, s{sKVO} offen offset:{i*1024} sc1", "kvs")
    for i in range(4):
        a.lgop(f"ds_write_b128 v{vK}, {vr(TK+4*i,4)} offset:{i*1024}", "kvw")
    for i in range(16): e(f"v_mul_f32 v{AQ+i}, s{sT2}, v{AQ+i}")
    for i in range(8): e(cvt(QF + i, AQ + 2 * i, AQ + 2 * i + 1))
    a.vmwait("tag")
    e(f"v_readfirstlane_b32 s{sTAG}, v14")
    e(f"s_lshl_b32 s{sKVO}, s{sC}, 5")
    e(f"s_add_u32 s{sKVO}, s{sKVO}, s{sBH}")
    e(f"s_lshl_b32 s{sKVO}, s{sKVO}, 7")
    e(f"s_lshl_b32 s{sT3x}, s{sTAU}, 2")
    e(f"s_add_u32 s{sKVO}, s{sKVO}, s{sT3x}")
    e(f"s_add_u32 s{sKVO}, s{sKVO}, {WS_KVF}")
    e(f"s_mov_b32 s{sSPIN}, 0")
    a.lab("L_TAG_LOOP")
    e(f"s_cmp_lg_u32 s{sTAG}, 0")
    e("s_cbranch_scc1 L_TAG_OK")
    e(f"s_add_u32 s{sSPIN}, s{sSPIN}, 1")
    e(f"s_cmp_gt_u32 s{sSPIN}, {opt.spin}")
    e("s_cbranch_scc1 L_TAG_OK")
    e(f"v_mov_b32 v15, 0")
    e(f"buffer_load_dword v14, v15, {srd(S_DBG)}, 0 offen sc1")
    e("s_waitcnt vmcnt(0)")
    e(f"v_readfirstlane_b32 s{sTAG}, v14")
    e("s_nop 3")
    e("s_branch L_TAG_LOOP")
    a.lab("L_TAG_OK")
    a.lgall()
    e("s_barrier")
    stamp("B1")

    def kread(h, extra=0): e(f"ds_read_b128 {vr(KF+4*h,4)}, v{vK} offset:{h*1024+extra}")
    def vreads(h, extra=0):
        e(f"s_mov_b64 exec, s[{sVM}:{sVM+1}]")
        for s in range(2):
            e(f"ds_read_b128 {vr(VF+8*h+4*s,4)}, v{vK} offset:{2048+s*1024+h*256+extra}")
        e("s_mov_b64 exec, -1")
    def seg(h, prev, nxt, kx=0, vx=0):
        o = 1 - h
        S = SS + 16 * h; O = OA + 16 * h
        ex = lambda i: e(f"v_exp_f32 v{S+i}, v{S+i}")
        ex(0); ex(1)
        if prev: mfma(OA + 16 * o, VF + 8 * o + 4, PP + 4, OA + 16 * o)
        ex(2); ex(3)
        if nxt: vreads(o, vx)
        ex(4); ex(5)
        if nxt:
            mfma(SS + 16 * o, KF + 4 * o, QF + 4 * o, "0")
            kread(o, kx)
        ex(6); ex(7)
        for i in range(4): e(cvt(PP + i, S + 2 * i, S + 2 * i + 1))
        ex(8)
        e(f"s_waitcnt lgkmcnt({3 if nxt else 0})")
        ex(9)
        mfma(O, VF + 8 * h, PP, O)
        for i in range(10, 16): ex(i)
        for i in range(4, 8): e(cvt(PP + i, S + 2 * i, S + 2 * i + 1))
    def part(name, first_s, rest_s, cnt_s, hook=None):
        a.c(f"---- attention part {name} ----")
        e(f"v_add_u32 v{vK}, s{first_s}, v{vL16}")
        kread(0); kread(1); vreads(0); vreads(1)
        e(f"s_sub_u32 s{sT2}, s{rest_s}, s{first_s}")
        e(f"s_mov_b32 s{sCNT}, s{cnt_s}")
        e("s_waitcnt lgkmcnt(4)")
        mfma(SS, KF, QF, MK)
        mfma(SS + 16, KF + 4, QF + 4, MK)
        e(f"v_add_u32 v{vK}, s{sT2}, v{vK}")
        kread(0); kread(1)
        e("s_nop 7")
        e("s_waitcnt lgkmcnt(2)")
        seg(0, prev=False, nxt=False)
        if hook: hook()
        e(f"s_cmp_eq_u32 s{sCNT}, 0")
        e(f"s_cbranch_scc1 L_{name}_LAST")
        e(f"s_sub_u32 s{sCNT}, s{sCNT}, 1")
        a.lab(f"L_{name}_LOOP")
        seg(1, prev=True, nxt=True, kx=REG, vx=0)
        seg(0, prev=True, nxt=True, kx=REG, vx=0)
        e(f"v_add_u32 v{vK}, {REG}, v{vK}")
        e(f"s_sub_u32 s{sCNT}, s{sCNT}, 1")
        e(f"s_cbranch_scc0 L_{name}_LOOP")
        a.lab(f"L_{name}_LAST")
        seg(1, prev=True, nxt=False)
        e("s_nop 1")
        mfma(OA + 16, VF + 12, PP + 4, OA + 16)
    def kvflag():
        e("s_waitcnt vmcnt(0)")
        e(f"v_mov_b32 v13, 0")
        e(f"v_mov_b32 v14, s{sTAG}")
        e("s_mov_b64 exec, 1")
        e(f"buffer_store_dword v14, v13, {srd(S_WS)}, s{sKVO} offen sc1")
        e("s_mov_b64 exec, -1")
    a.vm = []
    e(f"s_mul_i32 s{sT0}, s{sTAU}, {REG}")
    e(f"s_mov_b32 s{sT1}, 0")
    e(f"s_cmp_lt_u32 s{sW}, 4")
    e("s_cbranch_scc1 L_KVF_LATER")
    kvflag()
    a.lab("L_KVF_LATER")
    def hook():
        e(f"s_cmp_ge_u32 s{sW}, 4")
        e("s_cbranch_scc1 L_KVF_DONE")
        kvflag()
        a.lab("L_KVF_DONE")
    part("OWN", sT0, sT1, sTAU, hook=hook)
    stamp("own done")
    def gate_loads():
        e(f"s_lshl_b32 s{sT2}, s{sT3}, 16")
        e(f"s_lshl_b32 s{sT3x}, s{sW}, 13")
        e(f"s_add_u32 s{sT2}, s{sT2}, s{sT3x}")
        e(f"buffer_load_dwordx4 {vr(GW,4)}, v{vL16}, {srd(S_GW)}, 0 offen")
        for i in range(8):
            e(f"buffer_load_dwordx4 {vr(GX+4*i,4)}, v{vL16}, {srd(S_X)}, s{sT2} offen offset:{(i&3)*1024}")
            if i == 3: e(f"s_add_u32 s{sT2}, s{sT2}, 4096")
    def wo_voff():
        e(f"v_lshrrev_b32 v13, 3, v0")
        e(f"v_lshlrev_b32 v13, 10, v13")
        e(f"v_bfe_u32 v15, v0, 4, 1")
        e(f"v_lshlrev_b32 v15, 2, v15")
        e(f"v_xor_b32 v15, v15, v0")
        e(f"v_and_b32 v15, 7, v15")
        e(f"v_lshl_add_u32 v14, v15, 4, v13")
    def wo_dma(S, heads, kh, ldsaddr):
        for i in heads:
            sg, cst = ldsaddr(i)
            for hf in range(2):
                e(f"s_add_u32 s{sT3x}, s{sT5}, {(256*kh + 16*i + 8*hf)*1024}")
                e(f"s_add_u32 m0, s{sg}, {cst + hf*1024}")
                e("s_nop 0")
                e(f"buffer_load_dwordx4 v14, {srd(S)}, s{sT3x} offen lds")
    def wo_lin(S, sg, sl, n):
        e(f"s_mov_b32 m0, s{sl}")
        e("s_nop 0")
        for i in range(n):
            e(f"buffer_load_dwordx4 v14, {srd(S)}, s{sg} offen lds")
            if i < n - 1:
                e(f"s_add_u32 m0, m0, 1024")
                e(f"s_add_u32 s{sg}, s{sg}, 8192")
    def wo_early():
        wo_voff()
        e(f"s_lshl_b32 s{sT5}, s{sN3}, 7")
        e(f"s_and_b32 s{sT0}, s{sTAU}, 1")
        e(f"s_lshl_b32 s{sT0}, s{sT0}, 18")
        e(f"s_add_u32 s{sT0}, s{sT0}, s{sT5}")
        e(f"s_lshl_b32 s{sT1}, s{sTAU}, 14")
        e(f"s_add_u32 s{sT1}, s{sT1}, {LDS_A0}")
        lab = f"L_WE_{opt._n}"; opt._n += 1
        e(f"s_cmp_ge_u32 s{sTAU}, 2")
        e(f"s_cbranch_scc1 {lab}_B")
        e(f"s_mov_b32 s{sT4}, s{sT0}")
        wo_lin(S_WOA, sT4, sT1, 16)
        e(f"s_branch {lab}_E")
        a.lab(f"{lab}_B")
        e(f"s_mov_b32 s{sT4}, s{sT0}")
        wo_lin(S_WOB, sT4, sT1, 16)
        a.lab(f"{lab}_E")
    def halo_poll_load():
        n = opt._n; opt._n += 1
        e(f"s_sub_u32 s{sT2}, s{sC}, 1")
        e(f"s_lshl_b32 s{sT3x}, s{sT2}, 5")
        e(f"s_add_u32 s{sT3x}, s{sT3x}, s{sBH}")
        e(f"s_lshl_b32 s{sT3x}, s{sT3x}, 7")
        e(f"s_lshl_b32 s{sT4}, s{sTAU}, 3")
        e(f"s_add_u32 s{sT3x}, s{sT3x}, s{sT4}")
        e(f"s_add_u32 s{sT3x}, s{sT3x}, {WS_KVF}")
        e(f"v_and_b32 v13, 1, v0")
        e(f"v_lshlrev_b32 v13, 2, v13")
        e(f"s_mov_b32 s{sSPIN}, 0")
        a.lab(f"L_KVF_LOOP{n}")
        e(f"buffer_load_dword v15, v13, {srd(S_WS)}, s{sT3x} offen sc1")
        e(f"s_add_u32 s{sSPIN}, s{sSPIN}, 1")
        e("s_waitcnt vmcnt(0)")
        e(f"v_cmp_ne_u32 vcc, s{sTAG}, v15")
        e(f"s_cmp_gt_u32 s{sSPIN}, {opt.spin}")
        e(f"s_cbranch_scc1 L_KVF_OK{n}")
        e(f"s_cbranch_vccnz L_KVF_LOOP{n}")
        a.lab(f"L_KVF_OK{n}")
        stamp("roleA")
        e(f"s_lshl_b32 s{sT3x}, s{sBH}, 6")
        e(f"s_lshl_b32 s{sT2}, s{sT2}, 3")
        e(f"s_add_u32 s{sT3x}, s{sT3x}, s{sT2}")
        e(f"s_lshl_b32 s{sT2}, s{sTAU}, 1")
        e(f"s_add_u32 s{sT3x}, s{sT3x}, s{sT2}")
        e(f"s_lshl_b32 s{sT3x}, s{sT3x}, 12")
        e(f"s_add_u32 s{sT3x}, s{sT3x}, {WS_KV}")
        for j in range(2):
            for i in range(4):
                e(f"buffer_load_dwordx4 {vr(HT+16*j+4*i,4)}, v{vL16}, {srd(S_WS)}, s{sT3x} offen offset:{i*1024} sc1")
            if j < 1: e(f"s_add_u32 s{sT3x}, s{sT3x}, 4096")
    def halo_write(younger):
        e(f"s_mul_i32 s{sT2}, s{sTAU}, {2*REG}")
        e(f"s_add_u32 s{sT2}, s{sT2}, 4096")
        e(f"v_add_u32 v13, s{sT2}, v{vL16}")
        for j in range(2):
            e(f"s_waitcnt vmcnt({younger+4-4*j})")
            for i in range(4):
                e(f"ds_write_b128 v13, {vr(HT+16*j+4*i,4)} offset:{j*REG+i*1024}")
    opt._n = 0
    e(f"s_cmp_gt_u32 s{sTAU}, 3")
    e("s_cbranch_scc1 L_HALO_BAR")
    e(f"s_cmp_eq_u32 s{sC}, 0")
    e("s_cbranch_scc1 L_ROLE_C0")
    e(f"s_cmp_gt_u32 s{sTAU}, 1")
    e("s_cbranch_scc1 L_ROLE_HI")
    wo_early()
    halo_poll_load()
    gate_loads()
    halo_write(9)
    e("s_waitcnt lgkmcnt(0)")
    stamp("roleB")
    e("s_branch L_HALO_BAR")
    a.lab("L_ROLE_HI")
    halo_poll_load()
    wo_early()
    gate_loads()
    halo_write(16 + 9)
    e("s_waitcnt vmcnt(9) lgkmcnt(0)")
    stamp("roleB")
    e("s_branch L_HALO_BAR")
    a.lab("L_ROLE_C0")
    wo_early()
    gate_loads()
    e("s_waitcnt vmcnt(9)")
    a.lab("L_HALO_BAR")
    e(f"s_mov_b32 s{sT2}, 0xff800000")
    for r in range(16): e(f"v_xor_b32 v{MK+r}, s{sT2}, v{MK+r}")
    e("s_barrier")
    stamp("B2")
    e(f"s_cmp_lt_u32 s{sTAU}, 4")
    e("s_cbranch_scc1 L_LATE_E")
    wo_voff()
    e(f"s_sub_u32 s{sT2}, 7, s{sTAU}")
    e(f"s_lshl_b32 s{sT5}, s{sN3}, 7")
    e(f"s_and_b32 s{sT0}, s{sT2}, 1")
    e(f"s_lshl_b32 s{sT0}, s{sT0}, 18")
    e(f"s_add_u32 s{sT0}, s{sT0}, s{sT5}")
    e(f"s_add_u32 s{sT0}, s{sT0}, {128*1024}")
    e(f"s_mul_i32 s{sT1}, s{sT2}, {2*REG}")
    def late(S):
        for (reg, slot) in ((0, 8192), (1, 8192), (0, 0), (1, 0)):
            e(f"s_add_u32 s{sT3x}, s{sT1}, {reg*REG + slot}")
            wo_lin(S, sT0, sT3x, 4)
            e(f"s_add_u32 s{sT0}, s{sT0}, 8192")
    e(f"s_cmp_ge_u32 s{sT2}, 2")
    e("s_cbranch_scc1 L_LATE_B")
    late(S_WOA)
    e("s_branch L_LATE_G")
    a.lab("L_LATE_B")
    late(S_WOB)
    a.lab("L_LATE_G")
    gate_loads()
    a.lab("L_LATE_E")
    e(f"s_cmp_eq_u32 s{sC}, 0")
    e("s_cbranch_scc1 L_P2_EPI")
    e(f"s_mul_i32 s{sT0}, s{sTAU}, {REG}")
    e(f"s_add_u32 s{sT0}, s{sT0}, 4096")
    e(f"s_add_u32 s{sT1}, s{sT0}, {REG}")
    e(f"s_sub_u32 s{sT4}, 7, s{sTAU}")
    part("HALO", sT0, sT1, sT4)
    a.lab("L_P2_EPI")
    stamp("attn done")
    lo, hi = f32bits(2.0 ** -64), f32bits(2.0 ** 64)
    e(f"s_mov_b32 s{sT0}, {hex(lo)}")
    e(f"s_mov_b32 s{sT1}, {hex(hi)}")
    e(f"s_lshl_b32 s{sKVO}, s{sTT}, 1")
    e(f"s_add_u32 s{sKVO}, s{sKVO}, s{sBR}")
    e(f"s_lshl_b32 s{sKVO}, s{sKVO}, 5")
    e(f"s_lshl_b32 s{sT3x}, s{sHG}, 1")
    e(f"s_add_u32 s{sKVO}, s{sKVO}, s{sT3x}")
    e(f"s_lshl_b32 s{sKVO}, s{sKVO}, 10")
    e(f"s_add_u32 s{sKVO}, s{sKVO}, {WS_O}")
    e("s_nop 7")
    if opt.fallback:
        for h in range(2):
            O = OA + 16 * h
            e(f"v_mul_f32 v13, 0, v{O}")
            for i in range(1, 8): e(f"v_fmac_f32 v13, 0, v{O+i}")
            e(f"v_cmp_nle_f32 vcc, s{sT0}, v{O+8}")
            e(f"s_mov_b64 s[74:75], vcc")
            e(f"v_cmp_nge_f32 vcc, s{sT1}, v{O+8}")
            e("s_or_b64 s[74:75], s[74:75], vcc")
            e(f"v_cmp_u_f32 vcc, v13, v13")
            e("s_or_b64 s[74:75], s[74:75], vcc")
            e("s_cmp_lg_u64 s[74:75], 0")
            e(f"s_cselect_b32 s{sT2}, {1<<h}, 0")
            e(f"s_or_b32 s{sFAIL}, s{sFAIL}, s{sT2}")
        e(f"s_cmp_eq_u32 s{sFAIL}, 0")
        e("s_cbranch_scc1 L_NOFB")
        fallback(a, opt, dict(SS=SS, PP=PP, KF=KF, MK=MK, OA=OA, QF=QF, vL16=vL16, HT=HT))
        a.lab("L_NOFB")
    else:
        e("s_nop 7")
    for h in range(2):
        e(f"v_rcp_f32 v{13+h}, v{OA+16*h+8}")
    for h in range(2):
        O = OA + 16 * h
        for i in range(8): e(f"v_mul_f32 v{O+i}, v{O+i}, v{13+h}")
        for i in range(4): e(cvt(O + 8 + i, O + 2 * i, O + 2 * i + 1))
        e(f"buffer_store_dwordx4 {vr(O+8,4)}, v{vL16}, {srd(S_WS)}, s{sKVO} offen offset:{h*1024} sc1")
    WF3, OF3, AC3 = 16, 144, 208
    sTQ, sQ, sB3, sKH = 44, 45, 48, 49
    e(f"s_lshr_b32 s{sTQ}, s{sW}, 2")
    e(f"s_and_b32 s{sQ}, s{sW}, 3")
    e(f"s_lshr_b32 s{sB3}, s{sQ}, 1")
    e(f"s_and_b32 s{sKH}, s{sQ}, 1")
    e(f"v_lshrrev_b32 v1, 5, v0")
    e(f"v_lshlrev_b32 v1, 9, v1")
    e(f"v_bfe_u32 v2, v0, 2, 2")
    e(f"v_lshl_add_u32 v1, v2, 7, v1")
    e(f"v_bfe_u32 v2, v0, 3, 1")
    e(f"v_lshl_add_u32 v1, v2, 6, v1")
    e(f"v_bfe_u32 v2, v0, 4, 1")
    e(f"v_lshl_add_u32 v1, v2, 5, v1")
    e(f"v_and_b32 v2, 3, v0")
    e(f"v_lshl_add_u32 v1, v2, 3, v1")
    e(f"s_lshl_b32 s{sT2}, s{sQ}, 14")
    e(f"s_add_u32 s{sT2}, s{sT2}, {LDS_A0}")
    e(f"s_mul_i32 s{sT3x}, s{sQ}, {2*REG}")
    e(f"v_xor_b32 v2, 64, v1")
    vA = [160, 161]; vB = [162, 163]
    e(f"v_add_u32 v{vA[0]}, s{sT2}, v1")
    e(f"v_add_u32 v{vA[1]}, s{sT2}, v2")
    e(f"v_add_u32 v{vB[0]}, s{sT3x}, v1")
    e(f"v_add_u32 v{vB[1]}, s{sT3x}, v2")
    def trw(i):
        for ct in range(2):
            for u in range(2):
                if i < 8: ad, off = vA[ct], i * 2048
                elif i < 12: ad, off = vB[ct], ((i - 8) >> 1) * REG + 8192 + ((i - 8) & 1) * 2048
                else: ad, off = vB[ct], ((i - 12) >> 1) * REG + ((i - 12) & 1) * 2048
                e(f"ds_read_b64_tr_b16 {vr(WF3+8*i+4*ct+2*u,2)}, v{ad} offset:{off+u*1024}")
    for i in range(8): trw(i)
    e("s_waitcnt vmcnt(2)")
    GA = 196
    for i in range(8): e(f"v_mov_b32 v{GA+i}, 0")
    for d in range(4):
        for i in range(8):
            e(f"v_dot2_f32_bf16 v{GA+i}, v{GX+4*i+d}, v{GW+d}, v{GA+i}")
    e("s_nop 4")
    for i in range(4): e(f"v_permlane32_swap_b32 v{GA+i}, v{GA+4+i}")
    for i in range(4): e(f"v_add_f32 v{GA+i}, v{GA+i}, v{GA+4+i}")
    e("s_nop 1")
    for i in range(2): e(f"v_permlane16_swap_b32 v{GA+i}, v{GA+2+i}")
    for i in range(2): e(f"v_add_f32 v{GA+i}, v{GA+i}, v{GA+2+i}")
    e("s_nop 1")
    for i in range(2): e(f"v_add_f32_dpp v{GA+i}, v{GA+i}, v{GA+i} row_ror:8 row_mask:0xf bank_mask:0xf")
    e("s_nop 1")
    e(f"v_mov_b32_dpp v{GA}, v{GA+1} quad_perm:[0,1,2,3] row_mask:0xf bank_mask:0xc")
    e("s_nop 1")
    e(f"v_add_f32_dpp v13, v{GA}, v{GA} quad_perm:[1,0,3,2] row_mask:0xf bank_mask:0xf")
    e("s_nop 1")
    e("v_add_f32_dpp v13, v13, v13 quad_perm:[2,3,0,1] row_mask:0xf bank_mask:0xf")
    e("s_nop 1")
    e("v_add_f32_dpp v13, v13, v13 row_half_mirror row_mask:0xf bank_mask:0xf")
    e("v_cvt_pk_bf16_f32 v13, v13, v13")
    e("v_and_b32 v13, 0xffff0000, v13")
    e(f"v_mul_f32 v13, {hex(f32bits(-math.log2(math.e)))}, v13")
    e("v_exp_f32 v13, v13")
    e("s_nop 0")
    e("v_add_f32 v13, 1.0, v13")
    e("v_rcp_f32 v13, v13")
    e("s_nop 0")
    e("v_cvt_pk_bf16_f32 v13, v13, v13")
    e("v_and_b32 v13, 0xffff0000, v13")
    e("v_sub_f32 v14, 1.0, v13")
    e("v_cvt_pk_bf16_f32 v14, v14, v14")
    e("v_and_b32 v14, 0xffff0000, v14")
    e(f"v_mov_b32 v{GA+2}, v13")
    e(f"v_mov_b32 v{GA+3}, v14")
    e(f"s_lshl_b32 s{sT2}, s{sTT}, 5")
    e(f"s_add_u32 s{sT2}, s{sT2}, s{sBH}")
    e(f"s_lshl_b32 s{sT2}, s{sT2}, 2")
    e(f"s_add_u32 s{sT2}, s{sT2}, {WS_OF}")
    e(f"v_mov_b32 v13, 0")
    e(f"v_mov_b32 v14, s{sTAG}")
    e("s_waitcnt vmcnt(0)")
    e("s_mov_b64 exec, 1")
    e(f"buffer_store_dword v14, v13, {srd(S_WS)}, s{sT2} offen sc1")
    e("s_mov_b64 exec, -1")
    a.vm = []; a.lg = []
    stamp("O published")
    e(f"v_lshrrev_b32 v15, 3, v0")
    e(f"s_lshl_b32 s{sT2}, s{sW}, 3")
    e(f"v_add_u32 v15, s{sT2}, v15")
    e(f"v_lshlrev_b32 v15, 2, v15")
    e("s_barrier")
    stamp("B3")
    e(f"s_lshl_b32 s{sTT}, s{sT3}, 1")
    e(f"s_add_u32 s{sTT}, s{sTT}, s{sTQ}")
    e(f"s_lshl_b32 s{sT2}, s{sTT}, 5")
    e(f"s_lshl_b32 s{sT3x}, s{sQ}, 3")
    e(f"s_add_u32 s{sT2}, s{sT2}, s{sT3x}")
    e(f"s_lshl_b32 s{sT2}, s{sT2}, 2")
    e(f"s_add_u32 s{sT1}, s{sT2}, {WS_OF}")
    e(f"v_and_b32 v13, 7, v0")
    e(f"v_lshlrev_b32 v13, 2, v13")
    e(f"buffer_load_dword v14, v13, {srd(S_WS)}, s{sT1} offen sc1")
    e(f"ds_write_b32 v15, v{GA+2} offset:{LDS_GATE}")
    e(f"ds_write_b32 v15, v{GA+3} offset:{LDS_GATE+256}")
    for i in range(8, 16): trw(i)
    e(f"v_and_b32 v2, 31, v0")
    e(f"s_lshl_b32 s{sT2}, s{sTQ}, 5")
    e(f"s_lshl_b32 s{sT3x}, s{sB3}, 6")
    e(f"s_add_u32 s{sT2}, s{sT2}, s{sT3x}")
    e(f"v_add_u32 v2, s{sT2}, v2")
    e(f"v_lshlrev_b32 v2, 2, v2")
    e(f"s_mov_b32 s{sSPIN}, 0")
    e(f"s_lshl_b32 s{sT0}, s{sTT}, 1")
    e(f"s_add_u32 s{sT0}, s{sT0}, s{sB3}")
    e(f"s_lshl_b32 s{sT0}, s{sT0}, 5")
    e(f"s_lshl_b32 s{sT3x}, s{sKH}, 4")
    e(f"s_add_u32 s{sT0}, s{sT0}, s{sT3x}")
    e(f"s_lshl_b32 s{sT0}, s{sT0}, 10")
    e(f"s_add_u32 s{sT0}, s{sT0}, {WS_O}")
    e("s_waitcnt lgkmcnt(0)")
    e("s_barrier")
    stamp("B4")
    e(f"ds_read_b32 v3, v2 offset:{LDS_GATE}")
    a.lab("L_OF_LOOP")
    e("s_waitcnt vmcnt(0)")
    e(f"v_cmp_ne_u32 vcc, s{sTAG}, v14")
    e(f"s_add_u32 s{sSPIN}, s{sSPIN}, 1")
    e(f"s_cbranch_vccz L_OF_OK")
    e(f"s_cmp_gt_u32 s{sSPIN}, {opt.spin}")
    e("s_cbranch_scc1 L_OF_OK")
    e(f"buffer_load_dword v14, v13, {srd(S_WS)}, s{sT1} offen sc1")
    e("s_branch L_OF_LOOP")
    a.lab("L_OF_OK")
    stamp("O flags seen")
    for i in range(16):
        e(f"buffer_load_dwordx4 {vr(OF3+4*i,4)}, v{vL16}, {srd(S_WS)}, s{sT0} offen offset:{(i&3)*1024} sc1")
        if (i & 3) == 3 and i < 15: e(f"s_add_u32 s{sT0}, s{sT0}, 4096")
    for i in range(16):
        e(f"s_waitcnt vmcnt({15-i})")
        for ct in range(2):
            mfma(AC3 + 16 * ct, WF3 + 8 * i + 4 * ct, OF3 + 4 * i, "0" if i == 0 else AC3 + 16 * ct)
    stamp("P3 mfma")
    e(f"s_lshl_b32 s{sT2}, s{sTQ}, 15")
    e(f"s_lshl_b32 s{sT3x}, s{sQ}, 11")
    e(f"s_add_u32 s{sT3x}, s{sT3x}, s{sT2}")
    e(f"s_add_u32 s{sT3x}, s{sT3x}, {LDS_RB}")
    e(f"v_add_u32 v1, s{sT3x}, v{vL16}")
    e(f"s_lshl_b32 s{sT3x}, s{sQ}, 13")
    e(f"s_add_u32 s{sT3x}, s{sT3x}, s{sT2}")
    e(f"s_add_u32 s{sT3x}, s{sT3x}, {LDS_RB}")
    e(f"v_add_u32 v2, s{sT3x}, v{vL16}")
    e(f"v_and_b32 v4, 31, v0")
    e(f"v_lshlrev_b32 v4, 10, v4")
    e(f"v_lshrrev_b32 v5, 5, v0")
    e(f"v_lshl_add_u32 v4, v5, 4, v4")
    e(f"s_lshl_b32 s{sT2}, s{sTT}, 15")
    e(f"s_lshl_b32 s{sT3x}, s{sN3}, 7")
    e(f"s_add_u32 s{sT2}, s{sT2}, s{sT3x}")
    e(f"s_lshl_b32 s{sT3x}, s{sQ}, 5")
    e(f"s_add_u32 s{sT2}, s{sT2}, s{sT3x}")
    e("s_waitcnt lgkmcnt(0)")
    for i in range(16): e(f"v_mul_f32 v{AC3+i}, v{AC3+i}, v3")
    for qq in range(2):
        for hf in range(2):
            e(f"ds_write_b128 v1, {vr(AC3+8*qq+4*hf,4)} offset:{qq*8192+hf*1024}")
    for i in range(16, 32): e(f"v_mul_f32 v{AC3+i}, v{AC3+i}, v3")
    for qq in range(2, 4):
        for hf in range(2):
            e(f"ds_write_b128 v1, {vr(AC3+8*qq+4*hf,4)} offset:{qq*8192+hf*1024}")
    e("s_waitcnt lgkmcnt(0)")
    e("s_barrier")
    R = 144
    for src in range(4):
        for hf in range(2):
            e(f"ds_read_b128 {vr(R+8*src+4*hf,4)}, v2 offset:{src*2048+hf*1024}")
    e("s_waitcnt lgkmcnt(4)")
    for i in range(8): e(f"v_add_f32 v{R+i}, v{R+i}, v{R+8+i}")
    e("s_waitcnt lgkmcnt(0)")
    for i in range(8): e(f"v_add_f32 v{R+16+i}, v{R+16+i}, v{R+24+i}")
    for i in range(8): e(f"v_add_f32 v{R+i}, v{R+i}, v{R+16+i}")
    for i in range(4): e(cvt(R + 32 + i, R + 2 * i, R + 2 * i + 1))
    e("s_nop 1")
    e(f"v_permlane32_swap_b32 v{R+32}, v{R+34}")
    e(f"v_permlane32_swap_b32 v{R+33}, v{R+35}")
    e(f"buffer_store_dwordx4 {vr(R+32,4)}, v4, {srd(S_OUT)}, s{sT2} offen {opt.outmod}")
    if STAMPS:
        stamp("end")
        e(f"s_memtime s[{sTM}:{sTM+1}]")
        e("s_waitcnt lgkmcnt(0)")
        e(f"s_sub_u32 s{STREG[nst[0]]}, s{sTM}, s100")
        nst[0] += 1
        opt.stamp_names.append("CYCLES")
        n = nst[0]
        e(f"s_lshl_b32 s{sT2}, s2, 3")
        e(f"s_add_u32 s{sT2}, s{sT2}, s{sW}")
        e(f"s_lshl_b32 s{sT2}, s{sT2}, 7")
        e(f"s_add_u32 s{sT2}, s{sT2}, {WS_STAMP}")
        e("v_mov_b32 v13, 0")
        e("s_mov_b64 exec, 1")
        for i in range(n):
            e(f"v_mov_b32 v14, s{STREG[i]}")
            e(f"buffer_store_dword v14, v13, {srd(S_WS)}, s{sT2} offen offset:{4*i}")
            e("s_nop 0")
        e("s_mov_b64 exec, -1")
    e("s_waitcnt vmcnt(0)")
    a.lab("L_END")
    e("s_endpgm")
    a.lab("L_CODE_END")
    return a

def fallback(a, opt, R):
    e = a.e
    SS, PP, KF, MK, OA, QF, vL16, HT = (R[k] for k in "SS PP KF MK OA QF vL16 HT".split())
    TQ = HT; TM = HT + 4; TB = HT + 5; TO = HT + 8; TV = HT + 24; TC = HT + 32
    S = SS
    sHH, sPASS, sPART, sTILE, sN = sH, 40, 41, 42, 43
    def mfma(D, A, B, C): e(mfma_s(D, A, B, C))
    a.c("==== fallback: true max ====")
    e(f"s_lshl_b32 s{sT2}, s{sC}, 5")
    e(f"s_add_u32 s{sT2}, s{sT2}, s{sBH}")
    e(f"s_lshl_b32 s{sT2}, s{sT2}, 7")
    e(f"s_add_u32 s{sT2}, s{sT2}, {WS_KVF}")
    e(f"v_and_b32 v13, 7, v0")
    e(f"v_lshlrev_b32 v13, 2, v13")
    e(f"s_mov_b32 s{sSPIN}, 0")
    a.lab("L_FB_FLAG")
    e(f"buffer_load_dword v14, v13, {srd(S_WS)}, s{sT2} offen sc1")
    e(f"s_add_u32 s{sSPIN}, s{sSPIN}, 1")
    e("s_waitcnt vmcnt(0)")
    e(f"v_cmp_ne_u32 vcc, s{sTAG}, v14")
    e(f"s_cmp_gt_u32 s{sSPIN}, {opt.spin}")
    e("s_cbranch_scc1 L_FB_FLAG_OK")
    e("s_cbranch_vccnz L_FB_FLAG")
    a.lab("L_FB_FLAG_OK")
    e(f"s_mov_b32 s{sHH}, 0")
    a.lab("L_FB_H")
    e(f"s_lshr_b32 s{sT2}, s{sFAIL}, s{sHH}")
    e(f"s_and_b32 s{sT2}, s{sT2}, 1")
    e(f"s_cmp_eq_u32 s{sT2}, 0")
    e("s_cbranch_scc1 L_FB_NEXT")
    e(f"s_cmp_eq_u32 s{sHH}, 0")
    e("s_cbranch_scc0 L_FB_Q1")
    for i in range(4): e(f"v_mov_b32 v{TQ+i}, v{QF+i}")
    e("s_branch L_FB_Q2")
    a.lab("L_FB_Q1")
    for i in range(4): e(f"v_mov_b32 v{TQ+i}, v{QF+4+i}")
    a.lab("L_FB_Q2")
    e(f"v_mov_b32 v{TM}, 0xff800000")
    for i in range(16): e(f"v_mov_b32 v{TO+i}, 0")
    for i in range(8): e(f"v_mov_b32 v{TV+i}, 0x3f803f80")
    e(f"s_mov_b32 s{sPASS}, 0")
    a.lab("L_FB_PASS")
    e(f"s_mov_b32 s{sPART}, 0")
    a.lab("L_FB_PART")
    e(f"s_cmp_eq_u32 s{sPART}, 0")
    e(f"s_cselect_b32 s{sTILE}, 0, s{sTAU}")
    e(f"s_cselect_b32 s{sN}, s{sTAU}, 7")
    a.lab("L_FB_TILE")
    e(f"s_cmp_eq_u32 s{sTILE}, s{sTAU}")
    e("s_cbranch_scc1 L_FB_MASK")
    for i in range(16): e(f"v_mov_b32 v{TC+i}, 0")
    e("s_branch L_FB_C")
    a.lab("L_FB_MASK")
    e(f"v_and_b32 v13, 31, v0")
    e(f"v_lshrrev_b32 v14, 5, v0")
    e(f"v_lshlrev_b32 v14, 2, v14")
    e(f"v_sub_u32 v13, v13, v14")
    e(f"s_cmp_eq_u32 s{sPART}, 0")
    e(f"s_cselect_b32 s{sT2}, 0, 0xff800000")
    for r in range(16):
        kk = (r & 3) + 8 * (r >> 2)
        e(f"v_subrev_u32 v{TC+r}, {kk}, v13")
        e(f"v_ashrrev_i32 v{TC+r}, 31, v{TC+r}")
        e(f"v_and_b32 v{TC+r}, 0xff800000, v{TC+r}")
        e(f"v_xor_b32 v{TC+r}, s{sT2}, v{TC+r}")
    a.lab("L_FB_C")
    e(f"s_sub_u32 s{sT2}, s{sC}, s{sPART}")
    e(f"s_lshl_b32 s{sT2}, s{sT2}, 3")
    e(f"s_add_u32 s{sT2}, s{sT2}, s{sTILE}")
    e(f"s_lshl_b32 s{sT3x}, s{sBH}, 6")
    e(f"s_add_u32 s{sT2}, s{sT2}, s{sT3x}")
    e(f"s_lshl_b32 s{sT2}, s{sT2}, 12")
    e(f"s_add_u32 s{sT2}, s{sT2}, {WS_KV}")
    e(f"s_lshl_b32 s{sT3x}, s{sHH}, 10")
    e(f"s_add_u32 s{sT3x}, s{sT3x}, s{sT2}")
    e(f"buffer_load_dwordx4 {vr(KF,4)}, v{vL16}, {srd(S_WS)}, s{sT3x} offen sc1")
    e(f"s_lshl_b32 s{sT3x}, s{sHH}, 8")
    e(f"s_add_u32 s{sT3x}, s{sT3x}, s{sT2}")
    e(f"s_mov_b64 exec, s[{sVM}:{sVM+1}]")
    e(f"buffer_load_dwordx4 {vr(TV,4)}, v{vL16}, {srd(S_WS)}, s{sT3x} offen offset:2048 sc1")
    e(f"buffer_load_dwordx4 {vr(TV+4,4)}, v{vL16}, {srd(S_WS)}, s{sT3x} offen offset:3072 sc1")
    e("s_mov_b64 exec, -1")
    e("s_waitcnt vmcnt(0)")
    mfma(S, KF, TQ, TC)
    e("s_nop 7"); e("s_nop 7")
    e(f"s_cmp_eq_u32 s{sPASS}, 0")
    e("s_cbranch_scc0 L_FB_P2")
    for i in range(8): e(f"v_max3_f32 v{TM}, v{TM}, v{S+2*i}, v{S+2*i+1}")
    e("s_branch L_FB_TNEXT")
    a.lab("L_FB_P2")
    for i in range(16): e(f"v_sub_f32 v{S+i}, v{S+i}, v{TM}")
    for i in range(16): e(f"v_exp_f32 v{S+i}, v{S+i}")
    e("s_nop 0")
    for i in range(8): e(cvt(PP + i, S + 2 * i, S + 2 * i + 1))
    e("s_nop 1")
    mfma(TO, TV, PP, TO)
    mfma(TO, TV + 4, PP + 4, TO)
    e("s_nop 7"); e("s_nop 7")
    a.lab("L_FB_TNEXT")
    e(f"s_add_u32 s{sTILE}, s{sTILE}, 1")
    e(f"s_cmp_le_u32 s{sTILE}, s{sN}")
    e("s_cbranch_scc1 L_FB_TILE")
    e(f"s_cmp_eq_u32 s{sC}, 0")
    e("s_cbranch_scc1 L_FB_PDONE")
    e(f"s_add_u32 s{sPART}, s{sPART}, 1")
    e(f"s_cmp_lt_u32 s{sPART}, 2")
    e("s_cbranch_scc1 L_FB_PART")
    a.lab("L_FB_PDONE")
    e(f"s_cmp_eq_u32 s{sPASS}, 0")
    e("s_cbranch_scc0 L_FB_STORE")
    e(f"v_mov_b32 v{TB}, v{TM}")
    e("s_nop 1")
    e(f"v_permlane32_swap_b32 v{TM}, v{TB}")
    e("s_nop 1")
    e(f"v_max_f32 v{TM}, v{TM}, v{TB}")
    e(f"s_mov_b32 s{sPASS}, 1")
    e("s_branch L_FB_PASS")
    a.lab("L_FB_STORE")
    e(f"s_cmp_eq_u32 s{sHH}, 0")
    e("s_cbranch_scc0 L_FB_S1")
    for i in range(16): e(f"v_mov_b32 v{OA+i}, v{TO+i}")
    e("s_branch L_FB_NEXT")
    a.lab("L_FB_S1")
    for i in range(16): e(f"v_mov_b32 v{OA+16+i}, v{TO+i}")
    a.lab("L_FB_NEXT")
    e(f"s_add_u32 s{sHH}, s{sHH}, 1")
    e(f"s_cmp_lt_u32 s{sHH}, 2")
    e("s_cbranch_scc1 L_FB_H")

def build(opt):
    opt.stamp_names = []
    a = gen(opt)
    hdr = []
    hdr.append(f"; @launch grid=(256,1,1) block=(512,1,1) lds={LDS_TOTAL}")
    hdr.append('.amdgcn_target "amdgcn-amd-amdhsa--gfx950"')
    hdr.append(".text")
    hdr.append(f".globl {KNAME}")
    hdr.append(".p2align 8")
    hdr.append(f".type {KNAME},@function")
    tail = f""".section .rodata,"a"
.p2align 6
.amdhsa_kernel {KNAME}
  .amdhsa_next_free_vgpr 256
  .amdhsa_next_free_sgpr 102
  .amdhsa_accum_offset 256
  .amdhsa_group_segment_fixed_size 0
  .amdhsa_kernarg_size 80
  .amdhsa_user_sgpr_count 2
  .amdhsa_user_sgpr_kernarg_segment_ptr 1
  .amdhsa_system_sgpr_workgroup_id_x 1
  .amdhsa_float_denorm_mode_32 3
.end_amdhsa_kernel
"""
    return "\n".join(hdr) + "\n" + a.text() + tail

def parse(argv=None):
    p = argparse.ArgumentParser()
    p.add_argument("-o", default="gated_mix__sliding_block__sliding_block__prompt.s")
    p.add_argument("--stamps", type=int, default=0)
    p.add_argument("--codepf", type=int, default=1)
    p.add_argument("--pace", type=float, default=1.5)
    p.add_argument("--rot", type=int, default=1)
    p.add_argument("--pf", type=int, default=0)
    p.add_argument("--bar0", type=int, default=1)
    p.add_argument("--dbg", type=int, default=0)
    p.add_argument("--cyc", type=int, default=0)
    p.add_argument("--wopf", type=int, default=1)
    p.add_argument("--fallback", type=int, default=1)
    p.add_argument("--spin", type=int, default=20000)
    p.add_argument("--outmod", default="")
    return p.parse_args(argv)

if __name__ == "__main__":
    opt = parse()
    s = build(opt)
    open(opt.o, "w").write(s)
    if opt.stamps:
        open(opt.o + ".stamps", "w").write("\n".join(opt.stamp_names))
    print("wrote", opt.o, len(s), "bytes")
```

```python
import sys, argparse, math, struct

KNAME = "gated_mix__sliding_block__sliding_block__prompt_kernel"

WS_NONCE = 0
WS_OF = 0x10000
WS_KVF = 0x4000
WS_KV = 0x100000
WS_O = 0x1000000
WS_STAMP = 0x1800000
WS_SIZE = 0x2000000

REG = 12288
LDS_W = 8 * REG
WPART = 24576
LDS_TOTAL = 163840
LDS_A0, LDS_A1 = 98304, 131072
LDS_GATE = 4096
LDS_RB = 98304

S_X, S_W, S_WOA, S_WOB, S_WS, S_OUT, S_GW, S_DBG = 8, 12, 16, 20, 24, 28, 32, 36
sW, sTAU, sC, sBH, sBR, sHG, sTT, sT3, sN3, sTAG, sJ = 60, 61, 62, 63, 64, 65, 66, 67, 68, 69, 70
sT0, sT1, sT2, sT3x, sT4, sT5 = 71, 72, 73, 74, 75, 76
sCNT, sSPIN, sFAIL = 77, 80, 81
sVM = 78
sKVO = 82
sH = 83
STREG = list(range(84, 98)) + [3, 6, 7, 46, 47]
sTM = 98
sXB, sWG, sWL = 40, 41, 42

def srd(b): return f"s[{b}:{b+3}]"
def vr(b, n=1): return f"v{b}" if n == 1 else f"v[{b}:{b+n-1}]"

class Asm:
    def __init__(self):
        self.lines = []; self.vm = []; self.lg = []
    def e(self, s): self.lines.append("  " + s)
    def c(self, s): self.lines.append("  ; " + s)
    def lab(self, s): self.lines.append(s + ":")
    def vmop(self, s, tag): self.e(s); self.vm.append(tag)
    def lgop(self, s, tag): self.e(s); self.lg.append(tag)
    def _n(self, q, tag, mx):
        idx = max(i for i, t in enumerate(q) if t == tag)
        return min(len(q) - 1 - idx, mx)
    def vmwait(self, tag):
        if tag not in self.vm: return
        n = self._n(self.vm, tag, 63)
        self.e(f"s_waitcnt vmcnt({n})")
        self.vm = self.vm[len(self.vm) - n:] if n > 0 else []
    def lgwait(self, tag):
        if tag not in self.lg: return
        n = self._n(self.lg, tag, 15)
        self.e(f"s_waitcnt lgkmcnt({n})")
        self.lg = self.lg[len(self.lg) - n:] if n > 0 else []
    def vmall(self): self.e("s_waitcnt vmcnt(0)"); self.vm = []
    def lgall(self): self.e("s_waitcnt lgkmcnt(0)"); self.lg = []
    def text(self): return "\n".join(self.lines) + "\n"

def f32bits(x): return struct.unpack("<I", struct.pack("<f", x))[0]
def mfma_s(D, A, B, C):
    cs = C if isinstance(C, str) else vr(C, 16)
    return f"v_mfma_f32_32x32x16_bf16 {vr(D,16)}, {vr(A,4)}, {vr(B,4)}, {cs}"
def cvt(dst, s0, s1): return f"v_cvt_pk_bf16_f32 v{dst}, v{s0}, v{s1}"

def gen(opt):
    a = Asm()
    e = a.e
    mfma = lambda D, A, B, C: e(mfma_s(D, A, B, C))
    STAMPS = opt.stamps
    nst = [0]
    def stamp(name, inner=False):
        if not STAMPS: return
        if STAMPS == 4 and not inner:
            if name in ("entry", "first data", "gemm done", "B1", "B2", "attn done", "B3", "end"):
                opt.cyc = 0; stamp(name, True)
                if name not in ("entry", "end"):
                    opt.cyc = 1; stamp(name + " cyc", True); opt.cyc = 0
            return
        if STAMPS == 3 and name in ("own done", "B2", "attn done", "O published", "B3", "B4", "O flags seen", "P3 mfma", "roleA", "roleB"): return
        if STAMPS == 2 and name in ("own done", "B2", "attn done", "O published", "B3", "B4", "O flags seen", "P3 mfma"): return
        if name in opt.stamp_names:
            i = opt.stamp_names.index(name)
            e("s_waitcnt lgkmcnt(0)")
            e(f"{'s_memtime' if opt.cyc else 's_memrealtime'} s[{sTM}:{sTM+1}]")
            e("s_waitcnt lgkmcnt(0)")
            e(f"s_mov_b32 s{STREG[i]}, s{sTM}")
            return
        i = nst[0]; nst[0] += 1
        assert i < len(STREG)
        a.c(f"stamp {i}: {name}")
        e("s_waitcnt lgkmcnt(0)"); a.lg = []
        e(f"{'s_memtime' if opt.cyc else 's_memrealtime'} s[{sTM}:{sTM+1}]")
        e("s_waitcnt lgkmcnt(0)")
        e(f"s_mov_b32 s{STREG[i]}, s{sTM}")
        opt.stamp_names.append(name)

    vXO = 1; vXR = 5; vWO = 9; vWR = 10; vL16 = 12
    XF = 16
    WF = 80
    ACC = 116
    def AQ(x): return ACC + 48 * x
    def AK(x): return ACC + 48 * x + 16
    def AV(x): return ACC + 48 * x + 32
    def XFr(lc, x, s): return XF + 32 * (lc & 1) + 16 * x + 4 * s
    def WFr(t, m): return WF + 12 * (t % 3) + 4 * m
    OA = 216; QF = 248; MK = 16; VF = 32
    SS = 160; PP = 48; KF = 56; HT = 64
    vK = 1
    vD = 13
    GX, GW, GA = 96, 208, 212
    WSLOT = 12288
    TKA, TKB, TVA, TVB, TQA, TQB = 248, 4, ACC + 16, ACC + 64, ACC + 32, ACC + 80
    LDS_TAG = 8192 + 2048

    a.lab(KNAME)
    e("s_cmp_ge_u32 s2, 256")
    e("s_cbranch_scc1 L_END")
    if STAMPS:
        e("s_memtime s[100:101]")
        stamp("entry")
    e("s_getpc_b64 s[4:5]")
    a.lab("L_PC")
    e("s_load_dwordx4 s[40:43], s[0:1], 0")
    e("s_load_dwordx4 s[48:51], s[0:1], 32")
    e("v_lshlrev_b32 v13, 6, v0")
    e("s_load_dwordx2 s[44:45], s[0:1], 16")
    e("s_load_dwordx4 s[52:55], s[0:1], 48")
    e("s_load_dwordx4 s[56:59], s[0:1], 64")
    e("v_min_u32 v13, L_CODE_END-L_PC-4, v13")
    if opt.codepf:
        e(f"global_load_dword v213, v13, s[4:5]")
    e("v_lshrrev_b32 v15, 6, v0")
    e("v_and_b32 v0, 63, v0")
    e(f"s_and_b32 s{sT0}, s2, 7")
    e(f"v_readfirstlane_b32 s{sW}, v15")
    e(f"s_lshr_b32 s{sJ}, s2, 3")
    e(f"s_and_b32 s{sT1}, s{sT0}, 1")
    e(f"s_lshl_b32 s{sT1}, s{sT1}, 2")
    e(f"s_and_b32 s{sT2}, s{sJ}, 3")
    e(f"s_add_u32 s{sC}, s{sT1}, s{sT2}")
    e(f"s_lshr_b32 s{sT1}, s{sT0}, 1")
    e(f"s_lshl_b32 s{sT1}, s{sT1}, 3")
    e(f"s_lshr_b32 s{sN3}, s{sJ}, 2")
    e(f"s_add_u32 s{sBH}, s{sT1}, s{sN3}")
    e(f"s_lshr_b32 s{sBR}, s{sBH}, 4")
    e(f"s_and_b32 s{sHG}, s{sBH}, 15")
    e(f"s_lshl_b32 s{sT3}, s{sT0}, 2")
    e(f"s_add_u32 s{sT3}, s{sT3}, s{sT2}")
    e(f"s_sub_u32 s{sT1}, 11, s{sW}")
    e(f"s_cmp_lt_u32 s{sW}, 4")
    e(f"s_cselect_b32 s{sTAU}, s{sW}, s{sT1}")
    e(f"s_lshl_b32 s{sTT}, s{sC}, 3")
    e(f"s_add_u32 s{sTT}, s{sTT}, s{sTAU}")
    e(f"v_lshlrev_b32 v{vL16}, 4, v0")
    def mk(b, lo, hi, size):
        e(f"s_mov_b32 s{b}, s{lo}"); e(f"s_mov_b32 s{b+1}, s{hi}")
        e(f"s_mov_b32 s{b+2}, {size}"); e(f"s_mov_b32 s{b+3}, 0x00020000")
    def mk_w():
        e(f"s_cmp_eq_u32 s{sBR}, 0")
        e(f"s_cselect_b32 s{S_W}, s42, s48")
        e(f"s_cselect_b32 s{S_W+1}, s43, s49")
        e(f"s_mov_b32 s{S_W+2}, 1572864"); e(f"s_mov_b32 s{S_W+3}, 0x00020000")
    def mk_rest():
        mk(S_WS, 58, 59, WS_SIZE)
        mk(S_DBG, 56, 57, 256)
        mk(S_OUT, 54, 55, 2097152)
        mk(S_GW, 52, 53, 1024)
        mk(S_WOA, 44, 45, 524288)
        mk(S_WOB, 50, 51, 524288)
        e(f"s_mov_b32 s{sVM}, 0x0000ffff")
        e(f"s_mov_b32 s{sVM+1}, 0x0000ffff")
        e(f"s_mov_b32 s{sFAIL}, 0")
    def init_list():
        q = [f"v_and_b32 v{vD}, 31, v0", f"v_lshrrev_b32 v{vD+2}, 5, v0", f"v_lshlrev_b32 v{vD+2}, 2, v{vD+2}", f"v_sub_u32 v{vD}, v{vD}, v{vD+2}"]
        for r in range(16):
            kk = (r & 3) + 8 * (r >> 2)
            q += [f"v_subrev_u32 v{MK+r}, {kk}, v{vD}", f"v_ashrrev_i32 v{MK+r}, 31, v{MK+r}", f"v_and_b32 v{MK+r}, 0xff800000, v{MK+r}"]
        q += [f"v_mov_b32 v{VF+i}, 0x3f803f80" for i in range(16)]
        return q
    e(f"s_cmp_ge_u32 s{sW}, 4")
    e("s_cbranch_scc1 L_LOADER")

    SXB = sT4
    e(f"s_mul_i32 s{SXB}, s{sW}, {2*REG}")
    e(f"v_and_b32 v13, 31, v0")
    e(f"v_lshrrev_b32 v15, 5, v0")
    e(f"v_bfe_u32 v{vXR+1}, v13, 1, 3")
    e(f"v_xor_b32 v15, v15, v{vXR+1}")
    e(f"v_lshlrev_b32 v15, 4, v15")
    e(f"v_lshl_add_u32 v15, v13, 7, v15")
    e(f"v_add_u32 v{vXR}, s{SXB}, v15")
    for s_ in range(1, 4):
        e(f"v_xor_b32 v{vXR+s_}, {s_<<5}, v{vXR}")
    e(f"v_lshrrev_b32 v13, 5, v0")
    e(f"v_lshlrev_b32 v13, 9, v13")
    e(f"v_bfe_u32 v15, v0, 2, 2")
    e(f"v_lshl_add_u32 v13, v15, 6, v13")
    e(f"v_bfe_u32 v15, v0, 4, 1")
    e(f"v_lshl_add_u32 v13, v15, 5, v13")
    e(f"v_and_b32 v15, 3, v0")
    e(f"v_lshl_add_u32 v13, v15, 3, v13")
    e(f"v_add_u32 v{vWR}, {LDS_W}, v13")
    for i in range(32): e(f"v_mov_b32 v{OA+i}, 0")
    e("s_waitcnt lgkmcnt(0)")
    mk_rest()
    mk(S_X, 40, 41, 2097152)
    mk_w()
    stamp("issued")
    def xread1(lc, x, s_):
        a.lgop(f"ds_read_b128 {vr(XFr(lc,x,s_),4)}, v{vXR+s_} offset:{x*REG+(lc%3)*4096}", f"xr{lc}_{s_}")
    def wread1(t, m, u):
        lc = t >> 2
        a.lgop(f"ds_read_b64_tr_b16 {vr(WFr(t,m)+2*u,2)}, v{vWR} offset:{(lc%3)*WSLOT+m*4096+(t&3)*1024+u*256}", f"wf{t}")
    e("s_barrier")
    stamp("first data")
    mfma_full = mfma
    if opt.dbg == 16:
        def mfma(D, A, B, C):
            for h in range(2):
                cs = C if isinstance(C, str) else vr(C + 4 * h, 4)
                e(f"v_mfma_f32_16x16x32_bf16 {vr(D + 4*h, 4)}, {vr(A,4)}, {vr(B,4)}, {cs}")
    if opt.dbg == 17:
        def mfma(D, A, B, C): pass
    for m in range(3):
        for u in range(2): wread1(0, m, u)
    for x in range(2): xread1(0, x, 0)
    for m in range(3):
        for u in range(2): wread1(1, m, u)
    for s_ in range(1, 4):
        for x in range(2): xread1(0, x, s_)
    initq = init_list()
    NT = 29 if opt.tailopt else 32
    for t in range(NT):
        lc, s_ = t >> 2, t & 3
        if opt.stamps == 2 and t in (4, 8, 12, 16, 20, 24, 28): stamp(f"t{t}")
        if s_ == 2 and lc <= 6:
            a.lgall()
            e("s_barrier")
        a.lgwait(f"wf{t}")
        a.lgwait(f"xr{lc}_{s_}")
        R = [(t + 2, m, u) for m in range(3) for u in range(2)] if t + 2 < 32 else []
        X = [(lc + 1, x, 2 * (s_ - 2) + k) for k in range(2) for x in range(2)] if (s_ >= 2 and lc <= 6) else []
        C = (lambda r: "0") if t == 0 else (lambda r: r)
        xa, xb = XFr(lc, 0, s_), XFr(lc, 1, s_)
        def ini(n):
            if t >= 28:
                for _ in range(n):
                    if initq: e(initq.pop(0))
        mfma(AK(0), WFr(t, 0), xa, C(AK(0)))
        for r in R[0:2]: wread1(*r)
        ini(3)
        mfma(AK(1), WFr(t, 0), xb, C(AK(1)))
        for r in R[2:4]: wread1(*r)
        ini(3)
        mfma(AV(0), xa, WFr(t, 1), C(AV(0)))
        for r in R[4:6]: wread1(*r)
        ini(3)
        mfma(AV(1), xb, WFr(t, 1), C(AV(1)))
        for x in X[0:2]: xread1(*x)
        ini(3)
        mfma(AQ(0), WFr(t, 2), xa, C(AQ(0)))
        for x in X[2:4]: xread1(*x)
        ini(3)
        mfma(AQ(1), WFr(t, 2), xb, C(AQ(1)))
        ini(3)
    if not opt.tailopt:
        while initq: e(initq.pop(0))
    e(f"s_lshl_b32 s{sKVO}, s{sBH}, 6")
    e(f"s_lshl_b32 s{sT2}, s{sC}, 3")
    e(f"s_add_u32 s{sKVO}, s{sKVO}, s{sT2}")
    e(f"s_lshl_b32 s{sT2}, s{sW}, 1")
    e(f"s_add_u32 s{sKVO}, s{sKVO}, s{sT2}")
    e(f"s_lshl_b32 s{sKVO}, s{sKVO}, 12")
    e(f"s_add_u32 s{sKVO}, s{sKVO}, {WS_KV}")
    e(f"s_add_u32 s{sT1}, s{sKVO}, 4096")
    e(f"v_add_u32 v{vK}, s{SXB}, v{vL16}")
    cq = 0.25 * math.log2(math.e)
    e(f"s_mov_b32 s{sT2}, {hex(f32bits(cq))}")
    def k_epi(x, T):
        so = sKVO if x == 0 else sT1
        L = [("e", cvt(T + i, AK(x) + 2 * i, AK(x) + 2 * i + 1)) for i in range(8)]
        L += [("vm", f"buffer_store_dwordx4 {vr(T+4*i,4)}, v{vL16}, {srd(S_WS)}, s{so} offen offset:{i*1024} sc1") for i in range(2)]
        L += [("lg", f"ds_write_b128 v{vK}, {vr(T+4*i,4)} offset:{x*REG+i*1024}") for i in range(2)]
        return L
    def v_epi(x, T):
        so = sKVO if x == 0 else sT1
        L = [("e", cvt(T + i, AV(x) + 2 * i, AV(x) + 2 * i + 1)) for i in range(8)]
        L += [("vm", f"buffer_store_dwordx4 {vr(T+4*i,4)}, v{vL16}, {srd(S_WS)}, s{so} offen offset:{(2+i)*1024} sc1") for i in range(2)]
        L += [("lg", f"ds_write_b128 v{vK}, {vr(T+4*i,4)} offset:{x*REG+(2+i)*1024}") for i in range(2)]
        return L
    def q_epi(x, T):
        L = [("e", f"v_mul_f32 v{AQ(x)+i}, s{sT2}, v{AQ(x)+i}") for i in range(16)]
        L += [("e", cvt(T + i, AQ(x) + 2 * i, AQ(x) + 2 * i + 1)) for i in range(8)]
        L += [("lg", f"ds_write_b128 v{vK}, {vr(T+4*h,4)} offset:{x*REG+8192+h*1024}") for h in range(2)]
        return L
    def emit(items):
        for k, l in items:
            if k == "e": e(l)
            elif k == "vm": a.vmop(l, "kvs")
            else: a.lgop(l, "kvw")
    if opt.tailopt:
        for m in range(3):
            for u in range(2): wread1(31, m, u)
        xs = {t: (XFr(7, 0, t & 3), XFr(7, 1, t & 3)) for t in (29, 30, 31)}
        a.lgwait("wf30")
        for t in (29, 30):
            for x in range(2):
                mfma(AK(x), WFr(t, 0), xs[t][x], AK(x))
                for _ in range(8):
                    if initq: e(initq.pop(0))
        a.lgwait("wf31")
        for x in range(2):
            mfma(AK(x), WFr(31, 0), xs[31][x], AK(x))
            for _ in range(8):
                if initq: e(initq.pop(0))
        while initq: e(initq.pop(0))
        vm_ = [(x, t) for t in (29, 30, 31) for x in range(2)]
        ke = k_epi(0, TKA) + k_epi(1, TKB)
        for n, (x, t) in enumerate(vm_):
            mfma(AV(x), xs[t][x], WFr(t, 1), AV(x))
            if n == 1: e("s_nop 7"); e("s_nop 1")
            if n >= 2: emit(ke[:5]); del ke[:5]
        ve = v_epi(0, TVA) + v_epi(1, TVB)
        qm_ = [(x, t) for t in (29, 30, 31) for x in range(2)]
        for n, (x, t) in enumerate(qm_):
            mfma(AQ(x), WFr(t, 2), xs[t][x], AQ(x))
            if ke: emit(ke[:6]); del ke[:6]
            elif n >= 2: emit(ve[:6]); del ve[:6]
        emit(ke)
        stamp("gemm done")
        e("s_nop 3")
        emit(ve)
        e("s_nop 7")
        emit(q_epi(0, TQA)); emit(q_epi(1, TQB))
    else:
        stamp("gemm done")
        e("s_nop 7")
        emit(k_epi(0, TKA)); emit(k_epi(1, TKB)); emit(v_epi(0, TVA)); emit(v_epi(1, TVB))
        emit(q_epi(0, TQA)); emit(q_epi(1, TQB))
    mfma = mfma_full
    e(f"s_lshl_b32 s{sKVO}, s{sC}, 5")
    e(f"s_add_u32 s{sKVO}, s{sKVO}, s{sBH}")
    e(f"s_lshl_b32 s{sKVO}, s{sKVO}, 7")
    e(f"s_lshl_b32 s{sT3x}, s{sW}, 3")
    e(f"s_add_u32 s{sKVO}, s{sKVO}, s{sT3x}")
    e(f"s_add_u32 s{sKVO}, s{sKVO}, {WS_KVF}")
    e("s_branch L_B1")

    a.lab("L_LOADER")
    a.vm = []; a.lg = []
    sU, SXB2, SWG = sT5, sT4, sH
    e(f"s_sub_u32 s{sU}, s{sW}, 4")
    e(f"v_lshrrev_b32 v13, 2, v0")
    e(f"v_mul_u32_u24 v13, 3072, v13")
    e(f"v_and_b32 v15, 3, v0")
    e(f"v_lshl_add_u32 v13, v15, 4, v13")
    e(f"s_lshl_b32 s{sT1}, s{sHG}, 6")
    e(f"v_add_u32 v{vWO}, s{sT1}, v13")
    e(f"v_lshrrev_b32 v13, 3, v0")
    e(f"v_lshlrev_b32 v13, 10, v13")
    e(f"s_lshl_b32 s{sT1}, s{sC}, 3")
    e(f"s_lshl_b32 s{sT2}, s{sU}, 1")
    e(f"s_add_u32 s{sT1}, s{sT1}, s{sT2}")
    e(f"s_lshl_b32 s{sT1}, s{sT1}, 15")
    e(f"v_add_u32 v13, s{sT1}, v13")
    e(f"v_lshrrev_b32 v15, 4, v0")
    e(f"v_xor_b32 v15, v15, v0")
    e(f"v_and_b32 v15, 7, v15")
    e(f"v_lshl_add_u32 v{vXO}, v15, 4, v13")
    e(f"v_xor_b32 v{vXO+1}, 64, v{vXO}")
    e(f"v_add_u32 v{vXO+2}, 14336, v{vXO}")
    e(f"v_add_u32 v{vXO+3}, 21504, v{vXO+1}")
    e(f"v_add_u32 v{vXO+1}, 7168, v{vXO+1}")
    e(f"s_and_b32 s{sT1}, s{sJ}, 3")
    e(f"s_add_u32 s{sT1}, s{sT1}, s{sN3}")
    if opt.rot == 2:
        e(f"s_and_b32 s{sT0}, s{sT1}, 1")
        e(f"s_lshl_b32 s{sT0}, s{sT0}, 1")
    else:
        e(f"s_and_b32 s{sT0}, s{sT1}, {3 if opt.rot else 0}")
    e("s_waitcnt lgkmcnt(0)")
    mk_w()
    mk(S_X, 40, 41, 2097152)
    SWL, sXK, sWP = 40, 41, 42
    e(f"s_mul_i32 s{SXB2}, s{sU}, {2*REG}")
    e(f"s_mul_i32 s{SWG}, s{sU}, {16*3072}")
    e(f"s_lshl_b32 s{SWL}, s{sU}, 10")
    e(f"s_add_u32 s{SWL}, s{SWL}, {LDS_W}")
    e(f"s_lshl_b32 s{sXK}, s{sT0}, 8")
    MCOL = {0: 1, 1: 2, 2: 0}
    def issue(lc):
        if lc > 0:
            e(f"s_add_u32 s{sXK}, s{sXK}, 128")
            e(f"s_and_b32 s{sXK}, s{sXK}, 1023")
        e(f"s_mul_i32 s{sWP}, s{sXK}, 1536")
        e(f"s_add_u32 s{sWP}, s{sWP}, s{SWG}")
        for m in range(3):
            e(f"s_add_u32 m0, s{SWL}, {(lc%3)*WSLOT + m*4096}")
            e(f"s_add_u32 s{sT3x}, s{sWP}, {MCOL[m]*1024}")
            a.vmop(f"buffer_load_dwordx4 v{vWO}, {srd(S_W)}, s{sT3x} offen lds", f"c{lc}")
        for b in range(2):
            e(f"s_add_u32 m0, s{SXB2}, {b*REG + (lc%3)*4096}")
            e(f"s_add_u32 s{sT3x}, s{sXK}, {b*32768}")
            for i in range(4):
                a.vmop(f"buffer_load_dwordx4 v{vXO+i}, {srd(S_X)}, s{sT3x} offen offset:{i*1024} lds", f"c{lc}")
    issue(0); issue(1)
    mk_rest()
    e(f"s_or_b32 s{sT1}, s2, s{sU}")
    e(f"s_cmp_lg_u32 s{sT1}, 0")
    e("s_cbranch_scc1 L_NONCE_SKIP0")
    e(f"v_mov_b32 v13, 0")
    e(f"buffer_load_dword v14, v13, {srd(S_WS)}, 0 offen sc1")
    a.lab("L_NONCE_SKIP0")
    stamp("issued")
    a.vmwait("c0")
    e("s_barrier")
    stamp("first data")
    issue(2)
    e(f"s_or_b32 s{sT1}, s2, s{sU}")
    e(f"s_cmp_lg_u32 s{sT1}, 0")
    e("s_cbranch_scc1 L_NONCE_SKIP1")
    e("s_waitcnt vmcnt(11)")
    e(f"v_readfirstlane_b32 s{sT2}, v14")
    e(f"v_mov_b32 v13, 0")
    e("s_nop 3")
    e(f"s_add_u32 s{sT2}, s{sT2}, 1")
    e(f"s_max_u32 s{sT2}, s{sT2}, 1")
    e(f"v_mov_b32 v14, s{sT2}")
    e(f"buffer_store_dword v14, v13, {srd(S_DBG)}, 0 offen sc1")
    e(f"buffer_store_dword v14, v13, {srd(S_WS)}, 0 offen sc1")
    a.lab("L_NONCE_SKIP1")
    a.vmwait("c1")
    e("s_barrier")
    for j in range(6):
        if j + 3 <= 7: issue(j + 3)
        if j + 3 == 7:
            if opt.wopf:
                e(f"s_and_b32 s{sT2}, s{sJ}, 15")
                e(f"s_lshl_b32 s{sT2}, s{sT2}, 15")
                e(f"s_lshl_b32 s{sT3x}, s{sU}, 13")
                e(f"s_add_u32 s{sT2}, s{sT2}, s{sT3x}")
                e(f"v_lshlrev_b32 v15, 6, v0")
                e(f"s_cmp_lt_u32 s{sJ}, 16")
                e("s_cbranch_scc1 L_WOPF_A")
                e(f"buffer_load_dword v213, v15, {srd(S_WOB)}, s{sT2} offen")
                e(f"s_add_u32 s{sT2}, s{sT2}, 4096")
                e(f"buffer_load_dword v214, v15, {srd(S_WOB)}, s{sT2} offen")
                e("s_branch L_WOPF_E")
                a.lab("L_WOPF_A")
                e(f"buffer_load_dword v213, v15, {srd(S_WOA)}, s{sT2} offen")
                e(f"s_add_u32 s{sT2}, s{sT2}, 4096")
                e(f"buffer_load_dword v214, v15, {srd(S_WOA)}, s{sT2} offen")
                a.lab("L_WOPF_E")
                a.vm += ["wopf", "wopf"]
        if j + 2 <= 7: a.vmwait(f"c{j+2}")
        e("s_barrier")
    stamp("gemm done")
    for l in init_list(): e(l)
    for i in range(32): e(f"v_mov_b32 v{OA+i}, 0")
    e(f"s_cmp_lg_u32 s{sU}, 0")
    e("s_cbranch_scc1 L_B1")
    e(f"s_mov_b32 s{sSPIN}, 0")
    e(f"v_mov_b32 v15, 0")
    a.lab("L_TAG_LOOP")
    e(f"buffer_load_dword v14, v15, {srd(S_DBG)}, 0 offen sc1")
    e(f"s_add_u32 s{sSPIN}, s{sSPIN}, 1")
    e("s_waitcnt vmcnt(0)")
    e(f"v_readfirstlane_b32 s{sTAG}, v14")
    e("s_nop 3")
    e(f"s_cmp_lg_u32 s{sTAG}, 0")
    e("s_cbranch_scc1 L_TAG_OK")
    e(f"s_cmp_le_u32 s{sSPIN}, {opt.spin}")
    e("s_cbranch_scc1 L_TAG_LOOP")
    a.lab("L_TAG_OK")
    e(f"v_mov_b32 v15, {LDS_TAG}")
    e(f"ds_write_b32 v15, v14")
    a.lab("L_B1")
    a.vm = []; a.lg = []
    e("s_waitcnt lgkmcnt(0)")
    e("s_barrier")
    stamp("B1")
    e(f"v_mov_b32 v15, {LDS_TAG}")
    e(f"ds_read_b32 v14, v15")
    e(f"s_mul_i32 s{sT2}, s{sTAU}, {REG}")
    e(f"v_add_u32 v13, s{sT2}, v{vL16}")
    for h in range(2):
        e(f"ds_read_b128 {vr(QF+4*h,4)}, v13 offset:{8192+h*1024}")

    sTQ, sQ, sB3, sKH, sTT3, sOFA = 44, 45, 48, 49, 50, 51
    e(f"s_lshr_b32 s{sTQ}, s{sW}, 2")
    e(f"s_and_b32 s{sQ}, s{sW}, 3")
    e(f"s_lshr_b32 s{sB3}, s{sQ}, 1")
    e(f"s_and_b32 s{sKH}, s{sQ}, 1")
    e(f"s_and_b32 s{sT2}, s{sT3}, 3")
    e(f"s_sub_u32 s{sT3x}, 7, s{sT2}")
    e(f"s_cmp_eq_u32 s{sTQ}, 0")
    e(f"s_cselect_b32 s{sT2}, s{sT2}, s{sT3x}")
    e(f"s_lshr_b32 s{sTT3}, s{sT3}, 2")
    e(f"s_lshl_b32 s{sTT3}, s{sTT3}, 3")
    e(f"s_add_u32 s{sTT3}, s{sTT3}, s{sT2}")
    def kread(h, extra=0): e(f"ds_read_b128 {vr(KF+4*h,4)}, v{vK} offset:{h*1024+extra}")
    def vreads(h, extra=0):
        e(f"s_mov_b64 exec, s[{sVM}:{sVM+1}]")
        for s in range(2):
            e(f"ds_read_b128 {vr(VF+8*h+4*s,4)}, v{vK} offset:{2048+s*1024+h*256+extra}")
        e("s_mov_b64 exec, -1")
    def seg(h, prev, nxt, kx=0, vx=0):
        o = 1 - h
        S = SS + 16 * h; O = OA + 16 * h
        ex = lambda i: e(f"v_exp_f32 v{S+i}, v{S+i}")
        ex(0); ex(1)
        if prev: mfma(OA + 16 * o, VF + 8 * o + 4, PP + 4, OA + 16 * o)
        ex(2); ex(3)
        if nxt: vreads(o, vx)
        ex(4); ex(5)
        if nxt:
            mfma(SS + 16 * o, KF + 4 * o, QF + 4 * o, "0")
            kread(o, kx)
        ex(6); ex(7)
        for i in range(4): e(cvt(PP + i, S + 2 * i, S + 2 * i + 1))
        ex(8)
        e(f"s_waitcnt lgkmcnt({3 if nxt else 0})")
        ex(9)
        mfma(O, VF + 8 * h, PP, O)
        for i in range(10, 16): ex(i)
        for i in range(4, 8): e(cvt(PP + i, S + 2 * i, S + 2 * i + 1))
    def part(name, first_s, rest_s, cnt_s, hook=None):
        a.c(f"---- attention part {name} ----")
        e(f"v_add_u32 v{vK}, s{first_s}, v{vL16}")
        kread(0); kread(1); vreads(0); vreads(1)
        e(f"s_sub_u32 s{sT2}, s{rest_s}, s{first_s}")
        e(f"s_mov_b32 s{sCNT}, s{cnt_s}")
        e("s_waitcnt lgkmcnt(4)")
        if name == "OWN": e(f"v_readfirstlane_b32 s{sTAG}, v14")
        mfma(SS, KF, QF, MK)
        mfma(SS + 16, KF + 4, QF + 4, MK)
        e(f"v_add_u32 v{vK}, s{sT2}, v{vK}")
        kread(0); kread(1)
        e("s_nop 7")
        e("s_waitcnt lgkmcnt(2)")
        seg(0, prev=False, nxt=False)
        if hook: hook()
        e(f"s_cmp_eq_u32 s{sCNT}, 0")
        e(f"s_cbranch_scc1 L_{name}_LAST")
        e(f"s_sub_u32 s{sCNT}, s{sCNT}, 1")
        a.lab(f"L_{name}_LOOP")
        seg(1, prev=True, nxt=True, kx=REG, vx=0)
        seg(0, prev=True, nxt=True, kx=REG, vx=0)
        e(f"v_add_u32 v{vK}, {REG}, v{vK}")
        e(f"s_sub_u32 s{sCNT}, s{sCNT}, 1")
        e(f"s_cbranch_scc0 L_{name}_LOOP")
        a.lab(f"L_{name}_LAST")
        seg(1, prev=True, nxt=False)
        e("s_nop 1")
        mfma(OA + 16, VF + 12, PP + 4, OA + 16)
    def kvflag():
        e("s_waitcnt vmcnt(0)")
        e(f"v_lshlrev_b32 v13, 2, v0")
        e(f"v_mov_b32 v14, s{sTAG}")
        e("s_mov_b64 exec, 3")
        e(f"buffer_store_dword v14, v13, {srd(S_WS)}, s{sKVO} offen sc1")
        e("s_mov_b64 exec, -1")
    a.vm = []
    e(f"s_mul_i32 s{sT0}, s{sTAU}, {REG}")
    e(f"s_mov_b32 s{sT1}, 0")
    def hook():
        e(f"s_cmp_ge_u32 s{sW}, 4")
        e("s_cbranch_scc1 L_KVF_DONE")
        kvflag()
        a.lab("L_KVF_DONE")
    if opt.prio == 2:
        e(f"s_cmp_lt_u32 s{sW}, 4")
        e("s_cbranch_scc1 L_PRIO_SKIP")
        e("s_setprio 1")
        a.lab("L_PRIO_SKIP")
    part("OWN", sT0, sT1, sTAU, hook=hook)
    stamp("own done")
    def gate_loads():
        e(f"s_lshl_b32 s{sT2}, s{sTT3}, 15")
        e(f"s_lshl_b32 s{sT3x}, s{sQ}, 13")
        e(f"s_add_u32 s{sT2}, s{sT2}, s{sT3x}")
        e(f"buffer_load_dwordx4 {vr(GW,4)}, v{vL16}, {srd(S_GW)}, 0 offen")
        for i in range(8):
            e(f"buffer_load_dwordx4 {vr(GX+4*i,4)}, v{vL16}, {srd(S_X)}, s{sT2} offen offset:{(i&3)*1024}")
            if i == 3: e(f"s_add_u32 s{sT2}, s{sT2}, 4096")
    def wo_voff():
        e(f"v_lshrrev_b32 v13, 3, v0")
        e(f"v_lshlrev_b32 v13, 10, v13")
        e(f"v_bfe_u32 v15, v0, 4, 1")
        e(f"v_lshlrev_b32 v15, 2, v15")
        e(f"v_xor_b32 v15, v15, v0")
        e(f"v_and_b32 v15, 7, v15")
        e(f"v_lshl_add_u32 v14, v15, 4, v13")
    def wo_dma(S, heads, kh, ldsaddr):
        for i in heads:
            sg, cst = ldsaddr(i)
            for hf in range(2):
                e(f"s_add_u32 s{sT3x}, s{sT5}, {(256*kh + 16*i + 8*hf)*1024}")
                e(f"s_add_u32 m0, s{sg}, {cst + hf*1024}")
                e("s_nop 0")
                e(f"buffer_load_dwordx4 v14, {srd(S)}, s{sT3x} offen lds")
    def wo_lin(S, sg, sl, n):
        e(f"s_mov_b32 m0, s{sl}")
        e("s_nop 0")
        for i in range(n):
            e(f"buffer_load_dwordx4 v14, {srd(S)}, s{sg} offen lds")
            if i < n - 1:
                e(f"s_add_u32 m0, m0, 1024")
                e(f"s_add_u32 s{sg}, s{sg}, 8192")
    def wo_early():
        wo_voff()
        e(f"s_lshl_b32 s{sT5}, s{sN3}, 7")
        e(f"s_and_b32 s{sT0}, s{sTAU}, 1")
        e(f"s_lshl_b32 s{sT0}, s{sT0}, 18")
        e(f"s_add_u32 s{sT0}, s{sT0}, s{sT5}")
        e(f"s_lshl_b32 s{sT1}, s{sTAU}, 14")
        e(f"s_add_u32 s{sT1}, s{sT1}, {LDS_A0}")
        lab = f"L_WE_{opt._n}"; opt._n += 1
        e(f"s_cmp_ge_u32 s{sTAU}, 2")
        e(f"s_cbranch_scc1 {lab}_B")
        e(f"s_mov_b32 s{sT4}, s{sT0}")
        wo_lin(S_WOA, sT4, sT1, 16)
        e(f"s_branch {lab}_E")
        a.lab(f"{lab}_B")
        e(f"s_mov_b32 s{sT4}, s{sT0}")
        wo_lin(S_WOB, sT4, sT1, 16)
        a.lab(f"{lab}_E")
    def halo_poll_load():
        n = opt._n; opt._n += 1
        e(f"s_sub_u32 s{sT2}, s{sC}, 1")
        e(f"s_lshl_b32 s{sT3x}, s{sT2}, 5")
        e(f"s_add_u32 s{sT3x}, s{sT3x}, s{sBH}")
        e(f"s_lshl_b32 s{sT3x}, s{sT3x}, 7")
        e(f"s_lshl_b32 s{sT4}, s{sTAU}, 3")
        e(f"s_add_u32 s{sT3x}, s{sT3x}, s{sT4}")
        e(f"s_add_u32 s{sT3x}, s{sT3x}, {WS_KVF}")
        e(f"v_and_b32 v13, 1, v0")
        e(f"v_lshlrev_b32 v13, 2, v13")
        e(f"s_mov_b32 s{sSPIN}, 0")
        a.lab(f"L_KVF_LOOP{n}")
        e(f"buffer_load_dword v15, v13, {srd(S_WS)}, s{sT3x} offen sc1")
        e(f"s_add_u32 s{sSPIN}, s{sSPIN}, 1")
        e("s_waitcnt vmcnt(0)")
        e(f"v_cmp_ne_u32 vcc, s{sTAG}, v15")
        e(f"s_cmp_gt_u32 s{sSPIN}, {opt.spin}")
        e(f"s_cbranch_scc1 L_KVF_OK{n}")
        e(f"s_cbranch_vccnz L_KVF_LOOP{n}")
        a.lab(f"L_KVF_OK{n}")
        stamp("roleA")
        e(f"s_lshl_b32 s{sT3x}, s{sBH}, 6")
        e(f"s_lshl_b32 s{sT2}, s{sT2}, 3")
        e(f"s_add_u32 s{sT3x}, s{sT3x}, s{sT2}")
        e(f"s_lshl_b32 s{sT2}, s{sTAU}, 1")
        e(f"s_add_u32 s{sT3x}, s{sT3x}, s{sT2}")
        e(f"s_lshl_b32 s{sT3x}, s{sT3x}, 12")
        e(f"s_add_u32 s{sT3x}, s{sT3x}, {WS_KV}")
        for j in range(2):
            for i in range(4):
                e(f"buffer_load_dwordx4 {vr(HT+16*j+4*i,4)}, v{vL16}, {srd(S_WS)}, s{sT3x} offen offset:{i*1024} sc1")
            if j < 1: e(f"s_add_u32 s{sT3x}, s{sT3x}, 4096")
    def halo_write(younger):
        e(f"s_mul_i32 s{sT2}, s{sTAU}, {2*REG}")
        e(f"s_add_u32 s{sT2}, s{sT2}, 4096")
        e(f"v_add_u32 v13, s{sT2}, v{vL16}")
        for j in range(2):
            e(f"s_waitcnt vmcnt({younger+4-4*j})")
            for i in range(4):
                e(f"ds_write_b128 v13, {vr(HT+16*j+4*i,4)} offset:{j*REG+i*1024}")
    opt._n = 0
    NE = 16
    e(f"s_cmp_gt_u32 s{sTAU}, 3")
    e("s_cbranch_scc1 L_HALO_BAR")
    e(f"s_cmp_eq_u32 s{sC}, 0")
    e("s_cbranch_scc1 L_ROLE_C0")
    e(f"s_cmp_gt_u32 s{sTAU}, 1")
    e("s_cbranch_scc1 L_ROLE_HI")
    wo_early()
    halo_poll_load()
    gate_loads()
    halo_write(9)
    e("s_waitcnt lgkmcnt(0)")
    stamp("roleB")
    e("s_branch L_HALO_BAR")
    a.lab("L_ROLE_HI")
    halo_poll_load()
    wo_early()
    gate_loads()
    halo_write(NE + 9)
    e("s_waitcnt vmcnt(9) lgkmcnt(0)")
    stamp("roleB")
    e("s_branch L_HALO_BAR")
    a.lab("L_ROLE_C0")
    wo_early()
    gate_loads()
    e("s_waitcnt vmcnt(9)")
    a.lab("L_HALO_BAR")
    e(f"s_mov_b32 s{sT2}, 0xff800000")
    for r in range(16): e(f"v_xor_b32 v{MK+r}, s{sT2}, v{MK+r}")
    e("s_barrier")
    stamp("B2")
    e(f"s_cmp_lt_u32 s{sTAU}, 4")
    e("s_cbranch_scc1 L_LATE_E")
    wo_voff()
    e(f"s_sub_u32 s{sT2}, 7, s{sTAU}")
    e(f"s_lshl_b32 s{sT5}, s{sN3}, 7")
    e(f"s_and_b32 s{sT0}, s{sT2}, 1")
    e(f"s_lshl_b32 s{sT0}, s{sT0}, 18")
    e(f"s_add_u32 s{sT0}, s{sT0}, s{sT5}")
    e(f"s_add_u32 s{sT0}, s{sT0}, {128*1024}")
    e(f"s_mul_i32 s{sT1}, s{sT2}, {2*REG}")
    def late(S):
        for (reg, slot) in ((0, 8192), (1, 8192), (0, 0), (1, 0)):
            e(f"s_add_u32 s{sT3x}, s{sT1}, {reg*REG + slot}")
            wo_lin(S, sT0, sT3x, 4)
            e(f"s_add_u32 s{sT0}, s{sT0}, 8192")
    e(f"s_cmp_ge_u32 s{sT2}, 2")
    e("s_cbranch_scc1 L_LATE_B")
    late(S_WOA)
    e("s_branch L_LATE_G")
    a.lab("L_LATE_B")
    late(S_WOB)
    a.lab("L_LATE_G")
    gate_loads()
    if opt.prio: e("s_setprio 1")
    a.lab("L_LATE_E")
    e(f"s_cmp_eq_u32 s{sC}, 0")
    e("s_cbranch_scc1 L_P2_EPI")
    e(f"s_mul_i32 s{sT0}, s{sTAU}, {REG}")
    e(f"s_add_u32 s{sT0}, s{sT0}, 4096")
    e(f"s_add_u32 s{sT1}, s{sT0}, {REG}")
    e(f"s_sub_u32 s{sT4}, 7, s{sTAU}")
    part("HALO", sT0, sT1, sT4)
    a.lab("L_P2_EPI")
    stamp("attn done")
    lo, hi = f32bits(2.0 ** -64), f32bits(2.0 ** 64)
    e(f"s_mov_b32 s{sT0}, {hex(lo)}")
    e(f"s_mov_b32 s{sT1}, {hex(hi)}")
    e(f"s_lshl_b32 s{sKVO}, s{sTT}, 1")
    e(f"s_add_u32 s{sKVO}, s{sKVO}, s{sBR}")
    e(f"s_lshl_b32 s{sKVO}, s{sKVO}, 5")
    e(f"s_lshl_b32 s{sT3x}, s{sHG}, 1")
    e(f"s_add_u32 s{sKVO}, s{sKVO}, s{sT3x}")
    e(f"s_lshl_b32 s{sKVO}, s{sKVO}, 10")
    e(f"s_add_u32 s{sKVO}, s{sKVO}, {WS_O}")
    e("s_nop 7")
    if opt.fallback:
        for h in range(2):
            O = OA + 16 * h
            e(f"v_mul_f32 v13, 0, v{O}")
            for i in range(1, 8): e(f"v_fmac_f32 v13, 0, v{O+i}")
            e(f"v_cmp_nle_f32 vcc, s{sT0}, v{O+8}")
            e(f"s_mov_b64 s[74:75], vcc")
            e(f"v_cmp_nge_f32 vcc, s{sT1}, v{O+8}")
            e("s_or_b64 s[74:75], s[74:75], vcc")
            e(f"v_cmp_u_f32 vcc, v13, v13")
            e("s_or_b64 s[74:75], s[74:75], vcc")
            e("s_cmp_lg_u64 s[74:75], 0")
            e(f"s_cselect_b32 s{sT2}, {1<<h}, 0")
            e(f"s_or_b32 s{sFAIL}, s{sFAIL}, s{sT2}")
        e(f"s_cmp_eq_u32 s{sFAIL}, 0")
        e("s_cbranch_scc1 L_NOFB")
        fallback(a, opt, dict(SS=SS, PP=PP, KF=KF, MK=MK, OA=OA, QF=QF, vL16=vL16, HT=144))
        a.lab("L_NOFB")
    else:
        e("s_nop 7")
    for h in range(2):
        e(f"v_rcp_f32 v{13+h}, v{OA+16*h+8}")
    for h in range(2):
        O = OA + 16 * h
        for i in range(8): e(f"v_mul_f32 v{O+i}, v{O+i}, v{13+h}")
        for i in range(4): e(cvt(O + 8 + i, O + 2 * i, O + 2 * i + 1))
        e(f"buffer_store_dwordx4 {vr(O+8,4)}, v{vL16}, {srd(S_WS)}, s{sKVO} offen offset:{h*1024} sc1")
    WF3, OF3, AC3 = 16, 144, 208
    e(f"v_lshrrev_b32 v1, 5, v0")
    e(f"v_lshlrev_b32 v1, 9, v1")
    e(f"v_bfe_u32 v2, v0, 2, 2")
    e(f"v_lshl_add_u32 v1, v2, 7, v1")
    e(f"v_bfe_u32 v2, v0, 3, 1")
    e(f"v_lshl_add_u32 v1, v2, 6, v1")
    e(f"v_bfe_u32 v2, v0, 4, 1")
    e(f"v_lshl_add_u32 v1, v2, 5, v1")
    e(f"v_and_b32 v2, 3, v0")
    e(f"v_lshl_add_u32 v1, v2, 3, v1")
    e(f"s_lshl_b32 s{sT2}, s{sQ}, 14")
    e(f"s_add_u32 s{sT2}, s{sT2}, {LDS_A0}")
    e(f"s_mul_i32 s{sT3x}, s{sQ}, {2*REG}")
    e(f"v_xor_b32 v2, 64, v1")
    vA = [244, 245]; vB = [246, 247]
    e(f"v_add_u32 v{vA[0]}, s{sT2}, v1")
    e(f"v_add_u32 v{vA[1]}, s{sT2}, v2")
    e(f"v_add_u32 v{vB[0]}, s{sT3x}, v1")
    e(f"v_add_u32 v{vB[1]}, s{sT3x}, v2")
    def trw(i):
        for ct in range(2):
            for u in range(2):
                if i < 8: ad, off = vA[ct], i * 2048
                elif i < 12: ad, off = vB[ct], ((i - 8) >> 1) * REG + 8192 + ((i - 8) & 1) * 2048
                else: ad, off = vB[ct], ((i - 12) >> 1) * REG + ((i - 12) & 1) * 2048
                e(f"ds_read_b64_tr_b16 {vr(WF3+8*i+4*ct+2*u,2)}, v{ad} offset:{off+u*1024}")
    for i in range(8): trw(i)
    e(f"s_lshl_b32 s{sT2}, s{sTT}, 2")
    e(f"s_lshr_b32 s{sT3x}, s{sBH}, 3")
    e(f"s_add_u32 s{sT2}, s{sT2}, s{sT3x}")
    e(f"s_lshl_b32 s{sT2}, s{sT2}, 7")
    e(f"s_and_b32 s{sT3x}, s{sBH}, 7")
    e(f"s_lshl_b32 s{sT3x}, s{sT3x}, 2")
    e(f"s_add_u32 s{sT2}, s{sT2}, s{sT3x}")
    e(f"s_add_u32 s{sOFA}, s{sT2}, {WS_OF}")
    e(f"s_lshl_b32 s{sT1}, s{sTT3}, 2")
    e(f"s_add_u32 s{sT1}, s{sT1}, s{sQ}")
    e(f"s_lshl_b32 s{sT1}, s{sT1}, 7")
    e(f"s_add_u32 s{sT1}, s{sT1}, {WS_OF}")
    e(f"s_lshl_b32 s{sT0}, s{sTT3}, 1")
    e(f"s_add_u32 s{sT0}, s{sT0}, s{sB3}")
    e(f"s_lshl_b32 s{sT0}, s{sT0}, 5")
    e(f"s_lshl_b32 s{sT3x}, s{sKH}, 4")
    e(f"s_add_u32 s{sT0}, s{sT0}, s{sT3x}")
    e(f"s_lshl_b32 s{sT0}, s{sT0}, 10")
    e(f"s_add_u32 s{sT0}, s{sT0}, {WS_O}")
    def oflag():
        e(f"v_mov_b32 v13, 0")
        e(f"v_mov_b32 v14, s{sTAG}")
        e("s_waitcnt vmcnt(0)")
        e("s_mov_b64 exec, 1")
        e(f"buffer_store_dword v14, v13, {srd(S_WS)}, s{sOFA} offen sc1")
        e("s_mov_b64 exec, -1")
        stamp("O published")
    GR = 244 - 4 - 4
    def gate():
        for i in range(8): e(f"v_mov_b32 v{GA+i}, 0")
        for d in range(4):
            for i in range(8):
                e(f"v_dot2_f32_bf16 v{GA+i}, v{GX+4*i+d}, v{GW+d}, v{GA+i}")
        e("s_nop 4")
        for i in range(4): e(f"v_permlane32_swap_b32 v{GA+i}, v{GA+4+i}")
        for i in range(4): e(f"v_add_f32 v{GA+i}, v{GA+i}, v{GA+4+i}")
        e("s_nop 1")
        for i in range(2): e(f"v_permlane16_swap_b32 v{GA+i}, v{GA+2+i}")
        for i in range(2): e(f"v_add_f32 v{GA+i}, v{GA+i}, v{GA+2+i}")
        e("s_nop 1")
        for i in range(2): e(f"v_add_f32_dpp v{GA+i}, v{GA+i}, v{GA+i} row_ror:8 row_mask:0xf bank_mask:0xf")
        e("s_nop 1")
        e(f"v_mov_b32_dpp v{GA}, v{GA+1} quad_perm:[0,1,2,3] row_mask:0xf bank_mask:0xc")
        e("s_nop 1")
        e(f"v_add_f32_dpp v15, v{GA}, v{GA} quad_perm:[1,0,3,2] row_mask:0xf bank_mask:0xf")
        e("s_nop 1")
        e("v_add_f32_dpp v15, v15, v15 quad_perm:[2,3,0,1] row_mask:0xf bank_mask:0xf")
        e("s_nop 1")
        e("v_add_f32_dpp v15, v15, v15 row_half_mirror row_mask:0xf bank_mask:0xf")
        e("v_cvt_pk_bf16_f32 v15, v15, v15")
        e("v_and_b32 v15, 0xffff0000, v15")
        e(f"v_mul_f32 v15, {hex(f32bits(-math.log2(math.e)))}, v15")
        e("v_exp_f32 v15, v15")
        e("s_nop 0")
        e("v_add_f32 v15, 1.0, v15")
        e("v_rcp_f32 v15, v15")
        e("s_nop 0")
        e("v_cvt_pk_bf16_f32 v15, v15, v15")
        e(f"v_and_b32 v{GR}, 0xffff0000, v15")
        e(f"v_sub_f32 v15, 1.0, v{GR}")
        e("v_cvt_pk_bf16_f32 v15, v15, v15")
        e(f"v_and_b32 v{GR+1}, 0xffff0000, v15")
    def gate_write():
        e(f"v_lshrrev_b32 v15, 3, v0")
        e(f"s_lshl_b32 s{sT2}, s{sW}, 3")
        e(f"v_add_u32 v15, s{sT2}, v15")
        e(f"v_lshlrev_b32 v15, 2, v15")
        e(f"ds_write_b32 v15, v{GR} offset:{LDS_GATE}")
        e(f"ds_write_b32 v15, v{GR+1} offset:{LDS_GATE+256}")
    def poll(name, first_issued, sleep):
        e(f"s_mov_b32 s{sSPIN}, 0")
        if not first_issued:
            e(f"buffer_load_dword v14, v13, {srd(S_WS)}, s{sT1} offen sc1")
        a.lab(f"L_OF_LOOP{name}")
        e("s_waitcnt vmcnt(0)")
        e(f"v_cmp_ne_u32 vcc, s{sTAG}, v14")
        e(f"s_add_u32 s{sSPIN}, s{sSPIN}, 1")
        e(f"s_cbranch_vccz L_OF_OK{name}")
        e(f"s_cmp_gt_u32 s{sSPIN}, {opt.spin}")
        e(f"s_cbranch_scc1 L_OF_OK{name}")
        if sleep: e(f"s_sleep {sleep}")
        e(f"buffer_load_dword v14, v13, {srd(S_WS)}, s{sT1} offen sc1")
        e(f"s_branch L_OF_LOOP{name}")
        a.lab(f"L_OF_OK{name}")
    def oloads():
        for i in range(16):
            e(f"buffer_load_dwordx4 {vr(OF3+4*i,4)}, v{vL16}, {srd(S_WS)}, s{sT0} offen offset:{(i&3)*1024} sc1")
            if (i & 3) == 3 and i < 15: e(f"s_add_u32 s{sT0}, s{sT0}, 4096")
    def p3mfma(i0, i1):
        for i in range(i0, i1):
            e(f"s_waitcnt vmcnt({15-i})")
            for ct in range(2):
                mfma(AC3 + 16 * ct, WF3 + 8 * i + 4 * ct, OF3 + 4 * i, "0" if i == 0 else AC3 + 16 * ct)
    def late_part():
        gate_write()
        for i in range(8, 16): trw(i)
    def p3mfma2():
        for i in range(16):
            if i == 8: e("s_waitcnt lgkmcnt(0)")
            e(f"s_waitcnt vmcnt({15-i})")
            for ct in range(2):
                mfma(AC3 + 16 * ct, WF3 + 8 * i + 4 * ct, OF3 + 4 * i, "0" if i == 0 else AC3 + 16 * ct)
    e(f"s_cmp_eq_u32 s{sTQ}, 0")
    e("s_cbranch_scc1 L_P3_LATE")
    oflag()
    if opt.prio: e("s_setprio 0")
    gate()
    e(f"v_and_b32 v13, 7, v0")
    e(f"v_lshlrev_b32 v13, 2, v13")
    e(f"buffer_load_dword v14, v13, {srd(S_WS)}, s{sT1} offen sc1")
    e("s_waitcnt lgkmcnt(0)")
    e("s_barrier")
    stamp("B3")
    poll("E", True, opt.sleep)
    stamp("O flags seen")
    oloads()
    late_part()
    e("s_branch L_P3_J")
    a.lab("L_P3_LATE")
    e("s_waitcnt vmcnt(2)")
    gate()
    oflag()
    e(f"v_and_b32 v13, 7, v0")
    e(f"v_lshlrev_b32 v13, 2, v13")
    e("s_waitcnt lgkmcnt(0)")
    e("s_barrier")
    stamp("B3")
    e(f"buffer_load_dword v14, v13, {srd(S_WS)}, s{sT1} offen sc1")
    late_part()
    poll("L", True, 0)
    stamp("O flags seen")
    oloads()
    a.lab("L_P3_J")
    p3mfma2()
    stamp("P3 mfma")
    e(f"s_lshl_b32 s{sT2}, s{sTQ}, 15")
    e(f"s_lshl_b32 s{sT3x}, s{sQ}, 11")
    e(f"s_add_u32 s{sT3x}, s{sT3x}, s{sT2}")
    e(f"s_add_u32 s{sT3x}, s{sT3x}, {LDS_RB}")
    e(f"v_add_u32 v1, s{sT3x}, v{vL16}")
    e(f"s_lshl_b32 s{sT3x}, s{sQ}, 13")
    e(f"s_add_u32 s{sT3x}, s{sT3x}, s{sT2}")
    e(f"s_add_u32 s{sT3x}, s{sT3x}, {LDS_RB}")
    e(f"v_add_u32 v2, s{sT3x}, v{vL16}")
    e(f"v_and_b32 v4, 31, v0")
    e(f"s_lshl_b32 s{sT2}, s{sTQ}, 5")
    e(f"v_add_u32 v3, s{sT2}, v4")
    e(f"v_lshlrev_b32 v3, 2, v3")
    e(f"v_lshlrev_b32 v4, 10, v4")
    e(f"v_lshrrev_b32 v5, 5, v0")
    e(f"v_lshl_add_u32 v4, v5, 4, v4")
    e(f"s_lshl_b32 s{sT2}, s{sTT3}, 15")
    e(f"s_lshl_b32 s{sT3x}, s{sN3}, 7")
    e(f"s_add_u32 s{sT2}, s{sT2}, s{sT3x}")
    e(f"s_lshl_b32 s{sT3x}, s{sQ}, 5")
    e(f"s_add_u32 s{sT2}, s{sT2}, s{sT3x}")
    e("s_nop 1")
    for qq in range(4):
        for hf in range(2):
            e(f"ds_write_b128 v1, {vr(AC3+8*qq+4*hf,4)} offset:{qq*8192+hf*1024}")
    e("s_waitcnt lgkmcnt(0)")
    e("s_barrier")
    R = 144
    e(f"ds_read_b32 v5, v3 offset:{LDS_GATE}")
    e(f"ds_read_b32 v6, v3 offset:{LDS_GATE+256}")
    for src in range(4):
        for hf in range(2):
            e(f"ds_read_b128 {vr(R+8*src+4*hf,4)}, v2 offset:{src*2048+hf*1024}")
    e("s_waitcnt lgkmcnt(4)")
    for i in range(8): e(f"v_add_f32 v{R+i}, v{R+i}, v{R+8+i}")
    for i in range(8): e(f"v_mul_f32 v{R+i}, v{R+i}, v5")
    e("s_waitcnt lgkmcnt(0)")
    for i in range(8): e(f"v_add_f32 v{R+16+i}, v{R+16+i}, v{R+24+i}")
    for i in range(8): e(f"v_fmac_f32 v{R+i}, v{R+16+i}, v6")
    for i in range(4): e(cvt(R + 32 + i, R + 2 * i, R + 2 * i + 1))
    e("s_nop 1")
    e(f"v_permlane32_swap_b32 v{R+32}, v{R+34}")
    e(f"v_permlane32_swap_b32 v{R+33}, v{R+35}")
    e(f"buffer_store_dwordx4 {vr(R+32,4)}, v4, {srd(S_OUT)}, s{sT2} offen {opt.outmod}")
    if STAMPS:
        stamp("end")
        e(f"s_memtime s[{sTM}:{sTM+1}]")
        e("s_waitcnt lgkmcnt(0)")
        e(f"s_sub_u32 s{STREG[nst[0]]}, s{sTM}, s100")
        nst[0] += 1
        opt.stamp_names.append("CYCLES")
        n = nst[0]
        e(f"s_lshl_b32 s{sT2}, s2, 3")
        e(f"s_add_u32 s{sT2}, s{sT2}, s{sW}")
        e(f"s_lshl_b32 s{sT2}, s{sT2}, 7")
        e(f"s_add_u32 s{sT2}, s{sT2}, {WS_STAMP}")
        e("v_mov_b32 v13, 0")
        e("s_mov_b64 exec, 1")
        for i in range(n):
            e(f"v_mov_b32 v14, s{STREG[i]}")
            e(f"buffer_store_dword v14, v13, {srd(S_WS)}, s{sT2} offen offset:{4*i}")
            e("s_nop 0")
        e("s_mov_b64 exec, -1")
    e("s_waitcnt vmcnt(0)")
    a.lab("L_END")
    e("s_endpgm")
    a.lab("L_CODE_END")
    return a

def fallback(a, opt, R):
    e = a.e
    SS, PP, KF, MK, OA, QF, vL16, HT = (R[k] for k in "SS PP KF MK OA QF vL16 HT".split())
    TQ = 128; TM = 132; TB = 133; TO = 136; TV = 152; TC = 176
    S = SS
    sHH, sPASS, sPART, sTILE, sN = sH, 40, 41, 42, 43
    def mfma(D, A, B, C): e(mfma_s(D, A, B, C))
    a.c("==== fallback: true max ====")
    e(f"s_lshl_b32 s{sT2}, s{sC}, 5")
    e(f"s_add_u32 s{sT2}, s{sT2}, s{sBH}")
    e(f"s_lshl_b32 s{sT2}, s{sT2}, 7")
    e(f"s_add_u32 s{sT2}, s{sT2}, {WS_KVF}")
    e(f"v_and_b32 v13, 7, v0")
    e(f"v_lshlrev_b32 v13, 2, v13")
    e(f"s_mov_b32 s{sSPIN}, 0")
    a.lab("L_FB_FLAG")
    e(f"buffer_load_dword v14, v13, {srd(S_WS)}, s{sT2} offen sc1")
    e(f"s_add_u32 s{sSPIN}, s{sSPIN}, 1")
    e("s_waitcnt vmcnt(0)")
    e(f"v_cmp_ne_u32 vcc, s{sTAG}, v14")
    e(f"s_cmp_gt_u32 s{sSPIN}, {opt.spin}")
    e("s_cbranch_scc1 L_FB_FLAG_OK")
    e("s_cbranch_vccnz L_FB_FLAG")
    a.lab("L_FB_FLAG_OK")
    e(f"s_mov_b32 s{sHH}, 0")
    a.lab("L_FB_H")
    e(f"s_lshr_b32 s{sT2}, s{sFAIL}, s{sHH}")
    e(f"s_and_b32 s{sT2}, s{sT2}, 1")
    e(f"s_cmp_eq_u32 s{sT2}, 0")
    e("s_cbranch_scc1 L_FB_NEXT")
    e(f"s_cmp_eq_u32 s{sHH}, 0")
    e("s_cbranch_scc0 L_FB_Q1")
    for i in range(4): e(f"v_mov_b32 v{TQ+i}, v{QF+i}")
    e("s_branch L_FB_Q2")
    a.lab("L_FB_Q1")
    for i in range(4): e(f"v_mov_b32 v{TQ+i}, v{QF+4+i}")
    a.lab("L_FB_Q2")
    e(f"v_mov_b32 v{TM}, 0xff800000")
    for i in range(16): e(f"v_mov_b32 v{TO+i}, 0")
    for i in range(8): e(f"v_mov_b32 v{TV+i}, 0x3f803f80")
    e(f"s_mov_b32 s{sPASS}, 0")
    a.lab("L_FB_PASS")
    e(f"s_mov_b32 s{sPART}, 0")
    a.lab("L_FB_PART")
    e(f"s_cmp_eq_u32 s{sPART}, 0")
    e(f"s_cselect_b32 s{sTILE}, 0, s{sTAU}")
    e(f"s_cselect_b32 s{sN}, s{sTAU}, 7")
    a.lab("L_FB_TILE")
    e(f"s_cmp_eq_u32 s{sTILE}, s{sTAU}")
    e("s_cbranch_scc1 L_FB_MASK")
    for i in range(16): e(f"v_mov_b32 v{TC+i}, 0")
    e("s_branch L_FB_C")
    a.lab("L_FB_MASK")
    e(f"v_and_b32 v13, 31, v0")
    e(f"v_lshrrev_b32 v14, 5, v0")
    e(f"v_lshlrev_b32 v14, 2, v14")
    e(f"v_sub_u32 v13, v13, v14")
    e(f"s_cmp_eq_u32 s{sPART}, 0")
    e(f"s_cselect_b32 s{sT2}, 0, 0xff800000")
    for r in range(16):
        kk = (r & 3) + 8 * (r >> 2)
        e(f"v_subrev_u32 v{TC+r}, {kk}, v13")
        e(f"v_ashrrev_i32 v{TC+r}, 31, v{TC+r}")
        e(f"v_and_b32 v{TC+r}, 0xff800000, v{TC+r}")
        e(f"v_xor_b32 v{TC+r}, s{sT2}, v{TC+r}")
    a.lab("L_FB_C")
    e(f"s_sub_u32 s{sT2}, s{sC}, s{sPART}")
    e(f"s_lshl_b32 s{sT2}, s{sT2}, 3")
    e(f"s_add_u32 s{sT2}, s{sT2}, s{sTILE}")
    e(f"s_lshl_b32 s{sT3x}, s{sBH}, 6")
    e(f"s_add_u32 s{sT2}, s{sT2}, s{sT3x}")
    e(f"s_lshl_b32 s{sT2}, s{sT2}, 12")
    e(f"s_add_u32 s{sT2}, s{sT2}, {WS_KV}")
    e(f"s_lshl_b32 s{sT3x}, s{sHH}, 10")
    e(f"s_add_u32 s{sT3x}, s{sT3x}, s{sT2}")
    e(f"buffer_load_dwordx4 {vr(KF,4)}, v{vL16}, {srd(S_WS)}, s{sT3x} offen sc1")
    e(f"s_lshl_b32 s{sT3x}, s{sHH}, 8")
    e(f"s_add_u32 s{sT3x}, s{sT3x}, s{sT2}")
    e(f"s_mov_b64 exec, s[{sVM}:{sVM+1}]")
    e(f"buffer_load_dwordx4 {vr(TV,4)}, v{vL16}, {srd(S_WS)}, s{sT3x} offen offset:2048 sc1")
    e(f"buffer_load_dwordx4 {vr(TV+4,4)}, v{vL16}, {srd(S_WS)}, s{sT3x} offen offset:3072 sc1")
    e("s_mov_b64 exec, -1")
    e("s_waitcnt vmcnt(0)")
    mfma(S, KF, TQ, TC)
    e("s_nop 7"); e("s_nop 7")
    e(f"s_cmp_eq_u32 s{sPASS}, 0")
    e("s_cbranch_scc0 L_FB_P2")
    for i in range(8): e(f"v_max3_f32 v{TM}, v{TM}, v{S+2*i}, v{S+2*i+1}")
    e("s_branch L_FB_TNEXT")
    a.lab("L_FB_P2")
    for i in range(16): e(f"v_sub_f32 v{S+i}, v{S+i}, v{TM}")
    for i in range(16): e(f"v_exp_f32 v{S+i}, v{S+i}")
    e("s_nop 0")
    for i in range(8): e(cvt(PP + i, S + 2 * i, S + 2 * i + 1))
    e("s_nop 1")
    mfma(TO, TV, PP, TO)
    mfma(TO, TV + 4, PP + 4, TO)
    e("s_nop 7"); e("s_nop 7")
    a.lab("L_FB_TNEXT")
    e(f"s_add_u32 s{sTILE}, s{sTILE}, 1")
    e(f"s_cmp_le_u32 s{sTILE}, s{sN}")
    e("s_cbranch_scc1 L_FB_TILE")
    e(f"s_cmp_eq_u32 s{sC}, 0")
    e("s_cbranch_scc1 L_FB_PDONE")
    e(f"s_add_u32 s{sPART}, s{sPART}, 1")
    e(f"s_cmp_lt_u32 s{sPART}, 2")
    e("s_cbranch_scc1 L_FB_PART")
    a.lab("L_FB_PDONE")
    e(f"s_cmp_eq_u32 s{sPASS}, 0")
    e("s_cbranch_scc0 L_FB_STORE")
    e(f"v_mov_b32 v{TB}, v{TM}")
    e("s_nop 1")
    e(f"v_permlane32_swap_b32 v{TM}, v{TB}")
    e("s_nop 1")
    e(f"v_max_f32 v{TM}, v{TM}, v{TB}")
    e(f"s_mov_b32 s{sPASS}, 1")
    e("s_branch L_FB_PASS")
    a.lab("L_FB_STORE")
    e(f"s_cmp_eq_u32 s{sHH}, 0")
    e("s_cbranch_scc0 L_FB_S1")
    for i in range(16): e(f"v_mov_b32 v{OA+i}, v{TO+i}")
    e("s_branch L_FB_NEXT")
    a.lab("L_FB_S1")
    for i in range(16): e(f"v_mov_b32 v{OA+16+i}, v{TO+i}")
    a.lab("L_FB_NEXT")
    e(f"s_add_u32 s{sHH}, s{sHH}, 1")
    e(f"s_cmp_lt_u32 s{sHH}, 2")
    e("s_cbranch_scc1 L_FB_H")

def build(opt):
    opt.stamp_names = []
    a = gen(opt)
    hdr = []
    hdr.append(f"; @launch grid=(256,1,1) block=(512,1,1) lds={LDS_TOTAL}")
    hdr.append('.amdgcn_target "amdgcn-amd-amdhsa--gfx950"')
    hdr.append(".text")
    hdr.append(f".globl {KNAME}")
    hdr.append(".p2align 8")
    hdr.append(f".type {KNAME},@function")
    tail = f""".section .rodata,"a"
.p2align 6
.amdhsa_kernel {KNAME}
  .amdhsa_next_free_vgpr 256
  .amdhsa_next_free_sgpr 102
  .amdhsa_accum_offset 256
  .amdhsa_group_segment_fixed_size 0
  .amdhsa_kernarg_size 80
  .amdhsa_user_sgpr_count 2
  .amdhsa_user_sgpr_kernarg_segment_ptr 1
  .amdhsa_system_sgpr_workgroup_id_x 1
  .amdhsa_float_denorm_mode_32 3
.end_amdhsa_kernel
"""
    return "\n".join(hdr) + "\n" + a.text() + tail

def parse(argv=None):
    p = argparse.ArgumentParser()
    p.add_argument("-o", default="gated_mix__sliding_block__sliding_block__prompt.s")
    p.add_argument("--stamps", type=int, default=0)
    p.add_argument("--codepf", type=int, default=1)
    p.add_argument("--pace", type=float, default=1.6)
    p.add_argument("--rot", type=int, default=1)
    p.add_argument("--tailopt", type=int, default=1)
    p.add_argument("--eorder", type=int, default=1)
    p.add_argument("--prio", type=int, default=1)
    p.add_argument("--sleep", type=int, default=2)
    p.add_argument("--pf", type=int, default=0)
    p.add_argument("--bar0", type=int, default=1)
    p.add_argument("--dbg", type=int, default=0)
    p.add_argument("--cyc", type=int, default=0)
    p.add_argument("--wopf", type=int, default=1)
    p.add_argument("--fallback", type=int, default=1)
    p.add_argument("--spin", type=int, default=20000)
    p.add_argument("--outmod", default="")
    return p.parse_args(argv)

if __name__ == "__main__":
    opt = parse()
    s = build(opt)
    open(opt.o, "w").write(s)
    if opt.stamps:
        open(opt.o + ".stamps", "w").write("\n".join(opt.stamp_names))
    print("wrote", opt.o, len(s), "bytes")
```

```python
import sys, argparse, math, struct

KNAME = "gated_mix__sliding_block__sliding_block__prompt_kernel"

WS_NONCE = 0
WS_OF = 0x10000
WS_KVF = 0x4000
WS_KV = 0x100000
WS_O = 0x1000000
WS_STAMP = 0x1800000
WS_SIZE = 0x2000000

REG = 12288
LDS_W = 8 * REG
WPART = 24576
LDS_TOTAL = 163840
LDS_A0, LDS_A1 = 98304, 131072
LDS_GATE = 4096
LDS_RB = 98304

S_X, S_W, S_WOA, S_WOB, S_WS, S_OUT, S_GW, S_DBG = 8, 12, 16, 20, 24, 28, 32, 36
sW, sTAU, sC, sBH, sBR, sHG, sTT, sT3, sN3, sTAG, sJ = 60, 61, 62, 63, 64, 65, 66, 67, 68, 69, 70
sT0, sT1, sT2, sT3x, sT4, sT5 = 71, 72, 73, 74, 75, 76
sCNT, sSPIN, sFAIL = 77, 80, 81
sVM = 78
sKVO = 82
sH = 83
STREG = list(range(84, 98)) + [3, 6, 7, 46, 47]
sTM = 98
sXB, sWG, sWL = 40, 41, 42

def srd(b): return f"s[{b}:{b+3}]"
def vr(b, n=1): return f"v{b}" if n == 1 else f"v[{b}:{b+n-1}]"

class Asm:
    def __init__(self):
        self.lines = []; self.vm = []; self.lg = []
    def e(self, s): self.lines.append("  " + s)
    def c(self, s): self.lines.append("  ; " + s)
    def lab(self, s): self.lines.append(s + ":")
    def vmop(self, s, tag): self.e(s); self.vm.append(tag)
    def lgop(self, s, tag): self.e(s); self.lg.append(tag)
    def _n(self, q, tag, mx):
        idx = max(i for i, t in enumerate(q) if t == tag)
        return min(len(q) - 1 - idx, mx)
    def vmwait(self, tag):
        if tag not in self.vm: return
        n = self._n(self.vm, tag, 63)
        self.e(f"s_waitcnt vmcnt({n})")
        self.vm = self.vm[len(self.vm) - n:] if n > 0 else []
    def lgwait(self, tag):
        if tag not in self.lg: return
        n = self._n(self.lg, tag, 15)
        self.e(f"s_waitcnt lgkmcnt({n})")
        self.lg = self.lg[len(self.lg) - n:] if n > 0 else []
    def vmall(self): self.e("s_waitcnt vmcnt(0)"); self.vm = []
    def lgall(self): self.e("s_waitcnt lgkmcnt(0)"); self.lg = []
    def text(self): return "\n".join(self.lines) + "\n"

def f32bits(x): return struct.unpack("<I", struct.pack("<f", x))[0]
def mfma_s(D, A, B, C):
    cs = C if isinstance(C, str) else vr(C, 16)
    return f"v_mfma_f32_32x32x16_bf16 {vr(D,16)}, {vr(A,4)}, {vr(B,4)}, {cs}"
def cvt(dst, s0, s1): return f"v_cvt_pk_bf16_f32 v{dst}, v{s0}, v{s1}"

def gen(opt):
    a = Asm()
    e = a.e
    mfma = lambda D, A, B, C: e(mfma_s(D, A, B, C))
    STAMPS = opt.stamps
    nst = [0]
    def stamp(name, inner=False):
        if not STAMPS: return
        if STAMPS == 4 and not inner:
            if name in ("entry", "first data", "gemm done", "B1", "B2", "attn done", "B3", "end"):
                opt.cyc = 0; stamp(name, True)
                if name not in ("entry", "end"):
                    opt.cyc = 1; stamp(name + " cyc", True); opt.cyc = 0
            return
        if STAMPS == 3 and name in ("own done", "B2", "attn done", "O published", "B3", "B4", "O flags seen", "P3 mfma", "roleA", "roleB"): return
        if STAMPS == 2 and name in ("own done", "B2", "attn done", "O published", "B3", "B4", "O flags seen", "P3 mfma"): return
        if name in opt.stamp_names:
            i = opt.stamp_names.index(name)
            e("s_waitcnt lgkmcnt(0)")
            e(f"{'s_memtime' if opt.cyc else 's_memrealtime'} s[{sTM}:{sTM+1}]")
            e("s_waitcnt lgkmcnt(0)")
            e(f"s_mov_b32 s{STREG[i]}, s{sTM}")
            return
        i = nst[0]; nst[0] += 1
        assert i < len(STREG)
        a.c(f"stamp {i}: {name}")
        e("s_waitcnt lgkmcnt(0)"); a.lg = []
        e(f"{'s_memtime' if opt.cyc else 's_memrealtime'} s[{sTM}:{sTM+1}]")
        e("s_waitcnt lgkmcnt(0)")
        e(f"s_mov_b32 s{STREG[i]}, s{sTM}")
        opt.stamp_names.append(name)

    vXO = 1; vXR = 5; vWO = 9; vWR = 10; vL16 = 12
    XF = 16
    WF = 80
    ACC = 116
    def AQ(x): return ACC + 48 * x
    def AK(x): return ACC + 48 * x + 16
    def AV(x): return ACC + 48 * x + 32
    def XFr(lc, x, s): return XF + 32 * (lc & 1) + 16 * x + 4 * s
    def WFr(t, m): return WF + 12 * (t % 3) + 4 * m
    OA = 216; QF = 248; MK = 16; VF = 32
    SS = 160; PP = 48; KF = 56; HT = 64
    vK = 1
    vD = 13
    GX, GW, GA = 96, 208, 212
    WSLOT = 12288
    TKA, TKB, TVA, TVB, TQA, TQB = 248, 4, ACC + 16, ACC + 64, ACC + 32, ACC + 80
    LDS_TAG = 8192 + 2048

    a.lab(KNAME)
    e("s_cmp_ge_u32 s2, 256")
    e("s_cbranch_scc1 L_END")
    if STAMPS:
        e("s_memtime s[100:101]")
        stamp("entry")
    e("s_getpc_b64 s[4:5]")
    a.lab("L_PC")
    e("s_load_dwordx4 s[40:43], s[0:1], 0")
    e("s_load_dwordx4 s[48:51], s[0:1], 32")
    e("v_lshlrev_b32 v13, 6, v0")
    e("s_load_dwordx2 s[44:45], s[0:1], 16")
    e("s_load_dwordx4 s[52:55], s[0:1], 48")
    e("s_load_dwordx4 s[56:59], s[0:1], 64")
    e("v_min_u32 v13, L_CODE_END-L_PC-4, v13")
    if opt.codepf:
        e(f"global_load_dword v213, v13, s[4:5]")
    e("v_lshrrev_b32 v15, 6, v0")
    e("v_and_b32 v0, 63, v0")
    e(f"s_and_b32 s{sT0}, s2, 7")
    e(f"v_readfirstlane_b32 s{sW}, v15")
    e(f"s_lshr_b32 s{sJ}, s2, 3")
    e(f"s_and_b32 s{sT1}, s{sT0}, 1")
    e(f"s_lshl_b32 s{sT1}, s{sT1}, 2")
    e(f"s_and_b32 s{sT2}, s{sJ}, 3")
    e(f"s_add_u32 s{sC}, s{sT1}, s{sT2}")
    e(f"s_lshr_b32 s{sT1}, s{sT0}, 1")
    e(f"s_lshl_b32 s{sT1}, s{sT1}, 3")
    e(f"s_lshr_b32 s{sN3}, s{sJ}, 2")
    e(f"s_add_u32 s{sBH}, s{sT1}, s{sN3}")
    e(f"s_lshr_b32 s{sBR}, s{sBH}, 4")
    e(f"s_and_b32 s{sHG}, s{sBH}, 15")
    e(f"s_lshl_b32 s{sT3}, s{sT0}, 2")
    e(f"s_add_u32 s{sT3}, s{sT3}, s{sT2}")
    e(f"s_sub_u32 s{sT1}, 11, s{sW}")
    e(f"s_cmp_lt_u32 s{sW}, 4")
    e(f"s_cselect_b32 s{sTAU}, s{sW}, s{sT1}")
    e(f"s_lshl_b32 s{sTT}, s{sC}, 3")
    e(f"s_add_u32 s{sTT}, s{sTT}, s{sTAU}")
    e(f"v_lshlrev_b32 v{vL16}, 4, v0")
    def mk(b, lo, hi, size):
        e(f"s_mov_b32 s{b}, s{lo}"); e(f"s_mov_b32 s{b+1}, s{hi}")
        e(f"s_mov_b32 s{b+2}, {size}"); e(f"s_mov_b32 s{b+3}, 0x00020000")
    def mk_w():
        e(f"s_cmp_eq_u32 s{sBR}, 0")
        e(f"s_cselect_b32 s{S_W}, s42, s48")
        e(f"s_cselect_b32 s{S_W+1}, s43, s49")
        e(f"s_mov_b32 s{S_W+2}, 1572864"); e(f"s_mov_b32 s{S_W+3}, 0x00020000")
    def mk_rest():
        mk(S_WS, 58, 59, WS_SIZE)
        mk(S_DBG, 56, 57, 256)
        mk(S_OUT, 54, 55, 2097152)
        mk(S_GW, 52, 53, 1024)
        mk(S_WOA, 44, 45, 524288)
        mk(S_WOB, 50, 51, 524288)
        e(f"s_mov_b32 s{sVM}, 0x0000ffff")
        e(f"s_mov_b32 s{sVM+1}, 0x0000ffff")
        e(f"s_mov_b32 s{sFAIL}, 0")
    def init_list():
        q = [f"v_and_b32 v{vD}, 31, v0", f"v_lshrrev_b32 v{vD+2}, 5, v0", f"v_lshlrev_b32 v{vD+2}, 2, v{vD+2}", f"v_sub_u32 v{vD}, v{vD}, v{vD+2}"]
        for r in range(16):
            kk = (r & 3) + 8 * (r >> 2)
            q += [f"v_subrev_u32 v{MK+r}, {kk}, v{vD}", f"v_ashrrev_i32 v{MK+r}, 31, v{MK+r}", f"v_and_b32 v{MK+r}, 0xff800000, v{MK+r}"]
        q += [f"v_mov_b32 v{VF+i}, 0x3f803f80" for i in range(16)]
        return q
    e(f"s_cmp_ge_u32 s{sW}, 4")
    e("s_cbranch_scc1 L_LOADER")

    SXB = sT4
    e(f"s_mul_i32 s{SXB}, s{sW}, {2*REG}")
    e(f"v_and_b32 v13, 31, v0")
    e(f"v_lshrrev_b32 v15, 5, v0")
    e(f"v_bfe_u32 v{vXR+1}, v13, 1, 3")
    e(f"v_xor_b32 v15, v15, v{vXR+1}")
    e(f"v_lshlrev_b32 v15, 4, v15")
    e(f"v_lshl_add_u32 v15, v13, 7, v15")
    e(f"v_add_u32 v{vXR}, s{SXB}, v15")
    for s_ in range(1, 4):
        e(f"v_xor_b32 v{vXR+s_}, {s_<<5}, v{vXR}")
    e(f"v_lshrrev_b32 v13, 5, v0")
    e(f"v_lshlrev_b32 v13, 9, v13")
    e(f"v_bfe_u32 v15, v0, 2, 2")
    e(f"v_lshl_add_u32 v13, v15, 6, v13")
    e(f"v_bfe_u32 v15, v0, 4, 1")
    e(f"v_lshl_add_u32 v13, v15, 5, v13")
    e(f"v_and_b32 v15, 3, v0")
    e(f"v_lshl_add_u32 v13, v15, 3, v13")
    e(f"v_add_u32 v{vWR}, {LDS_W}, v13")
    for i in range(32): e(f"v_mov_b32 v{OA+i}, 0")
    e("s_waitcnt lgkmcnt(0)")
    mk_rest()
    mk(S_X, 40, 41, 2097152)
    mk_w()
    stamp("issued")
    def xread1(lc, x, s_):
        a.lgop(f"ds_read_b128 {vr(XFr(lc,x,s_),4)}, v{vXR+s_} offset:{x*REG+(lc%3)*4096}", f"xr{lc}_{s_}")
    def wread1(t, m, u):
        lc = t >> 2
        a.lgop(f"ds_read_b64_tr_b16 {vr(WFr(t,m)+2*u,2)}, v{vWR} offset:{(lc%3)*WSLOT+m*4096+(t&3)*1024+u*256}", f"wf{t}")
    e("s_barrier")
    stamp("first data")
    mfma_full = mfma
    if opt.dbg == 16:
        def mfma(D, A, B, C):
            for h in range(2):
                cs = C if isinstance(C, str) else vr(C + 4 * h, 4)
                e(f"v_mfma_f32_16x16x32_bf16 {vr(D + 4*h, 4)}, {vr(A,4)}, {vr(B,4)}, {cs}")
    if opt.dbg == 17:
        def mfma(D, A, B, C): pass
    for m in range(3):
        for u in range(2): wread1(0, m, u)
    for x in range(2): xread1(0, x, 0)
    for m in range(3):
        for u in range(2): wread1(1, m, u)
    for s_ in range(1, 4):
        for x in range(2): xread1(0, x, s_)
    initq = init_list()
    NT = 29 if opt.tailopt else 32
    for t in range(NT):
        lc, s_ = t >> 2, t & 3
        if opt.stamps == 2 and t in (4, 8, 12, 16, 20, 24, 28): stamp(f"t{t}")
        if s_ == 2 and lc <= 6:
            a.lgall()
            e("s_barrier")
        a.lgwait(f"wf{t}")
        a.lgwait(f"xr{lc}_{s_}")
        R = [(t + 2, m, u) for m in range(3) for u in range(2)] if t + 2 < 32 else []
        X = [(lc + 1, x, 2 * (s_ - 2) + k) for k in range(2) for x in range(2)] if (s_ >= 2 and lc <= 6) else []
        C = (lambda r: "0") if t == 0 else (lambda r: r)
        xa, xb = XFr(lc, 0, s_), XFr(lc, 1, s_)
        def ini(n):
            if t >= 28:
                for _ in range(n):
                    if initq: e(initq.pop(0))
        mfma(AK(0), WFr(t, 0), xa, C(AK(0)))
        for r in R[0:2]: wread1(*r)
        ini(3)
        mfma(AK(1), WFr(t, 0), xb, C(AK(1)))
        for r in R[2:4]: wread1(*r)
        ini(3)
        mfma(AV(0), xa, WFr(t, 1), C(AV(0)))
        for r in R[4:6]: wread1(*r)
        ini(3)
        mfma(AV(1), xb, WFr(t, 1), C(AV(1)))
        for x in X[0:2]: xread1(*x)
        ini(3)
        mfma(AQ(0), WFr(t, 2), xa, C(AQ(0)))
        for x in X[2:4]: xread1(*x)
        ini(3)
        mfma(AQ(1), WFr(t, 2), xb, C(AQ(1)))
        ini(3)
    if not opt.tailopt:
        while initq: e(initq.pop(0))
    e(f"s_lshl_b32 s{sKVO}, s{sBH}, 6")
    e(f"s_lshl_b32 s{sT2}, s{sC}, 3")
    e(f"s_add_u32 s{sKVO}, s{sKVO}, s{sT2}")
    e(f"s_lshl_b32 s{sT2}, s{sW}, 1")
    e(f"s_add_u32 s{sKVO}, s{sKVO}, s{sT2}")
    e(f"s_lshl_b32 s{sKVO}, s{sKVO}, 12")
    e(f"s_add_u32 s{sKVO}, s{sKVO}, {WS_KV}")
    e(f"s_add_u32 s{sT1}, s{sKVO}, 4096")
    e(f"v_add_u32 v{vK}, s{SXB}, v{vL16}")
    cq = 0.25 * math.log2(math.e)
    e(f"s_mov_b32 s{sT2}, {hex(f32bits(cq))}")
    def k_epi(x, T):
        so = sKVO if x == 0 else sT1
        L = [("e", cvt(T + i, AK(x) + 2 * i, AK(x) + 2 * i + 1)) for i in range(8)]
        L += [("vm", f"buffer_store_dwordx4 {vr(T+4*i,4)}, v{vL16}, {srd(S_WS)}, s{so} offen offset:{i*1024} sc1") for i in range(2)]
        L += [("lg", f"ds_write_b128 v{vK}, {vr(T+4*i,4)} offset:{x*REG+i*1024}") for i in range(2)]
        return L
    def v_epi(x, T):
        so = sKVO if x == 0 else sT1
        L = [("e", cvt(T + i, AV(x) + 2 * i, AV(x) + 2 * i + 1)) for i in range(8)]
        L += [("vm", f"buffer_store_dwordx4 {vr(T+4*i,4)}, v{vL16}, {srd(S_WS)}, s{so} offen offset:{(2+i)*1024} sc1") for i in range(2)]
        L += [("lg", f"ds_write_b128 v{vK}, {vr(T+4*i,4)} offset:{x*REG+(2+i)*1024}") for i in range(2)]
        return L
    def q_epi(x, T):
        L = [("e", f"v_mul_f32 v{AQ(x)+i}, s{sT2}, v{AQ(x)+i}") for i in range(16)]
        L += [("e", cvt(T + i, AQ(x) + 2 * i, AQ(x) + 2 * i + 1)) for i in range(8)]
        L += [("lg", f"ds_write_b128 v{vK}, {vr(T+4*h,4)} offset:{x*REG+8192+h*1024}") for h in range(2)]
        return L
    def emit(items):
        for k, l in items:
            if k == "e": e(l)
            elif k == "vm": a.vmop(l, "kvs")
            else: a.lgop(l, "kvw")
    if opt.tailopt:
        for m in range(3):
            for u in range(2): wread1(31, m, u)
        xs = {t: (XFr(7, 0, t & 3), XFr(7, 1, t & 3)) for t in (29, 30, 31)}
        a.lgwait("wf30")
        for t in (29, 30):
            for x in range(2):
                mfma(AK(x), WFr(t, 0), xs[t][x], AK(x))
                for _ in range(8):
                    if initq: e(initq.pop(0))
        a.lgwait("wf31")
        for x in range(2):
            mfma(AK(x), WFr(31, 0), xs[31][x], AK(x))
            for _ in range(8):
                if initq: e(initq.pop(0))
        while initq: e(initq.pop(0))
        vm_ = [(x, t) for t in (29, 30, 31) for x in range(2)]
        ke = k_epi(0, TKA) + k_epi(1, TKB)
        for n, (x, t) in enumerate(vm_):
            mfma(AV(x), xs[t][x], WFr(t, 1), AV(x))
            if n == 1: e("s_nop 7"); e("s_nop 1")
            if n >= 2: emit(ke[:5]); del ke[:5]
        ve = v_epi(0, TVA) + v_epi(1, TVB)
        qm_ = [(x, t) for t in (29, 30, 31) for x in range(2)]
        for n, (x, t) in enumerate(qm_):
            mfma(AQ(x), WFr(t, 2), xs[t][x], AQ(x))
            if ke: emit(ke[:6]); del ke[:6]
            elif n >= 2: emit(ve[:6]); del ve[:6]
        emit(ke)
        stamp("gemm done")
        e("s_nop 3")
        emit(ve)
        e("s_nop 7")
        emit(q_epi(0, TQA)); emit(q_epi(1, TQB))
    else:
        stamp("gemm done")
        e("s_nop 7")
        emit(k_epi(0, TKA)); emit(k_epi(1, TKB)); emit(v_epi(0, TVA)); emit(v_epi(1, TVB))
        emit(q_epi(0, TQA)); emit(q_epi(1, TQB))
    mfma = mfma_full
    e(f"s_lshl_b32 s{sKVO}, s{sC}, 5")
    e(f"s_add_u32 s{sKVO}, s{sKVO}, s{sBH}")
    e(f"s_lshl_b32 s{sKVO}, s{sKVO}, 7")
    e(f"s_lshl_b32 s{sT3x}, s{sW}, 3")
    e(f"s_add_u32 s{sKVO}, s{sKVO}, s{sT3x}")
    e(f"s_add_u32 s{sKVO}, s{sKVO}, {WS_KVF}")
    e("s_branch L_B1")

    a.lab("L_LOADER")
    a.vm = []; a.lg = []
    sU, SXB2, SWG = sT5, sT4, sH
    e(f"s_sub_u32 s{sU}, s{sW}, 4")
    e(f"v_lshrrev_b32 v13, 2, v0")
    e(f"v_mul_u32_u24 v13, 3072, v13")
    e(f"v_and_b32 v15, 3, v0")
    e(f"v_lshl_add_u32 v13, v15, 4, v13")
    e(f"s_lshl_b32 s{sT1}, s{sHG}, 6")
    e(f"v_add_u32 v{vWO}, s{sT1}, v13")
    e(f"v_lshrrev_b32 v13, 3, v0")
    e(f"v_lshlrev_b32 v13, 10, v13")
    e(f"s_lshl_b32 s{sT1}, s{sC}, 3")
    e(f"s_lshl_b32 s{sT2}, s{sU}, 1")
    e(f"s_add_u32 s{sT1}, s{sT1}, s{sT2}")
    e(f"s_lshl_b32 s{sT1}, s{sT1}, 15")
    e(f"v_add_u32 v13, s{sT1}, v13")
    e(f"v_lshrrev_b32 v15, 4, v0")
    e(f"v_xor_b32 v15, v15, v0")
    e(f"v_and_b32 v15, 7, v15")
    e(f"v_lshl_add_u32 v{vXO}, v15, 4, v13")
    e(f"v_xor_b32 v{vXO+1}, 64, v{vXO}")
    e(f"v_add_u32 v{vXO+2}, 14336, v{vXO}")
    e(f"v_add_u32 v{vXO+3}, 21504, v{vXO+1}")
    e(f"v_add_u32 v{vXO+1}, 7168, v{vXO+1}")
    e(f"s_and_b32 s{sT1}, s{sJ}, 3")
    e(f"s_add_u32 s{sT1}, s{sT1}, s{sN3}")
    if opt.rot == 2:
        e(f"s_and_b32 s{sT0}, s{sT1}, 1")
        e(f"s_lshl_b32 s{sT0}, s{sT0}, 1")
    else:
        e(f"s_and_b32 s{sT0}, s{sT1}, {3 if opt.rot else 0}")
    e("s_waitcnt lgkmcnt(0)")
    mk_w()
    mk(S_X, 40, 41, 2097152)
    SWL, sXK, sWP = 40, 41, 42
    e(f"s_mul_i32 s{SXB2}, s{sU}, {2*REG}")
    e(f"s_mul_i32 s{SWG}, s{sU}, {16*3072}")
    e(f"s_lshl_b32 s{SWL}, s{sU}, 10")
    e(f"s_add_u32 s{SWL}, s{SWL}, {LDS_W}")
    e(f"s_lshl_b32 s{sXK}, s{sT0}, 8")
    MCOL = {0: 1, 1: 2, 2: 0}
    def wo_pf():
        e(f"s_and_b32 s{sT2}, s{sJ}, 15")
        e(f"s_lshl_b32 s{sT2}, s{sT2}, 15")
        e(f"s_lshl_b32 s{sT3x}, s{sU}, 13")
        e(f"s_add_u32 s{sT2}, s{sT2}, s{sT3x}")
        e(f"v_lshlrev_b32 v15, 6, v0")
        e(f"s_cmp_lt_u32 s{sJ}, 16")
        e("s_cbranch_scc1 L_WOPF_A")
        e(f"buffer_load_dword v213, v15, {srd(S_WOB)}, s{sT2} offen")
        e(f"s_add_u32 s{sT2}, s{sT2}, 4096")
        e(f"buffer_load_dword v214, v15, {srd(S_WOB)}, s{sT2} offen")
        e("s_branch L_WOPF_E")
        a.lab("L_WOPF_A")
        e(f"buffer_load_dword v213, v15, {srd(S_WOA)}, s{sT2} offen")
        e(f"s_add_u32 s{sT2}, s{sT2}, 4096")
        e(f"buffer_load_dword v214, v15, {srd(S_WOA)}, s{sT2} offen")
        a.lab("L_WOPF_E")
        a.vm += ["wopf", "wopf"]
    def issue(lc):
        if lc > 0:
            e(f"s_add_u32 s{sXK}, s{sXK}, 128")
            e(f"s_and_b32 s{sXK}, s{sXK}, 1023")
        e(f"s_mul_i32 s{sWP}, s{sXK}, 1536")
        e(f"s_add_u32 s{sWP}, s{sWP}, s{SWG}")
        for m in range(3):
            e(f"s_add_u32 m0, s{SWL}, {(lc%3)*WSLOT + m*4096}")
            e(f"s_add_u32 s{sT3x}, s{sWP}, {MCOL[m]*1024}")
            a.vmop(f"buffer_load_dwordx4 v{vWO}, {srd(S_W)}, s{sT3x} offen lds", f"c{lc}")
        for b in range(2):
            e(f"s_add_u32 m0, s{SXB2}, {b*REG + (lc%3)*4096}")
            e(f"s_add_u32 s{sT3x}, s{sXK}, {b*32768}")
            for i in range(4):
                a.vmop(f"buffer_load_dwordx4 v{vXO+i}, {srd(S_X)}, s{sT3x} offen offset:{i*1024} lds", f"c{lc}")
    def tlb_warm():
        e(f"s_cmp_eq_u32 s{sU}, 0"); e("s_cbranch_scc0 L_TW1")
        e(f"s_lshl_b32 s{sT2}, s{sBH}, 6"); e(f"s_lshl_b32 s{sT3x}, s{sC}, 3"); e(f"s_add_u32 s{sT2}, s{sT2}, s{sT3x}")
        e(f"s_lshl_b32 s{sT2}, s{sT2}, 12"); e(f"s_add_u32 s{sT2}, s{sT2}, {WS_KV}")
        e(f"v_mov_b32 v13, {WS_OF}")
        e(f"v_writelane_b32 v13, s{sT2}, 1")
        e(f"s_lshl_b32 s{sT2}, s{sC}, 19"); e(f"s_add_u32 s{sT2}, s{sT2}, {WS_O}")
        e(f"v_writelane_b32 v13, s{sT2}, 2")
        e(f"s_lshr_b32 s{sT2}, s{sT3}, 2"); e(f"s_lshl_b32 s{sT2}, s{sT2}, 19"); e(f"s_add_u32 s{sT2}, s{sT2}, {WS_O}")
        e(f"v_writelane_b32 v13, s{sT2}, 3")
        e("s_mov_b64 exec, 15")
        e(f"buffer_load_dword v215, v13, {srd(S_WS)}, 0 offen sc1")
        e(f"buffer_load_dword v214, v13, {srd(S_WS)}, 0 offen offset:128 sc1")
        e("s_mov_b64 exec, -1")
        e("s_branch L_TWE")
        a.lab("L_TW1")
        e(f"s_cmp_eq_u32 s{sU}, 1"); e("s_cbranch_scc0 L_TW2")
        e(f"s_lshr_b32 s{sT2}, s{sT3}, 2"); e(f"s_lshl_b32 s{sT2}, s{sT2}, 18")
        e(f"v_mov_b32 v13, 0")
        e("s_mov_b64 exec, 1")
        e(f"buffer_load_dword v215, v13, {srd(S_OUT)}, s{sT2} offen")
        e(f"buffer_load_dword v214, v13, {srd(S_DBG)}, 0 offen sc1")
        e("s_mov_b64 exec, -1")
        e("s_branch L_TWE")
        a.lab("L_TW2")
        e(f"s_cmp_eq_u32 s{sU}, 2"); e("s_cbranch_scc0 L_TW3")
        e(f"v_mov_b32 v13, 0")
        e("s_mov_b64 exec, 1")
        e(f"buffer_load_dword v215, v13, {srd(S_WOA)}, 0 offen")
        e(f"buffer_load_dword v214, v13, {srd(S_WOB)}, 0 offen")
        e("s_mov_b64 exec, -1")
        e("s_branch L_TWE")
        a.lab("L_TW3")
        e(f"v_mov_b32 v13, 0")
        e("s_mov_b64 exec, 1")
        e(f"buffer_load_dword v215, v13, {srd(S_GW)}, 0 offen")
        e(f"buffer_load_dword v214, v13, {srd(S_GW)}, 0 offen offset:128")
        e("s_mov_b64 exec, -1")
        a.lab("L_TWE")
        a.vm += ["warm", "warm"]
    issue(0)
    issue(1)
    mk_rest()
    if opt.warm == 2: tlb_warm()
    e(f"s_or_b32 s{sT1}, s2, s{sU}")
    e(f"s_cmp_lg_u32 s{sT1}, 0")
    e("s_cbranch_scc1 L_NONCE_SKIP0")
    e(f"v_mov_b32 v13, 0")
    e(f"buffer_load_dword v14, v13, {srd(S_WS)}, 0 offen sc1")
    a.lab("L_NONCE_SKIP0")
    stamp("issued")
    a.vmwait("c0")
    e("s_barrier")
    stamp("first data")
    issue(2)
    if opt.warm == 3: tlb_warm()
    if opt.warm in (5, 6):
        if opt.warm == 6: e("s_branch L_F5_2")
        e(f"s_cmp_eq_u32 s{sU}, 0"); e("s_cbranch_scc0 L_F5_1")
        e(f"s_lshl_b32 s{sT2}, s{sC}, 5"); e(f"s_lshr_b32 s{sT3x}, s{sBH}, 3"); e(f"s_add_u32 s{sT2}, s{sT2}, s{sT3x}")
        e(f"s_lshl_b32 s{sT2}, s{sT2}, 7"); e(f"s_add_u32 s{sT2}, s{sT2}, {WS_OF}")
        e(f"v_and_b32 v13, 7, v0"); e(f"v_lshlrev_b32 v13, 9, v13")
        e("s_mov_b64 exec, 0xff")
        e(f"buffer_load_dword v215, v13, {srd(S_WS)}, s{sT2} offen sc1")
        e("s_branch L_F5_E")
        a.lab("L_F5_1")
        e(f"s_cmp_eq_u32 s{sU}, 1"); e("s_cbranch_scc0 L_F5_2")
        e(f"s_lshr_b32 s{sT2}, s{sT3}, 2"); e(f"s_lshl_b32 s{sT2}, s{sT2}, 3"); e(f"s_and_b32 s{sT3x}, s{sT3}, 3")
        e(f"s_add_u32 s{sT0}, s{sT2}, s{sT3x}"); e(f"s_sub_u32 s{sT3x}, 7, s{sT3x}"); e(f"s_add_u32 s{sT1}, s{sT2}, s{sT3x}")
        e(f"s_lshl_b32 s{sT0}, s{sT0}, 9"); e(f"s_lshl_b32 s{sT1}, s{sT1}, 9"); e(f"s_sub_u32 s{sT1}, s{sT1}, s{sT0}")
        e(f"s_sub_u32 s{sT1}, s{sT1}, 512"); e(f"s_add_u32 s{sT0}, s{sT0}, {WS_OF}")
        e(f"v_and_b32 v13, 7, v0"); e(f"v_lshlrev_b32 v13, 7, v13"); e(f"v_bfe_u32 v15, v0, 2, 1"); e(f"v_mul_lo_u32 v15, v15, s{sT1}"); e(f"v_add_u32 v13, v13, v15")
        e("s_mov_b64 exec, 0xff")
        e(f"buffer_load_dword v215, v13, {srd(S_WS)}, s{sT0} offen sc1")
        e("s_branch L_F5_E")
        a.lab("L_F5_2")
        e(f"s_lshl_b32 s{sT2}, s{sC}, 5"); e(f"s_add_u32 s{sT2}, s{sT2}, s{sBH}"); e(f"s_lshl_b32 s{sT2}, s{sT2}, 7"); e(f"s_add_u32 s{sT2}, s{sT2}, {WS_KVF - 4096}")
        e(f"v_and_b32 v13, 1, v0"); e(f"v_lshlrev_b32 v13, 12, v13")
        e("s_mov_b64 exec, 3")
        e(f"buffer_load_dword v215, v13, {srd(S_WS)}, s{sT2} offen sc1")
        a.lab("L_F5_E")
        e("s_mov_b64 exec, -1")
        a.vm += ["warm"]
    e(f"s_or_b32 s{sT1}, s2, s{sU}")
    e(f"s_cmp_lg_u32 s{sT1}, 0")
    e("s_cbranch_scc1 L_NONCE_SKIP1")
    e("s_waitcnt vmcnt(11)")
    e(f"v_readfirstlane_b32 s{sT2}, v14")
    e(f"v_mov_b32 v13, 0")
    e("s_nop 3")
    e(f"s_add_u32 s{sT2}, s{sT2}, 1")
    e(f"s_max_u32 s{sT2}, s{sT2}, 1")
    e(f"v_mov_b32 v14, s{sT2}")
    e(f"buffer_store_dword v14, v13, {srd(S_DBG)}, 0 offen sc1")
    e(f"buffer_store_dword v14, v13, {srd(S_WS)}, 0 offen sc1")
    a.lab("L_NONCE_SKIP1")
    a.vmwait("c1")
    e("s_barrier")
    for j in range(6):
        if j + 3 <= 7: issue(j + 3)
        if j + 3 == 7:
            if opt.wopf == 1: wo_pf()
            if opt.warm == 1:
                lab = "L_WARM"
                e(f"s_cmp_eq_u32 s{sU}, 0"); e(f"s_cbranch_scc0 {lab}1")
                e(f"s_lshl_b32 s{sT2}, s{sC}, 5"); e(f"s_lshr_b32 s{sT3x}, s{sBH}, 3"); e(f"s_add_u32 s{sT2}, s{sT2}, s{sT3x}")
                e(f"s_lshl_b32 s{sT2}, s{sT2}, 10"); e(f"s_add_u32 s{sT2}, s{sT2}, {WS_OF}")
                e(f"v_lshrrev_b32 v13, 3, v0"); e(f"v_lshlrev_b32 v13, 12, v13"); e(f"v_and_b32 v15, 7, v0"); e(f"v_lshl_add_u32 v13, v15, 7, v13")
                e(f"buffer_load_dword v215, v13, {srd(S_WS)}, s{sT2} offen sc1")
                e(f"s_branch {lab}E")
                a.lab(f"{lab}1")
                e(f"s_cmp_eq_u32 s{sU}, 1"); e(f"s_cbranch_scc0 {lab}2")
                e(f"s_lshl_b32 s{sT2}, s{sC}, 4"); e(f"s_add_u32 s{sT2}, s{sT2}, s{sBR}"); e(f"s_lshl_b32 s{sT2}, s{sT2}, 5")
                e(f"s_lshl_b32 s{sT3x}, s{sHG}, 1"); e(f"s_add_u32 s{sT2}, s{sT2}, s{sT3x}"); e(f"s_lshl_b32 s{sT2}, s{sT2}, 10")
                e(f"s_add_u32 s{sT2}, s{sT2}, {WS_O}")
                e(f"v_lshrrev_b32 v13, 3, v0"); e(f"v_lshlrev_b32 v13, 16, v13"); e(f"v_and_b32 v15, 7, v0"); e(f"v_lshl_add_u32 v13, v15, 8, v13")
                e(f"buffer_load_dword v215, v13, {srd(S_WS)}, s{sT2} offen sc1")
                e(f"s_branch {lab}E")
                a.lab(f"{lab}2")
                e(f"s_cmp_eq_u32 s{sU}, 2"); e(f"s_cbranch_scc0 {lab}3")
                e(f"s_lshl_b32 s{sT2}, s{sC}, 5"); e(f"s_add_u32 s{sT2}, s{sT2}, s{sBH}"); e(f"s_lshl_b32 s{sT2}, s{sT2}, 7")
                e(f"s_add_u32 s{sT2}, s{sT2}, {WS_KVF}")
                e(f"v_mov_b32 v13, 0")
                e(f"buffer_load_dword v215, v13, {srd(S_WS)}, s{sT2} offen sc1")
                e(f"s_branch {lab}E")
                a.lab(f"{lab}3")
                e(f"s_lshr_b32 s{sT2}, s{sT3}, 2"); e(f"s_lshl_b32 s{sT2}, s{sT2}, 18"); e(f"s_lshl_b32 s{sT3x}, s{sN3}, 7"); e(f"s_add_u32 s{sT2}, s{sT2}, s{sT3x}")
                e(f"v_lshlrev_b32 v13, 12, v0")
                e(f"buffer_load_dword v215, v13, {srd(S_OUT)}, s{sT2} offen")
                a.lab(f"{lab}E")
                a.vm += ["warm"]
        if j + 2 <= 7: a.vmwait(f"c{j+2}")
        e("s_barrier")
    stamp("gemm done")
    if opt.wopf == 2: wo_pf()
    for l in init_list(): e(l)
    for i in range(32): e(f"v_mov_b32 v{OA+i}, 0")
    e(f"s_cmp_lg_u32 s{sU}, 0")
    e("s_cbranch_scc1 L_B1")
    e(f"s_mov_b32 s{sSPIN}, 0")
    e(f"v_mov_b32 v15, 0")
    a.lab("L_TAG_LOOP")
    e(f"buffer_load_dword v14, v15, {srd(S_DBG)}, 0 offen sc1")
    e(f"s_add_u32 s{sSPIN}, s{sSPIN}, 1")
    e("s_waitcnt vmcnt(0)")
    e(f"v_readfirstlane_b32 s{sTAG}, v14")
    e("s_nop 3")
    e(f"s_cmp_lg_u32 s{sTAG}, 0")
    e("s_cbranch_scc1 L_TAG_OK")
    e(f"s_cmp_le_u32 s{sSPIN}, {opt.spin}")
    e("s_cbranch_scc1 L_TAG_LOOP")
    a.lab("L_TAG_OK")
    e(f"v_mov_b32 v15, {LDS_TAG}")
    e(f"ds_write_b32 v15, v14")
    a.lab("L_B1")
    a.vm = []; a.lg = []
    e("s_waitcnt lgkmcnt(0)")
    e("s_barrier")
    stamp("B1")
    e(f"v_mov_b32 v15, {LDS_TAG}")
    e(f"ds_read_b32 v14, v15")
    e(f"s_mul_i32 s{sT2}, s{sTAU}, {REG}")
    e(f"v_add_u32 v13, s{sT2}, v{vL16}")
    for h in range(2):
        e(f"ds_read_b128 {vr(QF+4*h,4)}, v13 offset:{8192+h*1024}")

    sTQ, sQ, sB3, sKH, sTT3, sOFA = 44, 45, 48, 49, 50, 51
    e(f"s_lshr_b32 s{sTQ}, s{sW}, 2")
    e(f"s_and_b32 s{sQ}, s{sW}, 3")
    e(f"s_lshr_b32 s{sB3}, s{sQ}, 1")
    e(f"s_and_b32 s{sKH}, s{sQ}, 1")
    e(f"s_and_b32 s{sT2}, s{sT3}, 3")
    e(f"s_sub_u32 s{sT3x}, 7, s{sT2}")
    e(f"s_cmp_eq_u32 s{sTQ}, 0")
    e(f"s_cselect_b32 s{sT2}, s{sT2}, s{sT3x}")
    e(f"s_lshr_b32 s{sTT3}, s{sT3}, 2")
    e(f"s_lshl_b32 s{sTT3}, s{sTT3}, 3")
    e(f"s_add_u32 s{sTT3}, s{sTT3}, s{sT2}")
    def kread(h, extra=0): e(f"ds_read_b128 {vr(KF+4*h,4)}, v{vK} offset:{h*1024+extra}")
    def vreads(h, extra=0):
        e(f"s_mov_b64 exec, s[{sVM}:{sVM+1}]")
        for s in range(2):
            e(f"ds_read_b128 {vr(VF+8*h+4*s,4)}, v{vK} offset:{2048+s*1024+h*256+extra}")
        e("s_mov_b64 exec, -1")
    def seg(h, prev, nxt, kx=0, vx=0):
        o = 1 - h
        S = SS + 16 * h; O = OA + 16 * h
        ex = lambda i: e(f"v_exp_f32 v{S+i}, v{S+i}")
        ex(0); ex(1)
        if prev: mfma(OA + 16 * o, VF + 8 * o + 4, PP + 4, OA + 16 * o)
        ex(2); ex(3)
        if nxt: vreads(o, vx)
        ex(4); ex(5)
        if nxt:
            mfma(SS + 16 * o, KF + 4 * o, QF + 4 * o, "0")
            kread(o, kx)
        ex(6); ex(7)
        for i in range(4): e(cvt(PP + i, S + 2 * i, S + 2 * i + 1))
        ex(8)
        e(f"s_waitcnt lgkmcnt({3 if nxt else 0})")
        ex(9)
        mfma(O, VF + 8 * h, PP, O)
        for i in range(10, 16): ex(i)
        for i in range(4, 8): e(cvt(PP + i, S + 2 * i, S + 2 * i + 1))
    def part(name, first_s, rest_s, cnt_s, hook=None):
        a.c(f"---- attention part {name} ----")
        e(f"v_add_u32 v{vK}, s{first_s}, v{vL16}")
        kread(0); kread(1); vreads(0); vreads(1)
        e(f"s_sub_u32 s{sT2}, s{rest_s}, s{first_s}")
        e(f"s_mov_b32 s{sCNT}, s{cnt_s}")
        e("s_waitcnt lgkmcnt(4)")
        if name == "OWN": e(f"v_readfirstlane_b32 s{sTAG}, v14")
        mfma(SS, KF, QF, MK)
        mfma(SS + 16, KF + 4, QF + 4, MK)
        e(f"v_add_u32 v{vK}, s{sT2}, v{vK}")
        kread(0); kread(1)
        e("s_nop 7")
        e("s_waitcnt lgkmcnt(2)")
        seg(0, prev=False, nxt=False)
        if hook: hook()
        e(f"s_cmp_eq_u32 s{sCNT}, 0")
        e(f"s_cbranch_scc1 L_{name}_LAST")
        e(f"s_sub_u32 s{sCNT}, s{sCNT}, 1")
        a.lab(f"L_{name}_LOOP")
        seg(1, prev=True, nxt=True, kx=REG, vx=0)
        seg(0, prev=True, nxt=True, kx=REG, vx=0)
        e(f"v_add_u32 v{vK}, {REG}, v{vK}")
        e(f"s_sub_u32 s{sCNT}, s{sCNT}, 1")
        e(f"s_cbranch_scc0 L_{name}_LOOP")
        a.lab(f"L_{name}_LAST")
        seg(1, prev=True, nxt=False)
        e("s_nop 1")
        mfma(OA + 16, VF + 12, PP + 4, OA + 16)
    def kvflag():
        e("s_waitcnt vmcnt(0)")
        e(f"v_lshlrev_b32 v13, 2, v0")
        e(f"v_mov_b32 v14, s{sTAG}")
        e("s_mov_b64 exec, 3")
        e(f"buffer_store_dword v14, v13, {srd(S_WS)}, s{sKVO} offen sc1")
        e("s_mov_b64 exec, -1")
    a.vm = []
    e(f"s_mul_i32 s{sT0}, s{sTAU}, {REG}")
    e(f"s_mov_b32 s{sT1}, 0")
    def hook():
        e(f"s_cmp_ge_u32 s{sW}, 4")
        e("s_cbranch_scc1 L_KVF_DONE")
        kvflag()
        a.lab("L_KVF_DONE")
    if opt.prio == 2:
        e(f"s_cmp_lt_u32 s{sW}, 4")
        e("s_cbranch_scc1 L_PRIO_SKIP")
        e("s_setprio 1")
        a.lab("L_PRIO_SKIP")
    part("OWN", sT0, sT1, sTAU, hook=hook)
    stamp("own done")
    def gate_loads():
        e(f"s_lshl_b32 s{sT2}, s{sTT3}, 15")
        e(f"s_lshl_b32 s{sT3x}, s{sQ}, 13")
        e(f"s_add_u32 s{sT2}, s{sT2}, s{sT3x}")
        e(f"buffer_load_dwordx4 {vr(GW,4)}, v{vL16}, {srd(S_GW)}, 0 offen")
        for i in range(8):
            e(f"buffer_load_dwordx4 {vr(GX+4*i,4)}, v{vL16}, {srd(S_X)}, s{sT2} offen offset:{(i&3)*1024}")
            if i == 3: e(f"s_add_u32 s{sT2}, s{sT2}, 4096")
    def prefill():
        if not opt.sent: return
        for i in range(4): e(f"v_mov_b32 v{128+i}, -1")
        e(f"s_lshl_b32 s{sT2}, s{sTT}, 1")
        e(f"s_add_u32 s{sT2}, s{sT2}, s{sBR}")
        e(f"s_lshl_b32 s{sT2}, s{sT2}, 5")
        e(f"s_lshl_b32 s{sT3x}, s{sHG}, 1")
        e(f"s_add_u32 s{sT2}, s{sT2}, s{sT3x}")
        e(f"s_lshl_b32 s{sT2}, s{sT2}, 10")
        e(f"s_add_u32 s{sT2}, s{sT2}, {WS_O}")
        for h in range(2):
            e(f"buffer_store_dwordx4 v[128:131], v{vL16}, {srd(S_WS)}, s{sT2} offen offset:{h*1024} sc1")
    def wo_voff():
        e(f"v_lshrrev_b32 v13, 3, v0")
        e(f"v_lshlrev_b32 v13, 10, v13")
        e(f"v_bfe_u32 v15, v0, 4, 1")
        e(f"v_lshlrev_b32 v15, 2, v15")
        e(f"v_xor_b32 v15, v15, v0")
        e(f"v_and_b32 v15, 7, v15")
        e(f"v_lshl_add_u32 v14, v15, 4, v13")
    def wo_dma(S, heads, kh, ldsaddr):
        for i in heads:
            sg, cst = ldsaddr(i)
            for hf in range(2):
                e(f"s_add_u32 s{sT3x}, s{sT5}, {(256*kh + 16*i + 8*hf)*1024}")
                e(f"s_add_u32 m0, s{sg}, {cst + hf*1024}")
                e("s_nop 0")
                e(f"buffer_load_dwordx4 v14, {srd(S)}, s{sT3x} offen lds")
    def wo_lin(S, sg, sl, n):
        e(f"s_mov_b32 m0, s{sl}")
        e("s_nop 0")
        for i in range(n):
            e(f"buffer_load_dwordx4 v14, {srd(S)}, s{sg} offen lds")
            if i < n - 1:
                e(f"s_add_u32 m0, m0, 1024")
                e(f"s_add_u32 s{sg}, s{sg}, 8192")
    def wo_early():
        wo_voff()
        e(f"s_lshl_b32 s{sT5}, s{sN3}, 7")
        e(f"s_and_b32 s{sT0}, s{sTAU}, 1")
        e(f"s_lshl_b32 s{sT0}, s{sT0}, 18")
        e(f"s_add_u32 s{sT0}, s{sT0}, s{sT5}")
        e(f"s_lshl_b32 s{sT1}, s{sTAU}, 14")
        e(f"s_add_u32 s{sT1}, s{sT1}, {LDS_A0}")
        lab = f"L_WE_{opt._n}"; opt._n += 1
        e(f"s_cmp_ge_u32 s{sTAU}, 2")
        e(f"s_cbranch_scc1 {lab}_B")
        e(f"s_mov_b32 s{sT4}, s{sT0}")
        wo_lin(S_WOA, sT4, sT1, 16)
        e(f"s_branch {lab}_E")
        a.lab(f"{lab}_B")
        e(f"s_mov_b32 s{sT4}, s{sT0}")
        wo_lin(S_WOB, sT4, sT1, 16)
        a.lab(f"{lab}_E")
    def halo_poll_load():
        n = opt._n; opt._n += 1
        e(f"s_sub_u32 s{sT2}, s{sC}, 1")
        e(f"s_lshl_b32 s{sT3x}, s{sT2}, 5")
        e(f"s_add_u32 s{sT3x}, s{sT3x}, s{sBH}")
        e(f"s_lshl_b32 s{sT3x}, s{sT3x}, 7")
        e(f"s_lshl_b32 s{sT4}, s{sTAU}, 3")
        e(f"s_add_u32 s{sT3x}, s{sT3x}, s{sT4}")
        e(f"s_add_u32 s{sT3x}, s{sT3x}, {WS_KVF}")
        e(f"v_and_b32 v13, 1, v0")
        e(f"v_lshlrev_b32 v13, 2, v13")
        e(f"s_mov_b32 s{sSPIN}, 0")
        a.lab(f"L_KVF_LOOP{n}")
        e(f"buffer_load_dword v15, v13, {srd(S_WS)}, s{sT3x} offen sc1")
        e(f"s_add_u32 s{sSPIN}, s{sSPIN}, 1")
        e("s_waitcnt vmcnt(0)")
        e(f"v_cmp_ne_u32 vcc, s{sTAG}, v15")
        e(f"s_cmp_gt_u32 s{sSPIN}, {opt.spin}")
        e(f"s_cbranch_scc1 L_KVF_OK{n}")
        e(f"s_cbranch_vccnz L_KVF_LOOP{n}")
        a.lab(f"L_KVF_OK{n}")
        stamp("roleA")
        e(f"s_lshl_b32 s{sT3x}, s{sBH}, 6")
        e(f"s_lshl_b32 s{sT2}, s{sT2}, 3")
        e(f"s_add_u32 s{sT3x}, s{sT3x}, s{sT2}")
        e(f"s_lshl_b32 s{sT2}, s{sTAU}, 1")
        e(f"s_add_u32 s{sT3x}, s{sT3x}, s{sT2}")
        e(f"s_lshl_b32 s{sT3x}, s{sT3x}, 12")
        e(f"s_add_u32 s{sT3x}, s{sT3x}, {WS_KV}")
        for j in range(2):
            for i in range(4):
                e(f"buffer_load_dwordx4 {vr(HT+16*j+4*i,4)}, v{vL16}, {srd(S_WS)}, s{sT3x} offen offset:{i*1024} sc1")
            if j < 1: e(f"s_add_u32 s{sT3x}, s{sT3x}, 4096")
    def halo_write(younger):
        e(f"s_mul_i32 s{sT2}, s{sTAU}, {2*REG}")
        e(f"s_add_u32 s{sT2}, s{sT2}, 4096")
        e(f"v_add_u32 v13, s{sT2}, v{vL16}")
        for j in range(2):
            e(f"s_waitcnt vmcnt({younger+4-4*j})")
            for i in range(4):
                e(f"ds_write_b128 v13, {vr(HT+16*j+4*i,4)} offset:{j*REG+i*1024}")
    opt._n = 0
    NE = 16
    e(f"s_cmp_gt_u32 s{sTAU}, 3")
    e("s_cbranch_scc0 L_ROLE_LO")
    e("s_branch L_HALO_BAR")
    a.lab("L_ROLE_LO")
    e(f"s_cmp_eq_u32 s{sC}, 0")
    e("s_cbranch_scc1 L_ROLE_C0")
    e(f"s_cmp_gt_u32 s{sTAU}, 1")
    e("s_cbranch_scc1 L_ROLE_HI")
    wo_early()
    halo_poll_load()
    gate_loads()
    halo_write(9)
    e("s_waitcnt lgkmcnt(0)")
    stamp("roleB")
    e("s_branch L_HALO_BAR")
    a.lab("L_ROLE_HI")
    halo_poll_load()
    wo_early()
    gate_loads()
    halo_write(NE + 9)
    e("s_waitcnt vmcnt(9) lgkmcnt(0)")
    stamp("roleB")
    e("s_branch L_HALO_BAR")
    a.lab("L_ROLE_C0")
    wo_early()
    gate_loads()
    e("s_waitcnt vmcnt(9)")
    a.lab("L_HALO_BAR")
    e(f"s_mov_b32 s{sT2}, 0xff800000")
    for r in range(16): e(f"v_xor_b32 v{MK+r}, s{sT2}, v{MK+r}")
    e("s_barrier")
    stamp("B2")
    e(f"s_cmp_ge_u32 s{sTAU}, 4")
    e("s_cbranch_scc1 L_LATE_S")
    prefill()
    e("s_branch L_LATE_E")
    a.lab("L_LATE_S")
    if opt.warm in (4, 6):
        assert not opt.rep
        e(f"s_cmp_eq_u32 s{sW}, 4"); e("s_cbranch_scc0 L_FW_E")
        e(f"s_lshl_b32 s{sT2}, s{sC}, 5"); e(f"s_lshr_b32 s{sT3x}, s{sBH}, 3"); e(f"s_add_u32 s{sT2}, s{sT2}, s{sT3x}")
        e(f"s_lshl_b32 s{sT2}, s{sT2}, 7"); e(f"s_add_u32 s{sT2}, s{sT2}, {WS_OF}")
        e(f"v_lshlrev_b32 v13, 9, v0"); e(f"v_add_u32 v13, s{sT2}, v13")
        e("s_mov_b64 exec, 0xff")
        e(f"buffer_load_dword v215, v13, {srd(S_WS)}, 0 offen sc1")
        e("s_mov_b64 exec, -1")
        e(f"s_lshr_b32 s{sT2}, s{sT3}, 2"); e(f"s_lshl_b32 s{sT2}, s{sT2}, 3"); e(f"s_and_b32 s{sT3x}, s{sT3}, 3")
        e(f"s_add_u32 s{sT0}, s{sT2}, s{sT3x}"); e(f"s_sub_u32 s{sT3x}, 7, s{sT3x}"); e(f"s_add_u32 s{sT1}, s{sT2}, s{sT3x}")
        e(f"s_lshl_b32 s{sT0}, s{sT0}, 9"); e(f"s_lshl_b32 s{sT1}, s{sT1}, 9")
        e(f"s_add_u32 s{sT0}, s{sT0}, {WS_OF}"); e(f"s_add_u32 s{sT1}, s{sT1}, {WS_OF}")
        e(f"v_lshlrev_b32 v13, 7, v0")
        e("s_mov_b64 exec, 15")
        e(f"buffer_load_dword v215, v13, {srd(S_WS)}, s{sT0} offen sc1")
        e(f"buffer_load_dword v214, v13, {srd(S_WS)}, s{sT1} offen sc1")
        e("s_mov_b64 exec, -1")
        a.lab("L_FW_E")
    wo_voff()
    e(f"s_sub_u32 s{sT2}, 7, s{sTAU}")
    e(f"s_lshl_b32 s{sT5}, s{sN3}, 7")
    e(f"s_and_b32 s{sT0}, s{sT2}, 1")
    e(f"s_lshl_b32 s{sT0}, s{sT0}, 18")
    e(f"s_add_u32 s{sT0}, s{sT0}, s{sT5}")
    e(f"s_add_u32 s{sT0}, s{sT0}, {128*1024}")
    e(f"s_mul_i32 s{sT1}, s{sT2}, {2*REG}")
    def late(S):
        for (reg, slot) in ((0, 8192), (1, 8192), (0, 0), (1, 0)):
            e(f"s_add_u32 s{sT3x}, s{sT1}, {reg*REG + slot}")
            wo_lin(S, sT0, sT3x, 4)
            e(f"s_add_u32 s{sT0}, s{sT0}, 8192")
    e(f"s_cmp_ge_u32 s{sT2}, 2")
    e("s_cbranch_scc1 L_LATE_B")
    late(S_WOA)
    e("s_branch L_LATE_G")
    a.lab("L_LATE_B")
    late(S_WOB)
    a.lab("L_LATE_G")
    gate_loads()
    if opt.prio: e("s_setprio 1")
    a.lab("L_LATE_E")
    e(f"s_cmp_eq_u32 s{sC}, 0")
    e("s_cbranch_scc1 L_P2_EPI")
    e(f"s_mul_i32 s{sT0}, s{sTAU}, {REG}")
    e(f"s_add_u32 s{sT0}, s{sT0}, 4096")
    e(f"s_add_u32 s{sT1}, s{sT0}, {REG}")
    e(f"s_sub_u32 s{sT4}, 7, s{sTAU}")
    part("HALO", sT0, sT1, sT4)
    a.lab("L_P2_EPI")
    stamp("attn done")
    lo, hi = f32bits(2.0 ** -64), f32bits(2.0 ** 64)
    e(f"s_mov_b32 s{sT0}, {hex(lo)}")
    e(f"s_mov_b32 s{sT1}, {hex(hi)}")
    e(f"s_lshl_b32 s{sKVO}, s{sTT}, 1")
    e(f"s_add_u32 s{sKVO}, s{sKVO}, s{sBR}")
    e(f"s_lshl_b32 s{sKVO}, s{sKVO}, 5")
    e(f"s_lshl_b32 s{sT3x}, s{sHG}, 1")
    e(f"s_add_u32 s{sKVO}, s{sKVO}, s{sT3x}")
    e(f"s_lshl_b32 s{sKVO}, s{sKVO}, 10")
    e(f"s_add_u32 s{sKVO}, s{sKVO}, {WS_O}")
    e(f"s_lshl_b32 s{sT2}, s{sTT}, 2")
    e(f"s_lshr_b32 s{sT3x}, s{sBH}, 3")
    e(f"s_add_u32 s{sT2}, s{sT2}, s{sT3x}")
    e(f"s_lshl_b32 s{sT2}, s{sT2}, {10 if opt.rep else 7}")
    e(f"s_and_b32 s{sT3x}, s{sBH}, 7")
    e(f"s_lshl_b32 s{sT3x}, s{sT3x}, 2")
    e(f"s_add_u32 s{sT2}, s{sT2}, s{sT3x}")
    e(f"s_add_u32 s{sOFA}, s{sT2}, {WS_OF}")
    e("s_nop 2")
    if opt.fallback:
        for h in range(2):
            O = OA + 16 * h
            e(f"v_mul_f32 v13, 0, v{O}")
            for i in range(1, 8): e(f"v_fmac_f32 v13, 0, v{O+i}")
            e(f"v_cmp_nle_f32 vcc, s{sT0}, v{O+8}")
            e(f"s_mov_b64 s[74:75], vcc")
            e(f"v_cmp_nge_f32 vcc, s{sT1}, v{O+8}")
            e("s_or_b64 s[74:75], s[74:75], vcc")
            e(f"v_cmp_u_f32 vcc, v13, v13")
            e("s_or_b64 s[74:75], s[74:75], vcc")
            e("s_cmp_lg_u64 s[74:75], 0")
            e(f"s_cselect_b32 s{sT2}, {1<<h}, 0")
            e(f"s_or_b32 s{sFAIL}, s{sFAIL}, s{sT2}")
        e(f"s_cmp_eq_u32 s{sFAIL}, 0")
        e("s_cbranch_scc1 L_NOFB")
        fallback(a, opt, dict(SS=SS, PP=PP, KF=KF, MK=MK, OA=OA, QF=QF, vL16=vL16, HT=144))
        a.lab("L_NOFB")
    else:
        e("s_nop 7")
    if opt.sent:
        e(f"s_cmp_ge_u32 s{sW}, 4")
        e("s_cbranch_scc1 L_NOSENT")
        e("s_waitcnt vmcnt(0)")
        a.lab("L_NOSENT")
    for h in range(2):
        e(f"v_rcp_f32 v{13+h}, v{OA+16*h+8}")
    for h in range(2):
        O = OA + 16 * h
        for i in range(8): e(f"v_mul_f32 v{O+i}, v{O+i}, v{13+h}")
        for i in range(4): e(cvt(O + 8 + i, O + 2 * i, O + 2 * i + 1))
        if opt.sent:
            for i in range(4): e(f"v_min_u32 v{O+8+i}, -2, v{O+8+i}")
        e(f"buffer_store_dwordx4 {vr(O+8,4)}, v{vL16}, {srd(S_WS)}, s{sKVO} offen offset:{h*1024} sc1")
    if opt.sent:
        e(f"s_cmp_ge_u32 s{sW}, 4")
        e("s_cbranch_scc1 L_NOHINT")
        e(f"v_lshlrev_b32 v13, 7, v0")
        e(f"v_mov_b32 v14, s{sTAG}")
        e(f"s_mov_b64 exec, {'0xff' if opt.rep else 1}")
        e(f"buffer_store_dword v14, v13, {srd(S_WS)}, s{sOFA} offen sc1")
        e("s_mov_b64 exec, -1")
        stamp("O published")
        a.lab("L_NOHINT")
    WF3, OF3, AC3 = 16, 144, 208
    e(f"v_lshrrev_b32 v1, 5, v0")
    e(f"v_lshlrev_b32 v1, 9, v1")
    e(f"v_bfe_u32 v2, v0, 2, 2")
    e(f"v_lshl_add_u32 v1, v2, 7, v1")
    e(f"v_bfe_u32 v2, v0, 3, 1")
    e(f"v_lshl_add_u32 v1, v2, 6, v1")
    e(f"v_bfe_u32 v2, v0, 4, 1")
    e(f"v_lshl_add_u32 v1, v2, 5, v1")
    e(f"v_and_b32 v2, 3, v0")
    e(f"v_lshl_add_u32 v1, v2, 3, v1")
    e(f"s_lshl_b32 s{sT2}, s{sQ}, 14")
    e(f"s_add_u32 s{sT2}, s{sT2}, {LDS_A0}")
    e(f"s_mul_i32 s{sT3x}, s{sQ}, {2*REG}")
    e(f"v_xor_b32 v2, 64, v1")
    vA = [244, 245]; vB = [246, 247]
    e(f"v_add_u32 v{vA[0]}, s{sT2}, v1")
    e(f"v_add_u32 v{vA[1]}, s{sT2}, v2")
    e(f"v_add_u32 v{vB[0]}, s{sT3x}, v1")
    e(f"v_add_u32 v{vB[1]}, s{sT3x}, v2")
    def trw(i):
        for ct in range(2):
            for u in range(2):
                if i < 8: ad, off = vA[ct], i * 2048
                elif i < 12: ad, off = vB[ct], ((i - 8) >> 1) * REG + 8192 + ((i - 8) & 1) * 2048
                else: ad, off = vB[ct], ((i - 12) >> 1) * REG + ((i - 12) & 1) * 2048
                e(f"ds_read_b64_tr_b16 {vr(WF3+8*i+4*ct+2*u,2)}, v{ad} offset:{off+u*1024}")
    for i in range(8): trw(i)
    e(f"s_lshl_b32 s{sT1}, s{sTT3}, 2")
    e(f"s_add_u32 s{sT1}, s{sT1}, s{sQ}")
    if opt.rep:
        e(f"s_lshl_b32 s{sT1}, s{sT1}, 3")
        e(f"s_add_u32 s{sT1}, s{sT1}, s{sN3}")
    e(f"s_lshl_b32 s{sT1}, s{sT1}, 7")
    e(f"s_add_u32 s{sT1}, s{sT1}, {WS_OF}")
    e(f"s_lshl_b32 s{sT0}, s{sTT3}, 1")
    e(f"s_add_u32 s{sT0}, s{sT0}, s{sB3}")
    e(f"s_lshl_b32 s{sT0}, s{sT0}, 5")
    e(f"s_lshl_b32 s{sT3x}, s{sKH}, 4")
    e(f"s_add_u32 s{sT0}, s{sT0}, s{sT3x}")
    e(f"s_lshl_b32 s{sT0}, s{sT0}, 10")
    e(f"s_add_u32 s{sT0}, s{sT0}, {WS_O}")
    def oflag(wait=True):
        e(f"v_lshlrev_b32 v13, 7, v0")
        e(f"v_mov_b32 v14, s{sTAG}")
        if wait: e("s_waitcnt vmcnt(0)")
        e(f"s_mov_b64 exec, {'0xff' if opt.rep else 1}")
        e(f"buffer_store_dword v14, v13, {srd(S_WS)}, s{sOFA} offen sc1")
        e("s_mov_b64 exec, -1")
        stamp("O published")
    GR = 244 - 4 - 4
    def gate():
        for i in range(8): e(f"v_mov_b32 v{GA+i}, 0")
        for d in range(4):
            for i in range(8):
                e(f"v_dot2_f32_bf16 v{GA+i}, v{GX+4*i+d}, v{GW+d}, v{GA+i}")
        e("s_nop 4")
        for i in range(4): e(f"v_permlane32_swap_b32 v{GA+i}, v{GA+4+i}")
        for i in range(4): e(f"v_add_f32 v{GA+i}, v{GA+i}, v{GA+4+i}")
        e("s_nop 1")
        for i in range(2): e(f"v_permlane16_swap_b32 v{GA+i}, v{GA+2+i}")
        for i in range(2): e(f"v_add_f32 v{GA+i}, v{GA+i}, v{GA+2+i}")
        e("s_nop 1")
        for i in range(2): e(f"v_add_f32_dpp v{GA+i}, v{GA+i}, v{GA+i} row_ror:8 row_mask:0xf bank_mask:0xf")
        e("s_nop 1")
        e(f"v_mov_b32_dpp v{GA}, v{GA+1} quad_perm:[0,1,2,3] row_mask:0xf bank_mask:0xc")
        e("s_nop 1")
        e(f"v_add_f32_dpp v15, v{GA}, v{GA} quad_perm:[1,0,3,2] row_mask:0xf bank_mask:0xf")
        e("s_nop 1")
        e("v_add_f32_dpp v15, v15, v15 quad_perm:[2,3,0,1] row_mask:0xf bank_mask:0xf")
        e("s_nop 1")
        e("v_add_f32_dpp v15, v15, v15 row_half_mirror row_mask:0xf bank_mask:0xf")
        e("v_cvt_pk_bf16_f32 v15, v15, v15")
        e("v_and_b32 v15, 0xffff0000, v15")
        e(f"v_mul_f32 v15, {hex(f32bits(-math.log2(math.e)))}, v15")
        e("v_exp_f32 v15, v15")
        e("s_nop 0")
        e("v_add_f32 v15, 1.0, v15")
        e("v_rcp_f32 v15, v15")
        e("s_nop 0")
        e("v_cvt_pk_bf16_f32 v15, v15, v15")
        e(f"v_and_b32 v{GR}, 0xffff0000, v15")
        e(f"v_sub_f32 v15, 1.0, v{GR}")
        e("v_cvt_pk_bf16_f32 v15, v15, v15")
        e(f"v_and_b32 v{GR+1}, 0xffff0000, v15")
    def gate_write():
        e(f"v_lshrrev_b32 v15, 3, v0")
        e(f"s_lshl_b32 s{sT2}, s{sW}, 3")
        e(f"v_add_u32 v15, s{sT2}, v15")
        e(f"v_lshlrev_b32 v15, 2, v15")
        e(f"ds_write_b32 v15, v{GR} offset:{LDS_GATE}")
        e(f"ds_write_b32 v15, v{GR+1} offset:{LDS_GATE+256}")
    def poll(name, first_issued, sleep):
        e(f"s_mov_b32 s{sSPIN}, 0")
        if not first_issued:
            e(f"buffer_load_dword v14, v13, {srd(S_WS)}, s{sT1} offen sc1")
        a.lab(f"L_OF_LOOP{name}")
        e("s_waitcnt vmcnt(0)")
        e(f"v_cmp_ne_u32 vcc, s{sTAG}, v14")
        e(f"s_add_u32 s{sSPIN}, s{sSPIN}, 1")
        e(f"s_cbranch_vccz L_OF_OK{name}")
        e(f"s_cmp_gt_u32 s{sSPIN}, {opt.spin}")
        e(f"s_cbranch_scc1 L_OF_OK{name}")
        if sleep: e(f"s_sleep {sleep}")
        e(f"buffer_load_dword v14, v13, {srd(S_WS)}, s{sT1} offen sc1")
        e(f"s_branch L_OF_LOOP{name}")
        a.lab(f"L_OF_OK{name}")
    def oloads(mod="sc1"):
        for i in range(16):
            e(f"buffer_load_dwordx4 {vr(OF3+4*i,4)}, v{vL16}, {srd(S_WS)}, s{sT0} offen offset:{(i&3)*1024} {mod}")
            if (i & 3) == 3 and i < 15: e(f"s_add_u32 s{sT0}, s{sT0}, 4096")
    def p3mfma(i0, i1):
        for i in range(i0, i1):
            e(f"s_waitcnt vmcnt({15-i})")
            for ct in range(2):
                mfma(AC3 + 16 * ct, WF3 + 8 * i + 4 * ct, OF3 + 4 * i, "0" if i == 0 else AC3 + 16 * ct)
    def late_part():
        gate_write()
        for i in range(8, 16): trw(i)
    def p3mfma2():
        if opt.sent:
            e(f"s_mov_b32 s{sSPIN}, 0")
            a.lab("L_P3_RETRY")
            e("v_mov_b32 v15, 0")
        for i in range(16):
            if i == 8: e("s_waitcnt lgkmcnt(0)")
            e(f"s_waitcnt vmcnt({15-i})")
            for ct in range(2):
                mfma(AC3 + 16 * ct, WF3 + 8 * i + 4 * ct, OF3 + 4 * i, "0" if i == 0 else AC3 + 16 * ct)
                if opt.sent: e(f"v_max3_u32 v15, v15, v{OF3+4*i+2*ct}, v{OF3+4*i+2*ct+1}")
        if opt.sent:
            e("v_cmp_eq_u32 vcc, -1, v15")
            e(f"s_add_u32 s{sSPIN}, s{sSPIN}, 1")
            e("s_cbranch_vccz L_P3_DONE")
            e(f"s_cmp_gt_u32 s{sSPIN}, {opt.spin}")
            e("s_cbranch_scc1 L_P3_DONE")
            e(f"s_sub_u32 s{sT0}, s{sT0}, 12288")
            e("s_nop 7")
            oloads()
            e("s_branch L_P3_RETRY")
            a.lab("L_P3_DONE")
    e(f"s_cmp_eq_u32 s{sTQ}, 0")
    e("s_cbranch_scc1 L_P3_LATE")
    oflag()
    if opt.prio: e("s_setprio 0")
    gate()
    e(f"v_and_b32 v13, 7, v0")
    e(f"v_lshlrev_b32 v13, 2, v13")
    e(f"buffer_load_dword v14, v13, {srd(S_WS)}, s{sT1} offen sc1")
    e("s_waitcnt lgkmcnt(0)")
    e("s_barrier")
    stamp("B3")
    poll("E", True, opt.sleep)
    stamp("O flags seen")
    oloads(opt.omod)
    late_part()
    e("s_branch L_P3_J")
    a.lab("L_P3_LATE")
    if opt.sent:
        e(f"v_and_b32 v13, 7, v0")
        e(f"v_lshlrev_b32 v13, 2, v13")
        e(f"buffer_load_dword v14, v13, {srd(S_WS)}, s{sT1} offen sc1")
        gate()
        e("s_waitcnt lgkmcnt(0)")
        e("s_barrier")
        stamp("B3")
    else:
        e("s_waitcnt vmcnt(2)")
        gate()
        oflag()
        e(f"v_and_b32 v13, 7, v0")
        e(f"v_lshlrev_b32 v13, 2, v13")
        e(f"buffer_load_dword v14, v13, {srd(S_WS)}, s{sT1} offen sc1")
        e("s_waitcnt lgkmcnt(0)")
        e("s_barrier")
        stamp("B3")
    late_part()
    poll("L", True, 0)
    stamp("O flags seen")
    oloads(opt.omod)
    a.lab("L_P3_J")
    p3mfma2()
    stamp("P3 mfma")
    e(f"s_lshl_b32 s{sT2}, s{sTQ}, 15")
    e(f"s_lshl_b32 s{sT3x}, s{sQ}, 11")
    e(f"s_add_u32 s{sT3x}, s{sT3x}, s{sT2}")
    e(f"s_add_u32 s{sT3x}, s{sT3x}, {LDS_RB}")
    e(f"v_add_u32 v1, s{sT3x}, v{vL16}")
    e(f"s_lshl_b32 s{sT3x}, s{sQ}, 13")
    e(f"s_add_u32 s{sT3x}, s{sT3x}, s{sT2}")
    e(f"s_add_u32 s{sT3x}, s{sT3x}, {LDS_RB}")
    e(f"v_add_u32 v2, s{sT3x}, v{vL16}")
    e(f"v_and_b32 v4, 31, v0")
    e(f"s_lshl_b32 s{sT2}, s{sTQ}, 5")
    e(f"v_add_u32 v3, s{sT2}, v4")
    e(f"v_lshlrev_b32 v3, 2, v3")
    e(f"v_lshlrev_b32 v4, 10, v4")
    e(f"v_lshrrev_b32 v5, 5, v0")
    e(f"v_lshl_add_u32 v4, v5, 4, v4")
    e(f"s_lshl_b32 s{sT2}, s{sTT3}, 15")
    e(f"s_lshl_b32 s{sT3x}, s{sN3}, 7")
    e(f"s_add_u32 s{sT2}, s{sT2}, s{sT3x}")
    e(f"s_lshl_b32 s{sT3x}, s{sQ}, 5")
    e(f"s_add_u32 s{sT2}, s{sT2}, s{sT3x}")
    e("s_nop 1")
    for qq in range(4):
        for hf in range(2):
            e(f"ds_write_b128 v1, {vr(AC3+8*qq+4*hf,4)} offset:{qq*8192+hf*1024}")
    e("s_waitcnt lgkmcnt(0)")
    e("s_barrier")
    R = 144
    e(f"ds_read_b32 v5, v3 offset:{LDS_GATE}")
    e(f"ds_read_b32 v6, v3 offset:{LDS_GATE+256}")
    for src in range(4):
        for hf in range(2):
            e(f"ds_read_b128 {vr(R+8*src+4*hf,4)}, v2 offset:{src*2048+hf*1024}")
    e("s_waitcnt lgkmcnt(4)")
    for i in range(8): e(f"v_add_f32 v{R+i}, v{R+i}, v{R+8+i}")
    for i in range(8): e(f"v_mul_f32 v{R+i}, v{R+i}, v5")
    e("s_waitcnt lgkmcnt(0)")
    for i in range(8): e(f"v_add_f32 v{R+16+i}, v{R+16+i}, v{R+24+i}")
    for i in range(8): e(f"v_fmac_f32 v{R+i}, v{R+16+i}, v6")
    for i in range(4): e(cvt(R + 32 + i, R + 2 * i, R + 2 * i + 1))
    e("s_nop 1")
    e(f"v_permlane32_swap_b32 v{R+32}, v{R+34}")
    e(f"v_permlane32_swap_b32 v{R+33}, v{R+35}")
    e(f"buffer_store_dwordx4 {vr(R+32,4)}, v4, {srd(S_OUT)}, s{sT2} offen {opt.outmod}")
    if STAMPS:
        stamp("end")
        e(f"s_memtime s[{sTM}:{sTM+1}]")
        e("s_waitcnt lgkmcnt(0)")
        e(f"s_sub_u32 s{STREG[nst[0]]}, s{sTM}, s100")
        nst[0] += 1
        opt.stamp_names.append("CYCLES")
        n = nst[0]
        e(f"s_lshl_b32 s{sT2}, s2, 3")
        e(f"s_add_u32 s{sT2}, s{sT2}, s{sW}")
        e(f"s_lshl_b32 s{sT2}, s{sT2}, 7")
        e(f"s_add_u32 s{sT2}, s{sT2}, {WS_STAMP}")
        e("v_mov_b32 v13, 0")
        e("s_mov_b64 exec, 1")
        for i in range(n):
            e(f"v_mov_b32 v14, s{STREG[i]}")
            e(f"buffer_store_dword v14, v13, {srd(S_WS)}, s{sT2} offen offset:{4*i}")
            e("s_nop 0")
        e("s_mov_b64 exec, -1")
    e("s_waitcnt vmcnt(0)")
    a.lab("L_END")
    e("s_endpgm")
    a.lab("L_CODE_END")
    return a

def fallback(a, opt, R):
    e = a.e
    SS, PP, KF, MK, OA, QF, vL16, HT = (R[k] for k in "SS PP KF MK OA QF vL16 HT".split())
    TQ = 128; TM = 132; TB = 133; TO = 136; TV = 152; TC = 176
    S = SS
    sHH, sPASS, sPART, sTILE, sN = sH, 40, 41, 42, 43
    def mfma(D, A, B, C): e(mfma_s(D, A, B, C))
    a.c("==== fallback: true max ====")
    e(f"s_lshl_b32 s{sT2}, s{sC}, 5")
    e(f"s_add_u32 s{sT2}, s{sT2}, s{sBH}")
    e(f"s_lshl_b32 s{sT2}, s{sT2}, 7")
    e(f"s_add_u32 s{sT2}, s{sT2}, {WS_KVF}")
    e(f"v_and_b32 v13, 7, v0")
    e(f"v_lshlrev_b32 v13, 2, v13")
    e(f"s_mov_b32 s{sSPIN}, 0")
    a.lab("L_FB_FLAG")
    e(f"buffer_load_dword v14, v13, {srd(S_WS)}, s{sT2} offen sc1")
    e(f"s_add_u32 s{sSPIN}, s{sSPIN}, 1")
    e("s_waitcnt vmcnt(0)")
    e(f"v_cmp_ne_u32 vcc, s{sTAG}, v14")
    e(f"s_cmp_gt_u32 s{sSPIN}, {opt.spin}")
    e("s_cbranch_scc1 L_FB_FLAG_OK")
    e("s_cbranch_vccnz L_FB_FLAG")
    a.lab("L_FB_FLAG_OK")
    e(f"s_mov_b32 s{sHH}, 0")
    a.lab("L_FB_H")
    e(f"s_lshr_b32 s{sT2}, s{sFAIL}, s{sHH}")
    e(f"s_and_b32 s{sT2}, s{sT2}, 1")
    e(f"s_cmp_eq_u32 s{sT2}, 0")
    e("s_cbranch_scc1 L_FB_NEXT")
    e(f"s_cmp_eq_u32 s{sHH}, 0")
    e("s_cbranch_scc0 L_FB_Q1")
    for i in range(4): e(f"v_mov_b32 v{TQ+i}, v{QF+i}")
    e("s_branch L_FB_Q2")
    a.lab("L_FB_Q1")
    for i in range(4): e(f"v_mov_b32 v{TQ+i}, v{QF+4+i}")
    a.lab("L_FB_Q2")
    e(f"v_mov_b32 v{TM}, 0xff800000")
    for i in range(16): e(f"v_mov_b32 v{TO+i}, 0")
    for i in range(8): e(f"v_mov_b32 v{TV+i}, 0x3f803f80")
    e(f"s_mov_b32 s{sPASS}, 0")
    a.lab("L_FB_PASS")
    e(f"s_mov_b32 s{sPART}, 0")
    a.lab("L_FB_PART")
    e(f"s_cmp_eq_u32 s{sPART}, 0")
    e(f"s_cselect_b32 s{sTILE}, 0, s{sTAU}")
    e(f"s_cselect_b32 s{sN}, s{sTAU}, 7")
    a.lab("L_FB_TILE")
    e(f"s_cmp_eq_u32 s{sTILE}, s{sTAU}")
    e("s_cbranch_scc1 L_FB_MASK")
    for i in range(16): e(f"v_mov_b32 v{TC+i}, 0")
    e("s_branch L_FB_C")
    a.lab("L_FB_MASK")
    e(f"v_and_b32 v13, 31, v0")
    e(f"v_lshrrev_b32 v14, 5, v0")
    e(f"v_lshlrev_b32 v14, 2, v14")
    e(f"v_sub_u32 v13, v13, v14")
    e(f"s_cmp_eq_u32 s{sPART}, 0")
    e(f"s_cselect_b32 s{sT2}, 0, 0xff800000")
    for r in range(16):
        kk = (r & 3) + 8 * (r >> 2)
        e(f"v_subrev_u32 v{TC+r}, {kk}, v13")
        e(f"v_ashrrev_i32 v{TC+r}, 31, v{TC+r}")
        e(f"v_and_b32 v{TC+r}, 0xff800000, v{TC+r}")
        e(f"v_xor_b32 v{TC+r}, s{sT2}, v{TC+r}")
    a.lab("L_FB_C")
    e(f"s_sub_u32 s{sT2}, s{sC}, s{sPART}")
    e(f"s_lshl_b32 s{sT2}, s{sT2}, 3")
    e(f"s_add_u32 s{sT2}, s{sT2}, s{sTILE}")
    e(f"s_lshl_b32 s{sT3x}, s{sBH}, 6")
    e(f"s_add_u32 s{sT2}, s{sT2}, s{sT3x}")
    e(f"s_lshl_b32 s{sT2}, s{sT2}, 12")
    e(f"s_add_u32 s{sT2}, s{sT2}, {WS_KV}")
    e(f"s_lshl_b32 s{sT3x}, s{sHH}, 10")
    e(f"s_add_u32 s{sT3x}, s{sT3x}, s{sT2}")
    e(f"buffer_load_dwordx4 {vr(KF,4)}, v{vL16}, {srd(S_WS)}, s{sT3x} offen sc1")
    e(f"s_lshl_b32 s{sT3x}, s{sHH}, 8")
    e(f"s_add_u32 s{sT3x}, s{sT3x}, s{sT2}")
    e(f"s_mov_b64 exec, s[{sVM}:{sVM+1}]")
    e(f"buffer_load_dwordx4 {vr(TV,4)}, v{vL16}, {srd(S_WS)}, s{sT3x} offen offset:2048 sc1")
    e(f"buffer_load_dwordx4 {vr(TV+4,4)}, v{vL16}, {srd(S_WS)}, s{sT3x} offen offset:3072 sc1")
    e("s_mov_b64 exec, -1")
    e("s_waitcnt vmcnt(0)")
    mfma(S, KF, TQ, TC)
    e("s_nop 7"); e("s_nop 7")
    e(f"s_cmp_eq_u32 s{sPASS}, 0")
    e("s_cbranch_scc0 L_FB_P2")
    for i in range(8): e(f"v_max3_f32 v{TM}, v{TM}, v{S+2*i}, v{S+2*i+1}")
    e("s_branch L_FB_TNEXT")
    a.lab("L_FB_P2")
    for i in range(16): e(f"v_sub_f32 v{S+i}, v{S+i}, v{TM}")
    for i in range(16): e(f"v_exp_f32 v{S+i}, v{S+i}")
    e("s_nop 0")
    for i in range(8): e(cvt(PP + i, S + 2 * i, S + 2 * i + 1))
    e("s_nop 1")
    mfma(TO, TV, PP, TO)
    mfma(TO, TV + 4, PP + 4, TO)
    e("s_nop 7"); e("s_nop 7")
    a.lab("L_FB_TNEXT")
    e(f"s_add_u32 s{sTILE}, s{sTILE}, 1")
    e(f"s_cmp_le_u32 s{sTILE}, s{sN}")
    e("s_cbranch_scc1 L_FB_TILE")
    e(f"s_cmp_eq_u32 s{sC}, 0")
    e("s_cbranch_scc1 L_FB_PDONE")
    e(f"s_add_u32 s{sPART}, s{sPART}, 1")
    e(f"s_cmp_lt_u32 s{sPART}, 2")
    e("s_cbranch_scc1 L_FB_PART")
    a.lab("L_FB_PDONE")
    e(f"s_cmp_eq_u32 s{sPASS}, 0")
    e("s_cbranch_scc0 L_FB_STORE")
    e(f"v_mov_b32 v{TB}, v{TM}")
    e("s_nop 1")
    e(f"v_permlane32_swap_b32 v{TM}, v{TB}")
    e("s_nop 1")
    e(f"v_max_f32 v{TM}, v{TM}, v{TB}")
    e(f"s_mov_b32 s{sPASS}, 1")
    e("s_branch L_FB_PASS")
    a.lab("L_FB_STORE")
    e(f"s_cmp_eq_u32 s{sHH}, 0")
    e("s_cbranch_scc0 L_FB_S1")
    for i in range(16): e(f"v_mov_b32 v{OA+i}, v{TO+i}")
    e("s_branch L_FB_NEXT")
    a.lab("L_FB_S1")
    for i in range(16): e(f"v_mov_b32 v{OA+16+i}, v{TO+i}")
    a.lab("L_FB_NEXT")
    e(f"s_add_u32 s{sHH}, s{sHH}, 1")
    e(f"s_cmp_lt_u32 s{sHH}, 2")
    e("s_cbranch_scc1 L_FB_H")

def build(opt):
    opt.stamp_names = []
    a = gen(opt)
    hdr = []
    hdr.append(f"; @launch grid=(256,1,1) block=(512,1,1) lds={LDS_TOTAL}")
    hdr.append('.amdgcn_target "amdgcn-amd-amdhsa--gfx950"')
    hdr.append(".text")
    hdr.append(f".globl {KNAME}")
    hdr.append(".p2align 8")
    hdr.append(f".type {KNAME},@function")
    tail = f""".section .rodata,"a"
.p2align 6
.amdhsa_kernel {KNAME}
  .amdhsa_next_free_vgpr 256
  .amdhsa_next_free_sgpr 102
  .amdhsa_accum_offset 256
  .amdhsa_group_segment_fixed_size 0
  .amdhsa_kernarg_size 80
  .amdhsa_user_sgpr_count 2
  .amdhsa_user_sgpr_kernarg_segment_ptr 1
  .amdhsa_system_sgpr_workgroup_id_x 1
  .amdhsa_float_denorm_mode_32 3
.end_amdhsa_kernel
"""
    return "\n".join(hdr) + "\n" + a.text() + tail

def parse(argv=None):
    p = argparse.ArgumentParser()
    p.add_argument("-o", default="gated_mix__sliding_block__sliding_block__prompt.s")
    p.add_argument("--stamps", type=int, default=0)
    p.add_argument("--codepf", type=int, default=1)
    p.add_argument("--pace", type=float, default=1.6)
    p.add_argument("--rot", type=int, default=1)
    p.add_argument("--omod", default="sc1")
    p.add_argument("--rep", type=int, default=0)
    p.add_argument("--warm", type=int, default=1)
    p.add_argument("--sent", type=int, default=1)
    p.add_argument("--tailopt", type=int, default=1)
    p.add_argument("--eorder", type=int, default=1)
    p.add_argument("--prio", type=int, default=1)
    p.add_argument("--sleep", type=int, default=2)
    p.add_argument("--pf", type=int, default=0)
    p.add_argument("--bar0", type=int, default=1)
    p.add_argument("--dbg", type=int, default=0)
    p.add_argument("--cyc", type=int, default=0)
    p.add_argument("--wopf", type=int, default=1)
    p.add_argument("--fallback", type=int, default=1)
    p.add_argument("--spin", type=int, default=20000)
    p.add_argument("--outmod", default="")
    return p.parse_args(argv)

if __name__ == "__main__":
    opt = parse()
    s = build(opt)
    open(opt.o, "w").write(s)
    if opt.stamps:
        open(opt.o + ".stamps", "w").write("\n".join(opt.stamp_names))
    print("wrote", opt.o, len(s), "bytes")
```

```python
import sys, argparse, math, struct

KNAME = "gated_mix__sliding_block__sliding_block__prompt_kernel"

WS_NONCE = 0
WS_OF = 0x10000
WS_KVF = 0x4000
WS_KV = 0x100000
WS_O = 0x1000000
WS_STAMP = 0x1800000
WS_SIZE = 0x2000000

REG = 12288
LDS_W = 8 * REG
WPART = 24576
LDS_TOTAL = 163840
LDS_A0, LDS_A1 = 98304, 131072
LDS_GATE = 4096
LDS_RB = 98304

S_X, S_W, S_WOA, S_WOB, S_WS, S_OUT, S_GW, S_DBG = 8, 12, 16, 20, 24, 28, 32, 36
sW, sTAU, sC, sBH, sBR, sHG, sTT, sT3, sN3, sTAG, sJ = 60, 61, 62, 63, 64, 65, 66, 67, 68, 69, 70
sT0, sT1, sT2, sT3x, sT4, sT5 = 71, 72, 73, 74, 75, 76
sCNT, sSPIN, sFAIL = 77, 80, 81
sVM = 78
sKVO = 82
sH = 83
STREG = list(range(84, 98)) + [3, 6, 7, 46, 47]
sTM = 98
sXB, sWG, sWL = 40, 41, 42

def srd(b): return f"s[{b}:{b+3}]"
def vr(b, n=1): return f"v{b}" if n == 1 else f"v[{b}:{b+n-1}]"

class Asm:
    def __init__(self):
        self.lines = []; self.vm = []; self.lg = []
    def e(self, s): self.lines.append("  " + s)
    def c(self, s): self.lines.append("  ; " + s)
    def lab(self, s): self.lines.append(s + ":")
    def vmop(self, s, tag): self.e(s); self.vm.append(tag)
    def lgop(self, s, tag): self.e(s); self.lg.append(tag)
    def _n(self, q, tag, mx):
        idx = max(i for i, t in enumerate(q) if t == tag)
        return min(len(q) - 1 - idx, mx)
    def vmwait(self, tag):
        if tag not in self.vm: return
        n = self._n(self.vm, tag, 63)
        self.e(f"s_waitcnt vmcnt({n})")
        self.vm = self.vm[len(self.vm) - n:] if n > 0 else []
    def lgwait(self, tag):
        if tag not in self.lg: return
        n = self._n(self.lg, tag, 15)
        self.e(f"s_waitcnt lgkmcnt({n})")
        self.lg = self.lg[len(self.lg) - n:] if n > 0 else []
    def vmall(self): self.e("s_waitcnt vmcnt(0)"); self.vm = []
    def lgall(self): self.e("s_waitcnt lgkmcnt(0)"); self.lg = []
    def text(self): return "\n".join(self.lines) + "\n"

def f32bits(x): return struct.unpack("<I", struct.pack("<f", x))[0]
def mfma_s(D, A, B, C):
    cs = C if isinstance(C, str) else vr(C, 16)
    return f"v_mfma_f32_32x32x16_bf16 {vr(D,16)}, {vr(A,4)}, {vr(B,4)}, {cs}"
def cvt(dst, s0, s1): return f"v_cvt_pk_bf16_f32 v{dst}, v{s0}, v{s1}"

def gen(opt):
    a = Asm()
    e = a.e
    mfma = lambda D, A, B, C: e(mfma_s(D, A, B, C))
    STAMPS = opt.stamps
    nst = [0]
    def stamp(name, inner=False):
        if not STAMPS: return
        if STAMPS == 4 and not inner:
            if name in ("entry", "first data", "gemm done", "B1", "B2", "attn done", "B3", "end"):
                opt.cyc = 0; stamp(name, True)
                if name not in ("entry", "end"):
                    opt.cyc = 1; stamp(name + " cyc", True); opt.cyc = 0
            return
        if STAMPS == 3 and name in ("own done", "B2", "attn done", "O published", "B3", "B4", "O flags seen", "P3 mfma", "roleA", "roleB"): return
        if STAMPS == 2 and name in ("own done", "B2", "attn done", "O published", "B3", "B4", "O flags seen", "P3 mfma"): return
        if name in opt.stamp_names:
            i = opt.stamp_names.index(name)
            e("s_waitcnt lgkmcnt(0)")
            e(f"{'s_memtime' if opt.cyc else 's_memrealtime'} s[{sTM}:{sTM+1}]")
            e("s_waitcnt lgkmcnt(0)")
            e(f"s_mov_b32 s{STREG[i]}, s{sTM}")
            return
        i = nst[0]; nst[0] += 1
        assert i < len(STREG)
        a.c(f"stamp {i}: {name}")
        e("s_waitcnt lgkmcnt(0)"); a.lg = []
        e(f"{'s_memtime' if opt.cyc else 's_memrealtime'} s[{sTM}:{sTM+1}]")
        e("s_waitcnt lgkmcnt(0)")
        e(f"s_mov_b32 s{STREG[i]}, s{sTM}")
        opt.stamp_names.append(name)

    vXO = 1; vXR = 5; vWO = 9; vWR = 10; vL16 = 12
    XF = 16
    WF = 80
    ACC = 116
    def AQ(x): return ACC + 48 * x
    def AK(x): return ACC + 48 * x + 16
    def AV(x): return ACC + 48 * x + 32
    def XFr(lc, x, s): return XF + 32 * (lc & 1) + 16 * x + 4 * s
    def WFr(t, m): return WF + 12 * (t % 3) + 4 * m
    OA = 216; QF = 248; MK = 16; VF = 32
    SS = 160; PP = 48; KF = 56; HT = 64
    vK = 1
    vD = 13
    GX, GW, GA = 96, 208, 212
    WSLOT = 12288
    TKA, TKB, TVA, TVB, TQA, TQB = 248, 4, ACC + 16, ACC + 64, ACC + 32, ACC + 80
    LDS_TAG = 8192 + 2048

    a.lab(KNAME)
    e("s_cmp_ge_u32 s2, 256")
    e("s_cbranch_scc1 L_END")
    if STAMPS:
        e("s_memtime s[100:101]")
        stamp("entry")
    e("s_getpc_b64 s[4:5]")
    a.lab("L_PC")
    e("s_load_dwordx4 s[40:43], s[0:1], 0")
    e("s_load_dwordx4 s[48:51], s[0:1], 32")
    e("v_lshlrev_b32 v13, 6, v0")
    e("s_load_dwordx2 s[44:45], s[0:1], 16")
    e("s_load_dwordx4 s[52:55], s[0:1], 48")
    e("s_load_dwordx4 s[56:59], s[0:1], 64")
    e("v_min_u32 v13, L_CODE_END-L_PC-4, v13")
    if opt.codepf:
        e(f"global_load_dword v213, v13, s[4:5]")
    e("v_lshrrev_b32 v15, 6, v0")
    e("v_and_b32 v0, 63, v0")
    e(f"s_and_b32 s{sT0}, s2, 7")
    e(f"v_readfirstlane_b32 s{sW}, v15")
    e(f"s_lshr_b32 s{sJ}, s2, 3")
    e(f"s_and_b32 s{sT1}, s{sT0}, 1")
    e(f"s_lshl_b32 s{sT1}, s{sT1}, 2")
    e(f"s_and_b32 s{sT2}, s{sJ}, 3")
    e(f"s_add_u32 s{sC}, s{sT1}, s{sT2}")
    e(f"s_lshr_b32 s{sT1}, s{sT0}, 1")
    e(f"s_lshl_b32 s{sT1}, s{sT1}, 3")
    e(f"s_lshr_b32 s{sN3}, s{sJ}, 2")
    e(f"s_add_u32 s{sBH}, s{sT1}, s{sN3}")
    e(f"s_lshr_b32 s{sBR}, s{sBH}, 4")
    e(f"s_and_b32 s{sHG}, s{sBH}, 15")
    e(f"s_lshl_b32 s{sT3}, s{sT0}, 2")
    e(f"s_add_u32 s{sT3}, s{sT3}, s{sT2}")
    e(f"s_sub_u32 s{sT1}, 11, s{sW}")
    e(f"s_cmp_lt_u32 s{sW}, 4")
    e(f"s_cselect_b32 s{sTAU}, s{sW}, s{sT1}")
    e(f"s_lshl_b32 s{sTT}, s{sC}, 3")
    e(f"s_add_u32 s{sTT}, s{sTT}, s{sTAU}")
    e(f"v_lshlrev_b32 v{vL16}, 4, v0")
    def mk(b, lo, hi, size):
        e(f"s_mov_b32 s{b}, s{lo}"); e(f"s_mov_b32 s{b+1}, s{hi}")
        e(f"s_mov_b32 s{b+2}, {size}"); e(f"s_mov_b32 s{b+3}, 0x00020000")
    def mk_w():
        e(f"s_cmp_eq_u32 s{sBR}, 0")
        e(f"s_cselect_b32 s{S_W}, s42, s48")
        e(f"s_cselect_b32 s{S_W+1}, s43, s49")
        e(f"s_mov_b32 s{S_W+2}, 1572864"); e(f"s_mov_b32 s{S_W+3}, 0x00020000")
    def mk_rest():
        mk(S_WS, 58, 59, WS_SIZE)
        mk(S_DBG, 56, 57, 256)
        mk(S_OUT, 54, 55, 2097152)
        mk(S_GW, 52, 53, 1024)
        mk(S_WOA, 44, 45, 524288)
        mk(S_WOB, 50, 51, 524288)
        e(f"s_mov_b32 s{sVM}, 0x0000ffff")
        e(f"s_mov_b32 s{sVM+1}, 0x0000ffff")
        e(f"s_mov_b32 s{sFAIL}, 0")
    def init_list():
        q = [f"v_and_b32 v{vD}, 31, v0", f"v_lshrrev_b32 v{vD+2}, 5, v0", f"v_lshlrev_b32 v{vD+2}, 2, v{vD+2}", f"v_sub_u32 v{vD}, v{vD}, v{vD+2}"]
        for r in range(16):
            kk = (r & 3) + 8 * (r >> 2)
            q += [f"v_subrev_u32 v{MK+r}, {kk}, v{vD}", f"v_ashrrev_i32 v{MK+r}, 31, v{MK+r}", f"v_and_b32 v{MK+r}, 0xff800000, v{MK+r}"]
        q += [f"v_mov_b32 v{VF+i}, 0x3f803f80" for i in range(16)]
        return q
    if opt.lfirst:
        e(f"s_cmp_lt_u32 s{sW}, 4")
        e("s_cbranch_scc1 L_COMPUTE")
    else:
        e(f"s_cmp_ge_u32 s{sW}, 4")
        e("s_cbranch_scc1 L_LOADER")
    i_comp = len(a.lines)
    a.lab("L_COMPUTE")

    SXB = sT4
    e(f"s_mul_i32 s{SXB}, s{sW}, {2*REG}")
    e(f"v_and_b32 v13, 31, v0")
    e(f"v_lshrrev_b32 v15, 5, v0")
    e(f"v_bfe_u32 v{vXR+1}, v13, 1, 3")
    e(f"v_xor_b32 v15, v15, v{vXR+1}")
    e(f"v_lshlrev_b32 v15, 4, v15")
    e(f"v_lshl_add_u32 v15, v13, 7, v15")
    e(f"v_add_u32 v{vXR}, s{SXB}, v15")
    for s_ in range(1, 4):
        e(f"v_xor_b32 v{vXR+s_}, {s_<<5}, v{vXR}")
    e(f"v_lshrrev_b32 v13, 5, v0")
    e(f"v_lshlrev_b32 v13, 9, v13")
    e(f"v_bfe_u32 v15, v0, 2, 2")
    e(f"v_lshl_add_u32 v13, v15, 6, v13")
    e(f"v_bfe_u32 v15, v0, 4, 1")
    e(f"v_lshl_add_u32 v13, v15, 5, v13")
    e(f"v_and_b32 v15, 3, v0")
    e(f"v_lshl_add_u32 v13, v15, 3, v13")
    e(f"v_add_u32 v{vWR}, {LDS_W}, v13")
    for i in range(32): e(f"v_mov_b32 v{OA+i}, 0")
    e("s_waitcnt lgkmcnt(0)")
    mk_rest()
    mk(S_X, 40, 41, 2097152)
    mk_w()
    stamp("issued")
    def xread1(lc, x, s_):
        a.lgop(f"ds_read_b128 {vr(XFr(lc,x,s_),4)}, v{vXR+s_} offset:{x*REG+(lc%3)*4096}", f"xr{lc}_{s_}")
    def wread1(t, m, u):
        lc = t >> 2
        a.lgop(f"ds_read_b64_tr_b16 {vr(WFr(t,m)+2*u,2)}, v{vWR} offset:{(lc%3)*WSLOT+m*4096+(t&3)*1024+u*256}", f"wf{t}")
    e("s_barrier")
    stamp("first data")
    mfma_full = mfma
    if opt.dbg == 16:
        def mfma(D, A, B, C):
            for h in range(2):
                cs = C if isinstance(C, str) else vr(C + 4 * h, 4)
                e(f"v_mfma_f32_16x16x32_bf16 {vr(D + 4*h, 4)}, {vr(A,4)}, {vr(B,4)}, {cs}")
    if opt.dbg == 17:
        def mfma(D, A, B, C): pass
    for m in range(3):
        for u in range(2): wread1(0, m, u)
    for x in range(2): xread1(0, x, 0)
    for m in range(3):
        for u in range(2): wread1(1, m, u)
    for s_ in range(1, 4):
        for x in range(2): xread1(0, x, s_)
    initq = init_list()
    NT = 29 if opt.tailopt else 32
    for t in range(NT):
        lc, s_ = t >> 2, t & 3
        if opt.stamps == 2 and t in (4, 8, 12, 16, 20, 24, 28): stamp(f"t{t}")
        if s_ == 2 and lc <= 6:
            a.lgall()
            e("s_barrier")
        a.lgwait(f"wf{t}")
        a.lgwait(f"xr{lc}_{s_}")
        R = [(t + 2, m, u) for m in range(3) for u in range(2)] if t + 2 < 32 else []
        X = [(lc + 1, x, 2 * (s_ - 2) + k) for k in range(2) for x in range(2)] if (s_ >= 2 and lc <= 6) else []
        C = (lambda r: "0") if t == 0 else (lambda r: r)
        xa, xb = XFr(lc, 0, s_), XFr(lc, 1, s_)
        def ini(n):
            if t >= 28:
                for _ in range(n):
                    if initq: e(initq.pop(0))
        mfma(AK(0), WFr(t, 0), xa, C(AK(0)))
        for r in R[0:2]: wread1(*r)
        ini(3)
        mfma(AK(1), WFr(t, 0), xb, C(AK(1)))
        for r in R[2:4]: wread1(*r)
        ini(3)
        mfma(AV(0), xa, WFr(t, 1), C(AV(0)))
        for r in R[4:6]: wread1(*r)
        ini(3)
        mfma(AV(1), xb, WFr(t, 1), C(AV(1)))
        for x in X[0:2]: xread1(*x)
        ini(3)
        mfma(AQ(0), WFr(t, 2), xa, C(AQ(0)))
        for x in X[2:4]: xread1(*x)
        ini(3)
        mfma(AQ(1), WFr(t, 2), xb, C(AQ(1)))
        ini(3)
    if not opt.tailopt:
        while initq: e(initq.pop(0))
    e(f"s_lshl_b32 s{sKVO}, s{sBH}, 6")
    e(f"s_lshl_b32 s{sT2}, s{sC}, 3")
    e(f"s_add_u32 s{sKVO}, s{sKVO}, s{sT2}")
    e(f"s_lshl_b32 s{sT2}, s{sW}, 1")
    e(f"s_add_u32 s{sKVO}, s{sKVO}, s{sT2}")
    e(f"s_lshl_b32 s{sKVO}, s{sKVO}, 12")
    e(f"s_add_u32 s{sKVO}, s{sKVO}, {WS_KV}")
    e(f"s_add_u32 s{sT1}, s{sKVO}, 4096")
    e(f"v_add_u32 v{vK}, s{SXB}, v{vL16}")
    cq = 0.25 * math.log2(math.e)
    e(f"s_mov_b32 s{sT2}, {hex(f32bits(cq))}")
    def k_epi(x, T):
        so = sKVO if x == 0 else sT1
        L = [("e", cvt(T + i, AK(x) + 2 * i, AK(x) + 2 * i + 1)) for i in range(8)]
        L += [("vm", f"buffer_store_dwordx4 {vr(T+4*i,4)}, v{vL16}, {srd(S_WS)}, s{so} offen offset:{i*1024} sc1") for i in range(2)]
        L += [("lg", f"ds_write_b128 v{vK}, {vr(T+4*i,4)} offset:{x*REG+i*1024}") for i in range(2)]
        return L
    def v_epi(x, T):
        so = sKVO if x == 0 else sT1
        L = [("e", cvt(T + i, AV(x) + 2 * i, AV(x) + 2 * i + 1)) for i in range(8)]
        L += [("vm", f"buffer_store_dwordx4 {vr(T+4*i,4)}, v{vL16}, {srd(S_WS)}, s{so} offen offset:{(2+i)*1024} sc1") for i in range(2)]
        L += [("lg", f"ds_write_b128 v{vK}, {vr(T+4*i,4)} offset:{x*REG+(2+i)*1024}") for i in range(2)]
        return L
    def q_epi(x, T):
        L = [("e", f"v_mul_f32 v{AQ(x)+i}, s{sT2}, v{AQ(x)+i}") for i in range(16)]
        L += [("e", cvt(T + i, AQ(x) + 2 * i, AQ(x) + 2 * i + 1)) for i in range(8)]
        L += [("lg", f"ds_write_b128 v{vK}, {vr(T+4*h,4)} offset:{x*REG+8192+h*1024}") for h in range(2)]
        return L
    def emit(items):
        for k, l in items:
            if k == "e": e(l)
            elif k == "vm": a.vmop(l, "kvs")
            else: a.lgop(l, "kvw")
    if opt.tailopt:
        for m in range(3):
            for u in range(2): wread1(31, m, u)
        xs = {t: (XFr(7, 0, t & 3), XFr(7, 1, t & 3)) for t in (29, 30, 31)}
        a.lgwait("wf30")
        for t in (29, 30):
            for x in range(2):
                mfma(AK(x), WFr(t, 0), xs[t][x], AK(x))
                for _ in range(8):
                    if initq: e(initq.pop(0))
        a.lgwait("wf31")
        for x in range(2):
            mfma(AK(x), WFr(31, 0), xs[31][x], AK(x))
            for _ in range(8):
                if initq: e(initq.pop(0))
        while initq: e(initq.pop(0))
        vm_ = [(x, t) for t in (29, 30, 31) for x in range(2)]
        ke = k_epi(0, TKA) + k_epi(1, TKB)
        for n, (x, t) in enumerate(vm_):
            mfma(AV(x), xs[t][x], WFr(t, 1), AV(x))
            if n == 1: e("s_nop 7"); e("s_nop 1")
            if n >= 2: emit(ke[:5]); del ke[:5]
        ve = v_epi(0, TVA) + v_epi(1, TVB)
        qm_ = [(x, t) for t in (29, 30, 31) for x in range(2)]
        for n, (x, t) in enumerate(qm_):
            mfma(AQ(x), WFr(t, 2), xs[t][x], AQ(x))
            if ke: emit(ke[:6]); del ke[:6]
            elif n >= 2: emit(ve[:6]); del ve[:6]
        emit(ke)
        stamp("gemm done")
        e("s_nop 3")
        emit(ve)
        e("s_nop 7")
        emit(q_epi(0, TQA)); emit(q_epi(1, TQB))
    else:
        stamp("gemm done")
        e("s_nop 7")
        emit(k_epi(0, TKA)); emit(k_epi(1, TKB)); emit(v_epi(0, TVA)); emit(v_epi(1, TVB))
        emit(q_epi(0, TQA)); emit(q_epi(1, TQB))
    mfma = mfma_full
    e(f"s_lshl_b32 s{sKVO}, s{sC}, 5")
    e(f"s_add_u32 s{sKVO}, s{sKVO}, s{sBH}")
    e(f"s_lshl_b32 s{sKVO}, s{sKVO}, 7")
    e(f"s_lshl_b32 s{sT3x}, s{sW}, 3")
    e(f"s_add_u32 s{sKVO}, s{sKVO}, s{sT3x}")
    e(f"s_add_u32 s{sKVO}, s{sKVO}, {WS_KVF}")
    if not opt.lfirst: e("s_branch L_B1")
    i_load = len(a.lines)

    a.lab("L_LOADER")
    a.vm = []; a.lg = []
    sU, SXB2, SWG = sT5, sT4, sH
    e(f"s_sub_u32 s{sU}, s{sW}, 4")
    e(f"v_lshrrev_b32 v13, 2, v0")
    e(f"v_mul_u32_u24 v13, 3072, v13")
    e(f"v_and_b32 v15, 3, v0")
    e(f"v_lshl_add_u32 v13, v15, 4, v13")
    e(f"s_lshl_b32 s{sT1}, s{sHG}, 6")
    e(f"v_add_u32 v{vWO}, s{sT1}, v13")
    e(f"v_lshrrev_b32 v13, 3, v0")
    e(f"v_lshlrev_b32 v13, 10, v13")
    e(f"s_lshl_b32 s{sT1}, s{sC}, 3")
    e(f"s_lshl_b32 s{sT2}, s{sU}, 1")
    e(f"s_add_u32 s{sT1}, s{sT1}, s{sT2}")
    e(f"s_lshl_b32 s{sT1}, s{sT1}, 15")
    e(f"v_add_u32 v13, s{sT1}, v13")
    e(f"v_lshrrev_b32 v15, 4, v0")
    e(f"v_xor_b32 v15, v15, v0")
    e(f"v_and_b32 v15, 7, v15")
    e(f"v_lshl_add_u32 v{vXO}, v15, 4, v13")
    e(f"v_xor_b32 v{vXO+1}, 64, v{vXO}")
    e(f"v_add_u32 v{vXO+2}, 14336, v{vXO}")
    e(f"v_add_u32 v{vXO+3}, 21504, v{vXO+1}")
    e(f"v_add_u32 v{vXO+1}, 7168, v{vXO+1}")
    e(f"s_and_b32 s{sT1}, s{sJ}, 3")
    e(f"s_add_u32 s{sT1}, s{sT1}, s{sN3}")
    if opt.rot == 2:
        e(f"s_and_b32 s{sT0}, s{sT1}, 1")
        e(f"s_lshl_b32 s{sT0}, s{sT0}, 1")
    else:
        e(f"s_and_b32 s{sT0}, s{sT1}, {3 if opt.rot else 0}")
    e("s_waitcnt lgkmcnt(0)")
    mk_w()
    mk(S_X, 40, 41, 2097152)
    SWL, sXK, sWP = 40, 41, 42
    e(f"s_mul_i32 s{SXB2}, s{sU}, {2*REG}")
    e(f"s_mul_i32 s{SWG}, s{sU}, {16*3072}")
    e(f"s_lshl_b32 s{SWL}, s{sU}, 10")
    e(f"s_add_u32 s{SWL}, s{SWL}, {LDS_W}")
    e(f"s_lshl_b32 s{sXK}, s{sT0}, 8")
    MCOL = {0: 1, 1: 2, 2: 0}
    def wo_pf():
        e(f"s_and_b32 s{sT2}, s{sJ}, 15")
        e(f"s_lshl_b32 s{sT2}, s{sT2}, 15")
        e(f"s_lshl_b32 s{sT3x}, s{sU}, 13")
        e(f"s_add_u32 s{sT2}, s{sT2}, s{sT3x}")
        e(f"v_lshlrev_b32 v15, 6, v0")
        e(f"s_cmp_lt_u32 s{sJ}, 16")
        e("s_cbranch_scc1 L_WOPF_A")
        e(f"buffer_load_dword v213, v15, {srd(S_WOB)}, s{sT2} offen")
        e(f"s_add_u32 s{sT2}, s{sT2}, 4096")
        e(f"buffer_load_dword v214, v15, {srd(S_WOB)}, s{sT2} offen")
        e("s_branch L_WOPF_E")
        a.lab("L_WOPF_A")
        e(f"buffer_load_dword v213, v15, {srd(S_WOA)}, s{sT2} offen")
        e(f"s_add_u32 s{sT2}, s{sT2}, 4096")
        e(f"buffer_load_dword v214, v15, {srd(S_WOA)}, s{sT2} offen")
        a.lab("L_WOPF_E")
        a.vm += ["wopf", "wopf"]
    def issue(lc):
        if lc > 0:
            e(f"s_add_u32 s{sXK}, s{sXK}, 128")
            e(f"s_and_b32 s{sXK}, s{sXK}, 1023")
        e(f"s_mul_i32 s{sWP}, s{sXK}, 1536")
        e(f"s_add_u32 s{sWP}, s{sWP}, s{SWG}")
        for m in range(3):
            e(f"s_add_u32 m0, s{SWL}, {(lc%3)*WSLOT + m*4096}")
            e(f"s_add_u32 s{sT3x}, s{sWP}, {MCOL[m]*1024}")
            a.vmop(f"buffer_load_dwordx4 v{vWO}, {srd(S_W)}, s{sT3x} offen lds", f"c{lc}")
        for b in range(2):
            e(f"s_add_u32 m0, s{SXB2}, {b*REG + (lc%3)*4096}")
            e(f"s_add_u32 s{sT3x}, s{sXK}, {b*32768}")
            for i in range(4):
                a.vmop(f"buffer_load_dwordx4 v{vXO+i}, {srd(S_X)}, s{sT3x} offen offset:{i*1024} lds", f"c{lc}")
    def tlb_warm():
        e(f"s_cmp_eq_u32 s{sU}, 0"); e("s_cbranch_scc0 L_TW1")
        e(f"s_lshl_b32 s{sT2}, s{sBH}, 6"); e(f"s_lshl_b32 s{sT3x}, s{sC}, 3"); e(f"s_add_u32 s{sT2}, s{sT2}, s{sT3x}")
        e(f"s_lshl_b32 s{sT2}, s{sT2}, 12"); e(f"s_add_u32 s{sT2}, s{sT2}, {WS_KV}")
        e(f"v_mov_b32 v13, {WS_OF}")
        e(f"v_writelane_b32 v13, s{sT2}, 1")
        e(f"s_lshl_b32 s{sT2}, s{sC}, 19"); e(f"s_add_u32 s{sT2}, s{sT2}, {WS_O}")
        e(f"v_writelane_b32 v13, s{sT2}, 2")
        e(f"s_lshr_b32 s{sT2}, s{sT3}, 2"); e(f"s_lshl_b32 s{sT2}, s{sT2}, 19"); e(f"s_add_u32 s{sT2}, s{sT2}, {WS_O}")
        e(f"v_writelane_b32 v13, s{sT2}, 3")
        e("s_mov_b64 exec, 15")
        e(f"buffer_load_dword v215, v13, {srd(S_WS)}, 0 offen sc1")
        e(f"buffer_load_dword v214, v13, {srd(S_WS)}, 0 offen offset:128 sc1")
        e("s_mov_b64 exec, -1")
        e("s_branch L_TWE")
        a.lab("L_TW1")
        e(f"s_cmp_eq_u32 s{sU}, 1"); e("s_cbranch_scc0 L_TW2")
        e(f"s_lshr_b32 s{sT2}, s{sT3}, 2"); e(f"s_lshl_b32 s{sT2}, s{sT2}, 18")
        e(f"v_mov_b32 v13, 0")
        e("s_mov_b64 exec, 1")
        e(f"buffer_load_dword v215, v13, {srd(S_OUT)}, s{sT2} offen")
        e(f"buffer_load_dword v214, v13, {srd(S_DBG)}, 0 offen sc1")
        e("s_mov_b64 exec, -1")
        e("s_branch L_TWE")
        a.lab("L_TW2")
        e(f"s_cmp_eq_u32 s{sU}, 2"); e("s_cbranch_scc0 L_TW3")
        e(f"v_mov_b32 v13, 0")
        e("s_mov_b64 exec, 1")
        e(f"buffer_load_dword v215, v13, {srd(S_WOA)}, 0 offen")
        e(f"buffer_load_dword v214, v13, {srd(S_WOB)}, 0 offen")
        e("s_mov_b64 exec, -1")
        e("s_branch L_TWE")
        a.lab("L_TW3")
        e(f"v_mov_b32 v13, 0")
        e("s_mov_b64 exec, 1")
        e(f"buffer_load_dword v215, v13, {srd(S_GW)}, 0 offen")
        e(f"buffer_load_dword v214, v13, {srd(S_GW)}, 0 offen offset:128")
        e("s_mov_b64 exec, -1")
        a.lab("L_TWE")
        a.vm += ["warm", "warm"]
    issue(0)
    issue(1)
    mk_rest()
    if opt.warm == 2: tlb_warm()
    e(f"s_or_b32 s{sT1}, s2, s{sU}")
    e(f"s_cmp_lg_u32 s{sT1}, 0")
    e("s_cbranch_scc1 L_NONCE_SKIP0")
    e(f"v_mov_b32 v13, 0")
    e(f"buffer_load_dword v14, v13, {srd(S_WS)}, 0 offen sc1")
    a.lab("L_NONCE_SKIP0")
    stamp("issued")
    a.vmwait("c0")
    e("s_barrier")
    stamp("first data")
    issue(2)
    if opt.warm == 3: tlb_warm()
    if opt.warm in (5, 6, 7):
        if opt.warm in (6, 7): e("s_branch L_F5_2")
        e(f"s_cmp_eq_u32 s{sU}, 0"); e("s_cbranch_scc0 L_F5_1")
        e(f"s_lshl_b32 s{sT2}, s{sC}, 5"); e(f"s_lshr_b32 s{sT3x}, s{sBH}, 3"); e(f"s_add_u32 s{sT2}, s{sT2}, s{sT3x}")
        e(f"s_lshl_b32 s{sT2}, s{sT2}, 7"); e(f"s_add_u32 s{sT2}, s{sT2}, {WS_OF}")
        e(f"v_and_b32 v13, 7, v0"); e(f"v_lshlrev_b32 v13, 9, v13")
        e("s_mov_b64 exec, 0xff")
        e(f"buffer_load_dword v215, v13, {srd(S_WS)}, s{sT2} offen sc1")
        e("s_branch L_F5_E")
        a.lab("L_F5_1")
        e(f"s_cmp_eq_u32 s{sU}, 1"); e("s_cbranch_scc0 L_F5_2")
        e(f"s_lshr_b32 s{sT2}, s{sT3}, 2"); e(f"s_lshl_b32 s{sT2}, s{sT2}, 3"); e(f"s_and_b32 s{sT3x}, s{sT3}, 3")
        e(f"s_add_u32 s{sT0}, s{sT2}, s{sT3x}"); e(f"s_sub_u32 s{sT3x}, 7, s{sT3x}"); e(f"s_add_u32 s{sT1}, s{sT2}, s{sT3x}")
        e(f"s_lshl_b32 s{sT0}, s{sT0}, 9"); e(f"s_lshl_b32 s{sT1}, s{sT1}, 9"); e(f"s_sub_u32 s{sT1}, s{sT1}, s{sT0}")
        e(f"s_sub_u32 s{sT1}, s{sT1}, 512"); e(f"s_add_u32 s{sT0}, s{sT0}, {WS_OF}")
        e(f"v_and_b32 v13, 7, v0"); e(f"v_lshlrev_b32 v13, 7, v13"); e(f"v_bfe_u32 v15, v0, 2, 1"); e(f"v_mul_lo_u32 v15, v15, s{sT1}"); e(f"v_add_u32 v13, v13, v15")
        e("s_mov_b64 exec, 0xff")
        e(f"buffer_load_dword v215, v13, {srd(S_WS)}, s{sT0} offen sc1")
        e("s_branch L_F5_E")
        a.lab("L_F5_2")
        e(f"s_lshl_b32 s{sT2}, s{sC}, 5"); e(f"s_add_u32 s{sT2}, s{sT2}, s{sBH}"); e(f"s_lshl_b32 s{sT2}, s{sT2}, 7"); e(f"s_add_u32 s{sT2}, s{sT2}, {WS_KVF - 4096}")
        e(f"v_and_b32 v13, 1, v0"); e(f"v_lshlrev_b32 v13, 12, v13")
        e("s_mov_b64 exec, 3")
        e(f"buffer_load_dword v215, v13, {srd(S_WS)}, s{sT2} offen sc1")
        a.lab("L_F5_E")
        e("s_mov_b64 exec, -1")
        a.vm += ["warm"]
    e(f"s_or_b32 s{sT1}, s2, s{sU}")
    e(f"s_cmp_lg_u32 s{sT1}, 0")
    e("s_cbranch_scc1 L_NONCE_SKIP1")
    e("s_waitcnt vmcnt(11)")
    e(f"v_readfirstlane_b32 s{sT2}, v14")
    e(f"v_mov_b32 v13, 0")
    e("s_nop 3")
    e(f"s_add_u32 s{sT2}, s{sT2}, 1")
    e(f"s_max_u32 s{sT2}, s{sT2}, 1")
    e(f"v_mov_b32 v14, s{sT2}")
    e(f"buffer_store_dword v14, v13, {srd(S_DBG)}, 0 offen sc1")
    e(f"buffer_store_dword v14, v13, {srd(S_WS)}, 0 offen sc1")
    a.lab("L_NONCE_SKIP1")
    a.vmwait("c1")
    e("s_barrier")
    for j in range(6):
        if j + 3 <= 7: issue(j + 3)
        if j + 3 == 7:
            if opt.wopf == 1: wo_pf()
            if opt.warm == 1:
                lab = "L_WARM"
                e(f"s_cmp_eq_u32 s{sU}, 0"); e(f"s_cbranch_scc0 {lab}1")
                e(f"s_lshl_b32 s{sT2}, s{sC}, 5"); e(f"s_lshr_b32 s{sT3x}, s{sBH}, 3"); e(f"s_add_u32 s{sT2}, s{sT2}, s{sT3x}")
                e(f"s_lshl_b32 s{sT2}, s{sT2}, 10"); e(f"s_add_u32 s{sT2}, s{sT2}, {WS_OF}")
                e(f"v_lshrrev_b32 v13, 3, v0"); e(f"v_lshlrev_b32 v13, 12, v13"); e(f"v_and_b32 v15, 7, v0"); e(f"v_lshl_add_u32 v13, v15, 7, v13")
                e(f"buffer_load_dword v215, v13, {srd(S_WS)}, s{sT2} offen sc1")
                e(f"s_branch {lab}E")
                a.lab(f"{lab}1")
                e(f"s_cmp_eq_u32 s{sU}, 1"); e(f"s_cbranch_scc0 {lab}2")
                e(f"s_lshl_b32 s{sT2}, s{sC}, 4"); e(f"s_add_u32 s{sT2}, s{sT2}, s{sBR}"); e(f"s_lshl_b32 s{sT2}, s{sT2}, 5")
                e(f"s_lshl_b32 s{sT3x}, s{sHG}, 1"); e(f"s_add_u32 s{sT2}, s{sT2}, s{sT3x}"); e(f"s_lshl_b32 s{sT2}, s{sT2}, 10")
                e(f"s_add_u32 s{sT2}, s{sT2}, {WS_O}")
                e(f"v_lshrrev_b32 v13, 3, v0"); e(f"v_lshlrev_b32 v13, 16, v13"); e(f"v_and_b32 v15, 7, v0"); e(f"v_lshl_add_u32 v13, v15, 8, v13")
                e(f"buffer_load_dword v215, v13, {srd(S_WS)}, s{sT2} offen sc1")
                e(f"s_branch {lab}E")
                a.lab(f"{lab}2")
                e(f"s_cmp_eq_u32 s{sU}, 2"); e(f"s_cbranch_scc0 {lab}3")
                e(f"s_lshl_b32 s{sT2}, s{sC}, 5"); e(f"s_add_u32 s{sT2}, s{sT2}, s{sBH}"); e(f"s_lshl_b32 s{sT2}, s{sT2}, 7")
                e(f"s_add_u32 s{sT2}, s{sT2}, {WS_KVF}")
                e(f"v_mov_b32 v13, 0")
                e(f"buffer_load_dword v215, v13, {srd(S_WS)}, s{sT2} offen sc1")
                e(f"s_branch {lab}E")
                a.lab(f"{lab}3")
                e(f"s_lshr_b32 s{sT2}, s{sT3}, 2"); e(f"s_lshl_b32 s{sT2}, s{sT2}, 18"); e(f"s_lshl_b32 s{sT3x}, s{sN3}, 7"); e(f"s_add_u32 s{sT2}, s{sT2}, s{sT3x}")
                e(f"v_lshlrev_b32 v13, 12, v0")
                e(f"buffer_load_dword v215, v13, {srd(S_OUT)}, s{sT2} offen")
                a.lab(f"{lab}E")
                a.vm += ["warm"]
        if j + 2 <= 7: a.vmwait(f"c{j+2}")
        e("s_barrier")
    stamp("gemm done")
    if opt.wopf == 2: wo_pf()
    for l in init_list(): e(l)
    for i in range(32): e(f"v_mov_b32 v{OA+i}, 0")
    e(f"s_cmp_lg_u32 s{sU}, 0")
    e("s_cbranch_scc1 L_B1")
    e(f"s_mov_b32 s{sSPIN}, 0")
    e(f"v_mov_b32 v15, 0")
    a.lab("L_TAG_LOOP")
    e(f"buffer_load_dword v14, v15, {srd(S_DBG)}, 0 offen sc1")
    e(f"s_add_u32 s{sSPIN}, s{sSPIN}, 1")
    e("s_waitcnt vmcnt(0)")
    e(f"v_readfirstlane_b32 s{sTAG}, v14")
    e("s_nop 3")
    e(f"s_cmp_lg_u32 s{sTAG}, 0")
    e("s_cbranch_scc1 L_TAG_OK")
    e(f"s_cmp_le_u32 s{sSPIN}, {opt.spin}")
    e("s_cbranch_scc1 L_TAG_LOOP")
    a.lab("L_TAG_OK")
    e(f"v_mov_b32 v15, {LDS_TAG}")
    e(f"ds_write_b32 v15, v14")
    if opt.lfirst:
        e("s_branch L_B1")
        comp = a.lines[i_comp:i_load]; load = a.lines[i_load:]
        a.lines = a.lines[:i_comp] + load + comp
    a.lab("L_B1")
    a.vm = []; a.lg = []
    e("s_waitcnt lgkmcnt(0)")
    e("s_barrier")
    stamp("B1")
    e(f"v_mov_b32 v15, {LDS_TAG}")
    e(f"ds_read_b32 v14, v15")
    e(f"s_mul_i32 s{sT2}, s{sTAU}, {REG}")
    e(f"v_add_u32 v13, s{sT2}, v{vL16}")
    for h in range(2):
        e(f"ds_read_b128 {vr(QF+4*h,4)}, v13 offset:{8192+h*1024}")

    sTQ, sQ, sB3, sKH, sTT3, sOFA = 44, 45, 48, 49, 50, 51
    e(f"s_lshr_b32 s{sTQ}, s{sW}, 2")
    e(f"s_and_b32 s{sQ}, s{sW}, 3")
    e(f"s_lshr_b32 s{sB3}, s{sQ}, 1")
    e(f"s_and_b32 s{sKH}, s{sQ}, 1")
    e(f"s_and_b32 s{sT2}, s{sT3}, 3")
    e(f"s_sub_u32 s{sT3x}, 7, s{sT2}")
    e(f"s_cmp_eq_u32 s{sTQ}, 0")
    e(f"s_cselect_b32 s{sT2}, s{sT2}, s{sT3x}")
    e(f"s_lshr_b32 s{sTT3}, s{sT3}, 2")
    e(f"s_lshl_b32 s{sTT3}, s{sTT3}, 3")
    e(f"s_add_u32 s{sTT3}, s{sTT3}, s{sT2}")
    def kread(h, extra=0): e(f"ds_read_b128 {vr(KF+4*h,4)}, v{vK} offset:{h*1024+extra}")
    def vreads(h, extra=0):
        e(f"s_mov_b64 exec, s[{sVM}:{sVM+1}]")
        for s in range(2):
            e(f"ds_read_b128 {vr(VF+8*h+4*s,4)}, v{vK} offset:{2048+s*1024+h*256+extra}")
        e("s_mov_b64 exec, -1")
    def seg(h, prev, nxt, kx=0, vx=0):
        o = 1 - h
        S = SS + 16 * h; O = OA + 16 * h
        ex = lambda i: e(f"v_exp_f32 v{S+i}, v{S+i}")
        ex(0); ex(1)
        if prev: mfma(OA + 16 * o, VF + 8 * o + 4, PP + 4, OA + 16 * o)
        ex(2); ex(3)
        if nxt: vreads(o, vx)
        ex(4); ex(5)
        if nxt:
            mfma(SS + 16 * o, KF + 4 * o, QF + 4 * o, "0")
            kread(o, kx)
        ex(6); ex(7)
        for i in range(4): e(cvt(PP + i, S + 2 * i, S + 2 * i + 1))
        ex(8)
        e(f"s_waitcnt lgkmcnt({3 if nxt else 0})")
        ex(9)
        mfma(O, VF + 8 * h, PP, O)
        for i in range(10, 16): ex(i)
        for i in range(4, 8): e(cvt(PP + i, S + 2 * i, S + 2 * i + 1))
    def part(name, first_s, rest_s, cnt_s, hook=None):
        a.c(f"---- attention part {name} ----")
        e(f"v_add_u32 v{vK}, s{first_s}, v{vL16}")
        kread(0); kread(1); vreads(0); vreads(1)
        e(f"s_sub_u32 s{sT2}, s{rest_s}, s{first_s}")
        e(f"s_mov_b32 s{sCNT}, s{cnt_s}")
        e("s_waitcnt lgkmcnt(4)")
        if name == "OWN": e(f"v_readfirstlane_b32 s{sTAG}, v14")
        mfma(SS, KF, QF, MK)
        mfma(SS + 16, KF + 4, QF + 4, MK)
        e(f"v_add_u32 v{vK}, s{sT2}, v{vK}")
        kread(0); kread(1)
        e("s_nop 7")
        e("s_waitcnt lgkmcnt(2)")
        seg(0, prev=False, nxt=False)
        if hook: hook()
        e(f"s_cmp_eq_u32 s{sCNT}, 0")
        e(f"s_cbranch_scc1 L_{name}_LAST")
        e(f"s_sub_u32 s{sCNT}, s{sCNT}, 1")
        a.lab(f"L_{name}_LOOP")
        seg(1, prev=True, nxt=True, kx=REG, vx=0)
        seg(0, prev=True, nxt=True, kx=REG, vx=0)
        e(f"v_add_u32 v{vK}, {REG}, v{vK}")
        e(f"s_sub_u32 s{sCNT}, s{sCNT}, 1")
        e(f"s_cbranch_scc0 L_{name}_LOOP")
        a.lab(f"L_{name}_LAST")
        seg(1, prev=True, nxt=False)
        e("s_nop 1")
        mfma(OA + 16, VF + 12, PP + 4, OA + 16)
    def kvflag():
        e("s_waitcnt vmcnt(0)")
        e(f"v_lshlrev_b32 v13, 2, v0")
        e(f"v_mov_b32 v14, s{sTAG}")
        e("s_mov_b64 exec, 3")
        e(f"buffer_store_dword v14, v13, {srd(S_WS)}, s{sKVO} offen sc1")
        e("s_mov_b64 exec, -1")
    a.vm = []
    e(f"s_mul_i32 s{sT0}, s{sTAU}, {REG}")
    e(f"s_mov_b32 s{sT1}, 0")
    def hook():
        e(f"s_cmp_ge_u32 s{sW}, 4")
        e("s_cbranch_scc1 L_KVF_DONE")
        kvflag()
        a.lab("L_KVF_DONE")
    if opt.prio == 2:
        e(f"s_cmp_lt_u32 s{sW}, 4")
        e("s_cbranch_scc1 L_PRIO_SKIP")
        e("s_setprio 1")
        a.lab("L_PRIO_SKIP")
    part("OWN", sT0, sT1, sTAU, hook=hook)
    stamp("own done")
    def gate_loads():
        e(f"s_lshl_b32 s{sT2}, s{sTT3}, 15")
        e(f"s_lshl_b32 s{sT3x}, s{sQ}, 13")
        e(f"s_add_u32 s{sT2}, s{sT2}, s{sT3x}")
        e(f"buffer_load_dwordx4 {vr(GW,4)}, v{vL16}, {srd(S_GW)}, 0 offen")
        for i in range(8):
            e(f"buffer_load_dwordx4 {vr(GX+4*i,4)}, v{vL16}, {srd(S_X)}, s{sT2} offen offset:{(i&3)*1024}")
            if i == 3: e(f"s_add_u32 s{sT2}, s{sT2}, 4096")
    def prefill():
        if not opt.sent: return
        for i in range(4): e(f"v_mov_b32 v{128+i}, -1")
        e(f"s_lshl_b32 s{sT2}, s{sTT}, 1")
        e(f"s_add_u32 s{sT2}, s{sT2}, s{sBR}")
        e(f"s_lshl_b32 s{sT2}, s{sT2}, 5")
        e(f"s_lshl_b32 s{sT3x}, s{sHG}, 1")
        e(f"s_add_u32 s{sT2}, s{sT2}, s{sT3x}")
        e(f"s_lshl_b32 s{sT2}, s{sT2}, 10")
        e(f"s_add_u32 s{sT2}, s{sT2}, {WS_O}")
        for h in range(2):
            e(f"buffer_store_dwordx4 v[128:131], v{vL16}, {srd(S_WS)}, s{sT2} offen offset:{h*1024} sc1")
    def wo_voff():
        e(f"v_lshrrev_b32 v13, 3, v0")
        e(f"v_lshlrev_b32 v13, 10, v13")
        e(f"v_bfe_u32 v15, v0, 4, 1")
        e(f"v_lshlrev_b32 v15, 2, v15")
        e(f"v_xor_b32 v15, v15, v0")
        e(f"v_and_b32 v15, 7, v15")
        e(f"v_lshl_add_u32 v14, v15, 4, v13")
    def wo_dma(S, heads, kh, ldsaddr):
        for i in heads:
            sg, cst = ldsaddr(i)
            for hf in range(2):
                e(f"s_add_u32 s{sT3x}, s{sT5}, {(256*kh + 16*i + 8*hf)*1024}")
                e(f"s_add_u32 m0, s{sg}, {cst + hf*1024}")
                e("s_nop 0")
                e(f"buffer_load_dwordx4 v14, {srd(S)}, s{sT3x} offen lds")
    def wo_lin(S, sg, sl, n):
        e(f"s_mov_b32 m0, s{sl}")
        e("s_nop 0")
        for i in range(n):
            e(f"buffer_load_dwordx4 v14, {srd(S)}, s{sg} offen lds")
            if i < n - 1:
                e(f"s_add_u32 m0, m0, 1024")
                e(f"s_add_u32 s{sg}, s{sg}, 8192")
    def wo_early():
        wo_voff()
        e(f"s_lshl_b32 s{sT5}, s{sN3}, 7")
        e(f"s_and_b32 s{sT0}, s{sTAU}, 1")
        e(f"s_lshl_b32 s{sT0}, s{sT0}, 18")
        e(f"s_add_u32 s{sT0}, s{sT0}, s{sT5}")
        e(f"s_lshl_b32 s{sT1}, s{sTAU}, 14")
        e(f"s_add_u32 s{sT1}, s{sT1}, {LDS_A0}")
        lab = f"L_WE_{opt._n}"; opt._n += 1
        e(f"s_cmp_ge_u32 s{sTAU}, 2")
        e(f"s_cbranch_scc1 {lab}_B")
        e(f"s_mov_b32 s{sT4}, s{sT0}")
        wo_lin(S_WOA, sT4, sT1, 16)
        e(f"s_branch {lab}_E")
        a.lab(f"{lab}_B")
        e(f"s_mov_b32 s{sT4}, s{sT0}")
        wo_lin(S_WOB, sT4, sT1, 16)
        a.lab(f"{lab}_E")
    def halo_poll_load():
        n = opt._n; opt._n += 1
        e(f"s_sub_u32 s{sT2}, s{sC}, 1")
        e(f"s_lshl_b32 s{sT3x}, s{sT2}, 5")
        e(f"s_add_u32 s{sT3x}, s{sT3x}, s{sBH}")
        e(f"s_lshl_b32 s{sT3x}, s{sT3x}, 7")
        e(f"s_lshl_b32 s{sT4}, s{sTAU}, 3")
        e(f"s_add_u32 s{sT3x}, s{sT3x}, s{sT4}")
        e(f"s_add_u32 s{sT3x}, s{sT3x}, {WS_KVF}")
        e(f"v_and_b32 v13, 1, v0")
        e(f"v_lshlrev_b32 v13, 2, v13")
        e(f"s_mov_b32 s{sSPIN}, 0")
        a.lab(f"L_KVF_LOOP{n}")
        e(f"buffer_load_dword v15, v13, {srd(S_WS)}, s{sT3x} offen sc1")
        e(f"s_add_u32 s{sSPIN}, s{sSPIN}, 1")
        e("s_waitcnt vmcnt(0)")
        e(f"v_cmp_ne_u32 vcc, s{sTAG}, v15")
        e(f"s_cmp_gt_u32 s{sSPIN}, {opt.spin}")
        e(f"s_cbranch_scc1 L_KVF_OK{n}")
        e(f"s_cbranch_vccnz L_KVF_LOOP{n}")
        a.lab(f"L_KVF_OK{n}")
        stamp("roleA")
        e(f"s_lshl_b32 s{sT3x}, s{sBH}, 6")
        e(f"s_lshl_b32 s{sT2}, s{sT2}, 3")
        e(f"s_add_u32 s{sT3x}, s{sT3x}, s{sT2}")
        e(f"s_lshl_b32 s{sT2}, s{sTAU}, 1")
        e(f"s_add_u32 s{sT3x}, s{sT3x}, s{sT2}")
        e(f"s_lshl_b32 s{sT3x}, s{sT3x}, 12")
        e(f"s_add_u32 s{sT3x}, s{sT3x}, {WS_KV}")
        for j in range(2):
            for i in range(4):
                e(f"buffer_load_dwordx4 {vr(HT+16*j+4*i,4)}, v{vL16}, {srd(S_WS)}, s{sT3x} offen offset:{i*1024} sc1")
            if j < 1: e(f"s_add_u32 s{sT3x}, s{sT3x}, 4096")
    def halo_write(younger):
        e(f"s_mul_i32 s{sT2}, s{sTAU}, {2*REG}")
        e(f"s_add_u32 s{sT2}, s{sT2}, 4096")
        e(f"v_add_u32 v13, s{sT2}, v{vL16}")
        for j in range(2):
            e(f"s_waitcnt vmcnt({younger+4-4*j})")
            for i in range(4):
                e(f"ds_write_b128 v13, {vr(HT+16*j+4*i,4)} offset:{j*REG+i*1024}")
    opt._n = 0
    NE = 16
    e(f"s_cmp_gt_u32 s{sTAU}, 3")
    e("s_cbranch_scc0 L_ROLE_LO")
    e("s_branch L_HALO_BAR")
    a.lab("L_ROLE_LO")
    e(f"s_cmp_eq_u32 s{sC}, 0")
    e("s_cbranch_scc1 L_ROLE_C0")
    e(f"s_cmp_gt_u32 s{sTAU}, 1")
    e("s_cbranch_scc1 L_ROLE_HI")
    wo_early()
    halo_poll_load()
    gate_loads()
    halo_write(9)
    e("s_waitcnt lgkmcnt(0)")
    stamp("roleB")
    e("s_branch L_HALO_BAR")
    a.lab("L_ROLE_HI")
    halo_poll_load()
    wo_early()
    gate_loads()
    halo_write(NE + 9)
    e("s_waitcnt vmcnt(9) lgkmcnt(0)")
    stamp("roleB")
    e("s_branch L_HALO_BAR")
    a.lab("L_ROLE_C0")
    wo_early()
    gate_loads()
    e("s_waitcnt vmcnt(9)")
    a.lab("L_HALO_BAR")
    e(f"s_mov_b32 s{sT2}, 0xff800000")
    for r in range(16): e(f"v_xor_b32 v{MK+r}, s{sT2}, v{MK+r}")
    e("s_barrier")
    stamp("B2")
    e(f"s_cmp_ge_u32 s{sTAU}, 4")
    e("s_cbranch_scc1 L_LATE_S")
    prefill()
    e("s_branch L_LATE_E")
    a.lab("L_LATE_S")
    if opt.warm in (4, 6, 7):
        assert not opt.rep
        e(f"s_cmp_eq_u32 s{sW}, 4"); e("s_cbranch_scc0 L_FW_E")
        e(f"s_lshl_b32 s{sT2}, s{sC}, 5"); e(f"s_lshr_b32 s{sT3x}, s{sBH}, 3"); e(f"s_add_u32 s{sT2}, s{sT2}, s{sT3x}")
        e(f"s_lshl_b32 s{sT2}, s{sT2}, 7"); e(f"s_add_u32 s{sT2}, s{sT2}, {WS_OF}")
        e(f"v_lshlrev_b32 v13, 9, v0"); e(f"v_add_u32 v13, s{sT2}, v13")
        e("s_mov_b64 exec, 0xff")
        e(f"buffer_load_dword v215, v13, {srd(S_WS)}, 0 offen sc1")
        e("s_mov_b64 exec, -1")
        e(f"s_lshr_b32 s{sT2}, s{sT3}, 2"); e(f"s_lshl_b32 s{sT2}, s{sT2}, 3"); e(f"s_and_b32 s{sT3x}, s{sT3}, 3")
        e(f"s_add_u32 s{sT0}, s{sT2}, s{sT3x}"); e(f"s_sub_u32 s{sT3x}, 7, s{sT3x}"); e(f"s_add_u32 s{sT1}, s{sT2}, s{sT3x}")
        e(f"s_lshl_b32 s{sT0}, s{sT0}, 9"); e(f"s_lshl_b32 s{sT1}, s{sT1}, 9")
        e(f"s_add_u32 s{sT0}, s{sT0}, {WS_OF}"); e(f"s_add_u32 s{sT1}, s{sT1}, {WS_OF}")
        e(f"v_lshlrev_b32 v13, 7, v0")
        e("s_mov_b64 exec, 15")
        e(f"buffer_load_dword v215, v13, {srd(S_WS)}, s{sT0} offen sc1")
        e(f"buffer_load_dword v214, v13, {srd(S_WS)}, s{sT1} offen sc1")
        e("s_mov_b64 exec, -1")
        a.lab("L_FW_E")
        if opt.warm == 7:
            e(f"s_cmp_eq_u32 s{sW}, 5"); e("s_cbranch_scc0 L_FW_F")
            e(f"s_lshr_b32 s{sT2}, s{sT3}, 2"); e(f"s_lshl_b32 s{sT2}, s{sT2}, 3"); e(f"s_and_b32 s{sT3x}, s{sT3}, 3")
            e(f"s_add_u32 s{sT0}, s{sT2}, s{sT3x}"); e(f"s_sub_u32 s{sT3x}, 7, s{sT3x}"); e(f"s_add_u32 s{sT1}, s{sT2}, s{sT3x}")
            e(f"s_sub_u32 s{sT1}, s{sT1}, s{sT0}"); e(f"s_sub_u32 s{sT1}, s{sT1}, 1"); e(f"s_lshl_b32 s{sT1}, s{sT1}, 15")
            e(f"s_lshl_b32 s{sT0}, s{sT0}, 15"); e(f"s_lshl_b32 s{sT3x}, s{sN3}, 7"); e(f"s_add_u32 s{sT0}, s{sT0}, s{sT3x}")
            e(f"v_lshlrev_b32 v13, 10, v0"); e(f"v_lshrrev_b32 v15, 5, v0"); e(f"v_mul_lo_u32 v15, v15, s{sT1}"); e(f"v_add_u32 v13, v13, v15")
            e(f"buffer_load_dword v215, v13, {srd(S_OUT)}, s{sT0} offen")
            a.lab("L_FW_F")
    wo_voff()
    e(f"s_sub_u32 s{sT2}, 7, s{sTAU}")
    e(f"s_lshl_b32 s{sT5}, s{sN3}, 7")
    e(f"s_and_b32 s{sT0}, s{sT2}, 1")
    e(f"s_lshl_b32 s{sT0}, s{sT0}, 18")
    e(f"s_add_u32 s{sT0}, s{sT0}, s{sT5}")
    e(f"s_add_u32 s{sT0}, s{sT0}, {128*1024}")
    e(f"s_mul_i32 s{sT1}, s{sT2}, {2*REG}")
    def late(S):
        for (reg, slot) in ((0, 8192), (1, 8192), (0, 0), (1, 0)):
            e(f"s_add_u32 s{sT3x}, s{sT1}, {reg*REG + slot}")
            wo_lin(S, sT0, sT3x, 4)
            e(f"s_add_u32 s{sT0}, s{sT0}, 8192")
    e(f"s_cmp_ge_u32 s{sT2}, 2")
    e("s_cbranch_scc1 L_LATE_B")
    late(S_WOA)
    e("s_branch L_LATE_G")
    a.lab("L_LATE_B")
    late(S_WOB)
    a.lab("L_LATE_G")
    gate_loads()
    if opt.prio: e("s_setprio 1")
    a.lab("L_LATE_E")
    e(f"s_cmp_eq_u32 s{sC}, 0")
    e("s_cbranch_scc1 L_P2_EPI")
    e(f"s_mul_i32 s{sT0}, s{sTAU}, {REG}")
    e(f"s_add_u32 s{sT0}, s{sT0}, 4096")
    e(f"s_add_u32 s{sT1}, s{sT0}, {REG}")
    e(f"s_sub_u32 s{sT4}, 7, s{sTAU}")
    part("HALO", sT0, sT1, sT4)
    a.lab("L_P2_EPI")
    stamp("attn done")
    lo, hi = f32bits(2.0 ** -64), f32bits(2.0 ** 64)
    e(f"s_mov_b32 s{sT0}, {hex(lo)}")
    e(f"s_mov_b32 s{sT1}, {hex(hi)}")
    e(f"s_lshl_b32 s{sKVO}, s{sTT}, 1")
    e(f"s_add_u32 s{sKVO}, s{sKVO}, s{sBR}")
    e(f"s_lshl_b32 s{sKVO}, s{sKVO}, 5")
    e(f"s_lshl_b32 s{sT3x}, s{sHG}, 1")
    e(f"s_add_u32 s{sKVO}, s{sKVO}, s{sT3x}")
    e(f"s_lshl_b32 s{sKVO}, s{sKVO}, 10")
    e(f"s_add_u32 s{sKVO}, s{sKVO}, {WS_O}")
    e(f"s_lshl_b32 s{sT2}, s{sTT}, 2")
    e(f"s_lshr_b32 s{sT3x}, s{sBH}, 3")
    e(f"s_add_u32 s{sT2}, s{sT2}, s{sT3x}")
    e(f"s_lshl_b32 s{sT2}, s{sT2}, {10 if opt.rep else 7}")
    e(f"s_and_b32 s{sT3x}, s{sBH}, 7")
    e(f"s_lshl_b32 s{sT3x}, s{sT3x}, 2")
    e(f"s_add_u32 s{sT2}, s{sT2}, s{sT3x}")
    e(f"s_add_u32 s{sOFA}, s{sT2}, {WS_OF}")
    e("s_nop 2")
    if opt.fallback:
        for h in range(2):
            O = OA + 16 * h
            e(f"v_mul_f32 v13, 0, v{O}")
            for i in range(1, 8): e(f"v_fmac_f32 v13, 0, v{O+i}")
            e(f"v_cmp_nle_f32 vcc, s{sT0}, v{O+8}")
            e(f"s_mov_b64 s[74:75], vcc")
            e(f"v_cmp_nge_f32 vcc, s{sT1}, v{O+8}")
            e("s_or_b64 s[74:75], s[74:75], vcc")
            e(f"v_cmp_u_f32 vcc, v13, v13")
            e("s_or_b64 s[74:75], s[74:75], vcc")
            e("s_cmp_lg_u64 s[74:75], 0")
            e(f"s_cselect_b32 s{sT2}, {1<<h}, 0")
            e(f"s_or_b32 s{sFAIL}, s{sFAIL}, s{sT2}")
        e(f"s_cmp_lg_u32 s{sFAIL}, 0")
        e("s_cbranch_scc1 L_FB_ENTRY")
        a.lab("L_NOFB")
    else:
        e("s_nop 7")
    if opt.sent:
        e(f"s_cmp_ge_u32 s{sW}, 4")
        e("s_cbranch_scc1 L_NOSENT")
        e("s_waitcnt vmcnt(0)")
        a.lab("L_NOSENT")
    for h in range(2):
        e(f"v_rcp_f32 v{13+h}, v{OA+16*h+8}")
    for h in range(2):
        O = OA + 16 * h
        for i in range(8): e(f"v_mul_f32 v{O+i}, v{O+i}, v{13+h}")
        for i in range(4): e(cvt(O + 8 + i, O + 2 * i, O + 2 * i + 1))
        if opt.sent:
            for i in range(4): e(f"v_min_u32 v{O+8+i}, -2, v{O+8+i}")
        e(f"buffer_store_dwordx4 {vr(O+8,4)}, v{vL16}, {srd(S_WS)}, s{sKVO} offen offset:{h*1024} sc1")
    if opt.sent:
        e(f"s_cmp_ge_u32 s{sW}, 4")
        e("s_cbranch_scc1 L_NOHINT")
        e(f"v_lshlrev_b32 v13, 7, v0")
        e(f"v_mov_b32 v14, s{sTAG}")
        e(f"s_mov_b64 exec, {'0xff' if opt.rep else 1}")
        e(f"buffer_store_dword v14, v13, {srd(S_WS)}, s{sOFA} offen sc1")
        e("s_mov_b64 exec, -1")
        stamp("O published")
        a.lab("L_NOHINT")
    WF3, OF3, AC3 = 16, 144, 208
    e(f"v_lshrrev_b32 v1, 5, v0")
    e(f"v_lshlrev_b32 v1, 9, v1")
    e(f"v_bfe_u32 v2, v0, 2, 2")
    e(f"v_lshl_add_u32 v1, v2, 7, v1")
    e(f"v_bfe_u32 v2, v0, 3, 1")
    e(f"v_lshl_add_u32 v1, v2, 6, v1")
    e(f"v_bfe_u32 v2, v0, 4, 1")
    e(f"v_lshl_add_u32 v1, v2, 5, v1")
    e(f"v_and_b32 v2, 3, v0")
    e(f"v_lshl_add_u32 v1, v2, 3, v1")
    e(f"s_lshl_b32 s{sT2}, s{sQ}, 14")
    e(f"s_add_u32 s{sT2}, s{sT2}, {LDS_A0}")
    e(f"s_mul_i32 s{sT3x}, s{sQ}, {2*REG}")
    e(f"v_xor_b32 v2, 64, v1")
    vA = [244, 245]; vB = [246, 247]
    e(f"v_add_u32 v{vA[0]}, s{sT2}, v1")
    e(f"v_add_u32 v{vA[1]}, s{sT2}, v2")
    e(f"v_add_u32 v{vB[0]}, s{sT3x}, v1")
    e(f"v_add_u32 v{vB[1]}, s{sT3x}, v2")
    def trw(i):
        for ct in range(2):
            for u in range(2):
                if i < 8: ad, off = vA[ct], i * 2048
                elif i < 12: ad, off = vB[ct], ((i - 8) >> 1) * REG + 8192 + ((i - 8) & 1) * 2048
                else: ad, off = vB[ct], ((i - 12) >> 1) * REG + ((i - 12) & 1) * 2048
                e(f"ds_read_b64_tr_b16 {vr(WF3+8*i+4*ct+2*u,2)}, v{ad} offset:{off+u*1024}")
    for i in range(8): trw(i)
    e(f"s_lshl_b32 s{sT1}, s{sTT3}, 2")
    e(f"s_add_u32 s{sT1}, s{sT1}, s{sQ}")
    if opt.rep:
        e(f"s_lshl_b32 s{sT1}, s{sT1}, 3")
        e(f"s_add_u32 s{sT1}, s{sT1}, s{sN3}")
    e(f"s_lshl_b32 s{sT1}, s{sT1}, 7")
    e(f"s_add_u32 s{sT1}, s{sT1}, {WS_OF}")
    e(f"s_lshl_b32 s{sT0}, s{sTT3}, 1")
    e(f"s_add_u32 s{sT0}, s{sT0}, s{sB3}")
    e(f"s_lshl_b32 s{sT0}, s{sT0}, 5")
    e(f"s_lshl_b32 s{sT3x}, s{sKH}, 4")
    e(f"s_add_u32 s{sT0}, s{sT0}, s{sT3x}")
    e(f"s_lshl_b32 s{sT0}, s{sT0}, 10")
    e(f"s_add_u32 s{sT0}, s{sT0}, {WS_O}")
    def oflag(wait=True):
        e(f"v_lshlrev_b32 v13, 7, v0")
        e(f"v_mov_b32 v14, s{sTAG}")
        if wait: e("s_waitcnt vmcnt(0)")
        e(f"s_mov_b64 exec, {'0xff' if opt.rep else 1}")
        e(f"buffer_store_dword v14, v13, {srd(S_WS)}, s{sOFA} offen sc1")
        e("s_mov_b64 exec, -1")
        stamp("O published")
    GR = 244 - 4 - 4
    def gate():
        for i in range(8): e(f"v_mov_b32 v{GA+i}, 0")
        for d in range(4):
            for i in range(8):
                e(f"v_dot2_f32_bf16 v{GA+i}, v{GX+4*i+d}, v{GW+d}, v{GA+i}")
        e("s_nop 4")
        for i in range(4): e(f"v_permlane32_swap_b32 v{GA+i}, v{GA+4+i}")
        for i in range(4): e(f"v_add_f32 v{GA+i}, v{GA+i}, v{GA+4+i}")
        e("s_nop 1")
        for i in range(2): e(f"v_permlane16_swap_b32 v{GA+i}, v{GA+2+i}")
        for i in range(2): e(f"v_add_f32 v{GA+i}, v{GA+i}, v{GA+2+i}")
        e("s_nop 1")
        for i in range(2): e(f"v_add_f32_dpp v{GA+i}, v{GA+i}, v{GA+i} row_ror:8 row_mask:0xf bank_mask:0xf")
        e("s_nop 1")
        e(f"v_mov_b32_dpp v{GA}, v{GA+1} quad_perm:[0,1,2,3] row_mask:0xf bank_mask:0xc")
        e("s_nop 1")
        e(f"v_add_f32_dpp v15, v{GA}, v{GA} quad_perm:[1,0,3,2] row_mask:0xf bank_mask:0xf")
        e("s_nop 1")
        e("v_add_f32_dpp v15, v15, v15 quad_perm:[2,3,0,1] row_mask:0xf bank_mask:0xf")
        e("s_nop 1")
        e("v_add_f32_dpp v15, v15, v15 row_half_mirror row_mask:0xf bank_mask:0xf")
        e("v_cvt_pk_bf16_f32 v15, v15, v15")
        e("v_and_b32 v15, 0xffff0000, v15")
        e(f"v_mul_f32 v15, {hex(f32bits(-math.log2(math.e)))}, v15")
        e("v_exp_f32 v15, v15")
        e("s_nop 0")
        e("v_add_f32 v15, 1.0, v15")
        e("v_rcp_f32 v15, v15")
        e("s_nop 0")
        e("v_cvt_pk_bf16_f32 v15, v15, v15")
        e(f"v_and_b32 v{GR}, 0xffff0000, v15")
        e(f"v_sub_f32 v15, 1.0, v{GR}")
        e("v_cvt_pk_bf16_f32 v15, v15, v15")
        e(f"v_and_b32 v{GR+1}, 0xffff0000, v15")
    def gate_write():
        e(f"v_lshrrev_b32 v15, 3, v0")
        e(f"s_lshl_b32 s{sT2}, s{sW}, 3")
        e(f"v_add_u32 v15, s{sT2}, v15")
        e(f"v_lshlrev_b32 v15, 2, v15")
        e(f"ds_write_b32 v15, v{GR} offset:{LDS_GATE}")
        e(f"ds_write_b32 v15, v{GR+1} offset:{LDS_GATE+256}")
    def poll(name, first_issued, sleep):
        e(f"s_mov_b32 s{sSPIN}, 0")
        if not first_issued:
            e(f"buffer_load_dword v14, v13, {srd(S_WS)}, s{sT1} offen sc1")
        a.lab(f"L_OF_LOOP{name}")
        e("s_waitcnt vmcnt(0)")
        e(f"v_cmp_ne_u32 vcc, s{sTAG}, v14")
        e(f"s_add_u32 s{sSPIN}, s{sSPIN}, 1")
        e(f"s_cbranch_vccz L_OF_OK{name}")
        e(f"s_cmp_gt_u32 s{sSPIN}, {opt.spin}")
        e(f"s_cbranch_scc1 L_OF_OK{name}")
        if sleep: e(f"s_sleep {sleep}")
        e(f"buffer_load_dword v14, v13, {srd(S_WS)}, s{sT1} offen sc1")
        e(f"s_branch L_OF_LOOP{name}")
        a.lab(f"L_OF_OK{name}")
    def oloads(mod="sc1"):
        for i in range(16):
            e(f"buffer_load_dwordx4 {vr(OF3+4*i,4)}, v{vL16}, {srd(S_WS)}, s{sT0} offen offset:{(i&3)*1024} {mod}")
            if (i & 3) == 3 and i < 15: e(f"s_add_u32 s{sT0}, s{sT0}, 4096")
    def p3mfma(i0, i1):
        for i in range(i0, i1):
            e(f"s_waitcnt vmcnt({15-i})")
            for ct in range(2):
                mfma(AC3 + 16 * ct, WF3 + 8 * i + 4 * ct, OF3 + 4 * i, "0" if i == 0 else AC3 + 16 * ct)
    def late_part():
        gate_write()
        for i in range(8, 16): trw(i)
    def p3mfma2():
        if opt.sent:
            e(f"s_mov_b32 s{sSPIN}, 0")
            a.lab("L_P3_RETRY")
            e("v_mov_b32 v15, 0")
        for i in range(16):
            if i == 8: e("s_waitcnt lgkmcnt(0)")
            e(f"s_waitcnt vmcnt({15-i})")
            for ct in range(2):
                mfma(AC3 + 16 * ct, WF3 + 8 * i + 4 * ct, OF3 + 4 * i, "0" if i == 0 else AC3 + 16 * ct)
                if opt.sent: e(f"v_max3_u32 v15, v15, v{OF3+4*i+2*ct}, v{OF3+4*i+2*ct+1}")
        if opt.sent:
            e("v_cmp_eq_u32 vcc, -1, v15")
            e(f"s_add_u32 s{sSPIN}, s{sSPIN}, 1")
            e("s_cbranch_vccz L_P3_DONE")
            e(f"s_cmp_gt_u32 s{sSPIN}, {opt.spin}")
            e("s_cbranch_scc1 L_P3_DONE")
            e(f"s_sub_u32 s{sT0}, s{sT0}, 12288")
            e("s_nop 7")
            oloads()
            e("s_branch L_P3_RETRY")
            a.lab("L_P3_DONE")
    e(f"s_cmp_eq_u32 s{sTQ}, 0")
    e("s_cbranch_scc1 L_P3_LATE")
    oflag()
    if opt.prio: e("s_setprio 0")
    gate()
    e(f"v_and_b32 v13, 7, v0")
    e(f"v_lshlrev_b32 v13, 2, v13")
    e(f"buffer_load_dword v14, v13, {srd(S_WS)}, s{sT1} offen sc1")
    e("s_waitcnt lgkmcnt(0)")
    e("s_barrier")
    stamp("B3")
    poll("E", True, opt.sleep)
    stamp("O flags seen")
    oloads(opt.omod)
    late_part()
    e("s_branch L_P3_J")
    a.lab("L_P3_LATE")
    if opt.sent:
        e(f"v_and_b32 v13, 7, v0")
        e(f"v_lshlrev_b32 v13, 2, v13")
        e(f"buffer_load_dword v14, v13, {srd(S_WS)}, s{sT1} offen sc1")
        gate()
        e("s_waitcnt lgkmcnt(0)")
        e("s_barrier")
        stamp("B3")
    else:
        e("s_waitcnt vmcnt(2)")
        gate()
        oflag()
        e(f"v_and_b32 v13, 7, v0")
        e(f"v_lshlrev_b32 v13, 2, v13")
        e(f"buffer_load_dword v14, v13, {srd(S_WS)}, s{sT1} offen sc1")
        e("s_waitcnt lgkmcnt(0)")
        e("s_barrier")
        stamp("B3")
    late_part()
    poll("L", True, 0)
    stamp("O flags seen")
    oloads(opt.omod)
    a.lab("L_P3_J")
    p3mfma2()
    stamp("P3 mfma")
    e(f"s_lshl_b32 s{sT2}, s{sTQ}, 15")
    e(f"s_lshl_b32 s{sT3x}, s{sQ}, 11")
    e(f"s_add_u32 s{sT3x}, s{sT3x}, s{sT2}")
    e(f"s_add_u32 s{sT3x}, s{sT3x}, {LDS_RB}")
    e(f"v_add_u32 v1, s{sT3x}, v{vL16}")
    e(f"s_lshl_b32 s{sT3x}, s{sQ}, 13")
    e(f"s_add_u32 s{sT3x}, s{sT3x}, s{sT2}")
    e(f"s_add_u32 s{sT3x}, s{sT3x}, {LDS_RB}")
    e(f"v_add_u32 v2, s{sT3x}, v{vL16}")
    e(f"v_and_b32 v4, 31, v0")
    e(f"s_lshl_b32 s{sT2}, s{sTQ}, 5")
    e(f"v_add_u32 v3, s{sT2}, v4")
    e(f"v_lshlrev_b32 v3, 2, v3")
    e(f"v_lshlrev_b32 v4, 10, v4")
    e(f"v_lshrrev_b32 v5, 5, v0")
    e(f"v_lshl_add_u32 v4, v5, 4, v4")
    e(f"s_lshl_b32 s{sT2}, s{sTT3}, 15")
    e(f"s_lshl_b32 s{sT3x}, s{sN3}, 7")
    e(f"s_add_u32 s{sT2}, s{sT2}, s{sT3x}")
    e(f"s_lshl_b32 s{sT3x}, s{sQ}, 5")
    e(f"s_add_u32 s{sT2}, s{sT2}, s{sT3x}")
    e("s_nop 1")
    for qq in range(4):
        for hf in range(2):
            e(f"ds_write_b128 v1, {vr(AC3+8*qq+4*hf,4)} offset:{qq*8192+hf*1024}")
    e("s_waitcnt lgkmcnt(0)")
    e("s_barrier")
    R = 144
    e(f"ds_read_b32 v5, v3 offset:{LDS_GATE}")
    e(f"ds_read_b32 v6, v3 offset:{LDS_GATE+256}")
    for src in range(4):
        for hf in range(2):
            e(f"ds_read_b128 {vr(R+8*src+4*hf,4)}, v2 offset:{src*2048+hf*1024}")
    e("s_waitcnt lgkmcnt(4)")
    for i in range(8): e(f"v_add_f32 v{R+i}, v{R+i}, v{R+8+i}")
    for i in range(8): e(f"v_mul_f32 v{R+i}, v{R+i}, v5")
    e("s_waitcnt lgkmcnt(0)")
    for i in range(8): e(f"v_add_f32 v{R+16+i}, v{R+16+i}, v{R+24+i}")
    for i in range(8): e(f"v_fmac_f32 v{R+i}, v{R+16+i}, v6")
    for i in range(4): e(cvt(R + 32 + i, R + 2 * i, R + 2 * i + 1))
    e("s_nop 1")
    e(f"v_permlane32_swap_b32 v{R+32}, v{R+34}")
    e(f"v_permlane32_swap_b32 v{R+33}, v{R+35}")
    e(f"buffer_store_dwordx4 {vr(R+32,4)}, v4, {srd(S_OUT)}, s{sT2} offen {opt.outmod}")
    if STAMPS:
        stamp("end")
        e(f"s_memtime s[{sTM}:{sTM+1}]")
        e("s_waitcnt lgkmcnt(0)")
        e(f"s_sub_u32 s{STREG[nst[0]]}, s{sTM}, s100")
        nst[0] += 1
        opt.stamp_names.append("CYCLES")
        n = nst[0]
        e(f"s_lshl_b32 s{sT2}, s2, 3")
        e(f"s_add_u32 s{sT2}, s{sT2}, s{sW}")
        e(f"s_lshl_b32 s{sT2}, s{sT2}, 7")
        e(f"s_add_u32 s{sT2}, s{sT2}, {WS_STAMP}")
        e("v_mov_b32 v13, 0")
        e("s_mov_b64 exec, 1")
        for i in range(n):
            e(f"v_mov_b32 v14, s{STREG[i]}")
            e(f"buffer_store_dword v14, v13, {srd(S_WS)}, s{sT2} offen offset:{4*i}")
            e("s_nop 0")
        e("s_mov_b64 exec, -1")
    e("s_waitcnt vmcnt(0)")
    a.lab("L_END")
    e("s_endpgm")
    if opt.fallback:
        a.lab("L_FB_ENTRY")
        fallback(a, opt, dict(SS=SS, PP=PP, KF=KF, MK=MK, OA=OA, QF=QF, vL16=vL16, HT=144))
        e("s_branch L_NOFB")
    a.lab("L_CODE_END")
    return a

def fallback(a, opt, R):
    e = a.e
    SS, PP, KF, MK, OA, QF, vL16, HT = (R[k] for k in "SS PP KF MK OA QF vL16 HT".split())
    TQ = 128; TM = 132; TB = 133; TO = 136; TV = 152; TC = 176
    S = SS
    sHH, sPASS, sPART, sTILE, sN = sH, 40, 41, 42, 43
    def mfma(D, A, B, C): e(mfma_s(D, A, B, C))
    a.c("==== fallback: true max ====")
    e(f"s_lshl_b32 s{sT2}, s{sC}, 5")
    e(f"s_add_u32 s{sT2}, s{sT2}, s{sBH}")
    e(f"s_lshl_b32 s{sT2}, s{sT2}, 7")
    e(f"s_add_u32 s{sT2}, s{sT2}, {WS_KVF}")
    e(f"v_and_b32 v13, 7, v0")
    e(f"v_lshlrev_b32 v13, 2, v13")
    e(f"s_mov_b32 s{sSPIN}, 0")
    a.lab("L_FB_FLAG")
    e(f"buffer_load_dword v14, v13, {srd(S_WS)}, s{sT2} offen sc1")
    e(f"s_add_u32 s{sSPIN}, s{sSPIN}, 1")
    e("s_waitcnt vmcnt(0)")
    e(f"v_cmp_ne_u32 vcc, s{sTAG}, v14")
    e(f"s_cmp_gt_u32 s{sSPIN}, {opt.spin}")
    e("s_cbranch_scc1 L_FB_FLAG_OK")
    e("s_cbranch_vccnz L_FB_FLAG")
    a.lab("L_FB_FLAG_OK")
    e(f"s_mov_b32 s{sHH}, 0")
    a.lab("L_FB_H")
    e(f"s_lshr_b32 s{sT2}, s{sFAIL}, s{sHH}")
    e(f"s_and_b32 s{sT2}, s{sT2}, 1")
    e(f"s_cmp_eq_u32 s{sT2}, 0")
    e("s_cbranch_scc1 L_FB_NEXT")
    e(f"s_cmp_eq_u32 s{sHH}, 0")
    e("s_cbranch_scc0 L_FB_Q1")
    for i in range(4): e(f"v_mov_b32 v{TQ+i}, v{QF+i}")
    e("s_branch L_FB_Q2")
    a.lab("L_FB_Q1")
    for i in range(4): e(f"v_mov_b32 v{TQ+i}, v{QF+4+i}")
    a.lab("L_FB_Q2")
    e(f"v_mov_b32 v{TM}, 0xff800000")
    for i in range(16): e(f"v_mov_b32 v{TO+i}, 0")
    for i in range(8): e(f"v_mov_b32 v{TV+i}, 0x3f803f80")
    e(f"s_mov_b32 s{sPASS}, 0")
    a.lab("L_FB_PASS")
    e(f"s_mov_b32 s{sPART}, 0")
    a.lab("L_FB_PART")
    e(f"s_cmp_eq_u32 s{sPART}, 0")
    e(f"s_cselect_b32 s{sTILE}, 0, s{sTAU}")
    e(f"s_cselect_b32 s{sN}, s{sTAU}, 7")
    a.lab("L_FB_TILE")
    e(f"s_cmp_eq_u32 s{sTILE}, s{sTAU}")
    e("s_cbranch_scc1 L_FB_MASK")
    for i in range(16): e(f"v_mov_b32 v{TC+i}, 0")
    e("s_branch L_FB_C")
    a.lab("L_FB_MASK")
    e(f"v_and_b32 v13, 31, v0")
    e(f"v_lshrrev_b32 v14, 5, v0")
    e(f"v_lshlrev_b32 v14, 2, v14")
    e(f"v_sub_u32 v13, v13, v14")
    e(f"s_cmp_eq_u32 s{sPART}, 0")
    e(f"s_cselect_b32 s{sT2}, 0, 0xff800000")
    for r in range(16):
        kk = (r & 3) + 8 * (r >> 2)
        e(f"v_subrev_u32 v{TC+r}, {kk}, v13")
        e(f"v_ashrrev_i32 v{TC+r}, 31, v{TC+r}")
        e(f"v_and_b32 v{TC+r}, 0xff800000, v{TC+r}")
        e(f"v_xor_b32 v{TC+r}, s{sT2}, v{TC+r}")
    a.lab("L_FB_C")
    e(f"s_sub_u32 s{sT2}, s{sC}, s{sPART}")
    e(f"s_lshl_b32 s{sT2}, s{sT2}, 3")
    e(f"s_add_u32 s{sT2}, s{sT2}, s{sTILE}")
    e(f"s_lshl_b32 s{sT3x}, s{sBH}, 6")
    e(f"s_add_u32 s{sT2}, s{sT2}, s{sT3x}")
    e(f"s_lshl_b32 s{sT2}, s{sT2}, 12")
    e(f"s_add_u32 s{sT2}, s{sT2}, {WS_KV}")
    e(f"s_lshl_b32 s{sT3x}, s{sHH}, 10")
    e(f"s_add_u32 s{sT3x}, s{sT3x}, s{sT2}")
    e(f"buffer_load_dwordx4 {vr(KF,4)}, v{vL16}, {srd(S_WS)}, s{sT3x} offen sc1")
    e(f"s_lshl_b32 s{sT3x}, s{sHH}, 8")
    e(f"s_add_u32 s{sT3x}, s{sT3x}, s{sT2}")
    e(f"s_mov_b64 exec, s[{sVM}:{sVM+1}]")
    e(f"buffer_load_dwordx4 {vr(TV,4)}, v{vL16}, {srd(S_WS)}, s{sT3x} offen offset:2048 sc1")
    e(f"buffer_load_dwordx4 {vr(TV+4,4)}, v{vL16}, {srd(S_WS)}, s{sT3x} offen offset:3072 sc1")
    e("s_mov_b64 exec, -1")
    e("s_waitcnt vmcnt(0)")
    mfma(S, KF, TQ, TC)
    e("s_nop 7"); e("s_nop 7")
    e(f"s_cmp_eq_u32 s{sPASS}, 0")
    e("s_cbranch_scc0 L_FB_P2")
    for i in range(8): e(f"v_max3_f32 v{TM}, v{TM}, v{S+2*i}, v{S+2*i+1}")
    e("s_branch L_FB_TNEXT")
    a.lab("L_FB_P2")
    for i in range(16): e(f"v_sub_f32 v{S+i}, v{S+i}, v{TM}")
    for i in range(16): e(f"v_exp_f32 v{S+i}, v{S+i}")
    e("s_nop 0")
    for i in range(8): e(cvt(PP + i, S + 2 * i, S + 2 * i + 1))
    e("s_nop 1")
    mfma(TO, TV, PP, TO)
    mfma(TO, TV + 4, PP + 4, TO)
    e("s_nop 7"); e("s_nop 7")
    a.lab("L_FB_TNEXT")
    e(f"s_add_u32 s{sTILE}, s{sTILE}, 1")
    e(f"s_cmp_le_u32 s{sTILE}, s{sN}")
    e("s_cbranch_scc1 L_FB_TILE")
    e(f"s_cmp_eq_u32 s{sC}, 0")
    e("s_cbranch_scc1 L_FB_PDONE")
    e(f"s_add_u32 s{sPART}, s{sPART}, 1")
    e(f"s_cmp_lt_u32 s{sPART}, 2")
    e("s_cbranch_scc1 L_FB_PART")
    a.lab("L_FB_PDONE")
    e(f"s_cmp_eq_u32 s{sPASS}, 0")
    e("s_cbranch_scc0 L_FB_STORE")
    e(f"v_mov_b32 v{TB}, v{TM}")
    e("s_nop 1")
    e(f"v_permlane32_swap_b32 v{TM}, v{TB}")
    e("s_nop 1")
    e(f"v_max_f32 v{TM}, v{TM}, v{TB}")
    e(f"s_mov_b32 s{sPASS}, 1")
    e("s_branch L_FB_PASS")
    a.lab("L_FB_STORE")
    e(f"s_cmp_eq_u32 s{sHH}, 0")
    e("s_cbranch_scc0 L_FB_S1")
    for i in range(16): e(f"v_mov_b32 v{OA+i}, v{TO+i}")
    e("s_branch L_FB_NEXT")
    a.lab("L_FB_S1")
    for i in range(16): e(f"v_mov_b32 v{OA+16+i}, v{TO+i}")
    a.lab("L_FB_NEXT")
    e(f"s_add_u32 s{sHH}, s{sHH}, 1")
    e(f"s_cmp_lt_u32 s{sHH}, 2")
    e("s_cbranch_scc1 L_FB_H")

def build(opt):
    opt.stamp_names = []
    a = gen(opt)
    hdr = []
    hdr.append(f"; @launch grid=(256,1,1) block=(512,1,1) lds={LDS_TOTAL}")
    hdr.append('.amdgcn_target "amdgcn-amd-amdhsa--gfx950"')
    hdr.append(".text")
    hdr.append(f".globl {KNAME}")
    hdr.append(".p2align 8")
    hdr.append(f".type {KNAME},@function")
    tail = f""".section .rodata,"a"
.p2align 6
.amdhsa_kernel {KNAME}
  .amdhsa_next_free_vgpr 256
  .amdhsa_next_free_sgpr 102
  .amdhsa_accum_offset 256
  .amdhsa_group_segment_fixed_size 0
  .amdhsa_kernarg_size 80
  .amdhsa_user_sgpr_count 2
  .amdhsa_user_sgpr_kernarg_segment_ptr 1
  .amdhsa_system_sgpr_workgroup_id_x 1
  .amdhsa_float_denorm_mode_32 3
.end_amdhsa_kernel
"""
    return "\n".join(hdr) + "\n" + a.text() + tail

def parse(argv=None):
    p = argparse.ArgumentParser()
    p.add_argument("-o", default="gated_mix__sliding_block__sliding_block__prompt.s")
    p.add_argument("--stamps", type=int, default=0)
    p.add_argument("--codepf", type=int, default=1)
    p.add_argument("--pace", type=float, default=1.6)
    p.add_argument("--rot", type=int, default=1)
    p.add_argument("--lfirst", type=int, default=1)
    p.add_argument("--omod", default="sc1")
    p.add_argument("--rep", type=int, default=0)
    p.add_argument("--warm", type=int, default=6)
    p.add_argument("--sent", type=int, default=1)
    p.add_argument("--tailopt", type=int, default=1)
    p.add_argument("--eorder", type=int, default=1)
    p.add_argument("--prio", type=int, default=1)
    p.add_argument("--sleep", type=int, default=4)
    p.add_argument("--pf", type=int, default=0)
    p.add_argument("--bar0", type=int, default=1)
    p.add_argument("--dbg", type=int, default=0)
    p.add_argument("--cyc", type=int, default=0)
    p.add_argument("--wopf", type=int, default=1)
    p.add_argument("--fallback", type=int, default=1)
    p.add_argument("--spin", type=int, default=20000)
    p.add_argument("--outmod", default="")
    return p.parse_args(argv)

if __name__ == "__main__":
    opt = parse()
    s = build(opt)
    open(opt.o, "w").write(s)
    if opt.stamps:
        open(opt.o + ".stamps", "w").write("\n".join(opt.stamp_names))
    print("wrote", opt.o, len(s), "bytes")
```

```python
import sys, argparse, math, struct

KNAME = "gated_mix__sliding_block__sliding_block__prompt_kernel"

WS_NONCE = 0
WS_OF = 0x10000
WS_KVF = 0x4000
WS_KV = 0x100000
WS_O = 0x1000000
WS_STAMP = 0x1800000
WS_SIZE = 0x2000000

REG = 12288
LDS_W = 8 * REG
WPART = 24576
LDS_TOTAL = 163840
LDS_A0, LDS_A1 = 98304, 131072
LDS_GATE = 4096
LDS_RB = 98304

S_X, S_W, S_WOA, S_WOB, S_WS, S_OUT, S_GW, S_DBG = 8, 12, 16, 20, 24, 28, 32, 36
sW, sTAU, sC, sBH, sBR, sHG, sTT, sT3, sN3, sTAG, sJ = 60, 61, 62, 63, 64, 65, 66, 67, 68, 69, 70
sT0, sT1, sT2, sT3x, sT4, sT5 = 71, 72, 73, 74, 75, 76
sCNT, sSPIN, sFAIL = 77, 80, 81
sVM = 78
sKVO = 82
sH = 83
STREG = list(range(84, 98)) + [3, 6, 7, 46, 47]
sTM = 98
sXB, sWG, sWL = 40, 41, 42

def srd(b): return f"s[{b}:{b+3}]"
def vr(b, n=1): return f"v{b}" if n == 1 else f"v[{b}:{b+n-1}]"

class Asm:
    def __init__(self):
        self.lines = []; self.vm = []; self.lg = []
    def e(self, s): self.lines.append("  " + s)
    def c(self, s): self.lines.append("  ; " + s)
    def lab(self, s): self.lines.append(s + ":")
    def vmop(self, s, tag): self.e(s); self.vm.append(tag)
    def lgop(self, s, tag): self.e(s); self.lg.append(tag)
    def _n(self, q, tag, mx):
        idx = max(i for i, t in enumerate(q) if t == tag)
        return min(len(q) - 1 - idx, mx)
    def vmwait(self, tag):
        if tag not in self.vm: return
        n = self._n(self.vm, tag, 63)
        self.e(f"s_waitcnt vmcnt({n})")
        self.vm = self.vm[len(self.vm) - n:] if n > 0 else []
    def lgwait(self, tag):
        if tag not in self.lg: return
        n = self._n(self.lg, tag, 15)
        self.e(f"s_waitcnt lgkmcnt({n})")
        self.lg = self.lg[len(self.lg) - n:] if n > 0 else []
    def vmall(self): self.e("s_waitcnt vmcnt(0)"); self.vm = []
    def lgall(self): self.e("s_waitcnt lgkmcnt(0)"); self.lg = []
    def text(self): return "\n".join(self.lines) + "\n"

def f32bits(x): return struct.unpack("<I", struct.pack("<f", x))[0]
def mfma_s(D, A, B, C):
    cs = C if isinstance(C, str) else vr(C, 16)
    return f"v_mfma_f32_32x32x16_bf16 {vr(D,16)}, {vr(A,4)}, {vr(B,4)}, {cs}"
def cvt(dst, s0, s1): return f"v_cvt_pk_bf16_f32 v{dst}, v{s0}, v{s1}"

def gen(opt):
    a = Asm()
    e = a.e
    mfma = lambda D, A, B, C: e(mfma_s(D, A, B, C))
    STAMPS = opt.stamps
    nst = [0]
    def stamp(name, inner=False):
        if not STAMPS: return
        if STAMPS == 4 and not inner:
            if name in ("entry", "first data", "gemm done", "B1", "B2", "attn done", "B3", "end"):
                opt.cyc = 0; stamp(name, True)
                if name not in ("entry", "end"):
                    opt.cyc = 1; stamp(name + " cyc", True); opt.cyc = 0
            return
        if STAMPS == 3 and name in ("own done", "B2", "attn done", "O published", "B3", "B4", "O flags seen", "P3 mfma", "roleA", "roleB"): return
        if STAMPS == 2 and name in ("own done", "B2", "attn done", "O published", "B3", "B4", "O flags seen", "P3 mfma"): return
        if name in opt.stamp_names:
            i = opt.stamp_names.index(name)
            e("s_waitcnt lgkmcnt(0)")
            e(f"{'s_memtime' if opt.cyc else 's_memrealtime'} s[{sTM}:{sTM+1}]")
            e("s_waitcnt lgkmcnt(0)")
            e(f"s_mov_b32 s{STREG[i]}, s{sTM}")
            return
        i = nst[0]; nst[0] += 1
        assert i < len(STREG)
        a.c(f"stamp {i}: {name}")
        e("s_waitcnt lgkmcnt(0)"); a.lg = []
        e(f"{'s_memtime' if opt.cyc else 's_memrealtime'} s[{sTM}:{sTM+1}]")
        e("s_waitcnt lgkmcnt(0)")
        e(f"s_mov_b32 s{STREG[i]}, s{sTM}")
        opt.stamp_names.append(name)

    vXO = 1; vXR = 5; vWO = 9; vWR = 10; vL16 = 12
    XF = 16
    WF = 80
    ACC = 116
    def AQ(x): return ACC + 48 * x
    def AK(x): return ACC + 48 * x + 16
    def AV(x): return ACC + 48 * x + 32
    def XFr(lc, x, s): return XF + 32 * (lc & 1) + 16 * x + 4 * s
    def WFr(t, m): return WF + 12 * (t % 3) + 4 * m
    OA = 216; QF = 248; MK = 16; VF = 32
    SS = 160; PP = 48; KF = 56; HT = 64
    vK = 1
    vD = 13
    GX, GW, GA = 96, 208, 212
    WSLOT = 12288
    MKE = 144
    TKA, TKB, TVA, TVB, TQA, TQB = 248, 4, ACC + 16, ACC + 64, ACC + 32, ACC + 80
    LDS_TAG = 8192 + 2048

    a.lab(KNAME)
    e("s_cmp_ge_u32 s2, 256")
    e("s_cbranch_scc1 L_END")
    if STAMPS:
        e("s_memtime s[100:101]")
        stamp("entry")
    e("s_getpc_b64 s[4:5]")
    a.lab("L_PC")
    e("s_load_dwordx4 s[40:43], s[0:1], 0")
    e("s_load_dwordx4 s[48:51], s[0:1], 32")
    e("v_lshlrev_b32 v13, 6, v0")
    e("s_load_dwordx2 s[44:45], s[0:1], 16")
    e("s_load_dwordx4 s[52:55], s[0:1], 48")
    e("s_load_dwordx4 s[56:59], s[0:1], 64")
    e("v_min_u32 v13, L_CODE_END-L_PC-4, v13")
    if opt.codepf:
        e(f"global_load_dword v213, v13, s[4:5]")
    e("v_lshrrev_b32 v15, 6, v0")
    e("v_and_b32 v0, 63, v0")
    e(f"s_and_b32 s{sT0}, s2, 7")
    e(f"v_readfirstlane_b32 s{sW}, v15")
    e(f"s_lshr_b32 s{sJ}, s2, 3")
    e(f"s_and_b32 s{sT1}, s{sT0}, 1")
    e(f"s_lshl_b32 s{sT1}, s{sT1}, 2")
    e(f"s_and_b32 s{sT2}, s{sJ}, 3")
    e(f"s_add_u32 s{sC}, s{sT1}, s{sT2}")
    e(f"s_lshr_b32 s{sT1}, s{sT0}, 1")
    e(f"s_lshl_b32 s{sT1}, s{sT1}, 3")
    e(f"s_lshr_b32 s{sN3}, s{sJ}, 2")
    e(f"s_add_u32 s{sBH}, s{sT1}, s{sN3}")
    e(f"s_lshr_b32 s{sBR}, s{sBH}, 4")
    e(f"s_and_b32 s{sHG}, s{sBH}, 15")
    e(f"s_lshl_b32 s{sT3}, s{sT0}, 2")
    e(f"s_add_u32 s{sT3}, s{sT3}, s{sT2}")
    e(f"s_sub_u32 s{sT1}, 11, s{sW}")
    e(f"s_cmp_lt_u32 s{sW}, 4")
    e(f"s_cselect_b32 s{sTAU}, s{sW}, s{sT1}")
    e(f"s_lshl_b32 s{sTT}, s{sC}, 3")
    e(f"s_add_u32 s{sTT}, s{sTT}, s{sTAU}")
    e(f"v_lshlrev_b32 v{vL16}, 4, v0")
    def mk(b, lo, hi, size):
        e(f"s_mov_b32 s{b}, s{lo}"); e(f"s_mov_b32 s{b+1}, s{hi}")
        e(f"s_mov_b32 s{b+2}, {size}"); e(f"s_mov_b32 s{b+3}, 0x00020000")
    def mk_w():
        e(f"s_cmp_eq_u32 s{sBR}, 0")
        e(f"s_cselect_b32 s{S_W}, s42, s48")
        e(f"s_cselect_b32 s{S_W+1}, s43, s49")
        e(f"s_mov_b32 s{S_W+2}, 1572864"); e(f"s_mov_b32 s{S_W+3}, 0x00020000")
    def mk_rest():
        mk(S_WS, 58, 59, WS_SIZE)
        mk(S_DBG, 56, 57, 256)
        mk(S_OUT, 54, 55, 2097152)
        mk(S_GW, 52, 53, 1024)
        mk(S_WOA, 44, 45, 524288)
        mk(S_WOB, 50, 51, 524288)
        e(f"s_mov_b32 s{sVM}, 0x0000ffff")
        e(f"s_mov_b32 s{sVM+1}, 0x0000ffff")
        e(f"s_mov_b32 s{sFAIL}, 0")
        p3_ids()
    sTQ, sQ, sB3, sKH, sTT3, sOFA = 44, 45, 48, 49, 50, 51
    def p3_ids():
        e(f"s_lshr_b32 s{sTQ}, s{sW}, 2")
        e(f"s_and_b32 s{sQ}, s{sW}, 3")
        e(f"s_lshr_b32 s{sB3}, s{sQ}, 1")
        e(f"s_and_b32 s{sKH}, s{sQ}, 1")
        e(f"s_and_b32 s{sT2}, s{sT3}, 3")
        e(f"s_sub_u32 s{sT3x}, 7, s{sT2}")
        e(f"s_cmp_eq_u32 s{sTQ}, 0")
        e(f"s_cselect_b32 s{sT2}, s{sT2}, s{sT3x}")
        e(f"s_lshr_b32 s{sTT3}, s{sT3}, 2")
        e(f"s_lshl_b32 s{sTT3}, s{sTT3}, 3")
        e(f"s_add_u32 s{sTT3}, s{sTT3}, s{sT2}")
    def init_list():
        q = [f"v_and_b32 v{vD}, 31, v0", f"v_lshrrev_b32 v{vD+2}, 5, v0", f"v_lshlrev_b32 v{vD+2}, 2, v{vD+2}", f"v_sub_u32 v{vD}, v{vD}, v{vD+2}"]
        for r in range(16):
            kk = (r & 3) + 8 * (r >> 2)
            q += [f"v_subrev_u32 v{MK+r}, {kk}, v{vD}", f"v_ashrrev_i32 v{MK+r}, 31, v{MK+r}", f"v_and_b32 v{MK+r}, 0xff800000, v{MK+r}"]
        q += [f"v_mov_b32 v{VF+i}, 0x3f803f80" for i in range(16)]
        return q
    if opt.lfirst:
        e(f"s_cmp_lt_u32 s{sW}, 4")
        e("s_cbranch_scc1 L_COMPUTE")
    else:
        e(f"s_cmp_ge_u32 s{sW}, 4")
        e("s_cbranch_scc1 L_LOADER")
    i_comp = len(a.lines)
    a.lab("L_COMPUTE")

    SXB = sT4
    e(f"s_mul_i32 s{SXB}, s{sW}, {2*REG}")
    e(f"v_and_b32 v13, 31, v0")
    e(f"v_lshrrev_b32 v15, 5, v0")
    e(f"v_bfe_u32 v{vXR+1}, v13, 1, 3")
    e(f"v_xor_b32 v15, v15, v{vXR+1}")
    e(f"v_lshlrev_b32 v15, 4, v15")
    e(f"v_lshl_add_u32 v15, v13, 7, v15")
    e(f"v_add_u32 v{vXR}, s{SXB}, v15")
    for s_ in range(1, 4):
        e(f"v_xor_b32 v{vXR+s_}, {s_<<5}, v{vXR}")
    e(f"v_lshrrev_b32 v13, 5, v0")
    e(f"v_lshlrev_b32 v13, 9, v13")
    e(f"v_bfe_u32 v15, v0, 2, 2")
    e(f"v_lshl_add_u32 v13, v15, 6, v13")
    e(f"v_bfe_u32 v15, v0, 4, 1")
    e(f"v_lshl_add_u32 v13, v15, 5, v13")
    e(f"v_and_b32 v15, 3, v0")
    e(f"v_lshl_add_u32 v13, v15, 3, v13")
    e(f"v_add_u32 v{vWR}, {LDS_W}, v13")
    for i in range(32): e(f"v_mov_b32 v{OA+i}, 0")
    e("s_waitcnt lgkmcnt(0)")
    mk(S_X, 40, 41, 2097152)
    mk_w()
    mk_rest()
    stamp("issued")
    def xread1(lc, x, s_):
        a.lgop(f"ds_read_b128 {vr(XFr(lc,x,s_),4)}, v{vXR+s_} offset:{x*REG+(lc%3)*4096}", f"xr{lc}_{s_}")
    def wread1(t, m, u):
        lc = t >> 2
        a.lgop(f"ds_read_b64_tr_b16 {vr(WFr(t,m)+2*u,2)}, v{vWR} offset:{(lc%3)*WSLOT+m*4096+(t&3)*1024+u*256}", f"wf{t}")
    e("s_barrier")
    stamp("first data")
    mfma_full = mfma
    if opt.dbg == 16:
        def mfma(D, A, B, C):
            for h in range(2):
                cs = C if isinstance(C, str) else vr(C + 4 * h, 4)
                e(f"v_mfma_f32_16x16x32_bf16 {vr(D + 4*h, 4)}, {vr(A,4)}, {vr(B,4)}, {cs}")
    if opt.dbg == 17:
        def mfma(D, A, B, C): pass
    for m in range(3):
        for u in range(2): wread1(0, m, u)
    for x in range(2): xread1(0, x, 0)
    for m in range(3):
        for u in range(2): wread1(1, m, u)
    for s_ in range(1, 4):
        for x in range(2): xread1(0, x, s_)
    initq = init_list()
    NT = 29 if opt.tailopt else 32
    for t in range(NT):
        lc, s_ = t >> 2, t & 3
        if opt.stamps == 2 and t in (4, 8, 12, 16, 20, 24, 28): stamp(f"t{t}")
        if s_ == 2 and lc <= 6:
            a.lgall()
            e("s_barrier")
        a.lgwait(f"wf{t}")
        a.lgwait(f"xr{lc}_{s_}")
        R = [(t + 2, m, u) for m in range(3) for u in range(2)] if t + 2 < 32 else []
        X = [(lc + 1, x, 2 * (s_ - 2) + k) for k in range(2) for x in range(2)] if (s_ >= 2 and lc <= 6) else []
        C = (lambda r: "0") if t == 0 else (lambda r: r)
        xa, xb = XFr(lc, 0, s_), XFr(lc, 1, s_)
        def ini(n):
            if t >= 28:
                for _ in range(n):
                    if initq: e(initq.pop(0))
        mfma(AK(0), WFr(t, 0), xa, C(AK(0)))
        for r in R[0:2]: wread1(*r)
        ini(3)
        mfma(AK(1), WFr(t, 0), xb, C(AK(1)))
        for r in R[2:4]: wread1(*r)
        ini(3)
        mfma(AV(0), xa, WFr(t, 1), C(AV(0)))
        for r in R[4:6]: wread1(*r)
        ini(3)
        mfma(AV(1), xb, WFr(t, 1), C(AV(1)))
        for x in X[0:2]: xread1(*x)
        ini(3)
        mfma(AQ(0), WFr(t, 2), xa, C(AQ(0)))
        for x in X[2:4]: xread1(*x)
        ini(3)
        mfma(AQ(1), WFr(t, 2), xb, C(AQ(1)))
        ini(3)
    if not opt.tailopt:
        while initq: e(initq.pop(0))
    e(f"s_lshl_b32 s{sKVO}, s{sBH}, 6")
    e(f"s_lshl_b32 s{sT2}, s{sC}, 3")
    e(f"s_add_u32 s{sKVO}, s{sKVO}, s{sT2}")
    e(f"s_lshl_b32 s{sT2}, s{sW}, 1")
    e(f"s_add_u32 s{sKVO}, s{sKVO}, s{sT2}")
    e(f"s_lshl_b32 s{sKVO}, s{sKVO}, 12")
    e(f"s_add_u32 s{sKVO}, s{sKVO}, {WS_KV}")
    e(f"s_add_u32 s{sT1}, s{sKVO}, 4096")
    e(f"v_add_u32 v{vK}, s{SXB}, v{vL16}")
    cq = 0.25 * math.log2(math.e)
    e(f"s_mov_b32 s{sT2}, {hex(f32bits(cq))}")
    def k_epi(x, T):
        so = sKVO if x == 0 else sT1
        L = [("e", cvt(T + i, AK(x) + 2 * i, AK(x) + 2 * i + 1)) for i in range(8)]
        L += [("vm", f"buffer_store_dwordx4 {vr(T+4*i,4)}, v{vL16}, {srd(S_WS)}, s{so} offen offset:{i*1024} sc1") for i in range(2)]
        L += [("lg", f"ds_write_b128 v{vK}, {vr(T+4*i,4)} offset:{x*REG+i*1024}") for i in range(2)]
        return L
    def v_epi(x, T):
        so = sKVO if x == 0 else sT1
        L = [("e", cvt(T + i, AV(x) + 2 * i, AV(x) + 2 * i + 1)) for i in range(8)]
        L += [("vm", f"buffer_store_dwordx4 {vr(T+4*i,4)}, v{vL16}, {srd(S_WS)}, s{so} offen offset:{(2+i)*1024} sc1") for i in range(2)]
        L += [("lg", f"ds_write_b128 v{vK}, {vr(T+4*i,4)} offset:{x*REG+(2+i)*1024}") for i in range(2)]
        return L
    def q_epi(x, T):
        L = [("e", f"v_mul_f32 v{AQ(x)+i}, s{sT2}, v{AQ(x)+i}") for i in range(16)]
        L += [("e", cvt(T + i, AQ(x) + 2 * i, AQ(x) + 2 * i + 1)) for i in range(8)]
        L += [("lg", f"ds_write_b128 v{vK}, {vr(T+4*h,4)} offset:{x*REG+8192+h*1024}") for h in range(2)]
        return L
    def emit(items):
        for k, l in items:
            if k == "e": e(l)
            elif k == "vm": a.vmop(l, "kvs")
            else: a.lgop(l, "kvw")
    if opt.tailopt:
        for m in range(3):
            for u in range(2): wread1(31, m, u)
        xs = {t: (XFr(7, 0, t & 3), XFr(7, 1, t & 3)) for t in (29, 30, 31)}
        a.lgwait("wf30")
        for t in (29, 30):
            for x in range(2):
                mfma(AK(x), WFr(t, 0), xs[t][x], AK(x))
                for _ in range(8):
                    if initq: e(initq.pop(0))
        a.lgwait("wf31")
        for x in range(2):
            mfma(AK(x), WFr(31, 0), xs[31][x], AK(x))
            for _ in range(8):
                if initq: e(initq.pop(0))
        while initq: e(initq.pop(0))
        vm_ = [(x, t) for t in (29, 30, 31) for x in range(2)]
        ke = k_epi(0, TKA) + k_epi(1, TKB)
        for n, (x, t) in enumerate(vm_):
            mfma(AV(x), xs[t][x], WFr(t, 1), AV(x))
            if n == 1: e("s_nop 7"); e("s_nop 1")
            if n >= 2: emit(ke[:5]); del ke[:5]
        ve = v_epi(0, TVA) + v_epi(1, TVB)
        qm_ = [(x, t) for t in (29, 30, 31) for x in range(2)]
        for n, (x, t) in enumerate(qm_):
            mfma(AQ(x), WFr(t, 2), xs[t][x], AQ(x))
            if ke: emit(ke[:6]); del ke[:6]
            elif n >= 2: emit(ve[:6]); del ve[:6]
        emit(ke)
        stamp("gemm done")
        e("s_nop 3")
        emit(ve)
        e("s_nop 7")
        emit(q_epi(0, TQA)); emit(q_epi(1, TQB))
    else:
        stamp("gemm done")
        e("s_nop 7")
        emit(k_epi(0, TKA)); emit(k_epi(1, TKB)); emit(v_epi(0, TVA)); emit(v_epi(1, TVB))
        emit(q_epi(0, TQA)); emit(q_epi(1, TQB))
    mfma = mfma_full
    e(f"s_lshl_b32 s{sKVO}, s{sC}, 5")
    e(f"s_add_u32 s{sKVO}, s{sKVO}, s{sBH}")
    e(f"s_lshl_b32 s{sKVO}, s{sKVO}, 7")
    e(f"s_lshl_b32 s{sT3x}, s{sW}, 3")
    e(f"s_add_u32 s{sKVO}, s{sKVO}, s{sT3x}")
    e(f"s_add_u32 s{sKVO}, s{sKVO}, {WS_KVF}")
    if not opt.lfirst: e("s_branch L_B1")
    i_load = len(a.lines)

    a.lab("L_LOADER")
    a.vm = []; a.lg = []
    sU, SXB2, SWG = sT5, sT4, sH
    e(f"s_sub_u32 s{sU}, s{sW}, 4")
    e(f"v_lshrrev_b32 v13, 2, v0")
    e(f"v_mul_u32_u24 v13, 3072, v13")
    e(f"v_and_b32 v15, 3, v0")
    e(f"v_lshl_add_u32 v13, v15, 4, v13")
    e(f"s_lshl_b32 s{sT1}, s{sHG}, 6")
    e(f"v_add_u32 v{vWO}, s{sT1}, v13")
    e(f"v_lshrrev_b32 v13, 3, v0")
    e(f"v_lshlrev_b32 v13, 10, v13")
    e(f"s_lshl_b32 s{sT1}, s{sC}, 3")
    e(f"s_lshl_b32 s{sT2}, s{sU}, 1")
    e(f"s_add_u32 s{sT1}, s{sT1}, s{sT2}")
    e(f"s_lshl_b32 s{sT1}, s{sT1}, 15")
    e(f"v_add_u32 v13, s{sT1}, v13")
    e(f"v_lshrrev_b32 v15, 4, v0")
    e(f"v_xor_b32 v15, v15, v0")
    e(f"v_and_b32 v15, 7, v15")
    e(f"v_lshl_add_u32 v{vXO}, v15, 4, v13")
    e(f"v_xor_b32 v{vXO+1}, 64, v{vXO}")
    e(f"v_add_u32 v{vXO+2}, 14336, v{vXO}")
    e(f"v_add_u32 v{vXO+3}, 21504, v{vXO+1}")
    e(f"v_add_u32 v{vXO+1}, 7168, v{vXO+1}")
    e(f"s_and_b32 s{sT1}, s{sJ}, 3")
    e(f"s_add_u32 s{sT1}, s{sT1}, s{sN3}")
    if opt.rot == 2:
        e(f"s_and_b32 s{sT0}, s{sT1}, 1")
        e(f"s_lshl_b32 s{sT0}, s{sT0}, 2")
    elif opt.rot == 3:
        e(f"s_and_b32 s{sT0}, s{sJ}, 3")
        e(f"s_lshl_b32 s{sT0}, s{sT0}, 1")
        e(f"s_add_u32 s{sT0}, s{sT0}, s{sN3}")
        e(f"s_and_b32 s{sT0}, s{sT0}, 7")
    else:
        e(f"s_and_b32 s{sT0}, s{sT1}, {3 if opt.rot else 0}")
        e(f"s_lshl_b32 s{sT0}, s{sT0}, 1")
    e("s_waitcnt lgkmcnt(0)")
    mk_w()
    mk(S_X, 40, 41, 2097152)
    SWL, sXK, sWP = 40, 41, 42
    e(f"s_mul_i32 s{SXB2}, s{sU}, {2*REG}")
    e(f"s_mul_i32 s{SWG}, s{sU}, {16*3072}")
    e(f"s_lshl_b32 s{SWL}, s{sU}, 10")
    e(f"s_add_u32 s{SWL}, s{SWL}, {LDS_W}")
    e(f"s_lshl_b32 s{sXK}, s{sT0}, 7")
    MCOL = {0: 1, 1: 2, 2: 0}
    def wo_pf():
        e(f"s_and_b32 s{sT2}, s{sJ}, 15")
        e(f"s_lshl_b32 s{sT2}, s{sT2}, 15")
        e(f"s_lshl_b32 s{sT3x}, s{sU}, 13")
        e(f"s_add_u32 s{sT2}, s{sT2}, s{sT3x}")
        e(f"v_lshlrev_b32 v15, 6, v0")
        e(f"s_cmp_lt_u32 s{sJ}, 16")
        e("s_cbranch_scc1 L_WOPF_A")
        e(f"buffer_load_dword v213, v15, {srd(S_WOB)}, s{sT2} offen")
        e(f"s_add_u32 s{sT2}, s{sT2}, 4096")
        e(f"buffer_load_dword v214, v15, {srd(S_WOB)}, s{sT2} offen")
        e("s_branch L_WOPF_E")
        a.lab("L_WOPF_A")
        e(f"buffer_load_dword v213, v15, {srd(S_WOA)}, s{sT2} offen")
        e(f"s_add_u32 s{sT2}, s{sT2}, 4096")
        e(f"buffer_load_dword v214, v15, {srd(S_WOA)}, s{sT2} offen")
        a.lab("L_WOPF_E")
        a.vm += ["wopf", "wopf"]
    def issue(lc):
        if lc > 0:
            e(f"s_add_u32 s{sXK}, s{sXK}, 128")
            e(f"s_and_b32 s{sXK}, s{sXK}, 1023")
        e(f"s_mul_i32 s{sWP}, s{sXK}, 1536")
        e(f"s_add_u32 s{sWP}, s{sWP}, s{SWG}")
        for m in range(3):
            e(f"s_add_u32 m0, s{SWL}, {(lc%3)*WSLOT + m*4096}")
            e(f"s_add_u32 s{sT3x}, s{sWP}, {MCOL[m]*1024}")
            a.vmop(f"buffer_load_dwordx4 v{vWO}, {srd(S_W)}, s{sT3x} offen lds", f"c{lc}")
        for b in range(2):
            e(f"s_add_u32 m0, s{SXB2}, {b*REG + (lc%3)*4096}")
            e(f"s_add_u32 s{sT3x}, s{sXK}, {b*32768}")
            for i in range(4):
                a.vmop(f"buffer_load_dwordx4 v{vXO+i}, {srd(S_X)}, s{sT3x} offen offset:{i*1024} lds", f"c{lc}")
    def tlb_warm():
        e(f"s_cmp_eq_u32 s{sU}, 0"); e("s_cbranch_scc0 L_TW1")
        e(f"s_lshl_b32 s{sT2}, s{sBH}, 6"); e(f"s_lshl_b32 s{sT3x}, s{sC}, 3"); e(f"s_add_u32 s{sT2}, s{sT2}, s{sT3x}")
        e(f"s_lshl_b32 s{sT2}, s{sT2}, 12"); e(f"s_add_u32 s{sT2}, s{sT2}, {WS_KV}")
        e(f"v_mov_b32 v13, {WS_OF}")
        e(f"v_writelane_b32 v13, s{sT2}, 1")
        e(f"s_lshl_b32 s{sT2}, s{sC}, 19"); e(f"s_add_u32 s{sT2}, s{sT2}, {WS_O}")
        e(f"v_writelane_b32 v13, s{sT2}, 2")
        e(f"s_lshr_b32 s{sT2}, s{sT3}, 2"); e(f"s_lshl_b32 s{sT2}, s{sT2}, 19"); e(f"s_add_u32 s{sT2}, s{sT2}, {WS_O}")
        e(f"v_writelane_b32 v13, s{sT2}, 3")
        e("s_mov_b64 exec, 15")
        e(f"buffer_load_dword v215, v13, {srd(S_WS)}, 0 offen sc1")
        e(f"buffer_load_dword v214, v13, {srd(S_WS)}, 0 offen offset:128 sc1")
        e("s_mov_b64 exec, -1")
        e("s_branch L_TWE")
        a.lab("L_TW1")
        e(f"s_cmp_eq_u32 s{sU}, 1"); e("s_cbranch_scc0 L_TW2")
        e(f"s_lshr_b32 s{sT2}, s{sT3}, 2"); e(f"s_lshl_b32 s{sT2}, s{sT2}, 18")
        e(f"v_mov_b32 v13, 0")
        e("s_mov_b64 exec, 1")
        e(f"buffer_load_dword v215, v13, {srd(S_OUT)}, s{sT2} offen")
        e(f"buffer_load_dword v214, v13, {srd(S_DBG)}, 0 offen sc1")
        e("s_mov_b64 exec, -1")
        e("s_branch L_TWE")
        a.lab("L_TW2")
        e(f"s_cmp_eq_u32 s{sU}, 2"); e("s_cbranch_scc0 L_TW3")
        e(f"v_mov_b32 v13, 0")
        e("s_mov_b64 exec, 1")
        e(f"buffer_load_dword v215, v13, {srd(S_WOA)}, 0 offen")
        e(f"buffer_load_dword v214, v13, {srd(S_WOB)}, 0 offen")
        e("s_mov_b64 exec, -1")
        e("s_branch L_TWE")
        a.lab("L_TW3")
        e(f"v_mov_b32 v13, 0")
        e("s_mov_b64 exec, 1")
        e(f"buffer_load_dword v215, v13, {srd(S_GW)}, 0 offen")
        e(f"buffer_load_dword v214, v13, {srd(S_GW)}, 0 offen offset:128")
        e("s_mov_b64 exec, -1")
        a.lab("L_TWE")
        a.vm += ["warm", "warm"]
    issue(0)
    issue(1)
    mk_rest()
    if opt.warm == 2: tlb_warm()
    e(f"s_or_b32 s{sT1}, s2, s{sU}")
    e(f"s_cmp_lg_u32 s{sT1}, 0")
    e("s_cbranch_scc1 L_NONCE_SKIP0")
    e(f"v_mov_b32 v13, 0")
    e(f"buffer_load_dword v14, v13, {srd(S_WS)}, 0 offen sc1")
    a.lab("L_NONCE_SKIP0")
    stamp("issued")
    a.vmwait("c0")
    e("s_barrier")
    stamp("first data")
    issue(2)
    if opt.warm == 3: tlb_warm()
    if opt.warm in (5, 6, 7):
        if opt.warm in (6, 7): e("s_branch L_F5_2")
        e(f"s_cmp_eq_u32 s{sU}, 0"); e("s_cbranch_scc0 L_F5_1")
        e(f"s_lshl_b32 s{sT2}, s{sC}, 5"); e(f"s_lshr_b32 s{sT3x}, s{sBH}, 3"); e(f"s_add_u32 s{sT2}, s{sT2}, s{sT3x}")
        e(f"s_lshl_b32 s{sT2}, s{sT2}, 7"); e(f"s_add_u32 s{sT2}, s{sT2}, {WS_OF}")
        e(f"v_and_b32 v13, 7, v0"); e(f"v_lshlrev_b32 v13, 9, v13")
        e("s_mov_b64 exec, 0xff")
        e(f"buffer_load_dword v215, v13, {srd(S_WS)}, s{sT2} offen sc1")
        e("s_branch L_F5_E")
        a.lab("L_F5_1")
        e(f"s_cmp_eq_u32 s{sU}, 1"); e("s_cbranch_scc0 L_F5_2")
        e(f"s_lshr_b32 s{sT2}, s{sT3}, 2"); e(f"s_lshl_b32 s{sT2}, s{sT2}, 3"); e(f"s_and_b32 s{sT3x}, s{sT3}, 3")
        e(f"s_add_u32 s{sT0}, s{sT2}, s{sT3x}"); e(f"s_sub_u32 s{sT3x}, 7, s{sT3x}"); e(f"s_add_u32 s{sT1}, s{sT2}, s{sT3x}")
        e(f"s_lshl_b32 s{sT0}, s{sT0}, 9"); e(f"s_lshl_b32 s{sT1}, s{sT1}, 9"); e(f"s_sub_u32 s{sT1}, s{sT1}, s{sT0}")
        e(f"s_sub_u32 s{sT1}, s{sT1}, 512"); e(f"s_add_u32 s{sT0}, s{sT0}, {WS_OF}")
        e(f"v_and_b32 v13, 7, v0"); e(f"v_lshlrev_b32 v13, 7, v13"); e(f"v_bfe_u32 v15, v0, 2, 1"); e(f"v_mul_lo_u32 v15, v15, s{sT1}"); e(f"v_add_u32 v13, v13, v15")
        e("s_mov_b64 exec, 0xff")
        e(f"buffer_load_dword v215, v13, {srd(S_WS)}, s{sT0} offen sc1")
        e("s_branch L_F5_E")
        a.lab("L_F5_2")
        e(f"s_lshl_b32 s{sT2}, s{sC}, 5"); e(f"s_add_u32 s{sT2}, s{sT2}, s{sBH}"); e(f"s_lshl_b32 s{sT2}, s{sT2}, 7"); e(f"s_add_u32 s{sT2}, s{sT2}, {WS_KVF - 4096}")
        e(f"v_and_b32 v13, 1, v0"); e(f"v_lshlrev_b32 v13, 12, v13")
        e("s_mov_b64 exec, 3")
        e(f"buffer_load_dword v215, v13, {srd(S_WS)}, s{sT2} offen sc1")
        a.lab("L_F5_E")
        e("s_mov_b64 exec, -1")
        a.vm += ["warm"]
    e(f"s_or_b32 s{sT1}, s2, s{sU}")
    e(f"s_cmp_lg_u32 s{sT1}, 0")
    e("s_cbranch_scc1 L_NONCE_SKIP1")
    e("s_waitcnt vmcnt(11)")
    e(f"v_readfirstlane_b32 s{sT2}, v14")
    e(f"v_mov_b32 v13, 0")
    e("s_nop 3")
    e(f"s_add_u32 s{sT2}, s{sT2}, 1")
    e(f"s_max_u32 s{sT2}, s{sT2}, 1")
    e(f"v_mov_b32 v14, s{sT2}")
    e(f"buffer_store_dword v14, v13, {srd(S_DBG)}, 0 offen sc1")
    e(f"buffer_store_dword v14, v13, {srd(S_WS)}, 0 offen sc1")
    a.lab("L_NONCE_SKIP1")
    a.vmwait("c1")
    e("s_barrier")
    for j in range(6):
        if j + 3 <= 7: issue(j + 3)
        if j + 3 == 7:
            if opt.wopf == 1: wo_pf()
            if opt.warm == 1:
                lab = "L_WARM"
                e(f"s_cmp_eq_u32 s{sU}, 0"); e(f"s_cbranch_scc0 {lab}1")
                e(f"s_lshl_b32 s{sT2}, s{sC}, 5"); e(f"s_lshr_b32 s{sT3x}, s{sBH}, 3"); e(f"s_add_u32 s{sT2}, s{sT2}, s{sT3x}")
                e(f"s_lshl_b32 s{sT2}, s{sT2}, 10"); e(f"s_add_u32 s{sT2}, s{sT2}, {WS_OF}")
                e(f"v_lshrrev_b32 v13, 3, v0"); e(f"v_lshlrev_b32 v13, 12, v13"); e(f"v_and_b32 v15, 7, v0"); e(f"v_lshl_add_u32 v13, v15, 7, v13")
                e(f"buffer_load_dword v215, v13, {srd(S_WS)}, s{sT2} offen sc1")
                e(f"s_branch {lab}E")
                a.lab(f"{lab}1")
                e(f"s_cmp_eq_u32 s{sU}, 1"); e(f"s_cbranch_scc0 {lab}2")
                e(f"s_lshl_b32 s{sT2}, s{sC}, 4"); e(f"s_add_u32 s{sT2}, s{sT2}, s{sBR}"); e(f"s_lshl_b32 s{sT2}, s{sT2}, 5")
                e(f"s_lshl_b32 s{sT3x}, s{sHG}, 1"); e(f"s_add_u32 s{sT2}, s{sT2}, s{sT3x}"); e(f"s_lshl_b32 s{sT2}, s{sT2}, 10")
                e(f"s_add_u32 s{sT2}, s{sT2}, {WS_O}")
                e(f"v_lshrrev_b32 v13, 3, v0"); e(f"v_lshlrev_b32 v13, 16, v13"); e(f"v_and_b32 v15, 7, v0"); e(f"v_lshl_add_u32 v13, v15, 8, v13")
                e(f"buffer_load_dword v215, v13, {srd(S_WS)}, s{sT2} offen sc1")
                e(f"s_branch {lab}E")
                a.lab(f"{lab}2")
                e(f"s_cmp_eq_u32 s{sU}, 2"); e(f"s_cbranch_scc0 {lab}3")
                e(f"s_lshl_b32 s{sT2}, s{sC}, 5"); e(f"s_add_u32 s{sT2}, s{sT2}, s{sBH}"); e(f"s_lshl_b32 s{sT2}, s{sT2}, 7")
                e(f"s_add_u32 s{sT2}, s{sT2}, {WS_KVF}")
                e(f"v_mov_b32 v13, 0")
                e(f"buffer_load_dword v215, v13, {srd(S_WS)}, s{sT2} offen sc1")
                e(f"s_branch {lab}E")
                a.lab(f"{lab}3")
                e(f"s_lshr_b32 s{sT2}, s{sT3}, 2"); e(f"s_lshl_b32 s{sT2}, s{sT2}, 18"); e(f"s_lshl_b32 s{sT3x}, s{sN3}, 7"); e(f"s_add_u32 s{sT2}, s{sT2}, s{sT3x}")
                e(f"v_lshlrev_b32 v13, 12, v0")
                e(f"buffer_load_dword v215, v13, {srd(S_OUT)}, s{sT2} offen")
                a.lab(f"{lab}E")
                a.vm += ["warm"]
        if j + 2 <= 7: a.vmwait(f"c{j+2}")
        e("s_barrier")
    stamp("gemm done")
    if opt.wopf == 2: wo_pf()
    for l in init_list(): e(l)
    for i in range(32): e(f"v_mov_b32 v{OA+i}, 0")
    if opt.mke:
        e(f"s_mov_b32 s{sT2}, 0xff800000")
        for r in range(16): e(f"v_xor_b32 v{MKE+r}, s{sT2}, v{MK+r}")
    e(f"s_cmp_lg_u32 s{sU}, 0")
    e("s_cbranch_scc1 L_B1")
    e(f"s_mov_b32 s{sSPIN}, 0")
    e(f"v_mov_b32 v15, 0")
    a.lab("L_TAG_LOOP")
    e(f"buffer_load_dword v14, v15, {srd(S_DBG)}, 0 offen sc1")
    e(f"s_add_u32 s{sSPIN}, s{sSPIN}, 1")
    e("s_waitcnt vmcnt(0)")
    e(f"v_readfirstlane_b32 s{sTAG}, v14")
    e("s_nop 3")
    e(f"s_cmp_lg_u32 s{sTAG}, 0")
    e("s_cbranch_scc1 L_TAG_OK")
    e(f"s_cmp_le_u32 s{sSPIN}, {opt.spin}")
    e("s_cbranch_scc1 L_TAG_LOOP")
    a.lab("L_TAG_OK")
    e(f"v_mov_b32 v15, {LDS_TAG}")
    e(f"ds_write_b32 v15, v14")
    if opt.lfirst:
        e("s_branch L_B1")
        comp = a.lines[i_comp:i_load]; load = a.lines[i_load:]
        a.lines = a.lines[:i_comp] + load + comp
    a.lab("L_B1")
    a.vm = []; a.lg = []
    e("s_waitcnt lgkmcnt(0)")
    e("s_barrier")
    stamp("B1")
    e(f"v_mov_b32 v15, {LDS_TAG}")
    e(f"ds_read_b32 v14, v15")
    e(f"s_mul_i32 s{sT2}, s{sTAU}, {REG}")
    e(f"v_add_u32 v13, s{sT2}, v{vL16}")
    for h in range(2):
        e(f"ds_read_b128 {vr(QF+4*h,4)}, v13 offset:{8192+h*1024}")

    def kread(h, extra=0): e(f"ds_read_b128 {vr(KF+4*h,4)}, v{vK} offset:{h*1024+extra}")
    def vreads(h, extra=0):
        e(f"s_mov_b64 exec, s[{sVM}:{sVM+1}]")
        for s in range(2):
            e(f"ds_read_b128 {vr(VF+8*h+4*s,4)}, v{vK} offset:{2048+s*1024+h*256+extra}")
        e("s_mov_b64 exec, -1")
    def seg(h, prev, nxt, kx=0, vx=0):
        o = 1 - h
        S = SS + 16 * h; O = OA + 16 * h
        ex = lambda i: e(f"v_exp_f32 v{S+i}, v{S+i}")
        ex(0); ex(1)
        if prev: mfma(OA + 16 * o, VF + 8 * o + 4, PP + 4, OA + 16 * o)
        ex(2); ex(3)
        if nxt: vreads(o, vx)
        ex(4); ex(5)
        if nxt:
            mfma(SS + 16 * o, KF + 4 * o, QF + 4 * o, "0")
            kread(o, kx)
        ex(6); ex(7)
        for i in range(4): e(cvt(PP + i, S + 2 * i, S + 2 * i + 1))
        ex(8)
        e(f"s_waitcnt lgkmcnt({3 if nxt else 0})")
        ex(9)
        mfma(O, VF + 8 * h, PP, O)
        for i in range(10, 16): ex(i)
        for i in range(4, 8): e(cvt(PP + i, S + 2 * i, S + 2 * i + 1))
    def part(name, first_s, rest_s, cnt_s, hook=None):
        MKx = MK if name == "OWN" or not opt.mke else MKE
        a.c(f"---- attention part {name} ----")
        e(f"v_add_u32 v{vK}, s{first_s}, v{vL16}")
        kread(0); kread(1)
        e(f"s_sub_u32 s{sT2}, s{rest_s}, s{first_s}")
        e(f"s_mov_b32 s{sCNT}, s{cnt_s}")
        e("s_waitcnt lgkmcnt(0)")
        if name == "OWN": e(f"v_readfirstlane_b32 s{sTAG}, v14")
        mfma(SS, KF, QF, MKx)
        mfma(SS + 16, KF + 4, QF + 4, MKx)
        vreads(0); vreads(1)
        e(f"v_add_u32 v{vK}, s{sT2}, v{vK}")
        kread(0); kread(1)
        e("s_waitcnt lgkmcnt(2)")
        seg(0, prev=False, nxt=False)
        if hook: hook()
        e(f"s_cmp_eq_u32 s{sCNT}, 0")
        e(f"s_cbranch_scc1 L_{name}_LAST")
        e(f"s_sub_u32 s{sCNT}, s{sCNT}, 1")
        a.lab(f"L_{name}_LOOP")
        seg(1, prev=True, nxt=True, kx=REG, vx=0)
        seg(0, prev=True, nxt=True, kx=REG, vx=0)
        e(f"v_add_u32 v{vK}, {REG}, v{vK}")
        e(f"s_sub_u32 s{sCNT}, s{sCNT}, 1")
        e(f"s_cbranch_scc0 L_{name}_LOOP")
        a.lab(f"L_{name}_LAST")
        seg(1, prev=True, nxt=False)
        e("s_nop 1")
        mfma(OA + 16, VF + 12, PP + 4, OA + 16)
    def kvflag():
        e("s_waitcnt vmcnt(0)")
        e(f"v_lshlrev_b32 v13, 2, v0")
        e(f"v_mov_b32 v14, s{sTAG}")
        e("s_mov_b64 exec, 3")
        e(f"buffer_store_dword v14, v13, {srd(S_WS)}, s{sKVO} offen sc1")
        e("s_mov_b64 exec, -1")
    a.vm = []
    e(f"s_mul_i32 s{sT0}, s{sTAU}, {REG}")
    e(f"s_mov_b32 s{sT1}, 0")
    def hook():
        e(f"s_cmp_ge_u32 s{sW}, 4")
        e("s_cbranch_scc1 L_KVF_DONE")
        kvflag()
        a.lab("L_KVF_DONE")
    if opt.prio == 2:
        e(f"s_cmp_lt_u32 s{sW}, 4")
        e("s_cbranch_scc1 L_PRIO_SKIP")
        e("s_setprio 1")
        a.lab("L_PRIO_SKIP")
    part("OWN", sT0, sT1, sTAU, hook=hook)
    stamp("own done")
    def gate_loads():
        e(f"s_lshl_b32 s{sT2}, s{sTT3}, 15")
        e(f"s_lshl_b32 s{sT3x}, s{sQ}, 13")
        e(f"s_add_u32 s{sT2}, s{sT2}, s{sT3x}")
        e(f"buffer_load_dwordx4 {vr(GW,4)}, v{vL16}, {srd(S_GW)}, 0 offen")
        for i in range(8):
            e(f"buffer_load_dwordx4 {vr(GX+4*i,4)}, v{vL16}, {srd(S_X)}, s{sT2} offen offset:{(i&3)*1024}")
            if i == 3: e(f"s_add_u32 s{sT2}, s{sT2}, 4096")
    def prefill():
        if not opt.sent: return
        for i in range(4): e(f"v_mov_b32 v{128+i}, -1")
        e(f"s_lshl_b32 s{sT2}, s{sTT}, 1")
        e(f"s_add_u32 s{sT2}, s{sT2}, s{sBR}")
        e(f"s_lshl_b32 s{sT2}, s{sT2}, 5")
        e(f"s_lshl_b32 s{sT3x}, s{sHG}, 1")
        e(f"s_add_u32 s{sT2}, s{sT2}, s{sT3x}")
        e(f"s_lshl_b32 s{sT2}, s{sT2}, 10")
        e(f"s_add_u32 s{sT2}, s{sT2}, {WS_O}")
        for h in range(2):
            e(f"buffer_store_dwordx4 v[128:131], v{vL16}, {srd(S_WS)}, s{sT2} offen offset:{h*1024} sc1")
    def wo_voff():
        e(f"v_lshrrev_b32 v13, 3, v0")
        e(f"v_lshlrev_b32 v13, 10, v13")
        e(f"v_bfe_u32 v15, v0, 4, 1")
        e(f"v_lshlrev_b32 v15, 2, v15")
        e(f"v_xor_b32 v15, v15, v0")
        e(f"v_and_b32 v15, 7, v15")
        e(f"v_lshl_add_u32 v14, v15, 4, v13")
    def wo_dma(S, heads, kh, ldsaddr):
        for i in heads:
            sg, cst = ldsaddr(i)
            for hf in range(2):
                e(f"s_add_u32 s{sT3x}, s{sT5}, {(256*kh + 16*i + 8*hf)*1024}")
                e(f"s_add_u32 m0, s{sg}, {cst + hf*1024}")
                e("s_nop 0")
                e(f"buffer_load_dwordx4 v14, {srd(S)}, s{sT3x} offen lds")
    def wo_lin(S, sg, sl, n):
        e(f"s_mov_b32 m0, s{sl}")
        e("s_nop 0")
        for i in range(n):
            e(f"buffer_load_dwordx4 v14, {srd(S)}, s{sg} offen lds")
            if i < n - 1:
                e(f"s_add_u32 m0, m0, 1024")
                e(f"s_add_u32 s{sg}, s{sg}, 8192")
    def wo_early():
        wo_voff()
        e(f"s_lshl_b32 s{sT5}, s{sN3}, 7")
        e(f"s_and_b32 s{sT0}, s{sTAU}, 1")
        e(f"s_lshl_b32 s{sT0}, s{sT0}, 18")
        e(f"s_add_u32 s{sT0}, s{sT0}, s{sT5}")
        e(f"s_lshl_b32 s{sT1}, s{sTAU}, 14")
        e(f"s_add_u32 s{sT1}, s{sT1}, {LDS_A0}")
        lab = f"L_WE_{opt._n}"; opt._n += 1
        e(f"s_cmp_ge_u32 s{sTAU}, 2")
        e(f"s_cbranch_scc1 {lab}_B")
        e(f"s_mov_b32 s{sT4}, s{sT0}")
        wo_lin(S_WOA, sT4, sT1, 16)
        e(f"s_branch {lab}_E")
        a.lab(f"{lab}_B")
        e(f"s_mov_b32 s{sT4}, s{sT0}")
        wo_lin(S_WOB, sT4, sT1, 16)
        a.lab(f"{lab}_E")
    def halo_poll_load():
        n = opt._n; opt._n += 1
        e(f"s_sub_u32 s{sT2}, s{sC}, 1")
        e(f"s_lshl_b32 s{sT3x}, s{sT2}, 5")
        e(f"s_add_u32 s{sT3x}, s{sT3x}, s{sBH}")
        e(f"s_lshl_b32 s{sT3x}, s{sT3x}, 7")
        e(f"s_lshl_b32 s{sT4}, s{sTAU}, 3")
        e(f"s_add_u32 s{sT3x}, s{sT3x}, s{sT4}")
        e(f"s_add_u32 s{sT3x}, s{sT3x}, {WS_KVF}")
        e(f"v_and_b32 v13, 1, v0")
        e(f"v_lshlrev_b32 v13, 2, v13")
        e(f"s_mov_b32 s{sSPIN}, 0")
        a.lab(f"L_KVF_LOOP{n}")
        e(f"buffer_load_dword v15, v13, {srd(S_WS)}, s{sT3x} offen sc1")
        e(f"s_add_u32 s{sSPIN}, s{sSPIN}, 1")
        e("s_waitcnt vmcnt(0)")
        e(f"v_cmp_ne_u32 vcc, s{sTAG}, v15")
        e(f"s_cmp_gt_u32 s{sSPIN}, {opt.spin}")
        e(f"s_cbranch_scc1 L_KVF_OK{n}")
        e(f"s_cbranch_vccnz L_KVF_LOOP{n}")
        a.lab(f"L_KVF_OK{n}")
        stamp("roleA")
        e(f"s_lshl_b32 s{sT3x}, s{sBH}, 6")
        e(f"s_lshl_b32 s{sT2}, s{sT2}, 3")
        e(f"s_add_u32 s{sT3x}, s{sT3x}, s{sT2}")
        e(f"s_lshl_b32 s{sT2}, s{sTAU}, 1")
        e(f"s_add_u32 s{sT3x}, s{sT3x}, s{sT2}")
        e(f"s_lshl_b32 s{sT3x}, s{sT3x}, 12")
        e(f"s_add_u32 s{sT3x}, s{sT3x}, {WS_KV}")
        for j in range(2):
            for i in range(4):
                e(f"buffer_load_dwordx4 {vr(HT+16*j+4*i,4)}, v{vL16}, {srd(S_WS)}, s{sT3x} offen offset:{i*1024} sc1")
            if j < 1: e(f"s_add_u32 s{sT3x}, s{sT3x}, 4096")
    def halo_write(younger):
        e(f"s_mul_i32 s{sT2}, s{sTAU}, {2*REG}")
        e(f"s_add_u32 s{sT2}, s{sT2}, 4096")
        e(f"v_add_u32 v13, s{sT2}, v{vL16}")
        for j in range(2):
            e(f"s_waitcnt vmcnt({younger+4-4*j})")
            for i in range(4):
                e(f"ds_write_b128 v13, {vr(HT+16*j+4*i,4)} offset:{j*REG+i*1024}")
    opt._n = 0
    NE = 16
    e(f"s_cmp_gt_u32 s{sTAU}, 3")
    e("s_cbranch_scc0 L_ROLE_LO")
    if opt.sent == 2: prefill()
    e("s_branch L_HALO_BAR")
    a.lab("L_ROLE_LO")
    if opt.mke:
        e(f"s_mov_b32 s{sT2}, 0xff800000")
        for r in range(16): e(f"v_xor_b32 v{MKE+r}, s{sT2}, v{MK+r}")
    e(f"s_cmp_eq_u32 s{sC}, 0")
    e("s_cbranch_scc1 L_ROLE_C0")
    e(f"s_cmp_gt_u32 s{sTAU}, 1")
    e("s_cbranch_scc1 L_ROLE_HI")
    wo_early()
    halo_poll_load()
    gate_loads()
    halo_write(9)
    e("s_waitcnt lgkmcnt(0)")
    stamp("roleB")
    e("s_branch L_HALO_BAR")
    a.lab("L_ROLE_HI")
    halo_poll_load()
    wo_early()
    gate_loads()
    halo_write(NE + 9)
    e("s_waitcnt vmcnt(9) lgkmcnt(0)")
    stamp("roleB")
    e("s_branch L_HALO_BAR")
    a.lab("L_ROLE_C0")
    wo_early()
    gate_loads()
    e("s_waitcnt vmcnt(9)")
    a.lab("L_HALO_BAR")
    if not opt.mke:
        e(f"s_mov_b32 s{sT2}, 0xff800000")
        for r in range(16): e(f"v_xor_b32 v{MK+r}, s{sT2}, v{MK+r}")
    e("s_barrier")
    stamp("B2")
    e(f"s_cmp_ge_u32 s{sTAU}, 4")
    e("s_cbranch_scc1 L_LATE_S")
    prefill()
    e("s_branch L_LATE_E")
    a.lab("L_LATE_S")
    if opt.warm in (4, 6, 7):
        assert not opt.rep
        e(f"s_cmp_eq_u32 s{sW}, 4"); e("s_cbranch_scc0 L_FW_E")
        e(f"s_lshl_b32 s{sT2}, s{sC}, 5"); e(f"s_lshr_b32 s{sT3x}, s{sBH}, 3"); e(f"s_add_u32 s{sT2}, s{sT2}, s{sT3x}")
        e(f"s_lshl_b32 s{sT2}, s{sT2}, 7"); e(f"s_add_u32 s{sT2}, s{sT2}, {WS_OF}")
        e(f"v_lshlrev_b32 v13, 9, v0"); e(f"v_add_u32 v13, s{sT2}, v13")
        e("s_mov_b64 exec, 0xff")
        e(f"buffer_load_dword v215, v13, {srd(S_WS)}, 0 offen sc1")
        e("s_mov_b64 exec, -1")
        e(f"s_lshr_b32 s{sT2}, s{sT3}, 2"); e(f"s_lshl_b32 s{sT2}, s{sT2}, 3"); e(f"s_and_b32 s{sT3x}, s{sT3}, 3")
        e(f"s_add_u32 s{sT0}, s{sT2}, s{sT3x}"); e(f"s_sub_u32 s{sT3x}, 7, s{sT3x}"); e(f"s_add_u32 s{sT1}, s{sT2}, s{sT3x}")
        e(f"s_lshl_b32 s{sT0}, s{sT0}, 9"); e(f"s_lshl_b32 s{sT1}, s{sT1}, 9")
        e(f"s_add_u32 s{sT0}, s{sT0}, {WS_OF}"); e(f"s_add_u32 s{sT1}, s{sT1}, {WS_OF}")
        e(f"v_lshlrev_b32 v13, 7, v0")
        e("s_mov_b64 exec, 15")
        e(f"buffer_load_dword v215, v13, {srd(S_WS)}, s{sT0} offen sc1")
        e(f"buffer_load_dword v214, v13, {srd(S_WS)}, s{sT1} offen sc1")
        e("s_mov_b64 exec, -1")
        a.lab("L_FW_E")
        if opt.warm == 7:
            e(f"s_cmp_eq_u32 s{sW}, 5"); e("s_cbranch_scc0 L_FW_F")
            e(f"s_lshr_b32 s{sT2}, s{sT3}, 2"); e(f"s_lshl_b32 s{sT2}, s{sT2}, 3"); e(f"s_and_b32 s{sT3x}, s{sT3}, 3")
            e(f"s_add_u32 s{sT0}, s{sT2}, s{sT3x}"); e(f"s_sub_u32 s{sT3x}, 7, s{sT3x}"); e(f"s_add_u32 s{sT1}, s{sT2}, s{sT3x}")
            e(f"s_sub_u32 s{sT1}, s{sT1}, s{sT0}"); e(f"s_sub_u32 s{sT1}, s{sT1}, 1"); e(f"s_lshl_b32 s{sT1}, s{sT1}, 15")
            e(f"s_lshl_b32 s{sT0}, s{sT0}, 15"); e(f"s_lshl_b32 s{sT3x}, s{sN3}, 7"); e(f"s_add_u32 s{sT0}, s{sT0}, s{sT3x}")
            e(f"v_lshlrev_b32 v13, 10, v0"); e(f"v_lshrrev_b32 v15, 5, v0"); e(f"v_mul_lo_u32 v15, v15, s{sT1}"); e(f"v_add_u32 v13, v13, v15")
            e(f"buffer_load_dword v215, v13, {srd(S_OUT)}, s{sT0} offen")
            a.lab("L_FW_F")
    wo_voff()
    e(f"s_sub_u32 s{sT2}, 7, s{sTAU}")
    e(f"s_lshl_b32 s{sT5}, s{sN3}, 7")
    e(f"s_and_b32 s{sT0}, s{sT2}, 1")
    e(f"s_lshl_b32 s{sT0}, s{sT0}, 18")
    e(f"s_add_u32 s{sT0}, s{sT0}, s{sT5}")
    e(f"s_add_u32 s{sT0}, s{sT0}, {128*1024}")
    e(f"s_mul_i32 s{sT1}, s{sT2}, {2*REG}")
    def late(S):
        for (reg, slot) in ((0, 8192), (1, 8192), (0, 0), (1, 0)):
            e(f"s_add_u32 s{sT3x}, s{sT1}, {reg*REG + slot}")
            wo_lin(S, sT0, sT3x, 4)
            e(f"s_add_u32 s{sT0}, s{sT0}, 8192")
    e(f"s_cmp_ge_u32 s{sT2}, 2")
    e("s_cbranch_scc1 L_LATE_B")
    late(S_WOA)
    e("s_branch L_LATE_G")
    a.lab("L_LATE_B")
    late(S_WOB)
    a.lab("L_LATE_G")
    gate_loads()
    if opt.prio: e("s_setprio 1")
    a.lab("L_LATE_E")
    e(f"s_cmp_eq_u32 s{sC}, 0")
    e("s_cbranch_scc1 L_P2_EPI")
    e(f"s_mul_i32 s{sT0}, s{sTAU}, {REG}")
    e(f"s_add_u32 s{sT0}, s{sT0}, 4096")
    e(f"s_add_u32 s{sT1}, s{sT0}, {REG}")
    e(f"s_sub_u32 s{sT4}, 7, s{sTAU}")
    part("HALO", sT0, sT1, sT4)
    a.lab("L_P2_EPI")
    stamp("attn done")
    lo, hi = f32bits(2.0 ** -64), f32bits(2.0 ** 64)
    e(f"s_mov_b32 s{sT0}, {hex(lo)}")
    e(f"s_mov_b32 s{sT1}, {hex(hi)}")
    e(f"s_lshl_b32 s{sKVO}, s{sTT}, 1")
    e(f"s_add_u32 s{sKVO}, s{sKVO}, s{sBR}")
    e(f"s_lshl_b32 s{sKVO}, s{sKVO}, 5")
    e(f"s_lshl_b32 s{sT3x}, s{sHG}, 1")
    e(f"s_add_u32 s{sKVO}, s{sKVO}, s{sT3x}")
    e(f"s_lshl_b32 s{sKVO}, s{sKVO}, 10")
    e(f"s_add_u32 s{sKVO}, s{sKVO}, {WS_O}")
    e(f"s_lshl_b32 s{sT2}, s{sTT}, 2")
    e(f"s_lshr_b32 s{sT3x}, s{sBH}, 3")
    e(f"s_add_u32 s{sT2}, s{sT2}, s{sT3x}")
    e(f"s_lshl_b32 s{sT2}, s{sT2}, {10 if opt.rep else 7}")
    e(f"s_and_b32 s{sT3x}, s{sBH}, 7")
    e(f"s_lshl_b32 s{sT3x}, s{sT3x}, 2")
    e(f"s_add_u32 s{sT2}, s{sT2}, s{sT3x}")
    e(f"s_add_u32 s{sOFA}, s{sT2}, {WS_OF}")
    e("s_nop 2")
    if opt.fallback:
        for h in range(2):
            O = OA + 16 * h
            e(f"v_mul_f32 v13, 0, v{O}")
            for i in range(1, 8): e(f"v_fmac_f32 v13, 0, v{O+i}")
            e(f"v_cmp_nle_f32 vcc, s{sT0}, v{O+8}")
            e(f"s_mov_b64 s[74:75], vcc")
            e(f"v_cmp_nge_f32 vcc, s{sT1}, v{O+8}")
            e("s_or_b64 s[74:75], s[74:75], vcc")
            e(f"v_cmp_u_f32 vcc, v13, v13")
            e("s_or_b64 s[74:75], s[74:75], vcc")
            e("s_cmp_lg_u64 s[74:75], 0")
            e(f"s_cselect_b32 s{sT2}, {1<<h}, 0")
            e(f"s_or_b32 s{sFAIL}, s{sFAIL}, s{sT2}")
        if opt.forcefb: e(f"s_or_b32 s{sFAIL}, s{sFAIL}, {opt.forcefb}")
        e(f"s_cmp_lg_u32 s{sFAIL}, 0")
        e("s_cbranch_scc1 L_FB_ENTRY")
        a.lab("L_NOFB")
    else:
        e("s_nop 7")
    if opt.sent:
        e(f"s_cmp_ge_u32 s{sW}, 4")
        e("s_cbranch_scc1 L_NOSENT0")
        e("s_waitcnt vmcnt(0)")
        e("s_branch L_NOSENT")
        a.lab("L_NOSENT0")
        if opt.sent == 2: e("s_waitcnt vmcnt(25)")
        a.lab("L_NOSENT")
    for h in range(2):
        e(f"v_rcp_f32 v{13+h}, v{OA+16*h+8}")
    for h in range(2):
        O = OA + 16 * h
        for i in range(8): e(f"v_mul_f32 v{O+i}, v{O+i}, v{13+h}")
        for i in range(4): e(cvt(O + 8 + i, O + 2 * i, O + 2 * i + 1))
        if opt.sent:
            for i in range(4): e(f"v_min_u32 v{O+8+i}, -2, v{O+8+i}")
        e(f"buffer_store_dwordx4 {vr(O+8,4)}, v{vL16}, {srd(S_WS)}, s{sKVO} offen offset:{h*1024} sc1")
    if opt.sent:
        if opt.sent != 2:
            e(f"s_cmp_ge_u32 s{sW}, 4")
            e("s_cbranch_scc1 L_NOHINT")
        e(f"v_lshlrev_b32 v13, 7, v0")
        e(f"v_mov_b32 v14, s{sTAG}")
        e(f"s_mov_b64 exec, {'0xff' if opt.rep else 1}")
        e(f"buffer_store_dword v14, v13, {srd(S_WS)}, s{sOFA} offen sc1")
        e("s_mov_b64 exec, -1")
        stamp("O published")
        a.lab("L_NOHINT")
    WF3, OF3, AC3 = 16, 144, 208
    e(f"v_lshrrev_b32 v1, 5, v0")
    e(f"v_lshlrev_b32 v1, 9, v1")
    e(f"v_bfe_u32 v2, v0, 2, 2")
    e(f"v_lshl_add_u32 v1, v2, 7, v1")
    e(f"v_bfe_u32 v2, v0, 3, 1")
    e(f"v_lshl_add_u32 v1, v2, 6, v1")
    e(f"v_bfe_u32 v2, v0, 4, 1")
    e(f"v_lshl_add_u32 v1, v2, 5, v1")
    e(f"v_and_b32 v2, 3, v0")
    e(f"v_lshl_add_u32 v1, v2, 3, v1")
    e(f"s_lshl_b32 s{sT2}, s{sQ}, 14")
    e(f"s_add_u32 s{sT2}, s{sT2}, {LDS_A0}")
    e(f"s_mul_i32 s{sT3x}, s{sQ}, {2*REG}")
    e(f"v_xor_b32 v2, 64, v1")
    vA = [244, 245]; vB = [246, 247]
    e(f"v_add_u32 v{vA[0]}, s{sT2}, v1")
    e(f"v_add_u32 v{vA[1]}, s{sT2}, v2")
    e(f"v_add_u32 v{vB[0]}, s{sT3x}, v1")
    e(f"v_add_u32 v{vB[1]}, s{sT3x}, v2")
    def trw(i):
        for ct in range(2):
            for u in range(2):
                if i < 8: ad, off = vA[ct], i * 2048
                elif i < 12: ad, off = vB[ct], ((i - 8) >> 1) * REG + 8192 + ((i - 8) & 1) * 2048
                else: ad, off = vB[ct], ((i - 12) >> 1) * REG + ((i - 12) & 1) * 2048
                e(f"ds_read_b64_tr_b16 {vr(WF3+8*i+4*ct+2*u,2)}, v{ad} offset:{off+u*1024}")
    for i in range(8): trw(i)
    e(f"s_lshl_b32 s{sT1}, s{sTT3}, 2")
    e(f"s_add_u32 s{sT1}, s{sT1}, s{sQ}")
    if opt.rep:
        e(f"s_lshl_b32 s{sT1}, s{sT1}, 3")
        e(f"s_add_u32 s{sT1}, s{sT1}, s{sN3}")
    e(f"s_lshl_b32 s{sT1}, s{sT1}, 7")
    e(f"s_add_u32 s{sT1}, s{sT1}, {WS_OF}")
    e(f"s_lshl_b32 s{sT0}, s{sTT3}, 1")
    e(f"s_add_u32 s{sT0}, s{sT0}, s{sB3}")
    e(f"s_lshl_b32 s{sT0}, s{sT0}, 5")
    e(f"s_lshl_b32 s{sT3x}, s{sKH}, 4")
    e(f"s_add_u32 s{sT0}, s{sT0}, s{sT3x}")
    e(f"s_lshl_b32 s{sT0}, s{sT0}, 10")
    e(f"s_add_u32 s{sT0}, s{sT0}, {WS_O}")
    def oflag(wait=True):
        e(f"v_lshlrev_b32 v13, 7, v0")
        e(f"v_mov_b32 v14, s{sTAG}")
        if wait: e("s_waitcnt vmcnt(0)")
        e(f"s_mov_b64 exec, {'0xff' if opt.rep else 1}")
        e(f"buffer_store_dword v14, v13, {srd(S_WS)}, s{sOFA} offen sc1")
        e("s_mov_b64 exec, -1")
        stamp("O published")
    GR = 244 - 4 - 4
    def gate():
        for i in range(8): e(f"v_mov_b32 v{GA+i}, 0")
        for d in range(4):
            for i in range(8):
                e(f"v_dot2_f32_bf16 v{GA+i}, v{GX+4*i+d}, v{GW+d}, v{GA+i}")
        e("s_nop 4")
        for i in range(4): e(f"v_permlane32_swap_b32 v{GA+i}, v{GA+4+i}")
        for i in range(4): e(f"v_add_f32 v{GA+i}, v{GA+i}, v{GA+4+i}")
        e("s_nop 1")
        for i in range(2): e(f"v_permlane16_swap_b32 v{GA+i}, v{GA+2+i}")
        for i in range(2): e(f"v_add_f32 v{GA+i}, v{GA+i}, v{GA+2+i}")
        e("s_nop 1")
        for i in range(2): e(f"v_add_f32_dpp v{GA+i}, v{GA+i}, v{GA+i} row_ror:8 row_mask:0xf bank_mask:0xf")
        e("s_nop 1")
        e(f"v_mov_b32_dpp v{GA}, v{GA+1} quad_perm:[0,1,2,3] row_mask:0xf bank_mask:0xc")
        e("s_nop 1")
        e(f"v_add_f32_dpp v15, v{GA}, v{GA} quad_perm:[1,0,3,2] row_mask:0xf bank_mask:0xf")
        e("s_nop 1")
        e("v_add_f32_dpp v15, v15, v15 quad_perm:[2,3,0,1] row_mask:0xf bank_mask:0xf")
        e("s_nop 1")
        e("v_add_f32_dpp v15, v15, v15 row_half_mirror row_mask:0xf bank_mask:0xf")
        e("v_cvt_pk_bf16_f32 v15, v15, v15")
        e("v_and_b32 v15, 0xffff0000, v15")
        e(f"v_mul_f32 v15, {hex(f32bits(-math.log2(math.e)))}, v15")
        e("v_exp_f32 v15, v15")
        e("s_nop 0")
        e("v_add_f32 v15, 1.0, v15")
        e("v_rcp_f32 v15, v15")
        e("s_nop 0")
        e("v_cvt_pk_bf16_f32 v15, v15, v15")
        e(f"v_and_b32 v{GR}, 0xffff0000, v15")
        e(f"v_sub_f32 v15, 1.0, v{GR}")
        e("v_cvt_pk_bf16_f32 v15, v15, v15")
        e(f"v_and_b32 v{GR+1}, 0xffff0000, v15")
    def gate_write():
        e(f"v_lshrrev_b32 v15, 3, v0")
        e(f"s_lshl_b32 s{sT2}, s{sW}, 3")
        e(f"v_add_u32 v15, s{sT2}, v15")
        e(f"v_lshlrev_b32 v15, 2, v15")
        e(f"ds_write_b32 v15, v{GR} offset:{LDS_GATE}")
        e(f"ds_write_b32 v15, v{GR+1} offset:{LDS_GATE+256}")
    def poll(name, first_issued, sleep):
        e(f"s_mov_b32 s{sSPIN}, 0")
        if not first_issued:
            e(f"buffer_load_dword v14, v13, {srd(S_WS)}, s{sT1} offen sc1")
        a.lab(f"L_OF_LOOP{name}")
        e("s_waitcnt vmcnt(0)")
        e(f"v_cmp_ne_u32 vcc, s{sTAG}, v14")
        e(f"s_add_u32 s{sSPIN}, s{sSPIN}, 1")
        e(f"s_cbranch_vccz L_OF_OK{name}")
        e(f"s_cmp_gt_u32 s{sSPIN}, {opt.spin}")
        e(f"s_cbranch_scc1 L_OF_OK{name}")
        if sleep: e(f"s_sleep {sleep}")
        e(f"buffer_load_dword v14, v13, {srd(S_WS)}, s{sT1} offen sc1")
        e(f"s_branch L_OF_LOOP{name}")
        a.lab(f"L_OF_OK{name}")
    def oloads(mod="sc1"):
        for i in range(16):
            e(f"buffer_load_dwordx4 {vr(OF3+4*i,4)}, v{vL16}, {srd(S_WS)}, s{sT0} offen offset:{(i&3)*1024} {mod}")
            if (i & 3) == 3 and i < 15: e(f"s_add_u32 s{sT0}, s{sT0}, 4096")
    def p3mfma(i0, i1):
        for i in range(i0, i1):
            e(f"s_waitcnt vmcnt({15-i})")
            for ct in range(2):
                mfma(AC3 + 16 * ct, WF3 + 8 * i + 4 * ct, OF3 + 4 * i, "0" if i == 0 else AC3 + 16 * ct)
    def late_part():
        gate_write()
        for i in range(8, 16): trw(i)
    def p3mfma2():
        if opt.sent:
            e(f"s_mov_b32 s{sSPIN}, 0")
            a.lab("L_P3_RETRY")
            e("v_mov_b32 v15, 0")
        for i in range(16):
            if i == 8: e("s_waitcnt lgkmcnt(0)")
            e(f"s_waitcnt vmcnt({15-i})")
            for ct in range(2):
                mfma(AC3 + 16 * ct, WF3 + 8 * i + 4 * ct, OF3 + 4 * i, "0" if i == 0 else AC3 + 16 * ct)
                if opt.sent: e(f"v_max3_u32 v15, v15, v{OF3+4*i+2*ct}, v{OF3+4*i+2*ct+1}")
        if opt.sent:
            e("v_cmp_eq_u32 vcc, -1, v15")
            e(f"s_add_u32 s{sSPIN}, s{sSPIN}, 1")
            e("s_cbranch_vccz L_P3_DONE")
            e(f"s_cmp_gt_u32 s{sSPIN}, {opt.spin}")
            e("s_cbranch_scc1 L_P3_DONE")
            e(f"s_sub_u32 s{sT0}, s{sT0}, 12288")
            e("s_nop 7")
            oloads()
            e("s_branch L_P3_RETRY")
            a.lab("L_P3_DONE")
    e(f"s_cmp_eq_u32 s{sTQ}, 0")
    e("s_cbranch_scc1 L_P3_LATE")
    if opt.sent == 2: e("s_waitcnt vmcnt(3)")
    else: oflag()
    if opt.prio: e("s_setprio 0")
    if opt.early == 0:
        gate()
        e(f"v_and_b32 v13, 7, v0")
        e(f"v_lshlrev_b32 v13, 2, v13")
        e(f"buffer_load_dword v14, v13, {srd(S_WS)}, s{sT1} offen sc1")
        e("s_waitcnt lgkmcnt(0)")
        e("s_barrier")
        stamp("B3")
        poll("E", True, opt.sleep)
        stamp("O flags seen")
        oloads(opt.omod)
        late_part()
    else:
        e(f"v_and_b32 v13, 7, v0")
        e(f"v_lshlrev_b32 v13, 2, v13")
        e(f"buffer_load_dword v14, v13, {srd(S_WS)}, s{sT1} offen sc1")
        gate()
        for i in range(8, 16): trw(i)
        poll("E", True, opt.sleep)
        stamp("O flags seen")
        oloads(opt.omod)
        e("s_waitcnt lgkmcnt(0)")
        e("s_barrier")
        stamp("B3")
        gate_write()
    e("s_branch L_P3_J")
    a.lab("L_P3_LATE")
    if opt.sent:
        e(f"v_and_b32 v13, 7, v0")
        e(f"v_lshlrev_b32 v13, 2, v13")
        e(f"buffer_load_dword v14, v13, {srd(S_WS)}, s{sT1} offen sc1")
        gate()
        e("s_waitcnt lgkmcnt(0)")
        e("s_barrier")
        stamp("B3")
    else:
        e("s_waitcnt vmcnt(2)")
        gate()
        oflag()
        e(f"v_and_b32 v13, 7, v0")
        e(f"v_lshlrev_b32 v13, 2, v13")
        e(f"buffer_load_dword v14, v13, {srd(S_WS)}, s{sT1} offen sc1")
        e("s_waitcnt lgkmcnt(0)")
        e("s_barrier")
        stamp("B3")
    late_part()
    poll("L", True, 0)
    stamp("O flags seen")
    oloads(opt.omod)
    a.lab("L_P3_J")
    p3mfma2()
    stamp("P3 mfma")
    e(f"s_lshl_b32 s{sT2}, s{sTQ}, 15")
    e(f"s_lshl_b32 s{sT3x}, s{sQ}, 11")
    e(f"s_add_u32 s{sT3x}, s{sT3x}, s{sT2}")
    e(f"s_add_u32 s{sT3x}, s{sT3x}, {LDS_RB}")
    e(f"v_add_u32 v1, s{sT3x}, v{vL16}")
    e(f"s_lshl_b32 s{sT3x}, s{sQ}, 13")
    e(f"s_add_u32 s{sT3x}, s{sT3x}, s{sT2}")
    e(f"s_add_u32 s{sT3x}, s{sT3x}, {LDS_RB}")
    e(f"v_add_u32 v2, s{sT3x}, v{vL16}")
    e(f"v_and_b32 v4, 31, v0")
    e(f"s_lshl_b32 s{sT2}, s{sTQ}, 5")
    e(f"v_add_u32 v3, s{sT2}, v4")
    e(f"v_lshlrev_b32 v3, 2, v3")
    e(f"v_lshlrev_b32 v4, 10, v4")
    e(f"v_lshrrev_b32 v5, 5, v0")
    e(f"v_lshl_add_u32 v4, v5, 4, v4")
    e(f"s_lshl_b32 s{sT2}, s{sTT3}, 15")
    e(f"s_lshl_b32 s{sT3x}, s{sN3}, 7")
    e(f"s_add_u32 s{sT2}, s{sT2}, s{sT3x}")
    e(f"s_lshl_b32 s{sT3x}, s{sQ}, 5")
    e(f"s_add_u32 s{sT2}, s{sT2}, s{sT3x}")
    e("s_nop 1")
    for qq in range(4):
        for hf in range(2):
            e(f"ds_write_b128 v1, {vr(AC3+8*qq+4*hf,4)} offset:{qq*8192+hf*1024}")
    e("s_waitcnt lgkmcnt(0)")
    e("s_barrier")
    R = 144
    e(f"ds_read_b32 v5, v3 offset:{LDS_GATE}")
    e(f"ds_read_b32 v6, v3 offset:{LDS_GATE+256}")
    for src in range(4):
        for hf in range(2):
            e(f"ds_read_b128 {vr(R+8*src+4*hf,4)}, v2 offset:{src*2048+hf*1024}")
    e("s_waitcnt lgkmcnt(4)")
    for i in range(8): e(f"v_add_f32 v{R+i}, v{R+i}, v{R+8+i}")
    for i in range(8): e(f"v_mul_f32 v{R+i}, v{R+i}, v5")
    e("s_waitcnt lgkmcnt(0)")
    for i in range(8): e(f"v_add_f32 v{R+16+i}, v{R+16+i}, v{R+24+i}")
    for i in range(8): e(f"v_fmac_f32 v{R+i}, v{R+16+i}, v6")
    for i in range(4): e(cvt(R + 32 + i, R + 2 * i, R + 2 * i + 1))
    e("s_nop 1")
    e(f"v_permlane32_swap_b32 v{R+32}, v{R+34}")
    e(f"v_permlane32_swap_b32 v{R+33}, v{R+35}")
    e(f"buffer_store_dwordx4 {vr(R+32,4)}, v4, {srd(S_OUT)}, s{sT2} offen {opt.outmod}")
    if STAMPS:
        stamp("end")
        e(f"s_memtime s[{sTM}:{sTM+1}]")
        e("s_waitcnt lgkmcnt(0)")
        e(f"s_sub_u32 s{STREG[nst[0]]}, s{sTM}, s100")
        nst[0] += 1
        opt.stamp_names.append("CYCLES")
        n = nst[0]
        e(f"s_lshl_b32 s{sT2}, s2, 3")
        e(f"s_add_u32 s{sT2}, s{sT2}, s{sW}")
        e(f"s_lshl_b32 s{sT2}, s{sT2}, 7")
        e(f"s_add_u32 s{sT2}, s{sT2}, {WS_STAMP}")
        e("v_mov_b32 v13, 0")
        e("s_mov_b64 exec, 1")
        for i in range(n):
            e(f"v_mov_b32 v14, s{STREG[i]}")
            e(f"buffer_store_dword v14, v13, {srd(S_WS)}, s{sT2} offen offset:{4*i}")
            e("s_nop 0")
        e("s_mov_b64 exec, -1")
    e("s_waitcnt vmcnt(0)")
    a.lab("L_END")
    e("s_endpgm")
    if opt.fallback:
        a.lab("L_FB_ENTRY")
        fallback(a, opt, dict(SS=SS, PP=PP, KF=KF, MK=MK, OA=OA, QF=QF, vL16=vL16, HT=144))
        e("s_branch L_NOFB")
    a.lab("L_CODE_END")
    return a

def fallback(a, opt, R):
    e = a.e
    SS, PP, KF, MK, OA, QF, vL16, HT = (R[k] for k in "SS PP KF MK OA QF vL16 HT".split())
    TQ = 128; TM = 132; TB = 133; TO = 136; TV = 152; TC = 176
    S = SS
    sHH, sPASS, sPART, sTILE, sN = sH, 40, 41, 42, 43
    def mfma(D, A, B, C): e(mfma_s(D, A, B, C))
    a.c("==== fallback: true max ====")
    e(f"s_lshl_b32 s{sT2}, s{sC}, 5")
    e(f"s_add_u32 s{sT2}, s{sT2}, s{sBH}")
    e(f"s_lshl_b32 s{sT2}, s{sT2}, 7")
    e(f"s_add_u32 s{sT2}, s{sT2}, {WS_KVF}")
    e(f"v_and_b32 v13, 7, v0")
    e(f"v_lshlrev_b32 v13, 2, v13")
    e(f"s_mov_b32 s{sSPIN}, 0")
    a.lab("L_FB_FLAG")
    e(f"buffer_load_dword v14, v13, {srd(S_WS)}, s{sT2} offen sc1")
    e(f"s_add_u32 s{sSPIN}, s{sSPIN}, 1")
    e("s_waitcnt vmcnt(0)")
    e(f"v_cmp_ne_u32 vcc, s{sTAG}, v14")
    e(f"s_cmp_gt_u32 s{sSPIN}, {opt.spin}")
    e("s_cbranch_scc1 L_FB_FLAG_OK")
    e("s_cbranch_vccnz L_FB_FLAG")
    a.lab("L_FB_FLAG_OK")
    e(f"s_mov_b32 s{sHH}, 0")
    a.lab("L_FB_H")
    e(f"s_lshr_b32 s{sT2}, s{sFAIL}, s{sHH}")
    e(f"s_and_b32 s{sT2}, s{sT2}, 1")
    e(f"s_cmp_eq_u32 s{sT2}, 0")
    e("s_cbranch_scc1 L_FB_NEXT")
    e(f"s_cmp_eq_u32 s{sHH}, 0")
    e("s_cbranch_scc0 L_FB_Q1")
    for i in range(4): e(f"v_mov_b32 v{TQ+i}, v{QF+i}")
    e("s_branch L_FB_Q2")
    a.lab("L_FB_Q1")
    for i in range(4): e(f"v_mov_b32 v{TQ+i}, v{QF+4+i}")
    a.lab("L_FB_Q2")
    e(f"v_mov_b32 v{TM}, 0xff800000")
    for i in range(16): e(f"v_mov_b32 v{TO+i}, 0")
    for i in range(8): e(f"v_mov_b32 v{TV+i}, 0x3f803f80")
    e(f"s_mov_b32 s{sPASS}, 0")
    a.lab("L_FB_PASS")
    e(f"s_mov_b32 s{sPART}, 0")
    a.lab("L_FB_PART")
    e(f"s_cmp_eq_u32 s{sPART}, 0")
    e(f"s_cselect_b32 s{sTILE}, 0, s{sTAU}")
    e(f"s_cselect_b32 s{sN}, s{sTAU}, 7")
    a.lab("L_FB_TILE")
    e(f"s_cmp_eq_u32 s{sTILE}, s{sTAU}")
    e("s_cbranch_scc1 L_FB_MASK")
    for i in range(16): e(f"v_mov_b32 v{TC+i}, 0")
    e("s_branch L_FB_C")
    a.lab("L_FB_MASK")
    e(f"v_and_b32 v13, 31, v0")
    e(f"v_lshrrev_b32 v14, 5, v0")
    e(f"v_lshlrev_b32 v14, 2, v14")
    e(f"v_sub_u32 v13, v13, v14")
    e(f"s_cmp_eq_u32 s{sPART}, 0")
    e(f"s_cselect_b32 s{sT2}, 0, 0xff800000")
    for r in range(16):
        kk = (r & 3) + 8 * (r >> 2)
        e(f"v_subrev_u32 v{TC+r}, {kk}, v13")
        e(f"v_ashrrev_i32 v{TC+r}, 31, v{TC+r}")
        e(f"v_and_b32 v{TC+r}, 0xff800000, v{TC+r}")
        e(f"v_xor_b32 v{TC+r}, s{sT2}, v{TC+r}")
    a.lab("L_FB_C")
    e(f"s_sub_u32 s{sT2}, s{sC}, s{sPART}")
    e(f"s_lshl_b32 s{sT2}, s{sT2}, 3")
    e(f"s_add_u32 s{sT2}, s{sT2}, s{sTILE}")
    e(f"s_lshl_b32 s{sT3x}, s{sBH}, 6")
    e(f"s_add_u32 s{sT2}, s{sT2}, s{sT3x}")
    e(f"s_lshl_b32 s{sT2}, s{sT2}, 12")
    e(f"s_add_u32 s{sT2}, s{sT2}, {WS_KV}")
    e(f"s_lshl_b32 s{sT3x}, s{sHH}, 10")
    e(f"s_add_u32 s{sT3x}, s{sT3x}, s{sT2}")
    e(f"buffer_load_dwordx4 {vr(KF,4)}, v{vL16}, {srd(S_WS)}, s{sT3x} offen sc1")
    e(f"s_lshl_b32 s{sT3x}, s{sHH}, 8")
    e(f"s_add_u32 s{sT3x}, s{sT3x}, s{sT2}")
    e(f"s_mov_b64 exec, s[{sVM}:{sVM+1}]")
    e(f"buffer_load_dwordx4 {vr(TV,4)}, v{vL16}, {srd(S_WS)}, s{sT3x} offen offset:2048 sc1")
    e(f"buffer_load_dwordx4 {vr(TV+4,4)}, v{vL16}, {srd(S_WS)}, s{sT3x} offen offset:3072 sc1")
    e("s_mov_b64 exec, -1")
    e("s_waitcnt vmcnt(0)")
    mfma(S, KF, TQ, TC)
    e("s_nop 7"); e("s_nop 7")
    e(f"s_cmp_eq_u32 s{sPASS}, 0")
    e("s_cbranch_scc0 L_FB_P2")
    for i in range(8): e(f"v_max3_f32 v{TM}, v{TM}, v{S+2*i}, v{S+2*i+1}")
    e("s_branch L_FB_TNEXT")
    a.lab("L_FB_P2")
    for i in range(16): e(f"v_sub_f32 v{S+i}, v{S+i}, v{TM}")
    for i in range(16): e(f"v_exp_f32 v{S+i}, v{S+i}")
    e("s_nop 0")
    for i in range(8): e(cvt(PP + i, S + 2 * i, S + 2 * i + 1))
    e("s_nop 1")
    mfma(TO, TV, PP, TO)
    mfma(TO, TV + 4, PP + 4, TO)
    e("s_nop 7"); e("s_nop 7")
    a.lab("L_FB_TNEXT")
    e(f"s_add_u32 s{sTILE}, s{sTILE}, 1")
    e(f"s_cmp_le_u32 s{sTILE}, s{sN}")
    e("s_cbranch_scc1 L_FB_TILE")
    e(f"s_cmp_eq_u32 s{sC}, 0")
    e("s_cbranch_scc1 L_FB_PDONE")
    e(f"s_add_u32 s{sPART}, s{sPART}, 1")
    e(f"s_cmp_lt_u32 s{sPART}, 2")
    e("s_cbranch_scc1 L_FB_PART")
    a.lab("L_FB_PDONE")
    e(f"s_cmp_eq_u32 s{sPASS}, 0")
    e("s_cbranch_scc0 L_FB_STORE")
    e(f"v_mov_b32 v{TB}, v{TM}")
    e("s_nop 1")
    e(f"v_permlane32_swap_b32 v{TM}, v{TB}")
    e("s_nop 1")
    e(f"v_max_f32 v{TM}, v{TM}, v{TB}")
    e(f"s_mov_b32 s{sPASS}, 1")
    e("s_branch L_FB_PASS")
    a.lab("L_FB_STORE")
    e(f"s_cmp_eq_u32 s{sHH}, 0")
    e("s_cbranch_scc0 L_FB_S1")
    for i in range(16): e(f"v_mov_b32 v{OA+i}, v{TO+i}")
    e("s_branch L_FB_NEXT")
    a.lab("L_FB_S1")
    for i in range(16): e(f"v_mov_b32 v{OA+16+i}, v{TO+i}")
    a.lab("L_FB_NEXT")
    e(f"s_add_u32 s{sHH}, s{sHH}, 1")
    e(f"s_cmp_lt_u32 s{sHH}, 2")
    e("s_cbranch_scc1 L_FB_H")

def build(opt):
    opt.stamp_names = []
    a = gen(opt)
    hdr = []
    hdr.append(f"; @launch grid=(256,1,1) block=(512,1,1) lds={LDS_TOTAL}")
    hdr.append('.amdgcn_target "amdgcn-amd-amdhsa--gfx950"')
    hdr.append(".text")
    hdr.append(f".globl {KNAME}")
    hdr.append(".p2align 8")
    hdr.append(f".type {KNAME},@function")
    tail = f""".section .rodata,"a"
.p2align 6
.amdhsa_kernel {KNAME}
  .amdhsa_next_free_vgpr 256
  .amdhsa_next_free_sgpr 102
  .amdhsa_accum_offset 256
  .amdhsa_group_segment_fixed_size 0
  .amdhsa_kernarg_size 80
  .amdhsa_user_sgpr_count 2
  .amdhsa_user_sgpr_kernarg_segment_ptr 1
  .amdhsa_system_sgpr_workgroup_id_x 1
  .amdhsa_float_denorm_mode_32 3
.end_amdhsa_kernel
"""
    return "\n".join(hdr) + "\n" + a.text() + tail

def parse(argv=None):
    p = argparse.ArgumentParser()
    p.add_argument("-o", default="gated_mix__sliding_block__sliding_block__prompt.s")
    p.add_argument("--stamps", type=int, default=0)
    p.add_argument("--codepf", type=int, default=1)
    p.add_argument("--pace", type=float, default=1.6)
    p.add_argument("--rot", type=int, default=1)
    p.add_argument("--mke", type=int, default=1)
    p.add_argument("--forcefb", type=int, default=0)
    p.add_argument("--early", type=int, default=0)
    p.add_argument("--lfirst", type=int, default=0)
    p.add_argument("--omod", default="sc1")
    p.add_argument("--rep", type=int, default=0)
    p.add_argument("--warm", type=int, default=6)
    p.add_argument("--sent", type=int, default=1)
    p.add_argument("--tailopt", type=int, default=1)
    p.add_argument("--eorder", type=int, default=1)
    p.add_argument("--prio", type=int, default=1)
    p.add_argument("--sleep", type=int, default=0)
    p.add_argument("--pf", type=int, default=0)
    p.add_argument("--bar0", type=int, default=1)
    p.add_argument("--dbg", type=int, default=0)
    p.add_argument("--cyc", type=int, default=0)
    p.add_argument("--wopf", type=int, default=1)
    p.add_argument("--fallback", type=int, default=1)
    p.add_argument("--spin", type=int, default=20000)
    p.add_argument("--outmod", default="")
    return p.parse_args(argv)

if __name__ == "__main__":
    opt = parse()
    s = build(opt)
    open(opt.o, "w").write(s)
    if opt.stamps:
        open(opt.o + ".stamps", "w").write("\n".join(opt.stamp_names))
    print("wrote", opt.o, len(s), "bytes")
```

```python
import sys, argparse, math, struct

KNAME = "gated_mix__sliding_block__sliding_block__prompt_kernel"

WS_NONCE = 0
WS_OF = 0x10000
WS_KVF = 0x4000
WS_KV = 0x100000
WS_O = 0x1000000
WS_STAMP = 0x1800000
WS_SIZE = 0x2000000

REG = 12288
LDS_W = 8 * REG
WPART = 24576
LDS_TOTAL = 163840
LDS_A0, LDS_A1 = 98304, 131072
LDS_GATE = 4096
LDS_RB = 98304

S_X, S_W, S_WOA, S_WOB, S_WS, S_OUT, S_GW, S_DBG = 8, 12, 16, 20, 24, 28, 32, 36
sW, sTAU, sC, sBH, sBR, sHG, sTT, sT3, sN3, sTAG, sJ = 60, 61, 62, 63, 64, 65, 66, 67, 68, 69, 70
sT0, sT1, sT2, sT3x, sT4, sT5 = 71, 72, 73, 74, 75, 76
sCNT, sSPIN, sFAIL = 77, 80, 81
sVM = 78
sKVO = 82
sH = 83
STREG = list(range(84, 98)) + [3, 6, 7, 46, 47]
sTM = 98
sXB, sWG, sWL = 40, 41, 42

def srd(b): return f"s[{b}:{b+3}]"
def vr(b, n=1): return f"v{b}" if n == 1 else f"v[{b}:{b+n-1}]"

class Asm:
    def __init__(self):
        self.lines = []; self.vm = []; self.lg = []
    def e(self, s): self.lines.append("  " + s)
    def c(self, s): self.lines.append("  ; " + s)
    def lab(self, s): self.lines.append(s + ":")
    def vmop(self, s, tag): self.e(s); self.vm.append(tag)
    def lgop(self, s, tag): self.e(s); self.lg.append(tag)
    def _n(self, q, tag, mx):
        idx = max(i for i, t in enumerate(q) if t == tag)
        return min(len(q) - 1 - idx, mx)
    def vmwait(self, tag):
        if tag not in self.vm: return
        n = self._n(self.vm, tag, 63)
        self.e(f"s_waitcnt vmcnt({n})")
        self.vm = self.vm[len(self.vm) - n:] if n > 0 else []
    def lgwait(self, tag):
        if tag not in self.lg: return
        n = self._n(self.lg, tag, 15)
        self.e(f"s_waitcnt lgkmcnt({n})")
        self.lg = self.lg[len(self.lg) - n:] if n > 0 else []
    def vmall(self): self.e("s_waitcnt vmcnt(0)"); self.vm = []
    def lgall(self): self.e("s_waitcnt lgkmcnt(0)"); self.lg = []
    def text(self): return "\n".join(self.lines) + "\n"

def f32bits(x): return struct.unpack("<I", struct.pack("<f", x))[0]
def mfma_s(D, A, B, C):
    cs = C if isinstance(C, str) else vr(C, 16)
    return f"v_mfma_f32_32x32x16_bf16 {vr(D,16)}, {vr(A,4)}, {vr(B,4)}, {cs}"
def cvt(dst, s0, s1): return f"v_cvt_pk_bf16_f32 v{dst}, v{s0}, v{s1}"

def gen(opt):
    a = Asm()
    e = a.e
    mfma = lambda D, A, B, C: e(mfma_s(D, A, B, C))
    STAMPS = opt.stamps
    nst = [0]
    def stamp(name, inner=False):
        if not STAMPS: return
        if STAMPS == 4 and not inner:
            if name in ("entry", "first data", "gemm done", "B1", "B2", "attn done", "B3", "end"):
                opt.cyc = 0; stamp(name, True)
                if name not in ("entry", "end"):
                    opt.cyc = 1; stamp(name + " cyc", True); opt.cyc = 0
            return
        if STAMPS == 3 and name in ("own done", "B2", "attn done", "O published", "B3", "B4", "O flags seen", "P3 mfma", "roleA", "roleB"): return
        if STAMPS == 2 and name in ("own done", "B2", "attn done", "O published", "B3", "B4", "O flags seen", "P3 mfma"): return
        if name in opt.stamp_names:
            i = opt.stamp_names.index(name)
            e("s_waitcnt lgkmcnt(0)")
            e(f"{'s_memtime' if opt.cyc else 's_memrealtime'} s[{sTM}:{sTM+1}]")
            e("s_waitcnt lgkmcnt(0)")
            e(f"s_mov_b32 s{STREG[i]}, s{sTM}")
            return
        i = nst[0]; nst[0] += 1
        assert i < len(STREG)
        a.c(f"stamp {i}: {name}")
        e("s_waitcnt lgkmcnt(0)"); a.lg = []
        e(f"{'s_memtime' if opt.cyc else 's_memrealtime'} s[{sTM}:{sTM+1}]")
        e("s_waitcnt lgkmcnt(0)")
        e(f"s_mov_b32 s{STREG[i]}, s{sTM}")
        opt.stamp_names.append(name)

    vXO = 1; vXR = 5; vWO = 9; vWR = 10; vL16 = 12
    XF = 16
    WF = 80
    ACC = 116
    def AQ(x): return ACC + 48 * x
    def AK(x): return ACC + 48 * x + 16
    def AV(x): return ACC + 48 * x + 32
    def XFr(lc, x, s): return XF + 32 * (lc & 1) + 16 * x + 4 * s
    def WFr(t, m): return WF + 12 * (t % 3) + 4 * m
    OA = 216; QF = 248; MK = 16; VF = 32
    SS = 160; PP = 48; KF = 56; HT = 64
    vK = 1
    vD = 13
    GX, GW, GA = 96, 208, 212
    WSLOT = 12288
    MKE = 144
    TKA, TKB, TVA, TVB, TQA, TQB = 248, 4, ACC + 16, ACC + 64, ACC + 32, ACC + 80
    LDS_TAG = 8192 + 2048

    a.lab(KNAME)
    e("s_cmp_ge_u32 s2, 256")
    e("s_cbranch_scc1 L_END")
    if STAMPS:
        e("s_memtime s[100:101]")
        stamp("entry")
    e("s_getpc_b64 s[4:5]")
    a.lab("L_PC")
    e("s_load_dwordx4 s[40:43], s[0:1], 0")
    e("s_load_dwordx4 s[48:51], s[0:1], 32")
    e("v_lshlrev_b32 v13, 6, v0")
    e("s_load_dwordx2 s[44:45], s[0:1], 16")
    e("s_load_dwordx4 s[52:55], s[0:1], 48")
    e("s_load_dwordx4 s[56:59], s[0:1], 64")
    e("v_min_u32 v13, L_CODE_END-L_PC-4, v13")
    if opt.codepf:
        e(f"global_load_dword v213, v13, s[4:5]")
    e("v_lshrrev_b32 v15, 6, v0")
    e("v_and_b32 v0, 63, v0")
    e(f"s_and_b32 s{sT0}, s2, 7")
    e(f"v_readfirstlane_b32 s{sW}, v15")
    e(f"s_lshr_b32 s{sJ}, s2, 3")
    e(f"s_and_b32 s{sT1}, s{sT0}, 1")
    e(f"s_lshl_b32 s{sT1}, s{sT1}, 2")
    e(f"s_and_b32 s{sT2}, s{sJ}, 3")
    e(f"s_add_u32 s{sC}, s{sT1}, s{sT2}")
    e(f"s_lshr_b32 s{sT1}, s{sT0}, 1")
    e(f"s_lshl_b32 s{sT1}, s{sT1}, 3")
    e(f"s_lshr_b32 s{sN3}, s{sJ}, 2")
    e(f"s_add_u32 s{sBH}, s{sT1}, s{sN3}")
    e(f"s_lshr_b32 s{sBR}, s{sBH}, 4")
    e(f"s_and_b32 s{sHG}, s{sBH}, 15")
    e(f"s_lshl_b32 s{sT3}, s{sT0}, 2")
    e(f"s_add_u32 s{sT3}, s{sT3}, s{sT2}")
    e(f"s_sub_u32 s{sT1}, 11, s{sW}")
    e(f"s_cmp_lt_u32 s{sW}, 4")
    e(f"s_cselect_b32 s{sTAU}, s{sW}, s{sT1}")
    e(f"s_lshl_b32 s{sTT}, s{sC}, 3")
    e(f"s_add_u32 s{sTT}, s{sTT}, s{sTAU}")
    e(f"v_lshlrev_b32 v{vL16}, 4, v0")
    def mk(b, lo, hi, size):
        e(f"s_mov_b32 s{b}, s{lo}"); e(f"s_mov_b32 s{b+1}, s{hi}")
        e(f"s_mov_b32 s{b+2}, {size}"); e(f"s_mov_b32 s{b+3}, 0x00020000")
    def mk_w():
        e(f"s_cmp_eq_u32 s{sBR}, 0")
        e(f"s_cselect_b32 s{S_W}, s42, s48")
        e(f"s_cselect_b32 s{S_W+1}, s43, s49")
        e(f"s_mov_b32 s{S_W+2}, 1572864"); e(f"s_mov_b32 s{S_W+3}, 0x00020000")
    def mk_rest():
        mk(S_WS, 58, 59, WS_SIZE)
        mk(S_DBG, 56, 57, 256)
        mk(S_OUT, 54, 55, 2097152)
        mk(S_GW, 52, 53, 1024)
        mk(S_WOA, 44, 45, 524288)
        mk(S_WOB, 50, 51, 524288)
        e(f"s_mov_b32 s{sVM}, 0x0000ffff")
        e(f"s_mov_b32 s{sVM+1}, 0x0000ffff")
        e(f"s_mov_b32 s{sFAIL}, 0")
        p3_ids()
    sTQ, sQ, sB3, sKH, sTT3, sOFA = 44, 45, 48, 49, 50, 51
    def p3_ids():
        e(f"s_lshr_b32 s{sTQ}, s{sW}, 2")
        e(f"s_and_b32 s{sQ}, s{sW}, 3")
        e(f"s_lshr_b32 s{sB3}, s{sQ}, 1")
        e(f"s_and_b32 s{sKH}, s{sQ}, 1")
        e(f"s_and_b32 s{sT2}, s{sT3}, 3")
        e(f"s_sub_u32 s{sT3x}, 7, s{sT2}")
        e(f"s_cmp_eq_u32 s{sTQ}, 0")
        e(f"s_cselect_b32 s{sT2}, s{sT2}, s{sT3x}")
        e(f"s_lshr_b32 s{sTT3}, s{sT3}, 2")
        e(f"s_lshl_b32 s{sTT3}, s{sTT3}, 3")
        e(f"s_add_u32 s{sTT3}, s{sTT3}, s{sT2}")
    def init_list():
        q = [f"v_and_b32 v{vD}, 31, v0", f"v_lshrrev_b32 v{vD+2}, 5, v0", f"v_lshlrev_b32 v{vD+2}, 2, v{vD+2}", f"v_sub_u32 v{vD}, v{vD}, v{vD+2}"]
        for r in range(16):
            kk = (r & 3) + 8 * (r >> 2)
            q += [f"v_subrev_u32 v{MK+r}, {kk}, v{vD}", f"v_ashrrev_i32 v{MK+r}, 31, v{MK+r}", f"v_and_b32 v{MK+r}, 0xff800000, v{MK+r}"]
        q += [f"v_mov_b32 v{VF+i}, 0x3f803f80" for i in range(16)]
        return q
    if opt.lfirst:
        e(f"s_cmp_lt_u32 s{sW}, 4")
        e("s_cbranch_scc1 L_COMPUTE")
    else:
        e(f"s_cmp_ge_u32 s{sW}, 4")
        e("s_cbranch_scc1 L_LOADER")
    i_comp = len(a.lines)
    a.lab("L_COMPUTE")

    SXB = sT4
    e(f"s_mul_i32 s{SXB}, s{sW}, {2*REG}")
    e(f"v_and_b32 v13, 31, v0")
    e(f"v_lshrrev_b32 v15, 5, v0")
    e(f"v_bfe_u32 v{vXR+1}, v13, 1, 3")
    e(f"v_xor_b32 v15, v15, v{vXR+1}")
    e(f"v_lshlrev_b32 v15, 4, v15")
    e(f"v_lshl_add_u32 v15, v13, 7, v15")
    e(f"v_add_u32 v{vXR}, s{SXB}, v15")
    for s_ in range(1, 4):
        e(f"v_xor_b32 v{vXR+s_}, {s_<<5}, v{vXR}")
    e(f"v_lshrrev_b32 v13, 5, v0")
    e(f"v_lshlrev_b32 v13, 9, v13")
    e(f"v_bfe_u32 v15, v0, 2, 2")
    e(f"v_lshl_add_u32 v13, v15, 6, v13")
    e(f"v_bfe_u32 v15, v0, 4, 1")
    e(f"v_lshl_add_u32 v13, v15, 5, v13")
    e(f"v_and_b32 v15, 3, v0")
    e(f"v_lshl_add_u32 v13, v15, 3, v13")
    e(f"v_add_u32 v{vWR}, {LDS_W}, v13")
    for i in range(32): e(f"v_mov_b32 v{OA+i}, 0")
    e("s_waitcnt lgkmcnt(0)")
    mk(S_X, 40, 41, 2097152)
    mk_w()
    mk_rest()
    stamp("issued")
    def xread1(lc, x, s_):
        a.lgop(f"ds_read_b128 {vr(XFr(lc,x,s_),4)}, v{vXR+s_} offset:{x*REG+(lc%3)*4096}", f"xr{lc}_{s_}")
    def wread1(t, m, u):
        lc = t >> 2
        a.lgop(f"ds_read_b64_tr_b16 {vr(WFr(t,m)+2*u,2)}, v{vWR} offset:{(lc%3)*WSLOT+m*4096+(t&3)*1024+u*256}", f"wf{t}")
    e("s_barrier")
    stamp("first data")
    mfma_full = mfma
    if opt.dbg == 16:
        def mfma(D, A, B, C):
            for h in range(2):
                cs = C if isinstance(C, str) else vr(C + 4 * h, 4)
                e(f"v_mfma_f32_16x16x32_bf16 {vr(D + 4*h, 4)}, {vr(A,4)}, {vr(B,4)}, {cs}")
    if opt.dbg == 17:
        def mfma(D, A, B, C): pass
    for m in range(3):
        for u in range(2): wread1(0, m, u)
    for x in range(2): xread1(0, x, 0)
    for m in range(3):
        for u in range(2): wread1(1, m, u)
    for s_ in range(1, 4):
        for x in range(2): xread1(0, x, s_)
    initq = init_list()
    NT = 29 if opt.tailopt else 32
    for t in range(NT):
        lc, s_ = t >> 2, t & 3
        if opt.stamps == 2 and t in (4, 8, 12, 16, 20, 24, 28): stamp(f"t{t}")
        if s_ == 2 and lc <= 6:
            a.lgall()
            e("s_barrier")
        a.lgwait(f"wf{t}")
        a.lgwait(f"xr{lc}_{s_}")
        R = [(t + 2, m, u) for m in range(3) for u in range(2)] if t + 2 < 32 else []
        X = [(lc + 1, x, 2 * (s_ - 2) + k) for k in range(2) for x in range(2)] if (s_ >= 2 and lc <= 6) else []
        C = (lambda r: "0") if t == 0 else (lambda r: r)
        xa, xb = XFr(lc, 0, s_), XFr(lc, 1, s_)
        def ini(n):
            if t >= 28:
                for _ in range(n):
                    if initq: e(initq.pop(0))
        mfma(AK(0), WFr(t, 0), xa, C(AK(0)))
        for r in R[0:2]: wread1(*r)
        ini(3)
        mfma(AK(1), WFr(t, 0), xb, C(AK(1)))
        for r in R[2:4]: wread1(*r)
        ini(3)
        mfma(AV(0), xa, WFr(t, 1), C(AV(0)))
        for r in R[4:6]: wread1(*r)
        ini(3)
        mfma(AV(1), xb, WFr(t, 1), C(AV(1)))
        for x in X[0:2]: xread1(*x)
        ini(3)
        mfma(AQ(0), WFr(t, 2), xa, C(AQ(0)))
        for x in X[2:4]: xread1(*x)
        ini(3)
        mfma(AQ(1), WFr(t, 2), xb, C(AQ(1)))
        ini(3)
    if not opt.tailopt:
        while initq: e(initq.pop(0))
    e(f"s_lshl_b32 s{sKVO}, s{sBH}, 6")
    e(f"s_lshl_b32 s{sT2}, s{sC}, 3")
    e(f"s_add_u32 s{sKVO}, s{sKVO}, s{sT2}")
    e(f"s_lshl_b32 s{sT2}, s{sW}, 1")
    e(f"s_add_u32 s{sKVO}, s{sKVO}, s{sT2}")
    e(f"s_lshl_b32 s{sKVO}, s{sKVO}, 12")
    e(f"s_add_u32 s{sKVO}, s{sKVO}, {WS_KV}")
    e(f"s_add_u32 s{sT1}, s{sKVO}, 4096")
    e(f"v_add_u32 v{vK}, s{SXB}, v{vL16}")
    cq = 0.25 * math.log2(math.e)
    e(f"s_mov_b32 s{sT2}, {hex(f32bits(cq))}")
    def k_epi(x, T):
        so = sKVO if x == 0 else sT1
        L = [("e", cvt(T + i, AK(x) + 2 * i, AK(x) + 2 * i + 1)) for i in range(8)]
        L += [("vm", f"buffer_store_dwordx4 {vr(T+4*i,4)}, v{vL16}, {srd(S_WS)}, s{so} offen offset:{i*1024} sc1") for i in range(2)]
        L += [("lg", f"ds_write_b128 v{vK}, {vr(T+4*i,4)} offset:{x*REG+i*1024}") for i in range(2)]
        return L
    def v_epi(x, T):
        so = sKVO if x == 0 else sT1
        L = [("e", cvt(T + i, AV(x) + 2 * i, AV(x) + 2 * i + 1)) for i in range(8)]
        L += [("vm", f"buffer_store_dwordx4 {vr(T+4*i,4)}, v{vL16}, {srd(S_WS)}, s{so} offen offset:{(2+i)*1024} sc1") for i in range(2)]
        L += [("lg", f"ds_write_b128 v{vK}, {vr(T+4*i,4)} offset:{x*REG+(2+i)*1024}") for i in range(2)]
        return L
    def q_epi(x, T):
        L = [("e", f"v_mul_f32 v{AQ(x)+i}, s{sT2}, v{AQ(x)+i}") for i in range(16)]
        L += [("e", cvt(T + i, AQ(x) + 2 * i, AQ(x) + 2 * i + 1)) for i in range(8)]
        L += [("lg", f"ds_write_b128 v{vK}, {vr(T+4*h,4)} offset:{x*REG+8192+h*1024}") for h in range(2)]
        return L
    def emit(items):
        for k, l in items:
            if k == "e": e(l)
            elif k == "vm": a.vmop(l, "kvs")
            else: a.lgop(l, "kvw")
    if opt.tailopt:
        for m in range(3):
            for u in range(2): wread1(31, m, u)
        xs = {t: (XFr(7, 0, t & 3), XFr(7, 1, t & 3)) for t in (29, 30, 31)}
        a.lgwait("wf30")
        for t in (29, 30):
            for x in range(2):
                mfma(AK(x), WFr(t, 0), xs[t][x], AK(x))
                for _ in range(8):
                    if initq: e(initq.pop(0))
        a.lgwait("wf31")
        for x in range(2):
            mfma(AK(x), WFr(31, 0), xs[31][x], AK(x))
            for _ in range(8):
                if initq: e(initq.pop(0))
        while initq: e(initq.pop(0))
        vm_ = [(x, t) for t in (29, 30, 31) for x in range(2)]
        ke = k_epi(0, TKA) + k_epi(1, TKB)
        for n, (x, t) in enumerate(vm_):
            mfma(AV(x), xs[t][x], WFr(t, 1), AV(x))
            if n == 1: e("s_nop 7"); e("s_nop 1")
            if n >= 2: emit(ke[:5]); del ke[:5]
        ve = v_epi(0, TVA) + v_epi(1, TVB)
        qm_ = [(x, t) for t in (29, 30, 31) for x in range(2)]
        for n, (x, t) in enumerate(qm_):
            mfma(AQ(x), WFr(t, 2), xs[t][x], AQ(x))
            if ke: emit(ke[:6]); del ke[:6]
            elif n >= 2: emit(ve[:6]); del ve[:6]
        emit(ke)
        stamp("gemm done")
        e("s_nop 3")
        emit(ve)
        e("s_nop 7")
        emit(q_epi(0, TQA)); emit(q_epi(1, TQB))
    else:
        stamp("gemm done")
        e("s_nop 7")
        emit(k_epi(0, TKA)); emit(k_epi(1, TKB)); emit(v_epi(0, TVA)); emit(v_epi(1, TVB))
        emit(q_epi(0, TQA)); emit(q_epi(1, TQB))
    mfma = mfma_full
    e(f"s_lshl_b32 s{sKVO}, s{sC}, 5")
    e(f"s_add_u32 s{sKVO}, s{sKVO}, s{sBH}")
    e(f"s_lshl_b32 s{sKVO}, s{sKVO}, 7")
    e(f"s_lshl_b32 s{sT3x}, s{sW}, 3")
    e(f"s_add_u32 s{sKVO}, s{sKVO}, s{sT3x}")
    e(f"s_add_u32 s{sKVO}, s{sKVO}, {WS_KVF}")
    if not opt.lfirst: e("s_branch L_B1")
    i_load = len(a.lines)

    a.lab("L_LOADER")
    a.vm = []; a.lg = []
    sU, SXB2, SWG = sT5, sT4, sH
    e(f"s_sub_u32 s{sU}, s{sW}, 4")
    e(f"v_lshrrev_b32 v13, 2, v0")
    e(f"v_mul_u32_u24 v13, 3072, v13")
    e(f"v_and_b32 v15, 3, v0")
    e(f"v_lshl_add_u32 v13, v15, 4, v13")
    e(f"s_lshl_b32 s{sT1}, s{sHG}, 6")
    e(f"v_add_u32 v{vWO}, s{sT1}, v13")
    e(f"v_lshrrev_b32 v13, 3, v0")
    e(f"v_lshlrev_b32 v13, 10, v13")
    e(f"s_lshl_b32 s{sT1}, s{sC}, 3")
    e(f"s_lshl_b32 s{sT2}, s{sU}, 1")
    e(f"s_add_u32 s{sT1}, s{sT1}, s{sT2}")
    e(f"s_lshl_b32 s{sT1}, s{sT1}, 15")
    e(f"v_add_u32 v13, s{sT1}, v13")
    e(f"v_lshrrev_b32 v15, 4, v0")
    e(f"v_xor_b32 v15, v15, v0")
    e(f"v_and_b32 v15, 7, v15")
    e(f"v_lshl_add_u32 v{vXO}, v15, 4, v13")
    e(f"v_xor_b32 v{vXO+1}, 64, v{vXO}")
    e(f"v_add_u32 v{vXO+2}, 14336, v{vXO}")
    e(f"v_add_u32 v{vXO+3}, 21504, v{vXO+1}")
    e(f"v_add_u32 v{vXO+1}, 7168, v{vXO+1}")
    e(f"s_and_b32 s{sT1}, s{sJ}, 3")
    e(f"s_add_u32 s{sT1}, s{sT1}, s{sN3}")
    if opt.rot == 2:
        e(f"s_and_b32 s{sT0}, s{sT1}, 1")
        e(f"s_lshl_b32 s{sT0}, s{sT0}, 2")
    elif opt.rot == 3:
        e(f"s_and_b32 s{sT0}, s{sJ}, 3")
        e(f"s_lshl_b32 s{sT0}, s{sT0}, 1")
        e(f"s_add_u32 s{sT0}, s{sT0}, s{sN3}")
        e(f"s_and_b32 s{sT0}, s{sT0}, 7")
    else:
        e(f"s_and_b32 s{sT0}, s{sT1}, {3 if opt.rot else 0}")
        e(f"s_lshl_b32 s{sT0}, s{sT0}, 1")
    e("s_waitcnt lgkmcnt(0)")
    mk_w()
    mk(S_X, 40, 41, 2097152)
    SWL, sXK, sWP = 40, 41, 42
    e(f"s_mul_i32 s{SXB2}, s{sU}, {2*REG}")
    e(f"s_mul_i32 s{SWG}, s{sU}, {16*3072}")
    e(f"s_lshl_b32 s{SWL}, s{sU}, 10")
    e(f"s_add_u32 s{SWL}, s{SWL}, {LDS_W}")
    e(f"s_lshl_b32 s{sXK}, s{sT0}, 7")
    MCOL = {0: 1, 1: 2, 2: 0}
    def wo_pf():
        e(f"s_and_b32 s{sT2}, s{sJ}, 15")
        e(f"s_lshl_b32 s{sT2}, s{sT2}, 15")
        e(f"s_lshl_b32 s{sT3x}, s{sU}, 13")
        e(f"s_add_u32 s{sT2}, s{sT2}, s{sT3x}")
        e(f"v_lshlrev_b32 v15, 6, v0")
        e(f"s_cmp_lt_u32 s{sJ}, 16")
        e("s_cbranch_scc1 L_WOPF_A")
        e(f"buffer_load_dword v213, v15, {srd(S_WOB)}, s{sT2} offen")
        e(f"s_add_u32 s{sT2}, s{sT2}, 4096")
        e(f"buffer_load_dword v214, v15, {srd(S_WOB)}, s{sT2} offen")
        e("s_branch L_WOPF_E")
        a.lab("L_WOPF_A")
        e(f"buffer_load_dword v213, v15, {srd(S_WOA)}, s{sT2} offen")
        e(f"s_add_u32 s{sT2}, s{sT2}, 4096")
        e(f"buffer_load_dword v214, v15, {srd(S_WOA)}, s{sT2} offen")
        a.lab("L_WOPF_E")
        a.vm += ["wopf", "wopf"]
    def issue(lc):
        if lc > 0:
            e(f"s_add_u32 s{sXK}, s{sXK}, 128")
            e(f"s_and_b32 s{sXK}, s{sXK}, 1023")
        e(f"s_mul_i32 s{sWP}, s{sXK}, 1536")
        e(f"s_add_u32 s{sWP}, s{sWP}, s{SWG}")
        for m in range(3):
            e(f"s_add_u32 m0, s{SWL}, {(lc%3)*WSLOT + m*4096}")
            e(f"s_add_u32 s{sT3x}, s{sWP}, {MCOL[m]*1024}")
            a.vmop(f"buffer_load_dwordx4 v{vWO}, {srd(S_W)}, s{sT3x} offen lds", f"c{lc}")
        for b in range(2):
            e(f"s_add_u32 m0, s{SXB2}, {b*REG + (lc%3)*4096}")
            e(f"s_add_u32 s{sT3x}, s{sXK}, {b*32768}")
            for i in range(4):
                a.vmop(f"buffer_load_dwordx4 v{vXO+i}, {srd(S_X)}, s{sT3x} offen offset:{i*1024} lds", f"c{lc}")
    def tlb_warm():
        e(f"s_cmp_eq_u32 s{sU}, 0"); e("s_cbranch_scc0 L_TW1")
        e(f"s_lshl_b32 s{sT2}, s{sBH}, 6"); e(f"s_lshl_b32 s{sT3x}, s{sC}, 3"); e(f"s_add_u32 s{sT2}, s{sT2}, s{sT3x}")
        e(f"s_lshl_b32 s{sT2}, s{sT2}, 12"); e(f"s_add_u32 s{sT2}, s{sT2}, {WS_KV}")
        e(f"v_mov_b32 v13, {WS_OF}")
        e(f"v_writelane_b32 v13, s{sT2}, 1")
        e(f"s_lshl_b32 s{sT2}, s{sC}, 19"); e(f"s_add_u32 s{sT2}, s{sT2}, {WS_O}")
        e(f"v_writelane_b32 v13, s{sT2}, 2")
        e(f"s_lshr_b32 s{sT2}, s{sT3}, 2"); e(f"s_lshl_b32 s{sT2}, s{sT2}, 19"); e(f"s_add_u32 s{sT2}, s{sT2}, {WS_O}")
        e(f"v_writelane_b32 v13, s{sT2}, 3")
        e("s_mov_b64 exec, 15")
        e(f"buffer_load_dword v215, v13, {srd(S_WS)}, 0 offen sc1")
        e(f"buffer_load_dword v214, v13, {srd(S_WS)}, 0 offen offset:128 sc1")
        e("s_mov_b64 exec, -1")
        e("s_branch L_TWE")
        a.lab("L_TW1")
        e(f"s_cmp_eq_u32 s{sU}, 1"); e("s_cbranch_scc0 L_TW2")
        e(f"s_lshr_b32 s{sT2}, s{sT3}, 2"); e(f"s_lshl_b32 s{sT2}, s{sT2}, 18")
        e(f"v_mov_b32 v13, 0")
        e("s_mov_b64 exec, 1")
        e(f"buffer_load_dword v215, v13, {srd(S_OUT)}, s{sT2} offen")
        e(f"buffer_load_dword v214, v13, {srd(S_DBG)}, 0 offen sc1")
        e("s_mov_b64 exec, -1")
        e("s_branch L_TWE")
        a.lab("L_TW2")
        e(f"s_cmp_eq_u32 s{sU}, 2"); e("s_cbranch_scc0 L_TW3")
        e(f"v_mov_b32 v13, 0")
        e("s_mov_b64 exec, 1")
        e(f"buffer_load_dword v215, v13, {srd(S_WOA)}, 0 offen")
        e(f"buffer_load_dword v214, v13, {srd(S_WOB)}, 0 offen")
        e("s_mov_b64 exec, -1")
        e("s_branch L_TWE")
        a.lab("L_TW3")
        e(f"v_mov_b32 v13, 0")
        e("s_mov_b64 exec, 1")
        e(f"buffer_load_dword v215, v13, {srd(S_GW)}, 0 offen")
        e(f"buffer_load_dword v214, v13, {srd(S_GW)}, 0 offen offset:128")
        e("s_mov_b64 exec, -1")
        a.lab("L_TWE")
        a.vm += ["warm", "warm"]
    issue(0)
    issue(1)
    mk_rest()
    if opt.warm == 2: tlb_warm()
    e(f"s_or_b32 s{sT1}, s2, s{sU}")
    e(f"s_cmp_lg_u32 s{sT1}, 0")
    e("s_cbranch_scc1 L_NONCE_SKIP0")
    e(f"v_mov_b32 v13, 0")
    e(f"buffer_load_dword v14, v13, {srd(S_WS)}, 0 offen sc1")
    a.lab("L_NONCE_SKIP0")
    stamp("issued")
    a.vmwait("c0")
    e("s_barrier")
    stamp("first data")
    issue(2)
    if opt.warm == 3: tlb_warm()
    if opt.warm in (5, 6, 7):
        if opt.warm in (6, 7): e("s_branch L_F5_2")
        e(f"s_cmp_eq_u32 s{sU}, 0"); e("s_cbranch_scc0 L_F5_1")
        e(f"s_lshl_b32 s{sT2}, s{sC}, 5"); e(f"s_lshr_b32 s{sT3x}, s{sBH}, 3"); e(f"s_add_u32 s{sT2}, s{sT2}, s{sT3x}")
        e(f"s_lshl_b32 s{sT2}, s{sT2}, 7"); e(f"s_add_u32 s{sT2}, s{sT2}, {WS_OF}")
        e(f"v_and_b32 v13, 7, v0"); e(f"v_lshlrev_b32 v13, 9, v13")
        e("s_mov_b64 exec, 0xff")
        e(f"buffer_load_dword v215, v13, {srd(S_WS)}, s{sT2} offen sc1")
        e("s_branch L_F5_E")
        a.lab("L_F5_1")
        e(f"s_cmp_eq_u32 s{sU}, 1"); e("s_cbranch_scc0 L_F5_2")
        e(f"s_lshr_b32 s{sT2}, s{sT3}, 2"); e(f"s_lshl_b32 s{sT2}, s{sT2}, 3"); e(f"s_and_b32 s{sT3x}, s{sT3}, 3")
        e(f"s_add_u32 s{sT0}, s{sT2}, s{sT3x}"); e(f"s_sub_u32 s{sT3x}, 7, s{sT3x}"); e(f"s_add_u32 s{sT1}, s{sT2}, s{sT3x}")
        e(f"s_lshl_b32 s{sT0}, s{sT0}, 9"); e(f"s_lshl_b32 s{sT1}, s{sT1}, 9"); e(f"s_sub_u32 s{sT1}, s{sT1}, s{sT0}")
        e(f"s_sub_u32 s{sT1}, s{sT1}, 512"); e(f"s_add_u32 s{sT0}, s{sT0}, {WS_OF}")
        e(f"v_and_b32 v13, 7, v0"); e(f"v_lshlrev_b32 v13, 7, v13"); e(f"v_bfe_u32 v15, v0, 2, 1"); e(f"v_mul_lo_u32 v15, v15, s{sT1}"); e(f"v_add_u32 v13, v13, v15")
        e("s_mov_b64 exec, 0xff")
        e(f"buffer_load_dword v215, v13, {srd(S_WS)}, s{sT0} offen sc1")
        e("s_branch L_F5_E")
        a.lab("L_F5_2")
        if opt.gwpf:
            e(f"s_cmp_eq_u32 s{sU}, 3"); e("s_cbranch_scc0 L_F5_3")
            e(f"v_and_b32 v13, 7, v0"); e(f"v_lshlrev_b32 v13, 7, v13")
            e("s_mov_b64 exec, 0xff")
            e(f"buffer_load_dword v215, v13, {srd(S_GW)}, 0 offen")
            e("s_branch L_F5_E")
            a.lab("L_F5_3")
        e(f"s_lshl_b32 s{sT2}, s{sC}, 5"); e(f"s_add_u32 s{sT2}, s{sT2}, s{sBH}"); e(f"s_lshl_b32 s{sT2}, s{sT2}, 7"); e(f"s_add_u32 s{sT2}, s{sT2}, {WS_KVF - 4096}")
        e(f"v_and_b32 v13, 1, v0"); e(f"v_lshlrev_b32 v13, 12, v13")
        e("s_mov_b64 exec, 3")
        e(f"buffer_load_dword v215, v13, {srd(S_WS)}, s{sT2} offen sc1")
        a.lab("L_F5_E")
        e("s_mov_b64 exec, -1")
        a.vm += ["warm"]
    e(f"s_or_b32 s{sT1}, s2, s{sU}")
    e(f"s_cmp_lg_u32 s{sT1}, 0")
    e("s_cbranch_scc1 L_NONCE_SKIP1")
    e("s_waitcnt vmcnt(11)")
    e(f"v_readfirstlane_b32 s{sT2}, v14")
    e(f"v_mov_b32 v13, 0")
    e("s_nop 3")
    e(f"s_add_u32 s{sT2}, s{sT2}, 1")
    e(f"s_max_u32 s{sT2}, s{sT2}, 1")
    e(f"v_mov_b32 v14, s{sT2}")
    e(f"buffer_store_dword v14, v13, {srd(S_DBG)}, 0 offen sc1")
    e(f"buffer_store_dword v14, v13, {srd(S_WS)}, 0 offen sc1")
    a.lab("L_NONCE_SKIP1")
    a.vmwait("c1")
    e("s_barrier")
    for j in range(6):
        if j + 3 <= 7: issue(j + 3)
        if j + 3 == 7:
            if opt.wopf == 1: wo_pf()
            if opt.warm == 1:
                lab = "L_WARM"
                e(f"s_cmp_eq_u32 s{sU}, 0"); e(f"s_cbranch_scc0 {lab}1")
                e(f"s_lshl_b32 s{sT2}, s{sC}, 5"); e(f"s_lshr_b32 s{sT3x}, s{sBH}, 3"); e(f"s_add_u32 s{sT2}, s{sT2}, s{sT3x}")
                e(f"s_lshl_b32 s{sT2}, s{sT2}, 10"); e(f"s_add_u32 s{sT2}, s{sT2}, {WS_OF}")
                e(f"v_lshrrev_b32 v13, 3, v0"); e(f"v_lshlrev_b32 v13, 12, v13"); e(f"v_and_b32 v15, 7, v0"); e(f"v_lshl_add_u32 v13, v15, 7, v13")
                e(f"buffer_load_dword v215, v13, {srd(S_WS)}, s{sT2} offen sc1")
                e(f"s_branch {lab}E")
                a.lab(f"{lab}1")
                e(f"s_cmp_eq_u32 s{sU}, 1"); e(f"s_cbranch_scc0 {lab}2")
                e(f"s_lshl_b32 s{sT2}, s{sC}, 4"); e(f"s_add_u32 s{sT2}, s{sT2}, s{sBR}"); e(f"s_lshl_b32 s{sT2}, s{sT2}, 5")
                e(f"s_lshl_b32 s{sT3x}, s{sHG}, 1"); e(f"s_add_u32 s{sT2}, s{sT2}, s{sT3x}"); e(f"s_lshl_b32 s{sT2}, s{sT2}, 10")
                e(f"s_add_u32 s{sT2}, s{sT2}, {WS_O}")
                e(f"v_lshrrev_b32 v13, 3, v0"); e(f"v_lshlrev_b32 v13, 16, v13"); e(f"v_and_b32 v15, 7, v0"); e(f"v_lshl_add_u32 v13, v15, 8, v13")
                e(f"buffer_load_dword v215, v13, {srd(S_WS)}, s{sT2} offen sc1")
                e(f"s_branch {lab}E")
                a.lab(f"{lab}2")
                e(f"s_cmp_eq_u32 s{sU}, 2"); e(f"s_cbranch_scc0 {lab}3")
                e(f"s_lshl_b32 s{sT2}, s{sC}, 5"); e(f"s_add_u32 s{sT2}, s{sT2}, s{sBH}"); e(f"s_lshl_b32 s{sT2}, s{sT2}, 7")
                e(f"s_add_u32 s{sT2}, s{sT2}, {WS_KVF}")
                e(f"v_mov_b32 v13, 0")
                e(f"buffer_load_dword v215, v13, {srd(S_WS)}, s{sT2} offen sc1")
                e(f"s_branch {lab}E")
                a.lab(f"{lab}3")
                e(f"s_lshr_b32 s{sT2}, s{sT3}, 2"); e(f"s_lshl_b32 s{sT2}, s{sT2}, 18"); e(f"s_lshl_b32 s{sT3x}, s{sN3}, 7"); e(f"s_add_u32 s{sT2}, s{sT2}, s{sT3x}")
                e(f"v_lshlrev_b32 v13, 12, v0")
                e(f"buffer_load_dword v215, v13, {srd(S_OUT)}, s{sT2} offen")
                a.lab(f"{lab}E")
                a.vm += ["warm"]
        if j + 2 <= 7: a.vmwait(f"c{j+2}")
        e("s_barrier")
    stamp("gemm done")
    if opt.wopf == 2: wo_pf()
    for l in init_list(): e(l)
    for i in range(32): e(f"v_mov_b32 v{OA+i}, 0")
    if opt.mke:
        e(f"s_mov_b32 s{sT2}, 0xff800000")
        for r in range(16): e(f"v_xor_b32 v{MKE+r}, s{sT2}, v{MK+r}")
    e(f"s_cmp_lg_u32 s{sU}, 0")
    e("s_cbranch_scc1 L_B1")
    e(f"s_mov_b32 s{sSPIN}, 0")
    e(f"v_mov_b32 v15, 0")
    a.lab("L_TAG_LOOP")
    e(f"buffer_load_dword v14, v15, {srd(S_DBG)}, 0 offen sc1")
    e(f"s_add_u32 s{sSPIN}, s{sSPIN}, 1")
    e("s_waitcnt vmcnt(0)")
    e(f"v_readfirstlane_b32 s{sTAG}, v14")
    e("s_nop 3")
    e(f"s_cmp_lg_u32 s{sTAG}, 0")
    e("s_cbranch_scc1 L_TAG_OK")
    e(f"s_cmp_le_u32 s{sSPIN}, {opt.spin}")
    e("s_cbranch_scc1 L_TAG_LOOP")
    a.lab("L_TAG_OK")
    e(f"v_mov_b32 v15, {LDS_TAG}")
    e(f"ds_write_b32 v15, v14")
    if opt.lfirst:
        e("s_branch L_B1")
        comp = a.lines[i_comp:i_load]; load = a.lines[i_load:]
        a.lines = a.lines[:i_comp] + load + comp
    a.lab("L_B1")
    a.vm = []; a.lg = []
    e("s_waitcnt lgkmcnt(0)")
    e("s_barrier")
    stamp("B1")
    e(f"v_mov_b32 v15, {LDS_TAG}")
    e(f"ds_read_b32 v14, v15")
    e(f"s_mul_i32 s{sT2}, s{sTAU}, {REG}")
    e(f"v_add_u32 v13, s{sT2}, v{vL16}")
    for h in range(2):
        e(f"ds_read_b128 {vr(QF+4*h,4)}, v13 offset:{8192+h*1024}")

    def kread(h, extra=0): e(f"ds_read_b128 {vr(KF+4*h,4)}, v{vK} offset:{h*1024+extra}")
    def vreads(h, extra=0):
        e(f"s_mov_b64 exec, s[{sVM}:{sVM+1}]")
        for s in range(2):
            e(f"ds_read_b128 {vr(VF+8*h+4*s,4)}, v{vK} offset:{2048+s*1024+h*256+extra}")
        e("s_mov_b64 exec, -1")
    def seg(h, prev, nxt, kx=0, vx=0):
        o = 1 - h
        S = SS + 16 * h; O = OA + 16 * h
        ex = lambda i: e(f"v_exp_f32 v{S+i}, v{S+i}")
        ex(0); ex(1)
        if prev: mfma(OA + 16 * o, VF + 8 * o + 4, PP + 4, OA + 16 * o)
        ex(2); ex(3)
        if nxt: vreads(o, vx)
        ex(4); ex(5)
        if nxt:
            mfma(SS + 16 * o, KF + 4 * o, QF + 4 * o, "0")
            kread(o, kx)
        ex(6); ex(7)
        for i in range(4): e(cvt(PP + i, S + 2 * i, S + 2 * i + 1))
        ex(8)
        e(f"s_waitcnt lgkmcnt({3 if nxt else 0})")
        ex(9)
        mfma(O, VF + 8 * h, PP, O)
        for i in range(10, 16): ex(i)
        for i in range(4, 8): e(cvt(PP + i, S + 2 * i, S + 2 * i + 1))
    def part(name, first_s, rest_s, cnt_s, hook=None):
        MKx = MK if name == "OWN" or not opt.mke else MKE
        a.c(f"---- attention part {name} ----")
        e(f"v_add_u32 v{vK}, s{first_s}, v{vL16}")
        kread(0); kread(1)
        e(f"s_sub_u32 s{sT2}, s{rest_s}, s{first_s}")
        e(f"s_mov_b32 s{sCNT}, s{cnt_s}")
        e("s_waitcnt lgkmcnt(0)")
        if name == "OWN": e(f"v_readfirstlane_b32 s{sTAG}, v14")
        mfma(SS, KF, QF, MKx)
        mfma(SS + 16, KF + 4, QF + 4, MKx)
        vreads(0); vreads(1)
        e(f"v_add_u32 v{vK}, s{sT2}, v{vK}")
        kread(0); kread(1)
        e("s_waitcnt lgkmcnt(2)")
        seg(0, prev=False, nxt=False)
        if hook: hook()
        e(f"s_cmp_eq_u32 s{sCNT}, 0")
        e(f"s_cbranch_scc1 L_{name}_LAST")
        e(f"s_sub_u32 s{sCNT}, s{sCNT}, 1")
        a.lab(f"L_{name}_LOOP")
        seg(1, prev=True, nxt=True, kx=REG, vx=0)
        seg(0, prev=True, nxt=True, kx=REG, vx=0)
        e(f"v_add_u32 v{vK}, {REG}, v{vK}")
        e(f"s_sub_u32 s{sCNT}, s{sCNT}, 1")
        e(f"s_cbranch_scc0 L_{name}_LOOP")
        a.lab(f"L_{name}_LAST")
        seg(1, prev=True, nxt=False)
        e("s_nop 1")
        mfma(OA + 16, VF + 12, PP + 4, OA + 16)
    def kvflag():
        e("s_waitcnt vmcnt(0)")
        e(f"v_lshlrev_b32 v13, 2, v0")
        e(f"v_mov_b32 v14, s{sTAG}")
        e("s_mov_b64 exec, 3")
        e(f"buffer_store_dword v14, v13, {srd(S_WS)}, s{sKVO} offen sc1")
        e("s_mov_b64 exec, -1")
    a.vm = []
    e(f"s_mul_i32 s{sT0}, s{sTAU}, {REG}")
    e(f"s_mov_b32 s{sT1}, 0")
    def hook():
        e(f"s_cmp_ge_u32 s{sW}, 4")
        e("s_cbranch_scc1 L_KVF_DONE")
        kvflag()
        a.lab("L_KVF_DONE")
    if opt.prio == 2:
        e(f"s_cmp_lt_u32 s{sW}, 4")
        e("s_cbranch_scc1 L_PRIO_SKIP")
        e("s_setprio 1")
        a.lab("L_PRIO_SKIP")
    part("OWN", sT0, sT1, sTAU, hook=hook)
    stamp("own done")
    def gate_loads():
        e(f"s_lshl_b32 s{sT2}, s{sTT3}, 15")
        e(f"s_lshl_b32 s{sT3x}, s{sQ}, 13")
        e(f"s_add_u32 s{sT2}, s{sT2}, s{sT3x}")
        e(f"buffer_load_dwordx4 {vr(GW,4)}, v{vL16}, {srd(S_GW)}, 0 offen")
        for i in range(8):
            e(f"buffer_load_dwordx4 {vr(GX+4*i,4)}, v{vL16}, {srd(S_X)}, s{sT2} offen offset:{(i&3)*1024}")
            if i == 3: e(f"s_add_u32 s{sT2}, s{sT2}, 4096")
    def prefill():
        if not opt.sent: return
        for i in range(4): e(f"v_mov_b32 v{128+i}, -1")
        e(f"s_lshl_b32 s{sT2}, s{sTT}, 1")
        e(f"s_add_u32 s{sT2}, s{sT2}, s{sBR}")
        e(f"s_lshl_b32 s{sT2}, s{sT2}, 5")
        e(f"s_lshl_b32 s{sT3x}, s{sHG}, 1")
        e(f"s_add_u32 s{sT2}, s{sT2}, s{sT3x}")
        e(f"s_lshl_b32 s{sT2}, s{sT2}, 10")
        e(f"s_add_u32 s{sT2}, s{sT2}, {WS_O}")
        for h in range(2):
            e(f"buffer_store_dwordx4 v[128:131], v{vL16}, {srd(S_WS)}, s{sT2} offen offset:{h*1024} sc1")
    def wo_voff():
        e(f"v_lshrrev_b32 v13, 3, v0")
        e(f"v_lshlrev_b32 v13, 10, v13")
        e(f"v_bfe_u32 v15, v0, 4, 1")
        e(f"v_lshlrev_b32 v15, 2, v15")
        e(f"v_xor_b32 v15, v15, v0")
        e(f"v_and_b32 v15, 7, v15")
        e(f"v_lshl_add_u32 v14, v15, 4, v13")
    def wo_dma(S, heads, kh, ldsaddr):
        for i in heads:
            sg, cst = ldsaddr(i)
            for hf in range(2):
                e(f"s_add_u32 s{sT3x}, s{sT5}, {(256*kh + 16*i + 8*hf)*1024}")
                e(f"s_add_u32 m0, s{sg}, {cst + hf*1024}")
                e("s_nop 0")
                e(f"buffer_load_dwordx4 v14, {srd(S)}, s{sT3x} offen lds")
    def wo_lin(S, sg, sl, n):
        e(f"s_mov_b32 m0, s{sl}")
        e("s_nop 0")
        for i in range(n):
            e(f"buffer_load_dwordx4 v14, {srd(S)}, s{sg} offen lds")
            if i < n - 1:
                e(f"s_add_u32 m0, m0, 1024")
                e(f"s_add_u32 s{sg}, s{sg}, 8192")
    def wo_early():
        wo_voff()
        e(f"s_lshl_b32 s{sT5}, s{sN3}, 7")
        e(f"s_and_b32 s{sT0}, s{sTAU}, 1")
        e(f"s_lshl_b32 s{sT0}, s{sT0}, 18")
        e(f"s_add_u32 s{sT0}, s{sT0}, s{sT5}")
        e(f"s_lshl_b32 s{sT1}, s{sTAU}, 14")
        e(f"s_add_u32 s{sT1}, s{sT1}, {LDS_A0}")
        lab = f"L_WE_{opt._n}"; opt._n += 1
        e(f"s_cmp_ge_u32 s{sTAU}, 2")
        e(f"s_cbranch_scc1 {lab}_B")
        e(f"s_mov_b32 s{sT4}, s{sT0}")
        wo_lin(S_WOA, sT4, sT1, 16)
        e(f"s_branch {lab}_E")
        a.lab(f"{lab}_B")
        e(f"s_mov_b32 s{sT4}, s{sT0}")
        wo_lin(S_WOB, sT4, sT1, 16)
        a.lab(f"{lab}_E")
    def halo_poll_load():
        n = opt._n; opt._n += 1
        e(f"s_sub_u32 s{sT2}, s{sC}, 1")
        e(f"s_lshl_b32 s{sT3x}, s{sT2}, 5")
        e(f"s_add_u32 s{sT3x}, s{sT3x}, s{sBH}")
        e(f"s_lshl_b32 s{sT3x}, s{sT3x}, 7")
        e(f"s_lshl_b32 s{sT4}, s{sTAU}, 3")
        e(f"s_add_u32 s{sT3x}, s{sT3x}, s{sT4}")
        e(f"s_add_u32 s{sT3x}, s{sT3x}, {WS_KVF}")
        e(f"v_and_b32 v13, 1, v0")
        e(f"v_lshlrev_b32 v13, 2, v13")
        e(f"s_mov_b32 s{sSPIN}, 0")
        a.lab(f"L_KVF_LOOP{n}")
        e(f"buffer_load_dword v15, v13, {srd(S_WS)}, s{sT3x} offen sc1")
        e(f"s_add_u32 s{sSPIN}, s{sSPIN}, 1")
        e("s_waitcnt vmcnt(0)")
        e(f"v_cmp_ne_u32 vcc, s{sTAG}, v15")
        e(f"s_cmp_gt_u32 s{sSPIN}, {opt.spin}")
        e(f"s_cbranch_scc1 L_KVF_OK{n}")
        e(f"s_cbranch_vccnz L_KVF_LOOP{n}")
        a.lab(f"L_KVF_OK{n}")
        stamp("roleA")
        e(f"s_lshl_b32 s{sT3x}, s{sBH}, 6")
        e(f"s_lshl_b32 s{sT2}, s{sT2}, 3")
        e(f"s_add_u32 s{sT3x}, s{sT3x}, s{sT2}")
        e(f"s_lshl_b32 s{sT2}, s{sTAU}, 1")
        e(f"s_add_u32 s{sT3x}, s{sT3x}, s{sT2}")
        e(f"s_lshl_b32 s{sT3x}, s{sT3x}, 12")
        e(f"s_add_u32 s{sT3x}, s{sT3x}, {WS_KV}")
        for j in range(2):
            for i in range(4):
                e(f"buffer_load_dwordx4 {vr(HT+16*j+4*i,4)}, v{vL16}, {srd(S_WS)}, s{sT3x} offen offset:{i*1024} sc1")
            if j < 1: e(f"s_add_u32 s{sT3x}, s{sT3x}, 4096")
    def halo_write(younger):
        e(f"s_mul_i32 s{sT2}, s{sTAU}, {2*REG}")
        e(f"s_add_u32 s{sT2}, s{sT2}, 4096")
        e(f"v_add_u32 v13, s{sT2}, v{vL16}")
        for j in range(2):
            e(f"s_waitcnt vmcnt({younger+4-4*j})")
            for i in range(4):
                e(f"ds_write_b128 v13, {vr(HT+16*j+4*i,4)} offset:{j*REG+i*1024}")
    opt._n = 0
    NE = 16
    e(f"s_cmp_gt_u32 s{sTAU}, 3")
    e("s_cbranch_scc0 L_ROLE_LO")
    if opt.sent == 2: prefill()
    e("s_branch L_HALO_BAR")
    a.lab("L_ROLE_LO")
    if opt.mke:
        e(f"s_mov_b32 s{sT2}, 0xff800000")
        for r in range(16): e(f"v_xor_b32 v{MKE+r}, s{sT2}, v{MK+r}")
    e(f"s_cmp_eq_u32 s{sC}, 0")
    e("s_cbranch_scc1 L_ROLE_C0")
    e(f"s_cmp_gt_u32 s{sTAU}, 1")
    e("s_cbranch_scc1 L_ROLE_HI")
    wo_early()
    halo_poll_load()
    gate_loads()
    halo_write(9)
    e("s_waitcnt lgkmcnt(0)")
    stamp("roleB")
    e("s_branch L_HALO_BAR")
    a.lab("L_ROLE_HI")
    halo_poll_load()
    wo_early()
    gate_loads()
    halo_write(NE + 9)
    e("s_waitcnt vmcnt(9) lgkmcnt(0)")
    stamp("roleB")
    e("s_branch L_HALO_BAR")
    a.lab("L_ROLE_C0")
    wo_early()
    gate_loads()
    e("s_waitcnt vmcnt(9)")
    a.lab("L_HALO_BAR")
    if not opt.mke:
        e(f"s_mov_b32 s{sT2}, 0xff800000")
        for r in range(16): e(f"v_xor_b32 v{MK+r}, s{sT2}, v{MK+r}")
    e("s_barrier")
    stamp("B2")
    e(f"s_cmp_ge_u32 s{sTAU}, 4")
    e("s_cbranch_scc1 L_LATE_S")
    prefill()
    e("s_branch L_LATE_E")
    a.lab("L_LATE_S")
    if opt.warm in (4, 6, 7):
        assert not opt.rep
        e(f"s_cmp_eq_u32 s{sW}, 4"); e("s_cbranch_scc0 L_FW_E")
        e(f"s_lshl_b32 s{sT2}, s{sC}, 5"); e(f"s_lshr_b32 s{sT3x}, s{sBH}, 3"); e(f"s_add_u32 s{sT2}, s{sT2}, s{sT3x}")
        e(f"s_lshl_b32 s{sT2}, s{sT2}, 7"); e(f"s_add_u32 s{sT2}, s{sT2}, {WS_OF}")
        e(f"v_lshlrev_b32 v13, 9, v0"); e(f"v_add_u32 v13, s{sT2}, v13")
        e("s_mov_b64 exec, 0xff")
        e(f"buffer_load_dword v215, v13, {srd(S_WS)}, 0 offen sc1")
        e("s_mov_b64 exec, -1")
        e(f"s_lshr_b32 s{sT2}, s{sT3}, 2"); e(f"s_lshl_b32 s{sT2}, s{sT2}, 3"); e(f"s_and_b32 s{sT3x}, s{sT3}, 3")
        e(f"s_add_u32 s{sT0}, s{sT2}, s{sT3x}"); e(f"s_sub_u32 s{sT3x}, 7, s{sT3x}"); e(f"s_add_u32 s{sT1}, s{sT2}, s{sT3x}")
        e(f"s_lshl_b32 s{sT0}, s{sT0}, 9"); e(f"s_lshl_b32 s{sT1}, s{sT1}, 9")
        e(f"s_add_u32 s{sT0}, s{sT0}, {WS_OF}"); e(f"s_add_u32 s{sT1}, s{sT1}, {WS_OF}")
        e(f"v_lshlrev_b32 v13, 7, v0")
        e("s_mov_b64 exec, 15")
        e(f"buffer_load_dword v215, v13, {srd(S_WS)}, s{sT0} offen sc1")
        e(f"buffer_load_dword v214, v13, {srd(S_WS)}, s{sT1} offen sc1")
        e("s_mov_b64 exec, -1")
        a.lab("L_FW_E")
        if opt.warm == 7:
            e(f"s_cmp_eq_u32 s{sW}, 5"); e("s_cbranch_scc0 L_FW_F")
            e(f"s_lshr_b32 s{sT2}, s{sT3}, 2"); e(f"s_lshl_b32 s{sT2}, s{sT2}, 3"); e(f"s_and_b32 s{sT3x}, s{sT3}, 3")
            e(f"s_add_u32 s{sT0}, s{sT2}, s{sT3x}"); e(f"s_sub_u32 s{sT3x}, 7, s{sT3x}"); e(f"s_add_u32 s{sT1}, s{sT2}, s{sT3x}")
            e(f"s_sub_u32 s{sT1}, s{sT1}, s{sT0}"); e(f"s_sub_u32 s{sT1}, s{sT1}, 1"); e(f"s_lshl_b32 s{sT1}, s{sT1}, 15")
            e(f"s_lshl_b32 s{sT0}, s{sT0}, 15"); e(f"s_lshl_b32 s{sT3x}, s{sN3}, 7"); e(f"s_add_u32 s{sT0}, s{sT0}, s{sT3x}")
            e(f"v_lshlrev_b32 v13, 10, v0"); e(f"v_lshrrev_b32 v15, 5, v0"); e(f"v_mul_lo_u32 v15, v15, s{sT1}"); e(f"v_add_u32 v13, v13, v15")
            e(f"buffer_load_dword v215, v13, {srd(S_OUT)}, s{sT0} offen")
            a.lab("L_FW_F")
    wo_voff()
    e(f"s_sub_u32 s{sT2}, 7, s{sTAU}")
    e(f"s_lshl_b32 s{sT5}, s{sN3}, 7")
    e(f"s_and_b32 s{sT0}, s{sT2}, 1")
    e(f"s_lshl_b32 s{sT0}, s{sT0}, 18")
    e(f"s_add_u32 s{sT0}, s{sT0}, s{sT5}")
    e(f"s_add_u32 s{sT0}, s{sT0}, {128*1024}")
    e(f"s_mul_i32 s{sT1}, s{sT2}, {2*REG}")
    def late(S):
        for (reg, slot) in ((0, 8192), (1, 8192), (0, 0), (1, 0)):
            e(f"s_add_u32 s{sT3x}, s{sT1}, {reg*REG + slot}")
            wo_lin(S, sT0, sT3x, 4)
            e(f"s_add_u32 s{sT0}, s{sT0}, 8192")
    e(f"s_cmp_ge_u32 s{sT2}, 2")
    e("s_cbranch_scc1 L_LATE_B")
    late(S_WOA)
    e("s_branch L_LATE_G")
    a.lab("L_LATE_B")
    late(S_WOB)
    a.lab("L_LATE_G")
    gate_loads()
    if opt.prio: e("s_setprio 1")
    a.lab("L_LATE_E")
    e(f"s_cmp_eq_u32 s{sC}, 0")
    e("s_cbranch_scc1 L_P2_EPI")
    e(f"s_mul_i32 s{sT0}, s{sTAU}, {REG}")
    e(f"s_add_u32 s{sT0}, s{sT0}, 4096")
    e(f"s_add_u32 s{sT1}, s{sT0}, {REG}")
    e(f"s_sub_u32 s{sT4}, 7, s{sTAU}")
    part("HALO", sT0, sT1, sT4)
    a.lab("L_P2_EPI")
    stamp("attn done")
    lo, hi = f32bits(2.0 ** -64), f32bits(2.0 ** 64)
    e(f"s_mov_b32 s{sT0}, {hex(lo)}")
    e(f"s_mov_b32 s{sT1}, {hex(hi)}")
    e(f"s_lshl_b32 s{sKVO}, s{sTT}, 1")
    e(f"s_add_u32 s{sKVO}, s{sKVO}, s{sBR}")
    e(f"s_lshl_b32 s{sKVO}, s{sKVO}, 5")
    e(f"s_lshl_b32 s{sT3x}, s{sHG}, 1")
    e(f"s_add_u32 s{sKVO}, s{sKVO}, s{sT3x}")
    e(f"s_lshl_b32 s{sKVO}, s{sKVO}, 10")
    e(f"s_add_u32 s{sKVO}, s{sKVO}, {WS_O}")
    e(f"s_lshl_b32 s{sT2}, s{sTT}, 2")
    e(f"s_lshr_b32 s{sT3x}, s{sBH}, 3")
    e(f"s_add_u32 s{sT2}, s{sT2}, s{sT3x}")
    e(f"s_lshl_b32 s{sT2}, s{sT2}, {10 if opt.rep else 7}")
    e(f"s_and_b32 s{sT3x}, s{sBH}, 7")
    e(f"s_lshl_b32 s{sT3x}, s{sT3x}, 2")
    e(f"s_add_u32 s{sT2}, s{sT2}, s{sT3x}")
    e(f"s_add_u32 s{sOFA}, s{sT2}, {WS_OF}")
    e("s_nop 2")
    if opt.fallback:
        for h in range(2):
            O = OA + 16 * h
            e(f"v_mul_f32 v13, 0, v{O}")
            for i in range(1, 8): e(f"v_fmac_f32 v13, 0, v{O+i}")
            e(f"v_cmp_nle_f32 vcc, s{sT0}, v{O+8}")
            e(f"s_mov_b64 s[74:75], vcc")
            e(f"v_cmp_nge_f32 vcc, s{sT1}, v{O+8}")
            e("s_or_b64 s[74:75], s[74:75], vcc")
            e(f"v_cmp_u_f32 vcc, v13, v13")
            e("s_or_b64 s[74:75], s[74:75], vcc")
            e("s_cmp_lg_u64 s[74:75], 0")
            e(f"s_cselect_b32 s{sT2}, {1<<h}, 0")
            e(f"s_or_b32 s{sFAIL}, s{sFAIL}, s{sT2}")
        if opt.forcefb: e(f"s_or_b32 s{sFAIL}, s{sFAIL}, {opt.forcefb}")
        e(f"s_cmp_lg_u32 s{sFAIL}, 0")
        e("s_cbranch_scc1 L_FB_ENTRY")
        a.lab("L_NOFB")
    else:
        e("s_nop 7")
    if opt.sent:
        e(f"s_cmp_ge_u32 s{sW}, 4")
        e("s_cbranch_scc1 L_NOSENT0")
        e("s_waitcnt vmcnt(0)")
        e("s_branch L_NOSENT")
        a.lab("L_NOSENT0")
        if opt.sent == 2: e("s_waitcnt vmcnt(25)")
        a.lab("L_NOSENT")
    for h in range(2):
        e(f"v_rcp_f32 v{13+h}, v{OA+16*h+8}")
    for h in range(2):
        O = OA + 16 * h
        for i in range(8): e(f"v_mul_f32 v{O+i}, v{O+i}, v{13+h}")
        for i in range(4): e(cvt(O + 8 + i, O + 2 * i, O + 2 * i + 1))
        if opt.sent:
            for i in range(4): e(f"v_min_u32 v{O+8+i}, -2, v{O+8+i}")
        e(f"buffer_store_dwordx4 {vr(O+8,4)}, v{vL16}, {srd(S_WS)}, s{sKVO} offen offset:{h*1024} sc1")
    if opt.sent:
        if opt.sent != 2:
            e(f"s_cmp_ge_u32 s{sW}, 4")
            e("s_cbranch_scc1 L_NOHINT")
        e(f"v_lshlrev_b32 v13, 7, v0")
        e(f"v_mov_b32 v14, s{sTAG}")
        e(f"s_mov_b64 exec, {'0xff' if opt.rep else 1}")
        e(f"buffer_store_dword v14, v13, {srd(S_WS)}, s{sOFA} offen sc1")
        e("s_mov_b64 exec, -1")
        stamp("O published")
        a.lab("L_NOHINT")
    WF3, OF3, AC3 = 16, 144, 208
    e(f"v_lshrrev_b32 v1, 5, v0")
    e(f"v_lshlrev_b32 v1, 9, v1")
    e(f"v_bfe_u32 v2, v0, 2, 2")
    e(f"v_lshl_add_u32 v1, v2, 7, v1")
    e(f"v_bfe_u32 v2, v0, 3, 1")
    e(f"v_lshl_add_u32 v1, v2, 6, v1")
    e(f"v_bfe_u32 v2, v0, 4, 1")
    e(f"v_lshl_add_u32 v1, v2, 5, v1")
    e(f"v_and_b32 v2, 3, v0")
    e(f"v_lshl_add_u32 v1, v2, 3, v1")
    e(f"s_lshl_b32 s{sT2}, s{sQ}, 14")
    e(f"s_add_u32 s{sT2}, s{sT2}, {LDS_A0}")
    e(f"s_mul_i32 s{sT3x}, s{sQ}, {2*REG}")
    e(f"v_xor_b32 v2, 64, v1")
    vA = [244, 245]; vB = [246, 247]
    e(f"v_add_u32 v{vA[0]}, s{sT2}, v1")
    e(f"v_add_u32 v{vA[1]}, s{sT2}, v2")
    e(f"v_add_u32 v{vB[0]}, s{sT3x}, v1")
    e(f"v_add_u32 v{vB[1]}, s{sT3x}, v2")
    def trw(i):
        for ct in range(2):
            for u in range(2):
                if i < 8: ad, off = vA[ct], i * 2048
                elif i < 12: ad, off = vB[ct], ((i - 8) >> 1) * REG + 8192 + ((i - 8) & 1) * 2048
                else: ad, off = vB[ct], ((i - 12) >> 1) * REG + ((i - 12) & 1) * 2048
                e(f"ds_read_b64_tr_b16 {vr(WF3+8*i+4*ct+2*u,2)}, v{ad} offset:{off+u*1024}")
    for i in range(8): trw(i)
    e(f"s_lshl_b32 s{sT1}, s{sTT3}, 2")
    e(f"s_add_u32 s{sT1}, s{sT1}, s{sQ}")
    if opt.rep:
        e(f"s_lshl_b32 s{sT1}, s{sT1}, 3")
        e(f"s_add_u32 s{sT1}, s{sT1}, s{sN3}")
    e(f"s_lshl_b32 s{sT1}, s{sT1}, 7")
    e(f"s_add_u32 s{sT1}, s{sT1}, {WS_OF}")
    e(f"s_lshl_b32 s{sT0}, s{sTT3}, 1")
    e(f"s_add_u32 s{sT0}, s{sT0}, s{sB3}")
    e(f"s_lshl_b32 s{sT0}, s{sT0}, 5")
    e(f"s_lshl_b32 s{sT3x}, s{sKH}, 4")
    e(f"s_add_u32 s{sT0}, s{sT0}, s{sT3x}")
    e(f"s_lshl_b32 s{sT0}, s{sT0}, 10")
    e(f"s_add_u32 s{sT0}, s{sT0}, {WS_O}")
    def oflag(wait=True):
        e(f"v_lshlrev_b32 v13, 7, v0")
        e(f"v_mov_b32 v14, s{sTAG}")
        if wait: e("s_waitcnt vmcnt(0)")
        e(f"s_mov_b64 exec, {'0xff' if opt.rep else 1}")
        e(f"buffer_store_dword v14, v13, {srd(S_WS)}, s{sOFA} offen sc1")
        e("s_mov_b64 exec, -1")
        stamp("O published")
    GR = 244 - 4 - 4
    def gate():
        for i in range(8): e(f"v_mov_b32 v{GA+i}, 0")
        for d in range(4):
            for i in range(8):
                e(f"v_dot2_f32_bf16 v{GA+i}, v{GX+4*i+d}, v{GW+d}, v{GA+i}")
        e("s_nop 4")
        for i in range(4): e(f"v_permlane32_swap_b32 v{GA+i}, v{GA+4+i}")
        for i in range(4): e(f"v_add_f32 v{GA+i}, v{GA+i}, v{GA+4+i}")
        e("s_nop 1")
        for i in range(2): e(f"v_permlane16_swap_b32 v{GA+i}, v{GA+2+i}")
        for i in range(2): e(f"v_add_f32 v{GA+i}, v{GA+i}, v{GA+2+i}")
        e("s_nop 1")
        for i in range(2): e(f"v_add_f32_dpp v{GA+i}, v{GA+i}, v{GA+i} row_ror:8 row_mask:0xf bank_mask:0xf")
        e("s_nop 1")
        e(f"v_mov_b32_dpp v{GA}, v{GA+1} quad_perm:[0,1,2,3] row_mask:0xf bank_mask:0xc")
        e("s_nop 1")
        e(f"v_add_f32_dpp v15, v{GA}, v{GA} quad_perm:[1,0,3,2] row_mask:0xf bank_mask:0xf")
        e("s_nop 1")
        e("v_add_f32_dpp v15, v15, v15 quad_perm:[2,3,0,1] row_mask:0xf bank_mask:0xf")
        e("s_nop 1")
        e("v_add_f32_dpp v15, v15, v15 row_half_mirror row_mask:0xf bank_mask:0xf")
        e("v_cvt_pk_bf16_f32 v15, v15, v15")
        e("v_and_b32 v15, 0xffff0000, v15")
        e(f"v_mul_f32 v15, {hex(f32bits(-math.log2(math.e)))}, v15")
        e("v_exp_f32 v15, v15")
        e("s_nop 0")
        e("v_add_f32 v15, 1.0, v15")
        e("v_rcp_f32 v15, v15")
        e("s_nop 0")
        e("v_cvt_pk_bf16_f32 v15, v15, v15")
        e(f"v_and_b32 v{GR}, 0xffff0000, v15")
        e(f"v_sub_f32 v15, 1.0, v{GR}")
        e("v_cvt_pk_bf16_f32 v15, v15, v15")
        e(f"v_and_b32 v{GR+1}, 0xffff0000, v15")
    def gate_write():
        e(f"v_lshrrev_b32 v15, 3, v0")
        e(f"s_lshl_b32 s{sT2}, s{sW}, 3")
        e(f"v_add_u32 v15, s{sT2}, v15")
        e(f"v_lshlrev_b32 v15, 2, v15")
        e(f"ds_write_b32 v15, v{GR} offset:{LDS_GATE}")
        e(f"ds_write_b32 v15, v{GR+1} offset:{LDS_GATE+256}")
    def poll(name, first_issued, sleep):
        e(f"s_mov_b32 s{sSPIN}, 0")
        if not first_issued:
            e(f"buffer_load_dword v14, v13, {srd(S_WS)}, s{sT1} offen sc1")
        a.lab(f"L_OF_LOOP{name}")
        e("s_waitcnt vmcnt(0)")
        e(f"v_cmp_ne_u32 vcc, s{sTAG}, v14")
        e(f"s_add_u32 s{sSPIN}, s{sSPIN}, 1")
        e(f"s_cbranch_vccz L_OF_OK{name}")
        e(f"s_cmp_gt_u32 s{sSPIN}, {opt.spin}")
        e(f"s_cbranch_scc1 L_OF_OK{name}")
        if sleep: e(f"s_sleep {sleep}")
        e(f"buffer_load_dword v14, v13, {srd(S_WS)}, s{sT1} offen sc1")
        e(f"s_branch L_OF_LOOP{name}")
        a.lab(f"L_OF_OK{name}")
    def oloads(mod="sc1"):
        for i in range(16):
            e(f"buffer_load_dwordx4 {vr(OF3+4*i,4)}, v{vL16}, {srd(S_WS)}, s{sT0} offen offset:{(i&3)*1024} {mod}")
            if (i & 3) == 3 and i < 15: e(f"s_add_u32 s{sT0}, s{sT0}, 4096")
    def p3mfma(i0, i1):
        for i in range(i0, i1):
            e(f"s_waitcnt vmcnt({15-i})")
            for ct in range(2):
                mfma(AC3 + 16 * ct, WF3 + 8 * i + 4 * ct, OF3 + 4 * i, "0" if i == 0 else AC3 + 16 * ct)
    def late_part():
        gate_write()
        for i in range(8, 16): trw(i)
    def p3mfma2():
        if opt.sent:
            e(f"s_mov_b32 s{sSPIN}, 0")
            a.lab("L_P3_RETRY")
            e("v_mov_b32 v15, 0")
        for i in range(16):
            if i == 8: e("s_waitcnt lgkmcnt(0)")
            e(f"s_waitcnt vmcnt({15-i})")
            for ct in range(2):
                mfma(AC3 + 16 * ct, WF3 + 8 * i + 4 * ct, OF3 + 4 * i, "0" if i == 0 else AC3 + 16 * ct)
                if opt.sent: e(f"v_max3_u32 v15, v15, v{OF3+4*i+2*ct}, v{OF3+4*i+2*ct+1}")
        if opt.sent:
            e("v_cmp_eq_u32 vcc, -1, v15")
            e(f"s_add_u32 s{sSPIN}, s{sSPIN}, 1")
            e("s_cbranch_vccz L_P3_DONE")
            e(f"s_cmp_gt_u32 s{sSPIN}, {opt.spin}")
            e("s_cbranch_scc1 L_P3_DONE")
            e(f"s_sub_u32 s{sT0}, s{sT0}, 12288")
            e("s_nop 7")
            oloads()
            e("s_branch L_P3_RETRY")
            a.lab("L_P3_DONE")
    e(f"s_cmp_eq_u32 s{sTQ}, 0")
    e("s_cbranch_scc1 L_P3_LATE")
    if opt.sent == 2: e("s_waitcnt vmcnt(3)")
    else: oflag()
    if opt.prio: e("s_setprio 0")
    if opt.early == 0:
        gate()
        e(f"v_and_b32 v13, 7, v0")
        e(f"v_lshlrev_b32 v13, 2, v13")
        e(f"buffer_load_dword v14, v13, {srd(S_WS)}, s{sT1} offen sc1")
        e("s_waitcnt lgkmcnt(0)")
        e("s_barrier")
        stamp("B3")
        poll("E", True, opt.sleep)
        stamp("O flags seen")
        oloads(opt.omod)
        late_part()
    else:
        e(f"v_and_b32 v13, 7, v0")
        e(f"v_lshlrev_b32 v13, 2, v13")
        e(f"buffer_load_dword v14, v13, {srd(S_WS)}, s{sT1} offen sc1")
        gate()
        for i in range(8, 16): trw(i)
        poll("E", True, opt.sleep)
        stamp("O flags seen")
        oloads(opt.omod)
        e("s_waitcnt lgkmcnt(0)")
        e("s_barrier")
        stamp("B3")
        gate_write()
    e("s_branch L_P3_J")
    a.lab("L_P3_LATE")
    if opt.sent:
        e(f"v_and_b32 v13, 7, v0")
        e(f"v_lshlrev_b32 v13, 2, v13")
        e(f"buffer_load_dword v14, v13, {srd(S_WS)}, s{sT1} offen sc1")
        gate()
        e("s_waitcnt lgkmcnt(0)")
        e("s_barrier")
        stamp("B3")
    else:
        e("s_waitcnt vmcnt(2)")
        gate()
        oflag()
        e(f"v_and_b32 v13, 7, v0")
        e(f"v_lshlrev_b32 v13, 2, v13")
        e(f"buffer_load_dword v14, v13, {srd(S_WS)}, s{sT1} offen sc1")
        e("s_waitcnt lgkmcnt(0)")
        e("s_barrier")
        stamp("B3")
    late_part()
    poll("L", True, 0)
    stamp("O flags seen")
    oloads(opt.omod)
    a.lab("L_P3_J")
    p3mfma2()
    stamp("P3 mfma")
    e(f"s_lshl_b32 s{sT2}, s{sTQ}, 15")
    e(f"s_lshl_b32 s{sT3x}, s{sQ}, 11")
    e(f"s_add_u32 s{sT3x}, s{sT3x}, s{sT2}")
    e(f"s_add_u32 s{sT3x}, s{sT3x}, {LDS_RB}")
    e(f"v_add_u32 v1, s{sT3x}, v{vL16}")
    e(f"s_lshl_b32 s{sT3x}, s{sQ}, 13")
    e(f"s_add_u32 s{sT3x}, s{sT3x}, s{sT2}")
    e(f"s_add_u32 s{sT3x}, s{sT3x}, {LDS_RB}")
    e(f"v_add_u32 v2, s{sT3x}, v{vL16}")
    e(f"v_and_b32 v4, 31, v0")
    e(f"s_lshl_b32 s{sT2}, s{sTQ}, 5")
    e(f"v_add_u32 v3, s{sT2}, v4")
    e(f"v_lshlrev_b32 v3, 2, v3")
    e(f"v_lshlrev_b32 v4, 10, v4")
    e(f"v_lshrrev_b32 v5, 5, v0")
    e(f"v_lshl_add_u32 v4, v5, 4, v4")
    e(f"s_lshl_b32 s{sT2}, s{sTT3}, 15")
    e(f"s_lshl_b32 s{sT3x}, s{sN3}, 7")
    e(f"s_add_u32 s{sT2}, s{sT2}, s{sT3x}")
    e(f"s_lshl_b32 s{sT3x}, s{sQ}, 5")
    e(f"s_add_u32 s{sT2}, s{sT2}, s{sT3x}")
    e("s_nop 1")
    for qq in range(4):
        for hf in range(2):
            e(f"ds_write_b128 v1, {vr(AC3+8*qq+4*hf,4)} offset:{qq*8192+hf*1024}")
    e("s_waitcnt lgkmcnt(0)")
    e("s_barrier")
    R = 144
    e(f"ds_read_b32 v5, v3 offset:{LDS_GATE}")
    e(f"ds_read_b32 v6, v3 offset:{LDS_GATE+256}")
    for src in range(4):
        for hf in range(2):
            e(f"ds_read_b128 {vr(R+8*src+4*hf,4)}, v2 offset:{src*2048+hf*1024}")
    e("s_waitcnt lgkmcnt(4)")
    for i in range(8): e(f"v_add_f32 v{R+i}, v{R+i}, v{R+8+i}")
    for i in range(8): e(f"v_mul_f32 v{R+i}, v{R+i}, v5")
    e("s_waitcnt lgkmcnt(0)")
    for i in range(8): e(f"v_add_f32 v{R+16+i}, v{R+16+i}, v{R+24+i}")
    for i in range(8): e(f"v_fmac_f32 v{R+i}, v{R+16+i}, v6")
    for i in range(4): e(cvt(R + 32 + i, R + 2 * i, R + 2 * i + 1))
    e("s_nop 1")
    e(f"v_permlane32_swap_b32 v{R+32}, v{R+34}")
    e(f"v_permlane32_swap_b32 v{R+33}, v{R+35}")
    e(f"buffer_store_dwordx4 {vr(R+32,4)}, v4, {srd(S_OUT)}, s{sT2} offen {opt.outmod}")
    if STAMPS:
        stamp("end")
        e(f"s_memtime s[{sTM}:{sTM+1}]")
        e("s_waitcnt lgkmcnt(0)")
        e(f"s_sub_u32 s{STREG[nst[0]]}, s{sTM}, s100")
        nst[0] += 1
        opt.stamp_names.append("CYCLES")
        n = nst[0]
        e(f"s_lshl_b32 s{sT2}, s2, 3")
        e(f"s_add_u32 s{sT2}, s{sT2}, s{sW}")
        e(f"s_lshl_b32 s{sT2}, s{sT2}, 7")
        e(f"s_add_u32 s{sT2}, s{sT2}, {WS_STAMP}")
        e("v_mov_b32 v13, 0")
        e("s_mov_b64 exec, 1")
        for i in range(n):
            e(f"v_mov_b32 v14, s{STREG[i]}")
            e(f"buffer_store_dword v14, v13, {srd(S_WS)}, s{sT2} offen offset:{4*i}")
            e("s_nop 0")
        e("s_mov_b64 exec, -1")
    e("s_waitcnt vmcnt(0)")
    a.lab("L_END")
    e("s_endpgm")
    if opt.fallback:
        a.lab("L_FB_ENTRY")
        fallback(a, opt, dict(SS=SS, PP=PP, KF=KF, MK=MK, OA=OA, QF=QF, vL16=vL16, HT=144))
        e("s_branch L_NOFB")
    a.lab("L_CODE_END")
    return a

def fallback(a, opt, R):
    e = a.e
    SS, PP, KF, MK, OA, QF, vL16, HT = (R[k] for k in "SS PP KF MK OA QF vL16 HT".split())
    TQ = 128; TM = 132; TB = 133; TO = 136; TV = 152; TC = 176
    S = SS
    sHH, sPASS, sPART, sTILE, sN = sH, 40, 41, 42, 43
    def mfma(D, A, B, C): e(mfma_s(D, A, B, C))
    a.c("==== fallback: true max ====")
    e(f"s_lshl_b32 s{sT2}, s{sC}, 5")
    e(f"s_add_u32 s{sT2}, s{sT2}, s{sBH}")
    e(f"s_lshl_b32 s{sT2}, s{sT2}, 7")
    e(f"s_add_u32 s{sT2}, s{sT2}, {WS_KVF}")
    e(f"v_and_b32 v13, 7, v0")
    e(f"v_lshlrev_b32 v13, 2, v13")
    e(f"s_mov_b32 s{sSPIN}, 0")
    a.lab("L_FB_FLAG")
    e(f"buffer_load_dword v14, v13, {srd(S_WS)}, s{sT2} offen sc1")
    e(f"s_add_u32 s{sSPIN}, s{sSPIN}, 1")
    e("s_waitcnt vmcnt(0)")
    e(f"v_cmp_ne_u32 vcc, s{sTAG}, v14")
    e(f"s_cmp_gt_u32 s{sSPIN}, {opt.spin}")
    e("s_cbranch_scc1 L_FB_FLAG_OK")
    e("s_cbranch_vccnz L_FB_FLAG")
    a.lab("L_FB_FLAG_OK")
    e(f"s_mov_b32 s{sHH}, 0")
    a.lab("L_FB_H")
    e(f"s_lshr_b32 s{sT2}, s{sFAIL}, s{sHH}")
    e(f"s_and_b32 s{sT2}, s{sT2}, 1")
    e(f"s_cmp_eq_u32 s{sT2}, 0")
    e("s_cbranch_scc1 L_FB_NEXT")
    e(f"s_cmp_eq_u32 s{sHH}, 0")
    e("s_cbranch_scc0 L_FB_Q1")
    for i in range(4): e(f"v_mov_b32 v{TQ+i}, v{QF+i}")
    e("s_branch L_FB_Q2")
    a.lab("L_FB_Q1")
    for i in range(4): e(f"v_mov_b32 v{TQ+i}, v{QF+4+i}")
    a.lab("L_FB_Q2")
    e(f"v_mov_b32 v{TM}, 0xff800000")
    for i in range(16): e(f"v_mov_b32 v{TO+i}, 0")
    for i in range(8): e(f"v_mov_b32 v{TV+i}, 0x3f803f80")
    e(f"s_mov_b32 s{sPASS}, 0")
    a.lab("L_FB_PASS")
    e(f"s_mov_b32 s{sPART}, 0")
    a.lab("L_FB_PART")
    e(f"s_cmp_eq_u32 s{sPART}, 0")
    e(f"s_cselect_b32 s{sTILE}, 0, s{sTAU}")
    e(f"s_cselect_b32 s{sN}, s{sTAU}, 7")
    a.lab("L_FB_TILE")
    e(f"s_cmp_eq_u32 s{sTILE}, s{sTAU}")
    e("s_cbranch_scc1 L_FB_MASK")
    for i in range(16): e(f"v_mov_b32 v{TC+i}, 0")
    e("s_branch L_FB_C")
    a.lab("L_FB_MASK")
    e(f"v_and_b32 v13, 31, v0")
    e(f"v_lshrrev_b32 v14, 5, v0")
    e(f"v_lshlrev_b32 v14, 2, v14")
    e(f"v_sub_u32 v13, v13, v14")
    e(f"s_cmp_eq_u32 s{sPART}, 0")
    e(f"s_cselect_b32 s{sT2}, 0, 0xff800000")
    for r in range(16):
        kk = (r & 3) + 8 * (r >> 2)
        e(f"v_subrev_u32 v{TC+r}, {kk}, v13")
        e(f"v_ashrrev_i32 v{TC+r}, 31, v{TC+r}")
        e(f"v_and_b32 v{TC+r}, 0xff800000, v{TC+r}")
        e(f"v_xor_b32 v{TC+r}, s{sT2}, v{TC+r}")
    a.lab("L_FB_C")
    e(f"s_sub_u32 s{sT2}, s{sC}, s{sPART}")
    e(f"s_lshl_b32 s{sT2}, s{sT2}, 3")
    e(f"s_add_u32 s{sT2}, s{sT2}, s{sTILE}")
    e(f"s_lshl_b32 s{sT3x}, s{sBH}, 6")
    e(f"s_add_u32 s{sT2}, s{sT2}, s{sT3x}")
    e(f"s_lshl_b32 s{sT2}, s{sT2}, 12")
    e(f"s_add_u32 s{sT2}, s{sT2}, {WS_KV}")
    e(f"s_lshl_b32 s{sT3x}, s{sHH}, 10")
    e(f"s_add_u32 s{sT3x}, s{sT3x}, s{sT2}")
    e(f"buffer_load_dwordx4 {vr(KF,4)}, v{vL16}, {srd(S_WS)}, s{sT3x} offen sc1")
    e(f"s_lshl_b32 s{sT3x}, s{sHH}, 8")
    e(f"s_add_u32 s{sT3x}, s{sT3x}, s{sT2}")
    e(f"s_mov_b64 exec, s[{sVM}:{sVM+1}]")
    e(f"buffer_load_dwordx4 {vr(TV,4)}, v{vL16}, {srd(S_WS)}, s{sT3x} offen offset:2048 sc1")
    e(f"buffer_load_dwordx4 {vr(TV+4,4)}, v{vL16}, {srd(S_WS)}, s{sT3x} offen offset:3072 sc1")
    e("s_mov_b64 exec, -1")
    e("s_waitcnt vmcnt(0)")
    mfma(S, KF, TQ, TC)
    e("s_nop 7"); e("s_nop 7")
    e(f"s_cmp_eq_u32 s{sPASS}, 0")
    e("s_cbranch_scc0 L_FB_P2")
    for i in range(8): e(f"v_max3_f32 v{TM}, v{TM}, v{S+2*i}, v{S+2*i+1}")
    e("s_branch L_FB_TNEXT")
    a.lab("L_FB_P2")
    for i in range(16): e(f"v_sub_f32 v{S+i}, v{S+i}, v{TM}")
    for i in range(16): e(f"v_exp_f32 v{S+i}, v{S+i}")
    e("s_nop 0")
    for i in range(8): e(cvt(PP + i, S + 2 * i, S + 2 * i + 1))
    e("s_nop 1")
    mfma(TO, TV, PP, TO)
    mfma(TO, TV + 4, PP + 4, TO)
    e("s_nop 7"); e("s_nop 7")
    a.lab("L_FB_TNEXT")
    e(f"s_add_u32 s{sTILE}, s{sTILE}, 1")
    e(f"s_cmp_le_u32 s{sTILE}, s{sN}")
    e("s_cbranch_scc1 L_FB_TILE")
    e(f"s_cmp_eq_u32 s{sC}, 0")
    e("s_cbranch_scc1 L_FB_PDONE")
    e(f"s_add_u32 s{sPART}, s{sPART}, 1")
    e(f"s_cmp_lt_u32 s{sPART}, 2")
    e("s_cbranch_scc1 L_FB_PART")
    a.lab("L_FB_PDONE")
    e(f"s_cmp_eq_u32 s{sPASS}, 0")
    e("s_cbranch_scc0 L_FB_STORE")
    e(f"v_mov_b32 v{TB}, v{TM}")
    e("s_nop 1")
    e(f"v_permlane32_swap_b32 v{TM}, v{TB}")
    e("s_nop 1")
    e(f"v_max_f32 v{TM}, v{TM}, v{TB}")
    e(f"s_mov_b32 s{sPASS}, 1")
    e("s_branch L_FB_PASS")
    a.lab("L_FB_STORE")
    e(f"s_cmp_eq_u32 s{sHH}, 0")
    e("s_cbranch_scc0 L_FB_S1")
    for i in range(16): e(f"v_mov_b32 v{OA+i}, v{TO+i}")
    e("s_branch L_FB_NEXT")
    a.lab("L_FB_S1")
    for i in range(16): e(f"v_mov_b32 v{OA+16+i}, v{TO+i}")
    a.lab("L_FB_NEXT")
    e(f"s_add_u32 s{sHH}, s{sHH}, 1")
    e(f"s_cmp_lt_u32 s{sHH}, 2")
    e("s_cbranch_scc1 L_FB_H")

def build(opt):
    opt.stamp_names = []
    a = gen(opt)
    hdr = []
    hdr.append(f"; @launch grid=(256,1,1) block=(512,1,1) lds={LDS_TOTAL}")
    hdr.append('.amdgcn_target "amdgcn-amd-amdhsa--gfx950"')
    hdr.append(".text")
    hdr.append(f".globl {KNAME}")
    hdr.append(".p2align 8")
    hdr.append(f".type {KNAME},@function")
    tail = f""".section .rodata,"a"
.p2align 6
.amdhsa_kernel {KNAME}
  .amdhsa_next_free_vgpr 256
  .amdhsa_next_free_sgpr 102
  .amdhsa_accum_offset 256
  .amdhsa_group_segment_fixed_size 0
  .amdhsa_kernarg_size 80
  .amdhsa_user_sgpr_count 2
  .amdhsa_user_sgpr_kernarg_segment_ptr 1
  .amdhsa_system_sgpr_workgroup_id_x 1
  .amdhsa_float_denorm_mode_32 3
.end_amdhsa_kernel
"""
    return "\n".join(hdr) + "\n" + a.text() + tail

def parse(argv=None):
    p = argparse.ArgumentParser()
    p.add_argument("-o", default="gated_mix__sliding_block__sliding_block__prompt.s")
    p.add_argument("--stamps", type=int, default=0)
    p.add_argument("--codepf", type=int, default=1)
    p.add_argument("--pace", type=float, default=1.6)
    p.add_argument("--rot", type=int, default=1)
    p.add_argument("--gwpf", type=int, default=1)
    p.add_argument("--mke", type=int, default=1)
    p.add_argument("--forcefb", type=int, default=0)
    p.add_argument("--early", type=int, default=0)
    p.add_argument("--lfirst", type=int, default=0)
    p.add_argument("--omod", default="sc1")
    p.add_argument("--rep", type=int, default=0)
    p.add_argument("--warm", type=int, default=6)
    p.add_argument("--sent", type=int, default=1)
    p.add_argument("--tailopt", type=int, default=1)
    p.add_argument("--eorder", type=int, default=1)
    p.add_argument("--prio", type=int, default=1)
    p.add_argument("--sleep", type=int, default=0)
    p.add_argument("--pf", type=int, default=0)
    p.add_argument("--bar0", type=int, default=1)
    p.add_argument("--dbg", type=int, default=0)
    p.add_argument("--cyc", type=int, default=0)
    p.add_argument("--wopf", type=int, default=1)
    p.add_argument("--fallback", type=int, default=1)
    p.add_argument("--spin", type=int, default=20000)
    p.add_argument("--outmod", default="")
    return p.parse_args(argv)

if __name__ == "__main__":
    opt = parse()
    s = build(opt)
    open(opt.o, "w").write(s)
    if opt.stamps:
        open(opt.o + ".stamps", "w").write("\n".join(opt.stamp_names))
    print("wrote", opt.o, len(s), "bytes")
```

```python
import sys, argparse, math, struct

KNAME = "gated_mix__sliding_block__sliding_block__prompt_kernel"

WS_NONCE = 0
WS_OF = 0x10000
WS_KVF = 0x4000
WS_KV = 0x100000
WS_O = 0x1000000
WS_STAMP = 0x1800000
WS_SIZE = 0x2000000

REG = 12288
LDS_W = 8 * REG
WPART = 24576
LDS_TOTAL = 163840
LDS_A0, LDS_A1 = 98304, 131072
LDS_GATE = 4096
LDS_RB = 98304

S_X, S_W, S_WOA, S_WOB, S_WS, S_OUT, S_GW, S_DBG = 8, 12, 16, 20, 24, 28, 32, 36
sW, sTAU, sC, sBH, sBR, sHG, sTT, sT3, sN3, sTAG, sJ = 60, 61, 62, 63, 64, 65, 66, 67, 68, 69, 70
sT0, sT1, sT2, sT3x, sT4, sT5 = 71, 72, 73, 74, 75, 76
sCNT, sSPIN, sFAIL = 77, 80, 81
sVM = 78
sKVO = 82
sH = 83
STREG = list(range(84, 98)) + [3, 6, 7, 46, 47]
sTM = 98
sXB, sWG, sWL = 40, 41, 42

def srd(b): return f"s[{b}:{b+3}]"
def vr(b, n=1): return f"v{b}" if n == 1 else f"v[{b}:{b+n-1}]"

class Asm:
    def __init__(self):
        self.lines = []; self.vm = []; self.lg = []
    def e(self, s): self.lines.append("  " + s)
    def c(self, s): self.lines.append("  ; " + s)
    def lab(self, s): self.lines.append(s + ":")
    def vmop(self, s, tag): self.e(s); self.vm.append(tag)
    def lgop(self, s, tag): self.e(s); self.lg.append(tag)
    def _n(self, q, tag, mx):
        idx = max(i for i, t in enumerate(q) if t == tag)
        return min(len(q) - 1 - idx, mx)
    def vmwait(self, tag):
        if tag not in self.vm: return
        n = self._n(self.vm, tag, 63)
        self.e(f"s_waitcnt vmcnt({n})")
        self.vm = self.vm[len(self.vm) - n:] if n > 0 else []
    def lgwait(self, tag):
        if tag not in self.lg: return
        n = self._n(self.lg, tag, 15)
        self.e(f"s_waitcnt lgkmcnt({n})")
        self.lg = self.lg[len(self.lg) - n:] if n > 0 else []
    def vmall(self): self.e("s_waitcnt vmcnt(0)"); self.vm = []
    def lgall(self): self.e("s_waitcnt lgkmcnt(0)"); self.lg = []
    def text(self): return "\n".join(self.lines) + "\n"

def f32bits(x): return struct.unpack("<I", struct.pack("<f", x))[0]
def mfma_s(D, A, B, C):
    cs = C if isinstance(C, str) else vr(C, 16)
    return f"v_mfma_f32_32x32x16_bf16 {vr(D,16)}, {vr(A,4)}, {vr(B,4)}, {cs}"
def cvt(dst, s0, s1): return f"v_cvt_pk_bf16_f32 v{dst}, v{s0}, v{s1}"

def gen(opt):
    a = Asm()
    e = a.e
    mfma = lambda D, A, B, C: e(mfma_s(D, A, B, C))
    STAMPS = opt.stamps
    nst = [0]
    def stamp(name, inner=False):
        if not STAMPS: return
        if STAMPS == 4 and not inner:
            if name in ("entry", "first data", "gemm done", "B1", "B2", "attn done", "B3", "end"):
                opt.cyc = 0; stamp(name, True)
                if name not in ("entry", "end"):
                    opt.cyc = 1; stamp(name + " cyc", True); opt.cyc = 0
            return
        if STAMPS == 3 and name in ("own done", "B2", "attn done", "O published", "B3", "B4", "O flags seen", "P3 mfma", "roleA", "roleB"): return
        if STAMPS == 2 and name in ("own done", "B2", "attn done", "O published", "B3", "B4", "O flags seen", "P3 mfma"): return
        if name in opt.stamp_names:
            i = opt.stamp_names.index(name)
            e("s_waitcnt lgkmcnt(0)")
            e(f"{'s_memtime' if opt.cyc else 's_memrealtime'} s[{sTM}:{sTM+1}]")
            e("s_waitcnt lgkmcnt(0)")
            e(f"s_mov_b32 s{STREG[i]}, s{sTM}")
            return
        i = nst[0]; nst[0] += 1
        assert i < len(STREG)
        a.c(f"stamp {i}: {name}")
        e("s_waitcnt lgkmcnt(0)"); a.lg = []
        e(f"{'s_memtime' if opt.cyc else 's_memrealtime'} s[{sTM}:{sTM+1}]")
        e("s_waitcnt lgkmcnt(0)")
        e(f"s_mov_b32 s{STREG[i]}, s{sTM}")
        opt.stamp_names.append(name)

    vXO = 1; vXR = 5; vWO = 9; vWR = 10; vL16 = 12
    XF = 16
    WF = 80
    ACC = 116
    def AQ(x): return ACC + 48 * x
    def AK(x): return ACC + 48 * x + 16
    def AV(x): return ACC + 48 * x + 32
    def XFr(lc, x, s): return XF + 32 * (lc & 1) + 16 * x + 4 * s
    def WFr(t, m): return WF + 12 * (t % 3) + 4 * m
    OA = 216; QF = 248; MK = 16; VF = 32
    SS = 160; PP = 48; KF = 56; HT = 64
    vK = 1
    vD = 13
    GX, GW, GA = (80 if opt.gate4 else 96), 208, 212
    WSLOT = 12288
    MKE = 144
    TKA, TKB, TVA, TVB, TQA, TQB = 248, 4, ACC + 16, ACC + 64, ACC + 32, ACC + 80
    LDS_TAG = 8192 + 2048

    a.lab(KNAME)
    e("s_cmp_ge_u32 s2, 256")
    e("s_cbranch_scc1 L_END")
    if STAMPS:
        e("s_memtime s[100:101]")
        stamp("entry")
    e("s_getpc_b64 s[4:5]")
    a.lab("L_PC")
    e("s_load_dwordx4 s[40:43], s[0:1], 0")
    e("s_load_dwordx4 s[48:51], s[0:1], 32")
    e("v_lshlrev_b32 v13, 6, v0")
    e("s_load_dwordx2 s[44:45], s[0:1], 16")
    e("s_load_dwordx4 s[52:55], s[0:1], 48")
    e("s_load_dwordx4 s[56:59], s[0:1], 64")
    e("v_min_u32 v13, L_CODE_END-L_PC-4, v13")
    if opt.codepf:
        e(f"global_load_dword v213, v13, s[4:5]")
    e("v_lshrrev_b32 v15, 6, v0")
    e("v_and_b32 v0, 63, v0")
    e(f"s_and_b32 s{sT0}, s2, 7")
    e(f"v_readfirstlane_b32 s{sW}, v15")
    e(f"s_lshr_b32 s{sJ}, s2, 3")
    e(f"s_and_b32 s{sT1}, s{sT0}, 1")
    e(f"s_lshl_b32 s{sT1}, s{sT1}, 2")
    e(f"s_and_b32 s{sT2}, s{sJ}, 3")
    e(f"s_add_u32 s{sC}, s{sT1}, s{sT2}")
    e(f"s_lshr_b32 s{sT1}, s{sT0}, 1")
    e(f"s_lshl_b32 s{sT1}, s{sT1}, 3")
    e(f"s_lshr_b32 s{sN3}, s{sJ}, 2")
    e(f"s_add_u32 s{sBH}, s{sT1}, s{sN3}")
    e(f"s_lshr_b32 s{sBR}, s{sBH}, 4")
    e(f"s_and_b32 s{sHG}, s{sBH}, 15")
    e(f"s_lshl_b32 s{sT3}, s{sT0}, 2")
    e(f"s_add_u32 s{sT3}, s{sT3}, s{sT2}")
    e(f"s_sub_u32 s{sT1}, 11, s{sW}")
    e(f"s_cmp_lt_u32 s{sW}, 4")
    e(f"s_cselect_b32 s{sTAU}, s{sW}, s{sT1}")
    e(f"s_lshl_b32 s{sTT}, s{sC}, 3")
    e(f"s_add_u32 s{sTT}, s{sTT}, s{sTAU}")
    e(f"v_lshlrev_b32 v{vL16}, 4, v0")
    def mk(b, lo, hi, size):
        e(f"s_mov_b32 s{b}, s{lo}"); e(f"s_mov_b32 s{b+1}, s{hi}")
        e(f"s_mov_b32 s{b+2}, {size}"); e(f"s_mov_b32 s{b+3}, 0x00020000")
    def mk_w():
        e(f"s_cmp_eq_u32 s{sBR}, 0")
        e(f"s_cselect_b32 s{S_W}, s42, s48")
        e(f"s_cselect_b32 s{S_W+1}, s43, s49")
        e(f"s_mov_b32 s{S_W+2}, 1572864"); e(f"s_mov_b32 s{S_W+3}, 0x00020000")
    def mk_rest():
        mk(S_WS, 58, 59, WS_SIZE)
        mk(S_DBG, 56, 57, 256)
        mk(S_OUT, 54, 55, 2097152)
        mk(S_GW, 52, 53, 1024)
        mk(S_WOA, 44, 45, 524288)
        mk(S_WOB, 50, 51, 524288)
        e(f"s_mov_b32 s{sVM}, 0x0000ffff")
        e(f"s_mov_b32 s{sVM+1}, 0x0000ffff")
        e(f"s_mov_b32 s{sFAIL}, 0")
        p3_ids()
    sTQ, sQ, sB3, sKH, sTT3, sOFA = 44, 45, 48, 49, 50, 51
    def p3_ids():
        e(f"s_lshr_b32 s{sTQ}, s{sW}, 2")
        e(f"s_and_b32 s{sQ}, s{sW}, 3")
        e(f"s_lshr_b32 s{sB3}, s{sQ}, 1")
        e(f"s_and_b32 s{sKH}, s{sQ}, 1")
        e(f"s_and_b32 s{sT2}, s{sT3}, 3")
        e(f"s_sub_u32 s{sT3x}, 7, s{sT2}")
        e(f"s_cmp_eq_u32 s{sTQ}, 0")
        e(f"s_cselect_b32 s{sT2}, s{sT2}, s{sT3x}")
        e(f"s_lshr_b32 s{sTT3}, s{sT3}, 2")
        e(f"s_lshl_b32 s{sTT3}, s{sTT3}, 3")
        e(f"s_add_u32 s{sTT3}, s{sTT3}, s{sT2}")
    def init_list():
        q = [f"v_and_b32 v{vD}, 31, v0", f"v_lshrrev_b32 v{vD+2}, 5, v0", f"v_lshlrev_b32 v{vD+2}, 2, v{vD+2}", f"v_sub_u32 v{vD}, v{vD}, v{vD+2}"]
        for r in range(16):
            kk = (r & 3) + 8 * (r >> 2)
            q += [f"v_subrev_u32 v{MK+r}, {kk}, v{vD}", f"v_ashrrev_i32 v{MK+r}, 31, v{MK+r}", f"v_and_b32 v{MK+r}, 0xff800000, v{MK+r}"]
        q += [f"v_mov_b32 v{VF+i}, 0x3f803f80" for i in range(16)]
        return q
    if opt.lfirst:
        e(f"s_cmp_lt_u32 s{sW}, 4")
        e("s_cbranch_scc1 L_COMPUTE")
    else:
        e(f"s_cmp_ge_u32 s{sW}, 4")
        e("s_cbranch_scc1 L_LOADER")
    i_comp = len(a.lines)
    a.lab("L_COMPUTE")

    SXB = sT4
    e(f"s_mul_i32 s{SXB}, s{sW}, {2*REG}")
    e(f"v_and_b32 v13, 31, v0")
    e(f"v_lshrrev_b32 v15, 5, v0")
    e(f"v_bfe_u32 v{vXR+1}, v13, 1, 3")
    e(f"v_xor_b32 v15, v15, v{vXR+1}")
    e(f"v_lshlrev_b32 v15, 4, v15")
    e(f"v_lshl_add_u32 v15, v13, 7, v15")
    e(f"v_add_u32 v{vXR}, s{SXB}, v15")
    for s_ in range(1, 4):
        e(f"v_xor_b32 v{vXR+s_}, {s_<<5}, v{vXR}")
    e(f"v_lshrrev_b32 v13, 5, v0")
    e(f"v_lshlrev_b32 v13, 9, v13")
    e(f"v_bfe_u32 v15, v0, 2, 2")
    e(f"v_lshl_add_u32 v13, v15, 6, v13")
    e(f"v_bfe_u32 v15, v0, 4, 1")
    e(f"v_lshl_add_u32 v13, v15, 5, v13")
    e(f"v_and_b32 v15, 3, v0")
    e(f"v_lshl_add_u32 v13, v15, 3, v13")
    e(f"v_add_u32 v{vWR}, {LDS_W}, v13")
    for i in range(32): e(f"v_mov_b32 v{OA+i}, 0")
    e("s_waitcnt lgkmcnt(0)")
    mk(S_X, 40, 41, 2097152)
    mk_w()
    mk_rest()
    stamp("issued")
    def xread1(lc, x, s_):
        a.lgop(f"ds_read_b128 {vr(XFr(lc,x,s_),4)}, v{vXR+s_} offset:{x*REG+(lc%3)*4096}", f"xr{lc}_{s_}")
    def wread1(t, m, u):
        lc = t >> 2
        a.lgop(f"ds_read_b64_tr_b16 {vr(WFr(t,m)+2*u,2)}, v{vWR} offset:{(lc%3)*WSLOT+m*4096+(t&3)*1024+u*256}", f"wf{t}")
    e("s_barrier")
    stamp("first data")
    mfma_full = mfma
    if opt.dbg == 16:
        def mfma(D, A, B, C):
            for h in range(2):
                cs = C if isinstance(C, str) else vr(C + 4 * h, 4)
                e(f"v_mfma_f32_16x16x32_bf16 {vr(D + 4*h, 4)}, {vr(A,4)}, {vr(B,4)}, {cs}")
    if opt.dbg == 17:
        def mfma(D, A, B, C): pass
    for m in range(3):
        for u in range(2): wread1(0, m, u)
    for x in range(2): xread1(0, x, 0)
    for m in range(3):
        for u in range(2): wread1(1, m, u)
    for s_ in range(1, 4):
        for x in range(2): xread1(0, x, s_)
    initq = init_list()
    NT = 29 if opt.tailopt else 32
    for t in range(NT):
        lc, s_ = t >> 2, t & 3
        if opt.stamps == 2 and t in (4, 8, 12, 16, 20, 24, 28): stamp(f"t{t}")
        if s_ == 2 and lc <= 6:
            a.lgall()
            e("s_barrier")
        a.lgwait(f"wf{t}")
        a.lgwait(f"xr{lc}_{s_}")
        R = [(t + 2, m, u) for m in range(3) for u in range(2)] if t + 2 < 32 else []
        X = [(lc + 1, x, 2 * (s_ - 2) + k) for k in range(2) for x in range(2)] if (s_ >= 2 and lc <= 6) else []
        C = (lambda r: "0") if t == 0 else (lambda r: r)
        xa, xb = XFr(lc, 0, s_), XFr(lc, 1, s_)
        def ini(n):
            if t >= 28:
                for _ in range(n):
                    if initq: e(initq.pop(0))
        mfma(AK(0), WFr(t, 0), xa, C(AK(0)))
        for r in R[0:2]: wread1(*r)
        ini(3)
        mfma(AK(1), WFr(t, 0), xb, C(AK(1)))
        for r in R[2:4]: wread1(*r)
        ini(3)
        mfma(AV(0), xa, WFr(t, 1), C(AV(0)))
        for r in R[4:6]: wread1(*r)
        ini(3)
        mfma(AV(1), xb, WFr(t, 1), C(AV(1)))
        for x in X[0:2]: xread1(*x)
        ini(3)
        mfma(AQ(0), WFr(t, 2), xa, C(AQ(0)))
        for x in X[2:4]: xread1(*x)
        ini(3)
        mfma(AQ(1), WFr(t, 2), xb, C(AQ(1)))
        ini(3)
    if not opt.tailopt:
        while initq: e(initq.pop(0))
    e(f"s_lshl_b32 s{sKVO}, s{sBH}, 6")
    e(f"s_lshl_b32 s{sT2}, s{sC}, 3")
    e(f"s_add_u32 s{sKVO}, s{sKVO}, s{sT2}")
    e(f"s_lshl_b32 s{sT2}, s{sW}, 1")
    e(f"s_add_u32 s{sKVO}, s{sKVO}, s{sT2}")
    e(f"s_lshl_b32 s{sKVO}, s{sKVO}, 12")
    e(f"s_add_u32 s{sKVO}, s{sKVO}, {WS_KV}")
    e(f"s_add_u32 s{sT1}, s{sKVO}, 4096")
    e(f"v_add_u32 v{vK}, s{SXB}, v{vL16}")
    cq = 0.25 * math.log2(math.e)
    e(f"s_mov_b32 s{sT2}, {hex(f32bits(cq))}")
    def k_epi(x, T):
        so = sKVO if x == 0 else sT1
        L = [("e", cvt(T + i, AK(x) + 2 * i, AK(x) + 2 * i + 1)) for i in range(8)]
        L += [("vm", f"buffer_store_dwordx4 {vr(T+4*i,4)}, v{vL16}, {srd(S_WS)}, s{so} offen offset:{i*1024} sc1") for i in range(2)]
        L += [("lg", f"ds_write_b128 v{vK}, {vr(T+4*i,4)} offset:{x*REG+i*1024}") for i in range(2)]
        return L
    def v_epi(x, T):
        so = sKVO if x == 0 else sT1
        L = [("e", cvt(T + i, AV(x) + 2 * i, AV(x) + 2 * i + 1)) for i in range(8)]
        L += [("vm", f"buffer_store_dwordx4 {vr(T+4*i,4)}, v{vL16}, {srd(S_WS)}, s{so} offen offset:{(2+i)*1024} sc1") for i in range(2)]
        L += [("lg", f"ds_write_b128 v{vK}, {vr(T+4*i,4)} offset:{x*REG+(2+i)*1024}") for i in range(2)]
        return L
    def q_epi(x, T):
        L = [("e", f"v_mul_f32 v{AQ(x)+i}, s{sT2}, v{AQ(x)+i}") for i in range(16)]
        L += [("e", cvt(T + i, AQ(x) + 2 * i, AQ(x) + 2 * i + 1)) for i in range(8)]
        L += [("lg", f"ds_write_b128 v{vK}, {vr(T+4*h,4)} offset:{x*REG+8192+h*1024}") for h in range(2)]
        return L
    def emit(items):
        for k, l in items:
            if k == "e": e(l)
            elif k == "vm": a.vmop(l, "kvs")
            else: a.lgop(l, "kvw")
    if opt.tailopt:
        for m in range(3):
            for u in range(2): wread1(31, m, u)
        xs = {t: (XFr(7, 0, t & 3), XFr(7, 1, t & 3)) for t in (29, 30, 31)}
        a.lgwait("wf30")
        for t in (29, 30):
            for x in range(2):
                mfma(AK(x), WFr(t, 0), xs[t][x], AK(x))
                for _ in range(8):
                    if initq: e(initq.pop(0))
        a.lgwait("wf31")
        for x in range(2):
            mfma(AK(x), WFr(31, 0), xs[31][x], AK(x))
            for _ in range(8):
                if initq: e(initq.pop(0))
        while initq: e(initq.pop(0))
        vm_ = [(x, t) for t in (29, 30, 31) for x in range(2)]
        ke = k_epi(0, TKA) + k_epi(1, TKB)
        for n, (x, t) in enumerate(vm_):
            mfma(AV(x), xs[t][x], WFr(t, 1), AV(x))
            if n == 1: e("s_nop 7"); e("s_nop 1")
            if n >= 2: emit(ke[:5]); del ke[:5]
        ve = v_epi(0, TVA) + v_epi(1, TVB)
        qm_ = [(x, t) for t in (29, 30, 31) for x in range(2)]
        for n, (x, t) in enumerate(qm_):
            mfma(AQ(x), WFr(t, 2), xs[t][x], AQ(x))
            if ke: emit(ke[:6]); del ke[:6]
            elif n >= 2: emit(ve[:6]); del ve[:6]
        emit(ke)
        stamp("gemm done")
        e("s_nop 3")
        emit(ve)
        e("s_nop 7")
        emit(q_epi(0, TQA)); emit(q_epi(1, TQB))
    else:
        stamp("gemm done")
        e("s_nop 7")
        emit(k_epi(0, TKA)); emit(k_epi(1, TKB)); emit(v_epi(0, TVA)); emit(v_epi(1, TVB))
        emit(q_epi(0, TQA)); emit(q_epi(1, TQB))
    mfma = mfma_full
    e(f"s_lshl_b32 s{sKVO}, s{sC}, 5")
    e(f"s_add_u32 s{sKVO}, s{sKVO}, s{sBH}")
    e(f"s_lshl_b32 s{sKVO}, s{sKVO}, 7")
    e(f"s_lshl_b32 s{sT3x}, s{sW}, 3")
    e(f"s_add_u32 s{sKVO}, s{sKVO}, s{sT3x}")
    e(f"s_add_u32 s{sKVO}, s{sKVO}, {WS_KVF}")
    if not opt.lfirst: e("s_branch L_B1")
    i_load = len(a.lines)

    a.lab("L_LOADER")
    a.vm = []; a.lg = []
    sU, SXB2, SWG = sT5, sT4, sH
    e(f"s_sub_u32 s{sU}, s{sW}, 4")
    e(f"v_lshrrev_b32 v13, 2, v0")
    e(f"v_mul_u32_u24 v13, 3072, v13")
    e(f"v_and_b32 v15, 3, v0")
    e(f"v_lshl_add_u32 v13, v15, 4, v13")
    e(f"s_lshl_b32 s{sT1}, s{sHG}, 6")
    e(f"v_add_u32 v{vWO}, s{sT1}, v13")
    e(f"v_lshrrev_b32 v13, 3, v0")
    e(f"v_lshlrev_b32 v13, 10, v13")
    e(f"s_lshl_b32 s{sT1}, s{sC}, 3")
    e(f"s_lshl_b32 s{sT2}, s{sU}, 1")
    e(f"s_add_u32 s{sT1}, s{sT1}, s{sT2}")
    e(f"s_lshl_b32 s{sT1}, s{sT1}, 15")
    e(f"v_add_u32 v13, s{sT1}, v13")
    e(f"v_lshrrev_b32 v15, 4, v0")
    e(f"v_xor_b32 v15, v15, v0")
    e(f"v_and_b32 v15, 7, v15")
    e(f"v_lshl_add_u32 v{vXO}, v15, 4, v13")
    e(f"v_xor_b32 v{vXO+1}, 64, v{vXO}")
    e(f"v_add_u32 v{vXO+2}, 14336, v{vXO}")
    e(f"v_add_u32 v{vXO+3}, 21504, v{vXO+1}")
    e(f"v_add_u32 v{vXO+1}, 7168, v{vXO+1}")
    e(f"s_and_b32 s{sT1}, s{sJ}, 3")
    e(f"s_add_u32 s{sT1}, s{sT1}, s{sN3}")
    if opt.rot == 2:
        e(f"s_and_b32 s{sT0}, s{sT1}, 1")
        e(f"s_lshl_b32 s{sT0}, s{sT0}, 2")
    elif opt.rot == 3:
        e(f"s_and_b32 s{sT0}, s{sJ}, 3")
        e(f"s_lshl_b32 s{sT0}, s{sT0}, 1")
        e(f"s_add_u32 s{sT0}, s{sT0}, s{sN3}")
        e(f"s_and_b32 s{sT0}, s{sT0}, 7")
    else:
        e(f"s_and_b32 s{sT0}, s{sT1}, {3 if opt.rot else 0}")
        e(f"s_lshl_b32 s{sT0}, s{sT0}, 1")
    e("s_waitcnt lgkmcnt(0)")
    mk_w()
    mk(S_X, 40, 41, 2097152)
    SWL, sXK, sWP = 40, 41, 42
    e(f"s_mul_i32 s{SXB2}, s{sU}, {2*REG}")
    e(f"s_mul_i32 s{SWG}, s{sU}, {16*3072}")
    e(f"s_lshl_b32 s{SWL}, s{sU}, 10")
    e(f"s_add_u32 s{SWL}, s{SWL}, {LDS_W}")
    e(f"s_lshl_b32 s{sXK}, s{sT0}, 7")
    MCOL = {0: 1, 1: 2, 2: 0}
    def wo_pf():
        n = 1 if opt.wostride == 128 else 2
        e(f"s_and_b32 s{sT2}, s{sJ}, 15")
        e(f"s_lshl_b32 s{sT2}, s{sT2}, 15")
        e(f"s_lshl_b32 s{sT3x}, s{sU}, 13")
        e(f"s_add_u32 s{sT2}, s{sT2}, s{sT3x}")
        e(f"v_lshlrev_b32 v15, {7 if n == 1 else 6}, v0")
        e(f"s_cmp_lt_u32 s{sJ}, 16")
        e("s_cbranch_scc1 L_WOPF_A")
        e(f"buffer_load_dword v213, v15, {srd(S_WOB)}, s{sT2} offen")
        if n == 2:
            e(f"s_add_u32 s{sT2}, s{sT2}, 4096")
            e(f"buffer_load_dword v214, v15, {srd(S_WOB)}, s{sT2} offen")
        e("s_branch L_WOPF_E")
        a.lab("L_WOPF_A")
        e(f"buffer_load_dword v213, v15, {srd(S_WOA)}, s{sT2} offen")
        if n == 2:
            e(f"s_add_u32 s{sT2}, s{sT2}, 4096")
            e(f"buffer_load_dword v214, v15, {srd(S_WOA)}, s{sT2} offen")
        a.lab("L_WOPF_E")
        a.vm += ["wopf"] * n
    def issue(lc):
        if lc > 0:
            e(f"s_add_u32 s{sXK}, s{sXK}, 128")
            e(f"s_and_b32 s{sXK}, s{sXK}, 1023")
        e(f"s_mul_i32 s{sWP}, s{sXK}, 1536")
        e(f"s_add_u32 s{sWP}, s{sWP}, s{SWG}")
        for m in range(3):
            e(f"s_add_u32 m0, s{SWL}, {(lc%3)*WSLOT + m*4096}")
            e(f"s_add_u32 s{sT3x}, s{sWP}, {MCOL[m]*1024}")
            a.vmop(f"buffer_load_dwordx4 v{vWO}, {srd(S_W)}, s{sT3x} offen lds", f"c{lc}")
        for b in range(2):
            e(f"s_add_u32 m0, s{SXB2}, {b*REG + (lc%3)*4096}")
            e(f"s_add_u32 s{sT3x}, s{sXK}, {b*32768}")
            for i in range(4):
                a.vmop(f"buffer_load_dwordx4 v{vXO+i}, {srd(S_X)}, s{sT3x} offen offset:{i*1024} lds", f"c{lc}")
    def tlb_warm():
        e(f"s_cmp_eq_u32 s{sU}, 0"); e("s_cbranch_scc0 L_TW1")
        e(f"s_lshl_b32 s{sT2}, s{sBH}, 6"); e(f"s_lshl_b32 s{sT3x}, s{sC}, 3"); e(f"s_add_u32 s{sT2}, s{sT2}, s{sT3x}")
        e(f"s_lshl_b32 s{sT2}, s{sT2}, 12"); e(f"s_add_u32 s{sT2}, s{sT2}, {WS_KV}")
        e(f"v_mov_b32 v13, {WS_OF}")
        e(f"v_writelane_b32 v13, s{sT2}, 1")
        e(f"s_lshl_b32 s{sT2}, s{sC}, 19"); e(f"s_add_u32 s{sT2}, s{sT2}, {WS_O}")
        e(f"v_writelane_b32 v13, s{sT2}, 2")
        e(f"s_lshr_b32 s{sT2}, s{sT3}, 2"); e(f"s_lshl_b32 s{sT2}, s{sT2}, 19"); e(f"s_add_u32 s{sT2}, s{sT2}, {WS_O}")
        e(f"v_writelane_b32 v13, s{sT2}, 3")
        e("s_mov_b64 exec, 15")
        e(f"buffer_load_dword v215, v13, {srd(S_WS)}, 0 offen sc1")
        e(f"buffer_load_dword v214, v13, {srd(S_WS)}, 0 offen offset:128 sc1")
        e("s_mov_b64 exec, -1")
        e("s_branch L_TWE")
        a.lab("L_TW1")
        e(f"s_cmp_eq_u32 s{sU}, 1"); e("s_cbranch_scc0 L_TW2")
        e(f"s_lshr_b32 s{sT2}, s{sT3}, 2"); e(f"s_lshl_b32 s{sT2}, s{sT2}, 18")
        e(f"v_mov_b32 v13, 0")
        e("s_mov_b64 exec, 1")
        e(f"buffer_load_dword v215, v13, {srd(S_OUT)}, s{sT2} offen")
        e(f"buffer_load_dword v214, v13, {srd(S_DBG)}, 0 offen sc1")
        e("s_mov_b64 exec, -1")
        e("s_branch L_TWE")
        a.lab("L_TW2")
        e(f"s_cmp_eq_u32 s{sU}, 2"); e("s_cbranch_scc0 L_TW3")
        e(f"v_mov_b32 v13, 0")
        e("s_mov_b64 exec, 1")
        e(f"buffer_load_dword v215, v13, {srd(S_WOA)}, 0 offen")
        e(f"buffer_load_dword v214, v13, {srd(S_WOB)}, 0 offen")
        e("s_mov_b64 exec, -1")
        e("s_branch L_TWE")
        a.lab("L_TW3")
        e(f"v_mov_b32 v13, 0")
        e("s_mov_b64 exec, 1")
        e(f"buffer_load_dword v215, v13, {srd(S_GW)}, 0 offen")
        e(f"buffer_load_dword v214, v13, {srd(S_GW)}, 0 offen offset:128")
        e("s_mov_b64 exec, -1")
        a.lab("L_TWE")
        a.vm += ["warm", "warm"]
    issue(0)
    issue(1)
    mk_rest()
    if opt.warm == 2: tlb_warm()
    e(f"s_or_b32 s{sT1}, s2, s{sU}")
    e(f"s_cmp_lg_u32 s{sT1}, 0")
    e("s_cbranch_scc1 L_NONCE_SKIP0")
    e(f"v_mov_b32 v13, 0")
    e(f"buffer_load_dword v14, v13, {srd(S_WS)}, 0 offen sc1")
    a.lab("L_NONCE_SKIP0")
    stamp("issued")
    a.vmwait("c0")
    e("s_barrier")
    stamp("first data")
    issue(2)
    if opt.warm == 3 or opt.tlb == 1: tlb_warm()
    if opt.warm in (5, 6, 7):
        if opt.warm in (6, 7): e("s_branch L_F5_2")
        e(f"s_cmp_eq_u32 s{sU}, 0"); e("s_cbranch_scc0 L_F5_1")
        e(f"s_lshl_b32 s{sT2}, s{sC}, 5"); e(f"s_lshr_b32 s{sT3x}, s{sBH}, 3"); e(f"s_add_u32 s{sT2}, s{sT2}, s{sT3x}")
        e(f"s_lshl_b32 s{sT2}, s{sT2}, 7"); e(f"s_add_u32 s{sT2}, s{sT2}, {WS_OF}")
        e(f"v_and_b32 v13, 7, v0"); e(f"v_lshlrev_b32 v13, 9, v13")
        e("s_mov_b64 exec, 0xff")
        e(f"buffer_load_dword v215, v13, {srd(S_WS)}, s{sT2} offen sc1")
        e("s_branch L_F5_E")
        a.lab("L_F5_1")
        e(f"s_cmp_eq_u32 s{sU}, 1"); e("s_cbranch_scc0 L_F5_2")
        e(f"s_lshr_b32 s{sT2}, s{sT3}, 2"); e(f"s_lshl_b32 s{sT2}, s{sT2}, 3"); e(f"s_and_b32 s{sT3x}, s{sT3}, 3")
        e(f"s_add_u32 s{sT0}, s{sT2}, s{sT3x}"); e(f"s_sub_u32 s{sT3x}, 7, s{sT3x}"); e(f"s_add_u32 s{sT1}, s{sT2}, s{sT3x}")
        e(f"s_lshl_b32 s{sT0}, s{sT0}, 9"); e(f"s_lshl_b32 s{sT1}, s{sT1}, 9"); e(f"s_sub_u32 s{sT1}, s{sT1}, s{sT0}")
        e(f"s_sub_u32 s{sT1}, s{sT1}, 512"); e(f"s_add_u32 s{sT0}, s{sT0}, {WS_OF}")
        e(f"v_and_b32 v13, 7, v0"); e(f"v_lshlrev_b32 v13, 7, v13"); e(f"v_bfe_u32 v15, v0, 2, 1"); e(f"v_mul_lo_u32 v15, v15, s{sT1}"); e(f"v_add_u32 v13, v13, v15")
        e("s_mov_b64 exec, 0xff")
        e(f"buffer_load_dword v215, v13, {srd(S_WS)}, s{sT0} offen sc1")
        e("s_branch L_F5_E")
        a.lab("L_F5_2")
        if opt.gwpf:
            e(f"s_cmp_eq_u32 s{sU}, 3"); e("s_cbranch_scc0 L_F5_3")
            e(f"v_and_b32 v13, 7, v0"); e(f"v_lshlrev_b32 v13, 7, v13")
            e("s_mov_b64 exec, 0xff")
            e(f"buffer_load_dword v215, v13, {srd(S_GW)}, 0 offen")
            e("s_branch L_F5_E")
            a.lab("L_F5_3")
        e(f"s_lshl_b32 s{sT2}, s{sC}, 5"); e(f"s_add_u32 s{sT2}, s{sT2}, s{sBH}"); e(f"s_lshl_b32 s{sT2}, s{sT2}, 7"); e(f"s_add_u32 s{sT2}, s{sT2}, {WS_KVF - 4096}")
        e(f"v_and_b32 v13, 1, v0"); e(f"v_lshlrev_b32 v13, 12, v13")
        e("s_mov_b64 exec, 3")
        e(f"buffer_load_dword v215, v13, {srd(S_WS)}, s{sT2} offen sc1")
        a.lab("L_F5_E")
        e("s_mov_b64 exec, -1")
        a.vm += ["warm"]
    e(f"s_or_b32 s{sT1}, s2, s{sU}")
    e(f"s_cmp_lg_u32 s{sT1}, 0")
    e("s_cbranch_scc1 L_NONCE_SKIP1")
    e("s_waitcnt vmcnt(11)")
    e(f"v_readfirstlane_b32 s{sT2}, v14")
    e(f"v_mov_b32 v13, 0")
    e("s_nop 3")
    e(f"s_add_u32 s{sT2}, s{sT2}, 1")
    e(f"s_max_u32 s{sT2}, s{sT2}, 1")
    e(f"v_mov_b32 v14, s{sT2}")
    e(f"buffer_store_dword v14, v13, {srd(S_DBG)}, 0 offen sc1")
    e(f"buffer_store_dword v14, v13, {srd(S_WS)}, 0 offen sc1")
    a.lab("L_NONCE_SKIP1")
    a.vmwait("c1")
    e("s_barrier")
    for j in range(6):
        if j + 3 <= 7: issue(j + 3)
        if j + 3 == 7:
            if opt.tagearly:
                e(f"v_mov_b32 v13, 0")
                a.vmop(f"buffer_load_dword v14, v13, {srd(S_DBG)}, 0 offen sc1", "tag")
            if opt.wopf == 1: wo_pf()
            if opt.warm == 1:
                lab = "L_WARM"
                e(f"s_cmp_eq_u32 s{sU}, 0"); e(f"s_cbranch_scc0 {lab}1")
                e(f"s_lshl_b32 s{sT2}, s{sC}, 5"); e(f"s_lshr_b32 s{sT3x}, s{sBH}, 3"); e(f"s_add_u32 s{sT2}, s{sT2}, s{sT3x}")
                e(f"s_lshl_b32 s{sT2}, s{sT2}, 10"); e(f"s_add_u32 s{sT2}, s{sT2}, {WS_OF}")
                e(f"v_lshrrev_b32 v13, 3, v0"); e(f"v_lshlrev_b32 v13, 12, v13"); e(f"v_and_b32 v15, 7, v0"); e(f"v_lshl_add_u32 v13, v15, 7, v13")
                e(f"buffer_load_dword v215, v13, {srd(S_WS)}, s{sT2} offen sc1")
                e(f"s_branch {lab}E")
                a.lab(f"{lab}1")
                e(f"s_cmp_eq_u32 s{sU}, 1"); e(f"s_cbranch_scc0 {lab}2")
                e(f"s_lshl_b32 s{sT2}, s{sC}, 4"); e(f"s_add_u32 s{sT2}, s{sT2}, s{sBR}"); e(f"s_lshl_b32 s{sT2}, s{sT2}, 5")
                e(f"s_lshl_b32 s{sT3x}, s{sHG}, 1"); e(f"s_add_u32 s{sT2}, s{sT2}, s{sT3x}"); e(f"s_lshl_b32 s{sT2}, s{sT2}, 10")
                e(f"s_add_u32 s{sT2}, s{sT2}, {WS_O}")
                e(f"v_lshrrev_b32 v13, 3, v0"); e(f"v_lshlrev_b32 v13, 16, v13"); e(f"v_and_b32 v15, 7, v0"); e(f"v_lshl_add_u32 v13, v15, 8, v13")
                e(f"buffer_load_dword v215, v13, {srd(S_WS)}, s{sT2} offen sc1")
                e(f"s_branch {lab}E")
                a.lab(f"{lab}2")
                e(f"s_cmp_eq_u32 s{sU}, 2"); e(f"s_cbranch_scc0 {lab}3")
                e(f"s_lshl_b32 s{sT2}, s{sC}, 5"); e(f"s_add_u32 s{sT2}, s{sT2}, s{sBH}"); e(f"s_lshl_b32 s{sT2}, s{sT2}, 7")
                e(f"s_add_u32 s{sT2}, s{sT2}, {WS_KVF}")
                e(f"v_mov_b32 v13, 0")
                e(f"buffer_load_dword v215, v13, {srd(S_WS)}, s{sT2} offen sc1")
                e(f"s_branch {lab}E")
                a.lab(f"{lab}3")
                e(f"s_lshr_b32 s{sT2}, s{sT3}, 2"); e(f"s_lshl_b32 s{sT2}, s{sT2}, 18"); e(f"s_lshl_b32 s{sT3x}, s{sN3}, 7"); e(f"s_add_u32 s{sT2}, s{sT2}, s{sT3x}")
                e(f"v_lshlrev_b32 v13, 12, v0")
                e(f"buffer_load_dword v215, v13, {srd(S_OUT)}, s{sT2} offen")
                a.lab(f"{lab}E")
                a.vm += ["warm"]
        if j + 2 <= 7: a.vmwait(f"c{j+2}")
        e("s_barrier")
    stamp("gemm done")
    if opt.wopf == 2: wo_pf()
    for l in init_list(): e(l)
    for i in range(32): e(f"v_mov_b32 v{OA+i}, 0")
    if opt.mke:
        e(f"s_mov_b32 s{sT2}, 0xff800000")
        for r in range(16): e(f"v_xor_b32 v{MKE+r}, s{sT2}, v{MK+r}")
    e(f"s_cmp_lg_u32 s{sU}, 0")
    e("s_cbranch_scc1 L_B1")
    e(f"s_mov_b32 s{sSPIN}, 0")
    e(f"v_mov_b32 v15, 0")
    if not opt.tagearly:
        e(f"buffer_load_dword v14, v15, {srd(S_DBG)}, 0 offen sc1")
    else:
        a.vmwait("tag")
        e("s_branch L_TAG_CHK")
    a.lab("L_TAG_LOOP")
    e("s_waitcnt vmcnt(0)")
    a.lab("L_TAG_CHK")
    e(f"s_add_u32 s{sSPIN}, s{sSPIN}, 1")
    e(f"v_readfirstlane_b32 s{sTAG}, v14")
    e("s_nop 3")
    e(f"s_cmp_lg_u32 s{sTAG}, 0")
    e("s_cbranch_scc1 L_TAG_OK")
    e(f"s_cmp_gt_u32 s{sSPIN}, {opt.spin}")
    e("s_cbranch_scc1 L_TAG_OK")
    e(f"buffer_load_dword v14, v15, {srd(S_DBG)}, 0 offen sc1")
    e("s_branch L_TAG_LOOP")
    a.lab("L_TAG_OK")
    e(f"v_mov_b32 v15, {LDS_TAG}")
    e(f"ds_write_b32 v15, v14")
    if opt.lfirst:
        e("s_branch L_B1")
        comp = a.lines[i_comp:i_load]; load = a.lines[i_load:]
        a.lines = a.lines[:i_comp] + load + comp
    a.lab("L_B1")
    a.vm = []; a.lg = []
    e("s_waitcnt lgkmcnt(0)")
    e("s_barrier")
    stamp("B1")
    e(f"v_mov_b32 v15, {LDS_TAG}")
    e(f"ds_read_b32 v14, v15")
    e(f"s_mul_i32 s{sT2}, s{sTAU}, {REG}")
    e(f"v_add_u32 v13, s{sT2}, v{vL16}")
    for h in range(2):
        e(f"ds_read_b128 {vr(QF+4*h,4)}, v13 offset:{8192+h*1024}")

    def kread(h, extra=0): e(f"ds_read_b128 {vr(KF+4*h,4)}, v{vK} offset:{h*1024+extra}")
    def vreads(h, extra=0):
        e(f"s_mov_b64 exec, s[{sVM}:{sVM+1}]")
        for s in range(2):
            e(f"ds_read_b128 {vr(VF+8*h+4*s,4)}, v{vK} offset:{2048+s*1024+h*256+extra}")
        e("s_mov_b64 exec, -1")
    def seg(h, prev, nxt, kx=0, vx=0):
        o = 1 - h
        S = SS + 16 * h; O = OA + 16 * h
        ex = lambda i: e(f"v_exp_f32 v{S+i}, v{S+i}")
        ex(0); ex(1)
        if prev: mfma(OA + 16 * o, VF + 8 * o + 4, PP + 4, OA + 16 * o)
        ex(2); ex(3)
        if nxt: vreads(o, vx)
        ex(4); ex(5)
        if nxt:
            mfma(SS + 16 * o, KF + 4 * o, QF + 4 * o, "0")
            kread(o, kx)
        ex(6); ex(7)
        for i in range(4): e(cvt(PP + i, S + 2 * i, S + 2 * i + 1))
        ex(8)
        e(f"s_waitcnt lgkmcnt({3 if nxt else 0})")
        ex(9)
        mfma(O, VF + 8 * h, PP, O)
        for i in range(10, 16): ex(i)
        for i in range(4, 8): e(cvt(PP + i, S + 2 * i, S + 2 * i + 1))
    def part(name, first_s, rest_s, cnt_s, hook=None):
        MKx = MK if name == "OWN" or not opt.mke else MKE
        a.c(f"---- attention part {name} ----")
        e(f"v_add_u32 v{vK}, s{first_s}, v{vL16}")
        kread(0); kread(1)
        e(f"s_sub_u32 s{sT2}, s{rest_s}, s{first_s}")
        e(f"s_mov_b32 s{sCNT}, s{cnt_s}")
        e("s_waitcnt lgkmcnt(0)")
        if name == "OWN": e(f"v_readfirstlane_b32 s{sTAG}, v14")
        mfma(SS, KF, QF, MKx)
        mfma(SS + 16, KF + 4, QF + 4, MKx)
        vreads(0); vreads(1)
        e(f"v_add_u32 v{vK}, s{sT2}, v{vK}")
        kread(0); kread(1)
        e("s_waitcnt lgkmcnt(2)")
        seg(0, prev=False, nxt=False)
        if hook: hook()
        e(f"s_cmp_eq_u32 s{sCNT}, 0")
        e(f"s_cbranch_scc1 L_{name}_LAST")
        e(f"s_sub_u32 s{sCNT}, s{sCNT}, 1")
        a.lab(f"L_{name}_LOOP")
        seg(1, prev=True, nxt=True, kx=REG, vx=0)
        seg(0, prev=True, nxt=True, kx=REG, vx=0)
        e(f"v_add_u32 v{vK}, {REG}, v{vK}")
        e(f"s_sub_u32 s{sCNT}, s{sCNT}, 1")
        e(f"s_cbranch_scc0 L_{name}_LOOP")
        a.lab(f"L_{name}_LAST")
        seg(1, prev=True, nxt=False)
        e("s_nop 1")
        mfma(OA + 16, VF + 12, PP + 4, OA + 16)
    def kvflag():
        e("s_waitcnt vmcnt(0)")
        e(f"v_lshlrev_b32 v13, 2, v0")
        e(f"v_mov_b32 v14, s{sTAG}")
        e("s_mov_b64 exec, 3")
        e(f"buffer_store_dword v14, v13, {srd(S_WS)}, s{sKVO} offen sc1")
        e("s_mov_b64 exec, -1")
    a.vm = []
    e(f"s_mul_i32 s{sT0}, s{sTAU}, {REG}")
    e(f"s_mov_b32 s{sT1}, 0")
    def hook():
        e(f"s_cmp_ge_u32 s{sW}, 4")
        e("s_cbranch_scc1 L_KVF_DONE")
        kvflag()
        a.lab("L_KVF_DONE")
    if opt.prio == 2:
        e(f"s_cmp_lt_u32 s{sW}, 4")
        e("s_cbranch_scc1 L_PRIO_SKIP")
        e("s_setprio 1")
        a.lab("L_PRIO_SKIP")
    part("OWN", sT0, sT1, sTAU, hook=hook)
    stamp("own done")
    def gate_loads():
        if opt.gate4:
            e(f"s_and_b32 s{sT2}, s{sT3}, 3")
            e(f"s_sub_u32 s{sT3x}, 7, s{sT2}")
            e(f"s_cmp_lt_u32 s{sQ}, 2")
            e(f"s_cselect_b32 s{sT2}, s{sT2}, s{sT3x}")
            e(f"s_lshr_b32 s{sT3x}, s{sT3}, 2")
            e(f"s_lshl_b32 s{sT3x}, s{sT3x}, 3")
            e(f"s_add_u32 s{sT2}, s{sT2}, s{sT3x}")
            e(f"s_lshl_b32 s{sT2}, s{sT2}, 15")
            e(f"s_and_b32 s{sT3x}, s{sQ}, 1")
            e(f"s_lshl_b32 s{sT3x}, s{sT3x}, 14")
            e(f"s_add_u32 s{sT2}, s{sT2}, s{sT3x}")
            n = 16
        else:
            e(f"s_lshl_b32 s{sT2}, s{sTT3}, 15")
            e(f"s_lshl_b32 s{sT3x}, s{sQ}, 13")
            e(f"s_add_u32 s{sT2}, s{sT2}, s{sT3x}")
            n = 8
        e(f"buffer_load_dwordx4 {vr(GW,4)}, v{vL16}, {srd(S_GW)}, 0 offen")
        for i in range(n):
            e(f"buffer_load_dwordx4 {vr(GX+4*i,4)}, v{vL16}, {srd(S_X)}, s{sT2} offen offset:{(i&3)*1024}")
            if (i & 3) == 3 and i < n - 1: e(f"s_add_u32 s{sT2}, s{sT2}, 4096")
    def prefill():
        if not opt.sent: return
        for i in range(4): e(f"v_mov_b32 v{128+i}, -1")
        e(f"s_lshl_b32 s{sT2}, s{sTT}, 1")
        e(f"s_add_u32 s{sT2}, s{sT2}, s{sBR}")
        e(f"s_lshl_b32 s{sT2}, s{sT2}, 5")
        e(f"s_lshl_b32 s{sT3x}, s{sHG}, 1")
        e(f"s_add_u32 s{sT2}, s{sT2}, s{sT3x}")
        e(f"s_lshl_b32 s{sT2}, s{sT2}, 10")
        e(f"s_add_u32 s{sT2}, s{sT2}, {WS_O}")
        for h in range(2):
            e(f"buffer_store_dwordx4 v[128:131], v{vL16}, {srd(S_WS)}, s{sT2} offen offset:{h*1024} sc1")
    def wo_voff():
        e(f"v_lshrrev_b32 v13, 3, v0")
        e(f"v_lshlrev_b32 v13, 10, v13")
        e(f"v_bfe_u32 v15, v0, 4, 1")
        e(f"v_lshlrev_b32 v15, 2, v15")
        e(f"v_xor_b32 v15, v15, v0")
        e(f"v_and_b32 v15, 7, v15")
        e(f"v_lshl_add_u32 v14, v15, 4, v13")
    def wo_dma(S, heads, kh, ldsaddr):
        for i in heads:
            sg, cst = ldsaddr(i)
            for hf in range(2):
                e(f"s_add_u32 s{sT3x}, s{sT5}, {(256*kh + 16*i + 8*hf)*1024}")
                e(f"s_add_u32 m0, s{sg}, {cst + hf*1024}")
                e("s_nop 0")
                e(f"buffer_load_dwordx4 v14, {srd(S)}, s{sT3x} offen lds")
    def wo_lin(S, sg, sl, n):
        e(f"s_mov_b32 m0, s{sl}")
        e("s_nop 0")
        for i in range(n):
            e(f"buffer_load_dwordx4 v14, {srd(S)}, s{sg} offen lds")
            if i < n - 1:
                e(f"s_add_u32 m0, m0, 1024")
                e(f"s_add_u32 s{sg}, s{sg}, 8192")
    def wo_early():
        wo_voff()
        e(f"s_lshl_b32 s{sT5}, s{sN3}, 7")
        e(f"s_and_b32 s{sT0}, s{sTAU}, 1")
        e(f"s_lshl_b32 s{sT0}, s{sT0}, 18")
        e(f"s_add_u32 s{sT0}, s{sT0}, s{sT5}")
        e(f"s_lshl_b32 s{sT1}, s{sTAU}, 14")
        e(f"s_add_u32 s{sT1}, s{sT1}, {LDS_A0}")
        lab = f"L_WE_{opt._n}"; opt._n += 1
        e(f"s_cmp_ge_u32 s{sTAU}, 2")
        e(f"s_cbranch_scc1 {lab}_B")
        e(f"s_mov_b32 s{sT4}, s{sT0}")
        wo_lin(S_WOA, sT4, sT1, 16)
        e(f"s_branch {lab}_E")
        a.lab(f"{lab}_B")
        e(f"s_mov_b32 s{sT4}, s{sT0}")
        wo_lin(S_WOB, sT4, sT1, 16)
        a.lab(f"{lab}_E")
    def halo_poll_load():
        n = opt._n; opt._n += 1
        e(f"s_sub_u32 s{sT2}, s{sC}, 1")
        e(f"s_lshl_b32 s{sT3x}, s{sT2}, 5")
        e(f"s_add_u32 s{sT3x}, s{sT3x}, s{sBH}")
        e(f"s_lshl_b32 s{sT3x}, s{sT3x}, 7")
        e(f"s_lshl_b32 s{sT4}, s{sTAU}, 3")
        e(f"s_add_u32 s{sT3x}, s{sT3x}, s{sT4}")
        e(f"s_add_u32 s{sT3x}, s{sT3x}, {WS_KVF}")
        e(f"v_and_b32 v13, 1, v0")
        e(f"v_lshlrev_b32 v13, 2, v13")
        e(f"s_mov_b32 s{sSPIN}, 0")
        a.lab(f"L_KVF_LOOP{n}")
        e(f"buffer_load_dword v15, v13, {srd(S_WS)}, s{sT3x} offen sc1")
        e(f"s_add_u32 s{sSPIN}, s{sSPIN}, 1")
        e("s_waitcnt vmcnt(0)")
        e(f"v_cmp_ne_u32 vcc, s{sTAG}, v15")
        e(f"s_cmp_gt_u32 s{sSPIN}, {opt.spin}")
        e(f"s_cbranch_scc1 L_KVF_OK{n}")
        e(f"s_cbranch_vccnz L_KVF_LOOP{n}")
        a.lab(f"L_KVF_OK{n}")
        stamp("roleA")
        e(f"s_lshl_b32 s{sT3x}, s{sBH}, 6")
        e(f"s_lshl_b32 s{sT2}, s{sT2}, 3")
        e(f"s_add_u32 s{sT3x}, s{sT3x}, s{sT2}")
        e(f"s_lshl_b32 s{sT2}, s{sTAU}, 1")
        e(f"s_add_u32 s{sT3x}, s{sT3x}, s{sT2}")
        e(f"s_lshl_b32 s{sT3x}, s{sT3x}, 12")
        e(f"s_add_u32 s{sT3x}, s{sT3x}, {WS_KV}")
        for j in range(2):
            for i in range(4):
                e(f"buffer_load_dwordx4 {vr(HT+16*j+4*i,4)}, v{vL16}, {srd(S_WS)}, s{sT3x} offen offset:{i*1024} sc1")
            if j < 1: e(f"s_add_u32 s{sT3x}, s{sT3x}, 4096")
    def halo_write(younger):
        e(f"s_mul_i32 s{sT2}, s{sTAU}, {2*REG}")
        e(f"s_add_u32 s{sT2}, s{sT2}, 4096")
        e(f"v_add_u32 v13, s{sT2}, v{vL16}")
        for j in range(2):
            e(f"s_waitcnt vmcnt({younger+4-4*j})")
            for i in range(4):
                e(f"ds_write_b128 v13, {vr(HT+16*j+4*i,4)} offset:{j*REG+i*1024}")
    opt._n = 0
    NE = 16
    NG = 0 if opt.gate4 else 9
    e(f"s_cmp_gt_u32 s{sTAU}, 3")
    e("s_cbranch_scc0 L_ROLE_LO")
    if opt.sent == 2: prefill()
    e("s_branch L_HALO_BAR")
    a.lab("L_ROLE_LO")
    if opt.mke:
        e(f"s_mov_b32 s{sT2}, 0xff800000")
        for r in range(16): e(f"v_xor_b32 v{MKE+r}, s{sT2}, v{MK+r}")
    e(f"s_cmp_eq_u32 s{sC}, 0")
    e("s_cbranch_scc1 L_ROLE_C0")
    e(f"s_cmp_gt_u32 s{sTAU}, 1")
    e("s_cbranch_scc1 L_ROLE_HI")
    wo_early()
    halo_poll_load()
    if not opt.gate4: gate_loads()
    halo_write(NG)
    e("s_waitcnt lgkmcnt(0)")
    stamp("roleB")
    e("s_branch L_HALO_BAR")
    a.lab("L_ROLE_HI")
    halo_poll_load()
    wo_early()
    if not opt.gate4: gate_loads()
    halo_write(NE + NG)
    e(f"s_waitcnt vmcnt({NG}) lgkmcnt(0)")
    stamp("roleB")
    e("s_branch L_HALO_BAR")
    a.lab("L_ROLE_C0")
    wo_early()
    if not opt.gate4: gate_loads()
    e(f"s_waitcnt vmcnt({NG})")
    a.lab("L_HALO_BAR")
    if not opt.mke:
        e(f"s_mov_b32 s{sT2}, 0xff800000")
        for r in range(16): e(f"v_xor_b32 v{MK+r}, s{sT2}, v{MK+r}")
    e("s_barrier")
    stamp("B2")
    e(f"s_cmp_ge_u32 s{sTAU}, 4")
    e("s_cbranch_scc1 L_LATE_S")
    prefill()
    e("s_branch L_LATE_E")
    a.lab("L_LATE_S")
    if opt.warm in (4, 6, 7):
        assert not opt.rep
        e(f"s_cmp_eq_u32 s{sW}, 4"); e("s_cbranch_scc0 L_FW_E")
        e(f"s_lshl_b32 s{sT2}, s{sC}, 5"); e(f"s_lshr_b32 s{sT3x}, s{sBH}, 3"); e(f"s_add_u32 s{sT2}, s{sT2}, s{sT3x}")
        e(f"s_lshl_b32 s{sT2}, s{sT2}, 7"); e(f"s_add_u32 s{sT2}, s{sT2}, {WS_OF}")
        e(f"v_lshlrev_b32 v13, 9, v0"); e(f"v_add_u32 v13, s{sT2}, v13")
        e("s_mov_b64 exec, 0xff")
        e(f"buffer_load_dword v215, v13, {srd(S_WS)}, 0 offen sc1")
        e("s_mov_b64 exec, -1")
        e(f"s_lshr_b32 s{sT2}, s{sT3}, 2"); e(f"s_lshl_b32 s{sT2}, s{sT2}, 3"); e(f"s_and_b32 s{sT3x}, s{sT3}, 3")
        e(f"s_add_u32 s{sT0}, s{sT2}, s{sT3x}"); e(f"s_sub_u32 s{sT3x}, 7, s{sT3x}"); e(f"s_add_u32 s{sT1}, s{sT2}, s{sT3x}")
        e(f"s_lshl_b32 s{sT0}, s{sT0}, 9"); e(f"s_lshl_b32 s{sT1}, s{sT1}, 9")
        e(f"s_add_u32 s{sT0}, s{sT0}, {WS_OF}"); e(f"s_add_u32 s{sT1}, s{sT1}, {WS_OF}")
        e(f"v_lshlrev_b32 v13, 7, v0")
        e("s_mov_b64 exec, 15")
        e(f"buffer_load_dword v215, v13, {srd(S_WS)}, s{sT0} offen sc1")
        e(f"buffer_load_dword v214, v13, {srd(S_WS)}, s{sT1} offen sc1")
        e("s_mov_b64 exec, -1")
        a.lab("L_FW_E")
        if opt.warm == 7:
            e(f"s_cmp_eq_u32 s{sW}, 5"); e("s_cbranch_scc0 L_FW_F")
            e(f"s_lshr_b32 s{sT2}, s{sT3}, 2"); e(f"s_lshl_b32 s{sT2}, s{sT2}, 3"); e(f"s_and_b32 s{sT3x}, s{sT3}, 3")
            e(f"s_add_u32 s{sT0}, s{sT2}, s{sT3x}"); e(f"s_sub_u32 s{sT3x}, 7, s{sT3x}"); e(f"s_add_u32 s{sT1}, s{sT2}, s{sT3x}")
            e(f"s_sub_u32 s{sT1}, s{sT1}, s{sT0}"); e(f"s_sub_u32 s{sT1}, s{sT1}, 1"); e(f"s_lshl_b32 s{sT1}, s{sT1}, 15")
            e(f"s_lshl_b32 s{sT0}, s{sT0}, 15"); e(f"s_lshl_b32 s{sT3x}, s{sN3}, 7"); e(f"s_add_u32 s{sT0}, s{sT0}, s{sT3x}")
            e(f"v_lshlrev_b32 v13, 10, v0"); e(f"v_lshrrev_b32 v15, 5, v0"); e(f"v_mul_lo_u32 v15, v15, s{sT1}"); e(f"v_add_u32 v13, v13, v15")
            e(f"buffer_load_dword v215, v13, {srd(S_OUT)}, s{sT0} offen")
            a.lab("L_FW_F")
    wo_voff()
    e(f"s_sub_u32 s{sT2}, 7, s{sTAU}")
    e(f"s_lshl_b32 s{sT5}, s{sN3}, 7")
    e(f"s_and_b32 s{sT0}, s{sT2}, 1")
    e(f"s_lshl_b32 s{sT0}, s{sT0}, 18")
    e(f"s_add_u32 s{sT0}, s{sT0}, s{sT5}")
    e(f"s_add_u32 s{sT0}, s{sT0}, {128*1024}")
    e(f"s_mul_i32 s{sT1}, s{sT2}, {2*REG}")
    def late(S):
        for (reg, slot) in ((0, 8192), (1, 8192), (0, 0), (1, 0)):
            e(f"s_add_u32 s{sT3x}, s{sT1}, {reg*REG + slot}")
            wo_lin(S, sT0, sT3x, 4)
            e(f"s_add_u32 s{sT0}, s{sT0}, 8192")
    e(f"s_cmp_ge_u32 s{sT2}, 2")
    e("s_cbranch_scc1 L_LATE_B")
    late(S_WOA)
    e("s_branch L_LATE_G")
    a.lab("L_LATE_B")
    late(S_WOB)
    a.lab("L_LATE_G")
    gate_loads()
    if opt.prio: e("s_setprio 1")
    a.lab("L_LATE_E")
    e(f"s_cmp_eq_u32 s{sC}, 0")
    e("s_cbranch_scc1 L_P2_EPI")
    e(f"s_mul_i32 s{sT0}, s{sTAU}, {REG}")
    e(f"s_add_u32 s{sT0}, s{sT0}, 4096")
    e(f"s_add_u32 s{sT1}, s{sT0}, {REG}")
    e(f"s_sub_u32 s{sT4}, 7, s{sTAU}")
    part("HALO", sT0, sT1, sT4)
    a.lab("L_P2_EPI")
    stamp("attn done")
    lo, hi = f32bits(2.0 ** -64), f32bits(2.0 ** 64)
    e(f"s_mov_b32 s{sT0}, {hex(lo)}")
    e(f"s_mov_b32 s{sT1}, {hex(hi)}")
    e(f"s_lshl_b32 s{sKVO}, s{sTT}, 1")
    e(f"s_add_u32 s{sKVO}, s{sKVO}, s{sBR}")
    e(f"s_lshl_b32 s{sKVO}, s{sKVO}, 5")
    e(f"s_lshl_b32 s{sT3x}, s{sHG}, 1")
    e(f"s_add_u32 s{sKVO}, s{sKVO}, s{sT3x}")
    e(f"s_lshl_b32 s{sKVO}, s{sKVO}, 10")
    e(f"s_add_u32 s{sKVO}, s{sKVO}, {WS_O}")
    e(f"s_lshl_b32 s{sT2}, s{sTT}, 2")
    e(f"s_lshr_b32 s{sT3x}, s{sBH}, 3")
    e(f"s_add_u32 s{sT2}, s{sT2}, s{sT3x}")
    e(f"s_lshl_b32 s{sT2}, s{sT2}, {10 if opt.rep else 7}")
    e(f"s_and_b32 s{sT3x}, s{sBH}, 7")
    e(f"s_lshl_b32 s{sT3x}, s{sT3x}, 2")
    e(f"s_add_u32 s{sT2}, s{sT2}, s{sT3x}")
    e(f"s_add_u32 s{sOFA}, s{sT2}, {WS_OF}")
    e("s_nop 2")
    if opt.fallback:
        for h in range(2):
            O = OA + 16 * h
            e(f"v_mul_f32 v13, 0, v{O}")
            for i in range(1, 8): e(f"v_fmac_f32 v13, 0, v{O+i}")
            e(f"v_cmp_nle_f32 vcc, s{sT0}, v{O+8}")
            e(f"s_mov_b64 s[74:75], vcc")
            e(f"v_cmp_nge_f32 vcc, s{sT1}, v{O+8}")
            e("s_or_b64 s[74:75], s[74:75], vcc")
            e(f"v_cmp_u_f32 vcc, v13, v13")
            e("s_or_b64 s[74:75], s[74:75], vcc")
            e("s_cmp_lg_u64 s[74:75], 0")
            e(f"s_cselect_b32 s{sT2}, {1<<h}, 0")
            e(f"s_or_b32 s{sFAIL}, s{sFAIL}, s{sT2}")
        if opt.forcefb: e(f"s_or_b32 s{sFAIL}, s{sFAIL}, {opt.forcefb}")
        e(f"s_cmp_lg_u32 s{sFAIL}, 0")
        e("s_cbranch_scc1 L_FB_ENTRY")
        a.lab("L_NOFB")
    else:
        e("s_nop 7")
    if opt.sent:
        e(f"s_cmp_ge_u32 s{sW}, 4")
        e("s_cbranch_scc1 L_NOSENT0")
        e("s_waitcnt vmcnt(0)")
        e("s_branch L_NOSENT")
        a.lab("L_NOSENT0")
        if opt.sent == 2: e("s_waitcnt vmcnt(25)")
        a.lab("L_NOSENT")
    for h in range(2):
        e(f"v_rcp_f32 v{13+h}, v{OA+16*h+8}")
    for h in range(2):
        O = OA + 16 * h
        for i in range(8): e(f"v_mul_f32 v{O+i}, v{O+i}, v{13+h}")
        for i in range(4): e(cvt(O + 8 + i, O + 2 * i, O + 2 * i + 1))
        if opt.sent:
            for i in range(4): e(f"v_min_u32 v{O+8+i}, -2, v{O+8+i}")
        e(f"buffer_store_dwordx4 {vr(O+8,4)}, v{vL16}, {srd(S_WS)}, s{sKVO} offen offset:{h*1024} sc1")
    if opt.sent:
        if opt.sent != 2:
            e(f"s_cmp_ge_u32 s{sW}, 4")
            e("s_cbranch_scc1 L_NOHINT")
        e(f"v_lshlrev_b32 v13, 7, v0")
        e(f"v_mov_b32 v14, s{sTAG}")
        e(f"s_mov_b64 exec, {'0xff' if opt.rep else 1}")
        e(f"buffer_store_dword v14, v13, {srd(S_WS)}, s{sOFA} offen sc1")
        e("s_mov_b64 exec, -1")
        stamp("O published")
        a.lab("L_NOHINT")
    WF3, OF3, AC3 = 16, 144, 208
    e(f"v_lshrrev_b32 v1, 5, v0")
    e(f"v_lshlrev_b32 v1, 9, v1")
    e(f"v_bfe_u32 v2, v0, 2, 2")
    e(f"v_lshl_add_u32 v1, v2, 7, v1")
    e(f"v_bfe_u32 v2, v0, 3, 1")
    e(f"v_lshl_add_u32 v1, v2, 6, v1")
    e(f"v_bfe_u32 v2, v0, 4, 1")
    e(f"v_lshl_add_u32 v1, v2, 5, v1")
    e(f"v_and_b32 v2, 3, v0")
    e(f"v_lshl_add_u32 v1, v2, 3, v1")
    e(f"s_lshl_b32 s{sT2}, s{sQ}, 14")
    e(f"s_add_u32 s{sT2}, s{sT2}, {LDS_A0}")
    e(f"s_mul_i32 s{sT3x}, s{sQ}, {2*REG}")
    e(f"v_xor_b32 v2, 64, v1")
    vA = [244, 245]; vB = [246, 247]
    e(f"v_add_u32 v{vA[0]}, s{sT2}, v1")
    e(f"v_add_u32 v{vA[1]}, s{sT2}, v2")
    e(f"v_add_u32 v{vB[0]}, s{sT3x}, v1")
    e(f"v_add_u32 v{vB[1]}, s{sT3x}, v2")
    def trw(i):
        for ct in range(2):
            for u in range(2):
                if i < 8: ad, off = vA[ct], i * 2048
                elif i < 12: ad, off = vB[ct], ((i - 8) >> 1) * REG + 8192 + ((i - 8) & 1) * 2048
                else: ad, off = vB[ct], ((i - 12) >> 1) * REG + ((i - 12) & 1) * 2048
                e(f"ds_read_b64_tr_b16 {vr(WF3+8*i+4*ct+2*u,2)}, v{ad} offset:{off+u*1024}")
    for i in range(8): trw(i)
    e(f"s_lshl_b32 s{sT1}, s{sTT3}, 2")
    e(f"s_add_u32 s{sT1}, s{sT1}, s{sQ}")
    if opt.rep:
        e(f"s_lshl_b32 s{sT1}, s{sT1}, 3")
        e(f"s_add_u32 s{sT1}, s{sT1}, s{sN3}")
    e(f"s_lshl_b32 s{sT1}, s{sT1}, 7")
    e(f"s_add_u32 s{sT1}, s{sT1}, {WS_OF}")
    e(f"s_lshl_b32 s{sT0}, s{sTT3}, 1")
    e(f"s_add_u32 s{sT0}, s{sT0}, s{sB3}")
    e(f"s_lshl_b32 s{sT0}, s{sT0}, 5")
    e(f"s_lshl_b32 s{sT3x}, s{sKH}, 4")
    e(f"s_add_u32 s{sT0}, s{sT0}, s{sT3x}")
    e(f"s_lshl_b32 s{sT0}, s{sT0}, 10")
    e(f"s_add_u32 s{sT0}, s{sT0}, {WS_O}")
    def oflag(wait=True):
        e(f"v_lshlrev_b32 v13, 7, v0")
        e(f"v_mov_b32 v14, s{sTAG}")
        if wait: e("s_waitcnt vmcnt(0)")
        e(f"s_mov_b64 exec, {'0xff' if opt.rep else 1}")
        e(f"buffer_store_dword v14, v13, {srd(S_WS)}, s{sOFA} offen sc1")
        e("s_mov_b64 exec, -1")
        stamp("O published")
    GR = 236
    def gate_round(gx, g_out, g1_out):
        for i in range(8): e(f"v_mov_b32 v{GA+i}, 0")
        for d in range(4):
            for i in range(8):
                e(f"v_dot2_f32_bf16 v{GA+i}, v{gx+4*i+d}, v{GW+d}, v{GA+i}")
        e("s_nop 4")
        for i in range(4): e(f"v_permlane32_swap_b32 v{GA+i}, v{GA+4+i}")
        for i in range(4): e(f"v_add_f32 v{GA+i}, v{GA+i}, v{GA+4+i}")
        e("s_nop 1")
        for i in range(2): e(f"v_permlane16_swap_b32 v{GA+i}, v{GA+2+i}")
        for i in range(2): e(f"v_add_f32 v{GA+i}, v{GA+i}, v{GA+2+i}")
        e("s_nop 1")
        for i in range(2): e(f"v_add_f32_dpp v{GA+i}, v{GA+i}, v{GA+i} row_ror:8 row_mask:0xf bank_mask:0xf")
        e("s_nop 1")
        e(f"v_mov_b32_dpp v{GA}, v{GA+1} quad_perm:[0,1,2,3] row_mask:0xf bank_mask:0xc")
        e("s_nop 1")
        e(f"v_add_f32_dpp v15, v{GA}, v{GA} quad_perm:[1,0,3,2] row_mask:0xf bank_mask:0xf")
        e("s_nop 1")
        e("v_add_f32_dpp v15, v15, v15 quad_perm:[2,3,0,1] row_mask:0xf bank_mask:0xf")
        e("s_nop 1")
        e("v_add_f32_dpp v15, v15, v15 row_half_mirror row_mask:0xf bank_mask:0xf")
        e("v_cvt_pk_bf16_f32 v15, v15, v15")
        e("v_and_b32 v15, 0xffff0000, v15")
        e(f"v_mul_f32 v15, {hex(f32bits(-math.log2(math.e)))}, v15")
        e("v_exp_f32 v15, v15")
        e("s_nop 0")
        e("v_add_f32 v15, 1.0, v15")
        e("v_rcp_f32 v15, v15")
        e("s_nop 0")
        e("v_cvt_pk_bf16_f32 v15, v15, v15")
        e(f"v_and_b32 v{g_out}, 0xffff0000, v15")
        e(f"v_sub_f32 v15, 1.0, v{g_out}")
        e("v_cvt_pk_bf16_f32 v15, v15, v15")
        e(f"v_and_b32 v{g1_out}, 0xffff0000, v15")
    def gate():
        if opt.gate4:
            gate_round(GX, GR, GR + 1); gate_round(GX + 32, GR + 2, GR + 3)
        else:
            gate_round(GX, GR, GR + 1)
    def gate_write():
        e(f"v_lshrrev_b32 v15, 3, v0")
        if opt.gate4:
            e(f"s_lshl_b32 s{sT2}, s{sQ}, 4")
        else:
            e(f"s_lshl_b32 s{sT2}, s{sW}, 3")
        e(f"v_add_u32 v15, s{sT2}, v15")
        e(f"v_lshlrev_b32 v15, 2, v15")
        e(f"ds_write_b32 v15, v{GR} offset:{LDS_GATE}")
        e(f"ds_write_b32 v15, v{GR+1} offset:{LDS_GATE+256}")
        if opt.gate4:
            e(f"ds_write_b32 v15, v{GR+2} offset:{LDS_GATE+32}")
            e(f"ds_write_b32 v15, v{GR+3} offset:{LDS_GATE+256+32}")
    def poll(name, first_issued, sleep):
        e(f"s_mov_b32 s{sSPIN}, 0")
        if not first_issued:
            e(f"buffer_load_dword v14, v13, {srd(S_WS)}, s{sT1} offen sc1")
        a.lab(f"L_OF_LOOP{name}")
        e("s_waitcnt vmcnt(0)")
        e(f"v_cmp_ne_u32 vcc, s{sTAG}, v14")
        e(f"s_add_u32 s{sSPIN}, s{sSPIN}, 1")
        e(f"s_cbranch_vccz L_OF_OK{name}")
        e(f"s_cmp_gt_u32 s{sSPIN}, {opt.spin}")
        e(f"s_cbranch_scc1 L_OF_OK{name}")
        if sleep: e(f"s_sleep {sleep}")
        e(f"buffer_load_dword v14, v13, {srd(S_WS)}, s{sT1} offen sc1")
        e(f"s_branch L_OF_LOOP{name}")
        a.lab(f"L_OF_OK{name}")
    def oloads(mod="sc1"):
        for i in range(16):
            e(f"buffer_load_dwordx4 {vr(OF3+4*i,4)}, v{vL16}, {srd(S_WS)}, s{sT0} offen offset:{(i&3)*1024} {mod}")
            if (i & 3) == 3 and i < 15: e(f"s_add_u32 s{sT0}, s{sT0}, 4096")
    def p3mfma(i0, i1):
        for i in range(i0, i1):
            e(f"s_waitcnt vmcnt({15-i})")
            for ct in range(2):
                mfma(AC3 + 16 * ct, WF3 + 8 * i + 4 * ct, OF3 + 4 * i, "0" if i == 0 else AC3 + 16 * ct)
    def late_part(gw=True):
        if gw: gate_write()
        for i in range(8, 16): trw(i)
    def p3mfma2():
        if opt.sent:
            e(f"s_mov_b32 s{sSPIN}, 0")
            a.lab("L_P3_RETRY")
            e("v_mov_b32 v15, 0")
        for i in range(16):
            if i == 8: e("s_waitcnt lgkmcnt(0)")
            e(f"s_waitcnt vmcnt({15-i})")
            for ct in range(2):
                mfma(AC3 + 16 * ct, WF3 + 8 * i + 4 * ct, OF3 + 4 * i, "0" if i == 0 else AC3 + 16 * ct)
                if opt.sent: e(f"v_max3_u32 v15, v15, v{OF3+4*i+2*ct}, v{OF3+4*i+2*ct+1}")
        if opt.sent:
            e("v_cmp_eq_u32 vcc, -1, v15")
            e(f"s_add_u32 s{sSPIN}, s{sSPIN}, 1")
            e("s_cbranch_vccz L_P3_DONE")
            e(f"s_cmp_gt_u32 s{sSPIN}, {opt.spin}")
            e("s_cbranch_scc1 L_P3_DONE")
            e(f"s_sub_u32 s{sT0}, s{sT0}, 12288")
            e("s_nop 7")
            oloads()
            e("s_branch L_P3_RETRY")
            a.lab("L_P3_DONE")
    e(f"s_cmp_eq_u32 s{sTQ}, 0")
    e("s_cbranch_scc1 L_P3_LATE")
    if opt.sent == 2: e("s_waitcnt vmcnt(3)")
    else: oflag()
    if opt.prio: e("s_setprio 0")
    if opt.early == 0:
        gate()
        e(f"v_and_b32 v13, 7, v0")
        e(f"v_lshlrev_b32 v13, 2, v13")
        e(f"buffer_load_dword v14, v13, {srd(S_WS)}, s{sT1} offen sc1")
        e("s_waitcnt lgkmcnt(0)")
        e("s_barrier")
        stamp("B3")
        poll("E", True, opt.sleep)
        stamp("O flags seen")
        oloads(opt.omod)
        late_part()
    else:
        e(f"v_and_b32 v13, 7, v0")
        e(f"v_lshlrev_b32 v13, 2, v13")
        e(f"buffer_load_dword v14, v13, {srd(S_WS)}, s{sT1} offen sc1")
        gate()
        for i in range(8, 16): trw(i)
        poll("E", True, opt.sleep)
        stamp("O flags seen")
        oloads(opt.omod)
        e("s_waitcnt lgkmcnt(0)")
        e("s_barrier")
        stamp("B3")
        gate_write()
    e("s_branch L_P3_J")
    a.lab("L_P3_LATE")
    if opt.sent:
        e(f"v_and_b32 v13, 7, v0")
        e(f"v_lshlrev_b32 v13, 2, v13")
        e(f"buffer_load_dword v14, v13, {srd(S_WS)}, s{sT1} offen sc1")
        if not opt.gate4: gate()
        e("s_waitcnt lgkmcnt(0)")
        e("s_barrier")
        stamp("B3")
    else:
        e("s_waitcnt vmcnt(2)")
        gate()
        oflag()
        e(f"v_and_b32 v13, 7, v0")
        e(f"v_lshlrev_b32 v13, 2, v13")
        e(f"buffer_load_dword v14, v13, {srd(S_WS)}, s{sT1} offen sc1")
        e("s_waitcnt lgkmcnt(0)")
        e("s_barrier")
        stamp("B3")
    late_part(not opt.gate4)
    poll("L", True, 0)
    stamp("O flags seen")
    oloads(opt.omod)
    a.lab("L_P3_J")
    p3mfma2()
    stamp("P3 mfma")
    e(f"s_lshl_b32 s{sT2}, s{sTQ}, 15")
    e(f"s_lshl_b32 s{sT3x}, s{sQ}, 11")
    e(f"s_add_u32 s{sT3x}, s{sT3x}, s{sT2}")
    e(f"s_add_u32 s{sT3x}, s{sT3x}, {LDS_RB}")
    e(f"v_add_u32 v1, s{sT3x}, v{vL16}")
    e(f"s_lshl_b32 s{sT3x}, s{sQ}, 13")
    e(f"s_add_u32 s{sT3x}, s{sT3x}, s{sT2}")
    e(f"s_add_u32 s{sT3x}, s{sT3x}, {LDS_RB}")
    e(f"v_add_u32 v2, s{sT3x}, v{vL16}")
    e(f"v_and_b32 v4, 31, v0")
    e(f"s_lshl_b32 s{sT2}, s{sTQ}, 5")
    e(f"v_add_u32 v3, s{sT2}, v4")
    e(f"v_lshlrev_b32 v3, 2, v3")
    e(f"v_lshlrev_b32 v4, 10, v4")
    e(f"v_lshrrev_b32 v5, 5, v0")
    e(f"v_lshl_add_u32 v4, v5, 4, v4")
    e(f"s_lshl_b32 s{sT2}, s{sTT3}, 15")
    e(f"s_lshl_b32 s{sT3x}, s{sN3}, 7")
    e(f"s_add_u32 s{sT2}, s{sT2}, s{sT3x}")
    e(f"s_lshl_b32 s{sT3x}, s{sQ}, 5")
    e(f"s_add_u32 s{sT2}, s{sT2}, s{sT3x}")
    e("s_nop 1")
    for qq in range(4):
        for hf in range(2):
            e(f"ds_write_b128 v1, {vr(AC3+8*qq+4*hf,4)} offset:{qq*8192+hf*1024}")
    e("s_waitcnt lgkmcnt(0)")
    e("s_barrier")
    R = 144
    e(f"ds_read_b32 v5, v3 offset:{LDS_GATE}")
    e(f"ds_read_b32 v6, v3 offset:{LDS_GATE+256}")
    for src in range(4):
        for hf in range(2):
            e(f"ds_read_b128 {vr(R+8*src+4*hf,4)}, v2 offset:{src*2048+hf*1024}")
    e("s_waitcnt lgkmcnt(4)")
    for i in range(8): e(f"v_add_f32 v{R+i}, v{R+i}, v{R+8+i}")
    for i in range(8): e(f"v_mul_f32 v{R+i}, v{R+i}, v5")
    e("s_waitcnt lgkmcnt(0)")
    for i in range(8): e(f"v_add_f32 v{R+16+i}, v{R+16+i}, v{R+24+i}")
    for i in range(8): e(f"v_fmac_f32 v{R+i}, v{R+16+i}, v6")
    for i in range(4): e(cvt(R + 32 + i, R + 2 * i, R + 2 * i + 1))
    e("s_nop 1")
    e(f"v_permlane32_swap_b32 v{R+32}, v{R+34}")
    e(f"v_permlane32_swap_b32 v{R+33}, v{R+35}")
    e(f"buffer_store_dwordx4 {vr(R+32,4)}, v4, {srd(S_OUT)}, s{sT2} offen {opt.outmod}")
    if STAMPS:
        stamp("end")
        e(f"s_memtime s[{sTM}:{sTM+1}]")
        e("s_waitcnt lgkmcnt(0)")
        e(f"s_sub_u32 s{STREG[nst[0]]}, s{sTM}, s100")
        nst[0] += 1
        opt.stamp_names.append("CYCLES")
        n = nst[0]
        e(f"s_lshl_b32 s{sT2}, s2, 3")
        e(f"s_add_u32 s{sT2}, s{sT2}, s{sW}")
        e(f"s_lshl_b32 s{sT2}, s{sT2}, 7")
        e(f"s_add_u32 s{sT2}, s{sT2}, {WS_STAMP}")
        e("v_mov_b32 v13, 0")
        e("s_mov_b64 exec, 1")
        for i in range(n):
            e(f"v_mov_b32 v14, s{STREG[i]}")
            e(f"buffer_store_dword v14, v13, {srd(S_WS)}, s{sT2} offen offset:{4*i}")
            e("s_nop 0")
        e("s_mov_b64 exec, -1")
    e("s_waitcnt vmcnt(0)")
    a.lab("L_END")
    e("s_endpgm")
    if opt.fallback:
        a.lab("L_FB_ENTRY")
        fallback(a, opt, dict(SS=SS, PP=PP, KF=KF, MK=MK, OA=OA, QF=QF, vL16=vL16, HT=144))
        e("s_branch L_NOFB")
    a.lab("L_CODE_END")
    return a

def fallback(a, opt, R):
    e = a.e
    SS, PP, KF, MK, OA, QF, vL16, HT = (R[k] for k in "SS PP KF MK OA QF vL16 HT".split())
    TQ = 64; TM = 68; TB = 69; TO = 144; TV = 192; TC = 176
    S = SS
    sHH, sPASS, sPART, sTILE, sN = sH, 40, 41, 42, 43
    def mfma(D, A, B, C): e(mfma_s(D, A, B, C))
    a.c("==== fallback: true max ====")
    e(f"s_lshl_b32 s{sT2}, s{sC}, 5")
    e(f"s_add_u32 s{sT2}, s{sT2}, s{sBH}")
    e(f"s_lshl_b32 s{sT2}, s{sT2}, 7")
    e(f"s_add_u32 s{sT2}, s{sT2}, {WS_KVF}")
    e(f"v_and_b32 v13, 7, v0")
    e(f"v_lshlrev_b32 v13, 2, v13")
    e(f"s_mov_b32 s{sSPIN}, 0")
    a.lab("L_FB_FLAG")
    e(f"buffer_load_dword v14, v13, {srd(S_WS)}, s{sT2} offen sc1")
    e(f"s_add_u32 s{sSPIN}, s{sSPIN}, 1")
    e("s_waitcnt vmcnt(0)")
    e(f"v_cmp_ne_u32 vcc, s{sTAG}, v14")
    e(f"s_cmp_gt_u32 s{sSPIN}, {opt.spin}")
    e("s_cbranch_scc1 L_FB_FLAG_OK")
    e("s_cbranch_vccnz L_FB_FLAG")
    a.lab("L_FB_FLAG_OK")
    e(f"s_mov_b32 s{sHH}, 0")
    a.lab("L_FB_H")
    e(f"s_lshr_b32 s{sT2}, s{sFAIL}, s{sHH}")
    e(f"s_and_b32 s{sT2}, s{sT2}, 1")
    e(f"s_cmp_eq_u32 s{sT2}, 0")
    e("s_cbranch_scc1 L_FB_NEXT")
    e(f"s_cmp_eq_u32 s{sHH}, 0")
    e("s_cbranch_scc0 L_FB_Q1")
    for i in range(4): e(f"v_mov_b32 v{TQ+i}, v{QF+i}")
    e("s_branch L_FB_Q2")
    a.lab("L_FB_Q1")
    for i in range(4): e(f"v_mov_b32 v{TQ+i}, v{QF+4+i}")
    a.lab("L_FB_Q2")
    e(f"v_mov_b32 v{TM}, 0xff800000")
    for i in range(16): e(f"v_mov_b32 v{TO+i}, 0")
    for i in range(8): e(f"v_mov_b32 v{TV+i}, 0x3f803f80")
    e(f"s_mov_b32 s{sPASS}, 0")
    a.lab("L_FB_PASS")
    e(f"s_mov_b32 s{sPART}, 0")
    a.lab("L_FB_PART")
    e(f"s_cmp_eq_u32 s{sPART}, 0")
    e(f"s_cselect_b32 s{sTILE}, 0, s{sTAU}")
    e(f"s_cselect_b32 s{sN}, s{sTAU}, 7")
    a.lab("L_FB_TILE")
    e(f"s_cmp_eq_u32 s{sTILE}, s{sTAU}")
    e("s_cbranch_scc1 L_FB_MASK")
    for i in range(16): e(f"v_mov_b32 v{TC+i}, 0")
    e("s_branch L_FB_C")
    a.lab("L_FB_MASK")
    e(f"v_and_b32 v13, 31, v0")
    e(f"v_lshrrev_b32 v14, 5, v0")
    e(f"v_lshlrev_b32 v14, 2, v14")
    e(f"v_sub_u32 v13, v13, v14")
    e(f"s_cmp_eq_u32 s{sPART}, 0")
    e(f"s_cselect_b32 s{sT2}, 0, 0xff800000")
    for r in range(16):
        kk = (r & 3) + 8 * (r >> 2)
        e(f"v_subrev_u32 v{TC+r}, {kk}, v13")
        e(f"v_ashrrev_i32 v{TC+r}, 31, v{TC+r}")
        e(f"v_and_b32 v{TC+r}, 0xff800000, v{TC+r}")
        e(f"v_xor_b32 v{TC+r}, s{sT2}, v{TC+r}")
    a.lab("L_FB_C")
    e(f"s_sub_u32 s{sT2}, s{sC}, s{sPART}")
    e(f"s_lshl_b32 s{sT2}, s{sT2}, 3")
    e(f"s_add_u32 s{sT2}, s{sT2}, s{sTILE}")
    e(f"s_lshl_b32 s{sT3x}, s{sBH}, 6")
    e(f"s_add_u32 s{sT2}, s{sT2}, s{sT3x}")
    e(f"s_lshl_b32 s{sT2}, s{sT2}, 12")
    e(f"s_add_u32 s{sT2}, s{sT2}, {WS_KV}")
    e(f"s_lshl_b32 s{sT3x}, s{sHH}, 10")
    e(f"s_add_u32 s{sT3x}, s{sT3x}, s{sT2}")
    e(f"buffer_load_dwordx4 {vr(KF,4)}, v{vL16}, {srd(S_WS)}, s{sT3x} offen sc1")
    e(f"s_lshl_b32 s{sT3x}, s{sHH}, 8")
    e(f"s_add_u32 s{sT3x}, s{sT3x}, s{sT2}")
    e(f"s_mov_b64 exec, s[{sVM}:{sVM+1}]")
    e(f"buffer_load_dwordx4 {vr(TV,4)}, v{vL16}, {srd(S_WS)}, s{sT3x} offen offset:2048 sc1")
    e(f"buffer_load_dwordx4 {vr(TV+4,4)}, v{vL16}, {srd(S_WS)}, s{sT3x} offen offset:3072 sc1")
    e("s_mov_b64 exec, -1")
    e("s_waitcnt vmcnt(0)")
    mfma(S, KF, TQ, TC)
    e("s_nop 7"); e("s_nop 7")
    e(f"s_cmp_eq_u32 s{sPASS}, 0")
    e("s_cbranch_scc0 L_FB_P2")
    for i in range(8): e(f"v_max3_f32 v{TM}, v{TM}, v{S+2*i}, v{S+2*i+1}")
    e("s_branch L_FB_TNEXT")
    a.lab("L_FB_P2")
    for i in range(16): e(f"v_sub_f32 v{S+i}, v{S+i}, v{TM}")
    for i in range(16): e(f"v_exp_f32 v{S+i}, v{S+i}")
    e("s_nop 0")
    for i in range(8): e(cvt(PP + i, S + 2 * i, S + 2 * i + 1))
    e("s_nop 1")
    mfma(TO, TV, PP, TO)
    mfma(TO, TV + 4, PP + 4, TO)
    e("s_nop 7"); e("s_nop 7")
    a.lab("L_FB_TNEXT")
    e(f"s_add_u32 s{sTILE}, s{sTILE}, 1")
    e(f"s_cmp_le_u32 s{sTILE}, s{sN}")
    e("s_cbranch_scc1 L_FB_TILE")
    e(f"s_cmp_eq_u32 s{sC}, 0")
    e("s_cbranch_scc1 L_FB_PDONE")
    e(f"s_add_u32 s{sPART}, s{sPART}, 1")
    e(f"s_cmp_lt_u32 s{sPART}, 2")
    e("s_cbranch_scc1 L_FB_PART")
    a.lab("L_FB_PDONE")
    e(f"s_cmp_eq_u32 s{sPASS}, 0")
    e("s_cbranch_scc0 L_FB_STORE")
    e(f"v_mov_b32 v{TB}, v{TM}")
    e("s_nop 1")
    e(f"v_permlane32_swap_b32 v{TM}, v{TB}")
    e("s_nop 1")
    e(f"v_max_f32 v{TM}, v{TM}, v{TB}")
    e(f"s_mov_b32 s{sPASS}, 1")
    e("s_branch L_FB_PASS")
    a.lab("L_FB_STORE")
    e(f"s_cmp_eq_u32 s{sHH}, 0")
    e("s_cbranch_scc0 L_FB_S1")
    for i in range(16): e(f"v_mov_b32 v{OA+i}, v{TO+i}")
    e("s_branch L_FB_NEXT")
    a.lab("L_FB_S1")
    for i in range(16): e(f"v_mov_b32 v{OA+16+i}, v{TO+i}")
    a.lab("L_FB_NEXT")
    e(f"s_add_u32 s{sHH}, s{sHH}, 1")
    e(f"s_cmp_lt_u32 s{sHH}, 2")
    e("s_cbranch_scc1 L_FB_H")

def build(opt):
    opt.stamp_names = []
    a = gen(opt)
    hdr = []
    hdr.append(f"; @launch grid=(256,1,1) block=(512,1,1) lds={LDS_TOTAL}")
    hdr.append('.amdgcn_target "amdgcn-amd-amdhsa--gfx950"')
    hdr.append(".text")
    hdr.append(f".globl {KNAME}")
    hdr.append(".p2align 8")
    hdr.append(f".type {KNAME},@function")
    tail = f""".section .rodata,"a"
.p2align 6
.amdhsa_kernel {KNAME}
  .amdhsa_next_free_vgpr 256
  .amdhsa_next_free_sgpr 102
  .amdhsa_accum_offset 256
  .amdhsa_group_segment_fixed_size 0
  .amdhsa_kernarg_size 80
  .amdhsa_user_sgpr_count 2
  .amdhsa_user_sgpr_kernarg_segment_ptr 1
  .amdhsa_system_sgpr_workgroup_id_x 1
  .amdhsa_float_denorm_mode_32 3
.end_amdhsa_kernel
"""
    return "\n".join(hdr) + "\n" + a.text() + tail

def parse(argv=None):
    p = argparse.ArgumentParser()
    p.add_argument("-o", default="gated_mix__sliding_block__sliding_block__prompt.s")
    p.add_argument("--stamps", type=int, default=0)
    p.add_argument("--codepf", type=int, default=1)
    p.add_argument("--pace", type=float, default=1.6)
    p.add_argument("--rot", type=int, default=1)
    p.add_argument("--tlb", type=int, default=0)
    p.add_argument("--gate4", type=int, default=0)
    p.add_argument("--wostride", type=int, default=64)
    p.add_argument("--tagearly", type=int, default=0)
    p.add_argument("--gwpf", type=int, default=1)
    p.add_argument("--mke", type=int, default=1)
    p.add_argument("--forcefb", type=int, default=0)
    p.add_argument("--early", type=int, default=0)
    p.add_argument("--lfirst", type=int, default=0)
    p.add_argument("--omod", default="sc1")
    p.add_argument("--rep", type=int, default=0)
    p.add_argument("--warm", type=int, default=6)
    p.add_argument("--sent", type=int, default=1)
    p.add_argument("--tailopt", type=int, default=1)
    p.add_argument("--eorder", type=int, default=1)
    p.add_argument("--prio", type=int, default=1)
    p.add_argument("--sleep", type=int, default=0)
    p.add_argument("--pf", type=int, default=0)
    p.add_argument("--bar0", type=int, default=1)
    p.add_argument("--dbg", type=int, default=0)
    p.add_argument("--cyc", type=int, default=0)
    p.add_argument("--wopf", type=int, default=1)
    p.add_argument("--fallback", type=int, default=1)
    p.add_argument("--spin", type=int, default=20000)
    p.add_argument("--outmod", default="")
    return p.parse_args(argv)

if __name__ == "__main__":
    opt = parse()
    s = build(opt)
    open(opt.o, "w").write(s)
    if opt.stamps:
        open(opt.o + ".stamps", "w").write("\n".join(opt.stamp_names))
    print("wrote", opt.o, len(s), "bytes")
```

```python
import sys, argparse, math, struct

KNAME = "gated_mix__sliding_block__sliding_block__prompt_kernel"

WS_NONCE = 0
WS_OF = 0x10000
WS_KVF = 0x4000
WS_KV = 0x100000
WS_O = 0x1000000
WS_STAMP = 0x1800000
WS_SIZE = 0x2000000

REG = 12288
LDS_W = 8 * REG
WPART = 24576
LDS_TOTAL = 163840
LDS_A0, LDS_A1 = 98304, 131072
LDS_GATE = 4096
LDS_RB = 98304

S_X, S_W, S_WOA, S_WOB, S_WS, S_OUT, S_GW, S_DBG = 8, 12, 16, 20, 24, 28, 32, 36
sW, sTAU, sC, sBH, sBR, sHG, sTT, sT3, sN3, sTAG, sJ = 60, 61, 62, 63, 64, 65, 66, 67, 68, 69, 70
sT0, sT1, sT2, sT3x, sT4, sT5 = 71, 72, 73, 74, 75, 76
sCNT, sSPIN, sFAIL = 77, 80, 81
sVM = 78
sKVO = 82
sH = 83
STREG = list(range(84, 98)) + [3, 6, 7, 46, 47]
sTM = 98
sXB, sWG, sWL = 40, 41, 42

def srd(b): return f"s[{b}:{b+3}]"
def vr(b, n=1): return f"v{b}" if n == 1 else f"v[{b}:{b+n-1}]"

class Asm:
    def __init__(self):
        self.lines = []; self.vm = []; self.lg = []
    def e(self, s): self.lines.append("  " + s)
    def c(self, s): self.lines.append("  ; " + s)
    def lab(self, s): self.lines.append(s + ":")
    def vmop(self, s, tag): self.e(s); self.vm.append(tag)
    def lgop(self, s, tag): self.e(s); self.lg.append(tag)
    def _n(self, q, tag, mx):
        idx = max(i for i, t in enumerate(q) if t == tag)
        return min(len(q) - 1 - idx, mx)
    def vmwait(self, tag):
        if tag not in self.vm: return
        n = self._n(self.vm, tag, 63)
        self.e(f"s_waitcnt vmcnt({n})")
        self.vm = self.vm[len(self.vm) - n:] if n > 0 else []
    def lgwait(self, tag):
        if tag not in self.lg: return
        n = self._n(self.lg, tag, 15)
        self.e(f"s_waitcnt lgkmcnt({n})")
        self.lg = self.lg[len(self.lg) - n:] if n > 0 else []
    def vmall(self): self.e("s_waitcnt vmcnt(0)"); self.vm = []
    def lgall(self): self.e("s_waitcnt lgkmcnt(0)"); self.lg = []
    def text(self): return "\n".join(self.lines) + "\n"

def f32bits(x): return struct.unpack("<I", struct.pack("<f", x))[0]
def mfma_s(D, A, B, C):
    cs = C if isinstance(C, str) else vr(C, 16)
    return f"v_mfma_f32_32x32x16_bf16 {vr(D,16)}, {vr(A,4)}, {vr(B,4)}, {cs}"
def cvt(dst, s0, s1): return f"v_cvt_pk_bf16_f32 v{dst}, v{s0}, v{s1}"

def gen(opt):
    a = Asm()
    e = a.e
    mfma = lambda D, A, B, C: e(mfma_s(D, A, B, C))
    STAMPS = opt.stamps
    nst = [0]
    def stamp(name, inner=False):
        if not STAMPS: return
        if STAMPS == 4 and not inner:
            if name in ("entry", "first data", "gemm done", "B1", "B2", "attn done", "B3", "end"):
                opt.cyc = 0; stamp(name, True)
                if name not in ("entry", "end"):
                    opt.cyc = 1; stamp(name + " cyc", True); opt.cyc = 0
            return
        if STAMPS == 3 and name in ("own done", "B2", "attn done", "O published", "B3", "B4", "O flags seen", "P3 mfma", "roleA", "roleB"): return
        if STAMPS == 2 and name in ("own done", "B2", "attn done", "O published", "B3", "B4", "O flags seen", "P3 mfma"): return
        if name in opt.stamp_names:
            i = opt.stamp_names.index(name)
            e("s_waitcnt lgkmcnt(0)")
            e(f"{'s_memtime' if opt.cyc else 's_memrealtime'} s[{sTM}:{sTM+1}]")
            e("s_waitcnt lgkmcnt(0)")
            e(f"s_mov_b32 s{STREG[i]}, s{sTM}")
            return
        i = nst[0]; nst[0] += 1
        assert i < len(STREG)
        a.c(f"stamp {i}: {name}")
        e("s_waitcnt lgkmcnt(0)"); a.lg = []
        e(f"{'s_memtime' if opt.cyc else 's_memrealtime'} s[{sTM}:{sTM+1}]")
        e("s_waitcnt lgkmcnt(0)")
        e(f"s_mov_b32 s{STREG[i]}, s{sTM}")
        opt.stamp_names.append(name)

    vXO = 1; vXR = 5; vWO = 9; vWR = 10; vL16 = 12
    XF = 16
    WF = 80
    ACC = 116
    def AQ(x): return ACC + 48 * x
    def AK(x): return ACC + 48 * x + 16
    def AV(x): return ACC + 48 * x + 32
    def XFr(lc, x, s): return XF + 32 * (lc & 1) + 16 * x + 4 * s
    def WFr(t, m): return WF + 12 * (t % 3) + 4 * m
    OA = 216; QF = 248; MK = 16; VF = 32
    SS = 160; PP = 48; KF = 56; HT = 64
    vK = 1
    vD = 13
    GX, GW, GA = (80 if opt.gate4 else 96), 208, 212
    WSLOT = 12288
    MKE = 144
    TKA, TKB, TVA, TVB, TQA, TQB = 248, 4, ACC + 16, ACC + 64, ACC + 32, ACC + 80
    LDS_TAG = 8192 + 2048

    a.lab(KNAME)
    e("s_cmp_ge_u32 s2, 256")
    e("s_cbranch_scc1 L_END")
    if STAMPS:
        e("s_memtime s[100:101]")
        stamp("entry")
    e("s_getpc_b64 s[4:5]")
    a.lab("L_PC")
    e("s_load_dwordx4 s[40:43], s[0:1], 0")
    e("s_load_dwordx4 s[48:51], s[0:1], 32")
    e("v_lshlrev_b32 v13, 6, v0")
    e("s_load_dwordx2 s[44:45], s[0:1], 16")
    e("s_load_dwordx4 s[52:55], s[0:1], 48")
    e("s_load_dwordx4 s[56:59], s[0:1], 64")
    e("v_min_u32 v13, L_CODE_END-L_PC-4, v13")
    if opt.codepf:
        e(f"global_load_dword v213, v13, s[4:5]")
    e("v_lshrrev_b32 v15, 6, v0")
    e("v_and_b32 v0, 63, v0")
    e(f"s_and_b32 s{sT0}, s2, 7")
    e(f"v_readfirstlane_b32 s{sW}, v15")
    e(f"s_lshr_b32 s{sJ}, s2, 3")
    e(f"s_and_b32 s{sT1}, s{sT0}, 1")
    e(f"s_lshl_b32 s{sT1}, s{sT1}, 2")
    e(f"s_and_b32 s{sT2}, s{sJ}, 3")
    e(f"s_add_u32 s{sC}, s{sT1}, s{sT2}")
    e(f"s_lshr_b32 s{sT1}, s{sT0}, 1")
    e(f"s_lshl_b32 s{sT1}, s{sT1}, 3")
    e(f"s_lshr_b32 s{sN3}, s{sJ}, 2")
    e(f"s_add_u32 s{sBH}, s{sT1}, s{sN3}")
    e(f"s_lshr_b32 s{sBR}, s{sBH}, 4")
    e(f"s_and_b32 s{sHG}, s{sBH}, 15")
    e(f"s_lshl_b32 s{sT3}, s{sT0}, 2")
    e(f"s_add_u32 s{sT3}, s{sT3}, s{sT2}")
    e(f"s_sub_u32 s{sT1}, 11, s{sW}")
    e(f"s_cmp_lt_u32 s{sW}, 4")
    e(f"s_cselect_b32 s{sTAU}, s{sW}, s{sT1}")
    e(f"s_lshl_b32 s{sTT}, s{sC}, 3")
    e(f"s_add_u32 s{sTT}, s{sTT}, s{sTAU}")
    e(f"v_lshlrev_b32 v{vL16}, 4, v0")
    def mk(b, lo, hi, size):
        e(f"s_mov_b32 s{b}, s{lo}"); e(f"s_mov_b32 s{b+1}, s{hi}")
        e(f"s_mov_b32 s{b+2}, {size}"); e(f"s_mov_b32 s{b+3}, 0x00020000")
    def mk_w():
        e(f"s_cmp_eq_u32 s{sBR}, 0")
        e(f"s_cselect_b32 s{S_W}, s42, s48")
        e(f"s_cselect_b32 s{S_W+1}, s43, s49")
        e(f"s_mov_b32 s{S_W+2}, 1572864"); e(f"s_mov_b32 s{S_W+3}, 0x00020000")
    def mk_rest():
        mk(S_WS, 58, 59, WS_SIZE)
        mk(S_DBG, 56, 57, 256)
        mk(S_OUT, 54, 55, 2097152)
        mk(S_GW, 52, 53, 1024)
        mk(S_WOA, 44, 45, 524288)
        mk(S_WOB, 50, 51, 524288)
        e(f"s_mov_b32 s{sVM}, 0x0000ffff")
        e(f"s_mov_b32 s{sVM+1}, 0x0000ffff")
        e(f"s_mov_b32 s{sFAIL}, 0")
        p3_ids()
    sTQ, sQ, sB3, sKH, sTT3, sOFA = 44, 45, 48, 49, 50, 51
    def p3_ids():
        e(f"s_lshr_b32 s{sTQ}, s{sW}, 2")
        e(f"s_and_b32 s{sQ}, s{sW}, 3")
        e(f"s_lshr_b32 s{sB3}, s{sQ}, 1")
        e(f"s_and_b32 s{sKH}, s{sQ}, 1")
        e(f"s_and_b32 s{sT2}, s{sT3}, 3")
        e(f"s_sub_u32 s{sT3x}, 7, s{sT2}")
        e(f"s_cmp_eq_u32 s{sTQ}, 0")
        e(f"s_cselect_b32 s{sT2}, s{sT2}, s{sT3x}")
        e(f"s_lshr_b32 s{sTT3}, s{sT3}, 2")
        e(f"s_lshl_b32 s{sTT3}, s{sTT3}, 3")
        e(f"s_add_u32 s{sTT3}, s{sTT3}, s{sT2}")
    def init_list():
        q = [f"v_and_b32 v{vD}, 31, v0", f"v_lshrrev_b32 v{vD+2}, 5, v0", f"v_lshlrev_b32 v{vD+2}, 2, v{vD+2}", f"v_sub_u32 v{vD}, v{vD}, v{vD+2}"]
        for r in range(16):
            kk = (r & 3) + 8 * (r >> 2)
            q += [f"v_subrev_u32 v{MK+r}, {kk}, v{vD}", f"v_ashrrev_i32 v{MK+r}, 31, v{MK+r}", f"v_and_b32 v{MK+r}, 0xff800000, v{MK+r}"]
        q += [f"v_mov_b32 v{VF+i}, 0x3f803f80" for i in range(16)]
        return q
    if opt.lfirst:
        e(f"s_cmp_lt_u32 s{sW}, 4")
        e("s_cbranch_scc1 L_COMPUTE")
    else:
        e(f"s_cmp_ge_u32 s{sW}, 4")
        e("s_cbranch_scc1 L_LOADER")
    i_comp = len(a.lines)
    a.lab("L_COMPUTE")

    SXB = sT4
    e(f"s_mul_i32 s{SXB}, s{sW}, {2*REG}")
    e(f"v_and_b32 v13, 31, v0")
    e(f"v_lshrrev_b32 v15, 5, v0")
    e(f"v_bfe_u32 v{vXR+1}, v13, 1, 3")
    e(f"v_xor_b32 v15, v15, v{vXR+1}")
    e(f"v_lshlrev_b32 v15, 4, v15")
    e(f"v_lshl_add_u32 v15, v13, 7, v15")
    e(f"v_add_u32 v{vXR}, s{SXB}, v15")
    for s_ in range(1, 4):
        e(f"v_xor_b32 v{vXR+s_}, {s_<<5}, v{vXR}")
    e(f"v_lshrrev_b32 v13, 5, v0")
    e(f"v_lshlrev_b32 v13, 9, v13")
    e(f"v_bfe_u32 v15, v0, 2, 2")
    e(f"v_lshl_add_u32 v13, v15, 6, v13")
    e(f"v_bfe_u32 v15, v0, 4, 1")
    e(f"v_lshl_add_u32 v13, v15, 5, v13")
    e(f"v_and_b32 v15, 3, v0")
    e(f"v_lshl_add_u32 v13, v15, 3, v13")
    e(f"v_add_u32 v{vWR}, {LDS_W}, v13")
    for i in range(32): e(f"v_mov_b32 v{OA+i}, 0")
    e("s_waitcnt lgkmcnt(0)")
    mk(S_X, 40, 41, 2097152)
    mk_w()
    mk_rest()
    stamp("issued")
    def xread1(lc, x, s_):
        a.lgop(f"ds_read_b128 {vr(XFr(lc,x,s_),4)}, v{vXR+s_} offset:{x*REG+(lc%3)*4096}", f"xr{lc}_{s_}")
    def wread1(t, m, u):
        lc = t >> 2
        a.lgop(f"ds_read_b64_tr_b16 {vr(WFr(t,m)+2*u,2)}, v{vWR} offset:{(lc%3)*WSLOT+m*4096+(t&3)*1024+u*256}", f"wf{t}")
    e("s_barrier")
    stamp("first data")
    mfma_full = mfma
    if opt.dbg == 16:
        def mfma(D, A, B, C):
            for h in range(2):
                cs = C if isinstance(C, str) else vr(C + 4 * h, 4)
                e(f"v_mfma_f32_16x16x32_bf16 {vr(D + 4*h, 4)}, {vr(A,4)}, {vr(B,4)}, {cs}")
    if opt.dbg == 17:
        def mfma(D, A, B, C): pass
    for m in range(3):
        for u in range(2): wread1(0, m, u)
    for x in range(2): xread1(0, x, 0)
    for m in range(3):
        for u in range(2): wread1(1, m, u)
    for s_ in range(1, 4):
        for x in range(2): xread1(0, x, s_)
    initq = init_list()
    NT = 29 if opt.tailopt else 32
    for t in range(NT):
        lc, s_ = t >> 2, t & 3
        if opt.stamps == 2 and t in (4, 8, 12, 16, 20, 24, 28): stamp(f"t{t}")
        if s_ == 2 and lc <= 6:
            a.lgall()
            e("s_barrier")
        a.lgwait(f"wf{t}")
        a.lgwait(f"xr{lc}_{s_}")
        R = [(t + 2, m, u) for m in range(3) for u in range(2)] if t + 2 < 32 else []
        X = [(lc + 1, x, 2 * (s_ - 2) + k) for k in range(2) for x in range(2)] if (s_ >= 2 and lc <= 6) else []
        C = (lambda r: "0") if t == 0 else (lambda r: r)
        xa, xb = XFr(lc, 0, s_), XFr(lc, 1, s_)
        def ini(n):
            if t >= 28:
                for _ in range(n):
                    if initq: e(initq.pop(0))
        mfma(AK(0), WFr(t, 0), xa, C(AK(0)))
        for r in R[0:2]: wread1(*r)
        ini(3)
        mfma(AK(1), WFr(t, 0), xb, C(AK(1)))
        for r in R[2:4]: wread1(*r)
        ini(3)
        mfma(AV(0), xa, WFr(t, 1), C(AV(0)))
        for r in R[4:6]: wread1(*r)
        ini(3)
        mfma(AV(1), xb, WFr(t, 1), C(AV(1)))
        for x in X[0:2]: xread1(*x)
        ini(3)
        mfma(AQ(0), WFr(t, 2), xa, C(AQ(0)))
        for x in X[2:4]: xread1(*x)
        ini(3)
        mfma(AQ(1), WFr(t, 2), xb, C(AQ(1)))
        ini(3)
    if not opt.tailopt:
        while initq: e(initq.pop(0))
    e(f"s_lshl_b32 s{sKVO}, s{sBH}, 6")
    e(f"s_lshl_b32 s{sT2}, s{sC}, 3")
    e(f"s_add_u32 s{sKVO}, s{sKVO}, s{sT2}")
    e(f"s_lshl_b32 s{sT2}, s{sW}, 1")
    e(f"s_add_u32 s{sKVO}, s{sKVO}, s{sT2}")
    e(f"s_lshl_b32 s{sKVO}, s{sKVO}, 12")
    e(f"s_add_u32 s{sKVO}, s{sKVO}, {WS_KV}")
    e(f"s_add_u32 s{sT1}, s{sKVO}, 4096")
    e(f"v_add_u32 v{vK}, s{SXB}, v{vL16}")
    cq = 0.25 * math.log2(math.e)
    e(f"s_mov_b32 s{sT2}, {hex(f32bits(cq))}")
    def k_epi(x, T):
        so = sKVO if x == 0 else sT1
        L = [("e", cvt(T + i, AK(x) + 2 * i, AK(x) + 2 * i + 1)) for i in range(8)]
        L += [("vm", f"buffer_store_dwordx4 {vr(T+4*i,4)}, v{vL16}, {srd(S_WS)}, s{so} offen offset:{i*1024} sc1") for i in range(2)]
        L += [("lg", f"ds_write_b128 v{vK}, {vr(T+4*i,4)} offset:{x*REG+i*1024}") for i in range(2)]
        return L
    def v_epi(x, T):
        so = sKVO if x == 0 else sT1
        L = [("e", cvt(T + i, AV(x) + 2 * i, AV(x) + 2 * i + 1)) for i in range(8)]
        L += [("vm", f"buffer_store_dwordx4 {vr(T+4*i,4)}, v{vL16}, {srd(S_WS)}, s{so} offen offset:{(2+i)*1024} sc1") for i in range(2)]
        L += [("lg", f"ds_write_b128 v{vK}, {vr(T+4*i,4)} offset:{x*REG+(2+i)*1024}") for i in range(2)]
        return L
    def q_epi(x, T):
        L = [("e", f"v_mul_f32 v{AQ(x)+i}, s{sT2}, v{AQ(x)+i}") for i in range(16)]
        L += [("e", cvt(T + i, AQ(x) + 2 * i, AQ(x) + 2 * i + 1)) for i in range(8)]
        L += [("lg", f"ds_write_b128 v{vK}, {vr(T+4*h,4)} offset:{x*REG+8192+h*1024}") for h in range(2)]
        return L
    def emit(items):
        for k, l in items:
            if k == "e": e(l)
            elif k == "vm": a.vmop(l, "kvs")
            else: a.lgop(l, "kvw")
    if opt.tailopt:
        for m in range(3):
            for u in range(2): wread1(31, m, u)
        xs = {t: (XFr(7, 0, t & 3), XFr(7, 1, t & 3)) for t in (29, 30, 31)}
        a.lgwait("wf30")
        for t in (29, 30):
            for x in range(2):
                mfma(AK(x), WFr(t, 0), xs[t][x], AK(x))
                for _ in range(8):
                    if initq: e(initq.pop(0))
        a.lgwait("wf31")
        for x in range(2):
            mfma(AK(x), WFr(31, 0), xs[31][x], AK(x))
            for _ in range(8):
                if initq: e(initq.pop(0))
        while initq: e(initq.pop(0))
        vm_ = [(x, t) for t in (29, 30, 31) for x in range(2)]
        ke = k_epi(0, TKA) + k_epi(1, TKB)
        for n, (x, t) in enumerate(vm_):
            mfma(AV(x), xs[t][x], WFr(t, 1), AV(x))
            if n == 1: e("s_nop 7"); e("s_nop 1")
            if n >= 2: emit(ke[:5]); del ke[:5]
        ve = v_epi(0, TVA) + v_epi(1, TVB)
        qm_ = [(x, t) for t in (29, 30, 31) for x in range(2)]
        for n, (x, t) in enumerate(qm_):
            mfma(AQ(x), WFr(t, 2), xs[t][x], AQ(x))
            if ke: emit(ke[:6]); del ke[:6]
            elif n >= 2: emit(ve[:6]); del ve[:6]
        emit(ke)
        stamp("gemm done")
        e("s_nop 3")
        emit(ve)
        e("s_nop 7")
        emit(q_epi(0, TQA)); emit(q_epi(1, TQB))
    else:
        stamp("gemm done")
        e("s_nop 7")
        emit(k_epi(0, TKA)); emit(k_epi(1, TKB)); emit(v_epi(0, TVA)); emit(v_epi(1, TVB))
        emit(q_epi(0, TQA)); emit(q_epi(1, TQB))
    mfma = mfma_full
    e(f"s_lshl_b32 s{sKVO}, s{sC}, 5")
    e(f"s_add_u32 s{sKVO}, s{sKVO}, s{sBH}")
    e(f"s_lshl_b32 s{sKVO}, s{sKVO}, 7")
    e(f"s_lshl_b32 s{sT3x}, s{sW}, 3")
    e(f"s_add_u32 s{sKVO}, s{sKVO}, s{sT3x}")
    e(f"s_add_u32 s{sKVO}, s{sKVO}, {WS_KVF}")
    if not opt.lfirst: e("s_branch L_B1")
    i_load = len(a.lines)

    a.lab("L_LOADER")
    a.vm = []; a.lg = []
    sU, SXB2, SWG = sT5, sT4, sH
    e(f"s_sub_u32 s{sU}, s{sW}, 4")
    e(f"v_lshrrev_b32 v13, 2, v0")
    e(f"v_mul_u32_u24 v13, 3072, v13")
    e(f"v_and_b32 v15, 3, v0")
    e(f"v_lshl_add_u32 v13, v15, 4, v13")
    e(f"s_lshl_b32 s{sT1}, s{sHG}, 6")
    e(f"v_add_u32 v{vWO}, s{sT1}, v13")
    e(f"v_lshrrev_b32 v13, 3, v0")
    e(f"v_lshlrev_b32 v13, 10, v13")
    e(f"s_lshl_b32 s{sT1}, s{sC}, 3")
    e(f"s_lshl_b32 s{sT2}, s{sU}, 1")
    e(f"s_add_u32 s{sT1}, s{sT1}, s{sT2}")
    e(f"s_lshl_b32 s{sT1}, s{sT1}, 15")
    e(f"v_add_u32 v13, s{sT1}, v13")
    e(f"v_lshrrev_b32 v15, 4, v0")
    e(f"v_xor_b32 v15, v15, v0")
    e(f"v_and_b32 v15, 7, v15")
    e(f"v_lshl_add_u32 v{vXO}, v15, 4, v13")
    e(f"v_xor_b32 v{vXO+1}, 64, v{vXO}")
    e(f"v_add_u32 v{vXO+2}, 14336, v{vXO}")
    e(f"v_add_u32 v{vXO+3}, 21504, v{vXO+1}")
    e(f"v_add_u32 v{vXO+1}, 7168, v{vXO+1}")
    e(f"s_and_b32 s{sT1}, s{sJ}, 3")
    e(f"s_add_u32 s{sT1}, s{sT1}, s{sN3}")
    if opt.rot == 2:
        e(f"s_and_b32 s{sT0}, s{sT1}, 1")
        e(f"s_lshl_b32 s{sT0}, s{sT0}, 2")
    elif opt.rot == 3:
        e(f"s_and_b32 s{sT0}, s{sJ}, 3")
        e(f"s_lshl_b32 s{sT0}, s{sT0}, 1")
        e(f"s_add_u32 s{sT0}, s{sT0}, s{sN3}")
        e(f"s_and_b32 s{sT0}, s{sT0}, 7")
    else:
        e(f"s_and_b32 s{sT0}, s{sT1}, {3 if opt.rot else 0}")
        e(f"s_lshl_b32 s{sT0}, s{sT0}, 1")
    e("s_waitcnt lgkmcnt(0)")
    mk_w()
    mk(S_X, 40, 41, 2097152)
    SWL, sXK, sWP = 40, 41, 42
    e(f"s_mul_i32 s{SXB2}, s{sU}, {2*REG}")
    e(f"s_mul_i32 s{SWG}, s{sU}, {16*3072}")
    e(f"s_lshl_b32 s{SWL}, s{sU}, 10")
    e(f"s_add_u32 s{SWL}, s{SWL}, {LDS_W}")
    e(f"s_lshl_b32 s{sXK}, s{sT0}, 7")
    MCOL = {0: 1, 1: 2, 2: 0}
    def wo_pf():
        n = 1 if opt.wostride == 128 else 2
        e(f"s_and_b32 s{sT2}, s{sJ}, 15")
        e(f"s_lshl_b32 s{sT2}, s{sT2}, 15")
        e(f"s_lshl_b32 s{sT3x}, s{sU}, 13")
        e(f"s_add_u32 s{sT2}, s{sT2}, s{sT3x}")
        e(f"v_lshlrev_b32 v15, {7 if n == 1 else 6}, v0")
        e(f"s_cmp_lt_u32 s{sJ}, 16")
        e("s_cbranch_scc1 L_WOPF_A")
        e(f"buffer_load_dword v213, v15, {srd(S_WOB)}, s{sT2} offen")
        if n == 2:
            e(f"s_add_u32 s{sT2}, s{sT2}, 4096")
            e(f"buffer_load_dword v214, v15, {srd(S_WOB)}, s{sT2} offen")
        e("s_branch L_WOPF_E")
        a.lab("L_WOPF_A")
        e(f"buffer_load_dword v213, v15, {srd(S_WOA)}, s{sT2} offen")
        if n == 2:
            e(f"s_add_u32 s{sT2}, s{sT2}, 4096")
            e(f"buffer_load_dword v214, v15, {srd(S_WOA)}, s{sT2} offen")
        a.lab("L_WOPF_E")
        a.vm += ["wopf"] * n
    def issue(lc):
        if lc > 0:
            e(f"s_add_u32 s{sXK}, s{sXK}, 128")
            e(f"s_and_b32 s{sXK}, s{sXK}, 1023")
        e(f"s_mul_i32 s{sWP}, s{sXK}, 1536")
        e(f"s_add_u32 s{sWP}, s{sWP}, s{SWG}")
        for m in range(3):
            e(f"s_add_u32 m0, s{SWL}, {(lc%3)*WSLOT + m*4096}")
            e(f"s_add_u32 s{sT3x}, s{sWP}, {MCOL[m]*1024}")
            a.vmop(f"buffer_load_dwordx4 v{vWO}, {srd(S_W)}, s{sT3x} offen lds", f"c{lc}")
        for b in range(2):
            e(f"s_add_u32 m0, s{SXB2}, {b*REG + (lc%3)*4096}")
            e(f"s_add_u32 s{sT3x}, s{sXK}, {b*32768}")
            for i in range(4):
                a.vmop(f"buffer_load_dwordx4 v{vXO+i}, {srd(S_X)}, s{sT3x} offen offset:{i*1024} lds", f"c{lc}")
    def tlb_warm2():
        e(f"s_lshr_b32 s{sT0}, s{sT3}, 2"); e(f"s_lshl_b32 s{sT0}, s{sT0}, 3"); e(f"s_and_b32 s{sT1}, s{sT3}, 3")
        e(f"s_sub_u32 s{sT2}, 7, s{sT1}"); e(f"s_add_u32 s{sT1}, s{sT1}, s{sT0}"); e(f"s_add_u32 s{sT0}, s{sT2}, s{sT0}")
        e(f"s_cmp_eq_u32 s{sU}, 0"); e("s_cbranch_scc0 L_TX1")
        e(f"s_lshl_b32 s{sT2}, s{sC}, 19"); e(f"s_lshl_b32 s{sT3x}, s{sBR}, 15"); e(f"s_add_u32 s{sT2}, s{sT2}, s{sT3x}"); e(f"s_add_u32 s{sT2}, s{sT2}, {WS_O}")
        e(f"v_and_b32 v13, 7, v0"); e(f"v_lshlrev_b32 v13, 16, v13"); e(f"v_add_u32 v13, s{sT2}, v13")
        e(f"s_lshl_b32 s{sT2}, s{sT1}, 16"); e(f"s_add_u32 s{sT2}, s{sT2}, {WS_O}"); e(f"v_writelane_b32 v13, s{sT2}, 8")
        e(f"s_lshl_b32 s{sT2}, s{sT0}, 16"); e(f"s_add_u32 s{sT2}, s{sT2}, {WS_O}"); e(f"v_writelane_b32 v13, s{sT2}, 9")
        e(f"s_lshl_b32 s{sT2}, s{sBH}, 6"); e(f"s_lshl_b32 s{sT3x}, s{sC}, 3"); e(f"s_add_u32 s{sT2}, s{sT2}, s{sT3x}")
        e(f"s_lshl_b32 s{sT2}, s{sT2}, 12"); e(f"s_add_u32 s{sT2}, s{sT2}, {WS_KV}"); e(f"v_writelane_b32 v13, s{sT2}, 10")
        e(f"s_sub_u32 s{sT2}, s{sT2}, 32768"); e(f"s_max_u32 s{sT2}, s{sT2}, {WS_KV}"); e(f"v_writelane_b32 v13, s{sT2}, 11")
        e(f"s_mov_b32 s{sT2}, {WS_OF}"); e(f"v_writelane_b32 v13, s{sT2}, 12")
        e("s_mov_b64 exec, 0x1fff")
        e(f"buffer_load_dword v215, v13, {srd(S_WS)}, 0 offen sc1")
        e(f"buffer_load_dword v214, v13, {srd(S_WS)}, 0 offen offset:128 sc1")
        e("s_branch L_TXE")
        a.lab("L_TX1")
        e(f"s_cmp_eq_u32 s{sU}, 1"); e("s_cbranch_scc0 L_TX2")
        e(f"s_lshl_b32 s{sT2}, s{sT1}, 15"); e(f"v_mov_b32 v13, s{sT2}"); e(f"s_lshl_b32 s{sT2}, s{sT0}, 15"); e(f"v_writelane_b32 v13, s{sT2}, 1")
        e("s_mov_b64 exec, 3")
        e(f"buffer_load_dword v215, v13, {srd(S_OUT)}, 0 offen")
        e(f"v_mov_b32 v13, 0")
        e(f"buffer_load_dword v214, v13, {srd(S_DBG)}, 0 offen sc1")
        e("s_branch L_TXE")
        a.lab("L_TX2")
        e(f"s_cmp_eq_u32 s{sU}, 2"); e("s_cbranch_scc0 L_TX3")
        e(f"v_and_b32 v13, 7, v0"); e(f"v_lshlrev_b32 v13, 16, v13")
        e("s_mov_b64 exec, 0xff")
        e(f"buffer_load_dword v215, v13, {srd(S_WOA)}, 0 offen")
        e(f"buffer_load_dword v214, v13, {srd(S_WOB)}, 0 offen")
        e("s_branch L_TXE")
        a.lab("L_TX3")
        e(f"s_lshl_b32 s{sT2}, s{sT1}, 15"); e(f"v_mov_b32 v13, s{sT2}"); e(f"s_lshl_b32 s{sT2}, s{sT0}, 15"); e(f"v_writelane_b32 v13, s{sT2}, 1")
        e("s_mov_b64 exec, 3")
        e(f"buffer_load_dword v215, v13, {srd(S_X)}, 0 offen")
        e(f"v_mov_b32 v13, 0")
        e(f"buffer_load_dword v214, v13, {srd(S_GW)}, 0 offen")
        a.lab("L_TXE")
        e("s_mov_b64 exec, -1")
        a.vm += ["warm", "warm"]
    def tlb_warm():
        e(f"s_cmp_eq_u32 s{sU}, 0"); e("s_cbranch_scc0 L_TW1")
        e(f"s_lshl_b32 s{sT2}, s{sBH}, 6"); e(f"s_lshl_b32 s{sT3x}, s{sC}, 3"); e(f"s_add_u32 s{sT2}, s{sT2}, s{sT3x}")
        e(f"s_lshl_b32 s{sT2}, s{sT2}, 12"); e(f"s_add_u32 s{sT2}, s{sT2}, {WS_KV}")
        e(f"v_mov_b32 v13, {WS_OF}")
        e(f"v_writelane_b32 v13, s{sT2}, 1")
        e(f"s_lshl_b32 s{sT2}, s{sC}, 19"); e(f"s_add_u32 s{sT2}, s{sT2}, {WS_O}")
        e(f"v_writelane_b32 v13, s{sT2}, 2")
        e(f"s_lshr_b32 s{sT2}, s{sT3}, 2"); e(f"s_lshl_b32 s{sT2}, s{sT2}, 19"); e(f"s_add_u32 s{sT2}, s{sT2}, {WS_O}")
        e(f"v_writelane_b32 v13, s{sT2}, 3")
        e("s_mov_b64 exec, 15")
        e(f"buffer_load_dword v215, v13, {srd(S_WS)}, 0 offen sc1")
        e(f"buffer_load_dword v214, v13, {srd(S_WS)}, 0 offen offset:128 sc1")
        e("s_mov_b64 exec, -1")
        e("s_branch L_TWE")
        a.lab("L_TW1")
        e(f"s_cmp_eq_u32 s{sU}, 1"); e("s_cbranch_scc0 L_TW2")
        e(f"s_lshr_b32 s{sT2}, s{sT3}, 2"); e(f"s_lshl_b32 s{sT2}, s{sT2}, 18")
        e(f"v_mov_b32 v13, 0")
        e("s_mov_b64 exec, 1")
        e(f"buffer_load_dword v215, v13, {srd(S_OUT)}, s{sT2} offen")
        e(f"buffer_load_dword v214, v13, {srd(S_DBG)}, 0 offen sc1")
        e("s_mov_b64 exec, -1")
        e("s_branch L_TWE")
        a.lab("L_TW2")
        e(f"s_cmp_eq_u32 s{sU}, 2"); e("s_cbranch_scc0 L_TW3")
        e(f"v_mov_b32 v13, 0")
        e("s_mov_b64 exec, 1")
        e(f"buffer_load_dword v215, v13, {srd(S_WOA)}, 0 offen")
        e(f"buffer_load_dword v214, v13, {srd(S_WOB)}, 0 offen")
        e("s_mov_b64 exec, -1")
        e("s_branch L_TWE")
        a.lab("L_TW3")
        e(f"v_mov_b32 v13, 0")
        e("s_mov_b64 exec, 1")
        e(f"buffer_load_dword v215, v13, {srd(S_GW)}, 0 offen")
        e(f"buffer_load_dword v214, v13, {srd(S_GW)}, 0 offen offset:128")
        e("s_mov_b64 exec, -1")
        a.lab("L_TWE")
        a.vm += ["warm", "warm"]
    issue(0)
    issue(1)
    mk_rest()
    if opt.warm == 2: tlb_warm()
    e(f"s_or_b32 s{sT1}, s2, s{sU}")
    e(f"s_cmp_lg_u32 s{sT1}, 0")
    e("s_cbranch_scc1 L_NONCE_SKIP0")
    e(f"v_mov_b32 v13, 0")
    e(f"buffer_load_dword v14, v13, {srd(S_WS)}, 0 offen sc1")
    a.lab("L_NONCE_SKIP0")
    stamp("issued")
    a.vmwait("c0")
    e("s_barrier")
    stamp("first data")
    issue(2)
    if opt.warm == 3 or opt.tlb == 1: tlb_warm()
    if opt.tlb == 2: tlb_warm2()
    if opt.warm in (5, 6, 7):
        if opt.warm in (6, 7): e("s_branch L_F5_2")
        e(f"s_cmp_eq_u32 s{sU}, 0"); e("s_cbranch_scc0 L_F5_1")
        e(f"s_lshl_b32 s{sT2}, s{sC}, 5"); e(f"s_lshr_b32 s{sT3x}, s{sBH}, 3"); e(f"s_add_u32 s{sT2}, s{sT2}, s{sT3x}")
        e(f"s_lshl_b32 s{sT2}, s{sT2}, 7"); e(f"s_add_u32 s{sT2}, s{sT2}, {WS_OF}")
        e(f"v_and_b32 v13, 7, v0"); e(f"v_lshlrev_b32 v13, 9, v13")
        e("s_mov_b64 exec, 0xff")
        e(f"buffer_load_dword v215, v13, {srd(S_WS)}, s{sT2} offen sc1")
        e("s_branch L_F5_E")
        a.lab("L_F5_1")
        e(f"s_cmp_eq_u32 s{sU}, 1"); e("s_cbranch_scc0 L_F5_2")
        e(f"s_lshr_b32 s{sT2}, s{sT3}, 2"); e(f"s_lshl_b32 s{sT2}, s{sT2}, 3"); e(f"s_and_b32 s{sT3x}, s{sT3}, 3")
        e(f"s_add_u32 s{sT0}, s{sT2}, s{sT3x}"); e(f"s_sub_u32 s{sT3x}, 7, s{sT3x}"); e(f"s_add_u32 s{sT1}, s{sT2}, s{sT3x}")
        e(f"s_lshl_b32 s{sT0}, s{sT0}, 9"); e(f"s_lshl_b32 s{sT1}, s{sT1}, 9"); e(f"s_sub_u32 s{sT1}, s{sT1}, s{sT0}")
        e(f"s_sub_u32 s{sT1}, s{sT1}, 512"); e(f"s_add_u32 s{sT0}, s{sT0}, {WS_OF}")
        e(f"v_and_b32 v13, 7, v0"); e(f"v_lshlrev_b32 v13, 7, v13"); e(f"v_bfe_u32 v15, v0, 2, 1"); e(f"v_mul_lo_u32 v15, v15, s{sT1}"); e(f"v_add_u32 v13, v13, v15")
        e("s_mov_b64 exec, 0xff")
        e(f"buffer_load_dword v215, v13, {srd(S_WS)}, s{sT0} offen sc1")
        e("s_branch L_F5_E")
        a.lab("L_F5_2")
        if opt.gwpf:
            e(f"s_cmp_eq_u32 s{sU}, 3"); e("s_cbranch_scc0 L_F5_3")
            e(f"v_and_b32 v13, 7, v0"); e(f"v_lshlrev_b32 v13, 7, v13")
            e("s_mov_b64 exec, 0xff")
            e(f"buffer_load_dword v215, v13, {srd(S_GW)}, 0 offen")
            e("s_branch L_F5_E")
            a.lab("L_F5_3")
        e(f"s_lshl_b32 s{sT2}, s{sC}, 5"); e(f"s_add_u32 s{sT2}, s{sT2}, s{sBH}"); e(f"s_lshl_b32 s{sT2}, s{sT2}, 7"); e(f"s_add_u32 s{sT2}, s{sT2}, {WS_KVF - 4096}")
        e(f"v_and_b32 v13, 1, v0"); e(f"v_lshlrev_b32 v13, 12, v13")
        e("s_mov_b64 exec, 3")
        e(f"buffer_load_dword v215, v13, {srd(S_WS)}, s{sT2} offen sc1")
        a.lab("L_F5_E")
        e("s_mov_b64 exec, -1")
        a.vm += ["warm"]
    e(f"s_or_b32 s{sT1}, s2, s{sU}")
    e(f"s_cmp_lg_u32 s{sT1}, 0")
    e("s_cbranch_scc1 L_NONCE_SKIP1")
    e("s_waitcnt vmcnt(11)")
    e(f"v_readfirstlane_b32 s{sT2}, v14")
    e(f"v_mov_b32 v13, 0")
    e("s_nop 3")
    e(f"s_add_u32 s{sT2}, s{sT2}, 1")
    e(f"s_max_u32 s{sT2}, s{sT2}, 1")
    e(f"v_mov_b32 v14, s{sT2}")
    e(f"buffer_store_dword v14, v13, {srd(S_DBG)}, 0 offen sc1")
    e(f"buffer_store_dword v14, v13, {srd(S_WS)}, 0 offen sc1")
    a.lab("L_NONCE_SKIP1")
    a.vmwait("c1")
    e("s_barrier")
    for j in range(6):
        if j + 3 <= 7: issue(j + 3)
        if j + 3 == 7:
            if opt.tagearly:
                e(f"v_mov_b32 v13, 0")
                a.vmop(f"buffer_load_dword v14, v13, {srd(S_DBG)}, 0 offen sc1", "tag")
            if opt.wopf == 1: wo_pf()
            if opt.warm == 1:
                lab = "L_WARM"
                e(f"s_cmp_eq_u32 s{sU}, 0"); e(f"s_cbranch_scc0 {lab}1")
                e(f"s_lshl_b32 s{sT2}, s{sC}, 5"); e(f"s_lshr_b32 s{sT3x}, s{sBH}, 3"); e(f"s_add_u32 s{sT2}, s{sT2}, s{sT3x}")
                e(f"s_lshl_b32 s{sT2}, s{sT2}, 10"); e(f"s_add_u32 s{sT2}, s{sT2}, {WS_OF}")
                e(f"v_lshrrev_b32 v13, 3, v0"); e(f"v_lshlrev_b32 v13, 12, v13"); e(f"v_and_b32 v15, 7, v0"); e(f"v_lshl_add_u32 v13, v15, 7, v13")
                e(f"buffer_load_dword v215, v13, {srd(S_WS)}, s{sT2} offen sc1")
                e(f"s_branch {lab}E")
                a.lab(f"{lab}1")
                e(f"s_cmp_eq_u32 s{sU}, 1"); e(f"s_cbranch_scc0 {lab}2")
                e(f"s_lshl_b32 s{sT2}, s{sC}, 4"); e(f"s_add_u32 s{sT2}, s{sT2}, s{sBR}"); e(f"s_lshl_b32 s{sT2}, s{sT2}, 5")
                e(f"s_lshl_b32 s{sT3x}, s{sHG}, 1"); e(f"s_add_u32 s{sT2}, s{sT2}, s{sT3x}"); e(f"s_lshl_b32 s{sT2}, s{sT2}, 10")
                e(f"s_add_u32 s{sT2}, s{sT2}, {WS_O}")
                e(f"v_lshrrev_b32 v13, 3, v0"); e(f"v_lshlrev_b32 v13, 16, v13"); e(f"v_and_b32 v15, 7, v0"); e(f"v_lshl_add_u32 v13, v15, 8, v13")
                e(f"buffer_load_dword v215, v13, {srd(S_WS)}, s{sT2} offen sc1")
                e(f"s_branch {lab}E")
                a.lab(f"{lab}2")
                e(f"s_cmp_eq_u32 s{sU}, 2"); e(f"s_cbranch_scc0 {lab}3")
                e(f"s_lshl_b32 s{sT2}, s{sC}, 5"); e(f"s_add_u32 s{sT2}, s{sT2}, s{sBH}"); e(f"s_lshl_b32 s{sT2}, s{sT2}, 7")
                e(f"s_add_u32 s{sT2}, s{sT2}, {WS_KVF}")
                e(f"v_mov_b32 v13, 0")
                e(f"buffer_load_dword v215, v13, {srd(S_WS)}, s{sT2} offen sc1")
                e(f"s_branch {lab}E")
                a.lab(f"{lab}3")
                e(f"s_lshr_b32 s{sT2}, s{sT3}, 2"); e(f"s_lshl_b32 s{sT2}, s{sT2}, 18"); e(f"s_lshl_b32 s{sT3x}, s{sN3}, 7"); e(f"s_add_u32 s{sT2}, s{sT2}, s{sT3x}")
                e(f"v_lshlrev_b32 v13, 12, v0")
                e(f"buffer_load_dword v215, v13, {srd(S_OUT)}, s{sT2} offen")
                a.lab(f"{lab}E")
                a.vm += ["warm"]
        if j + 2 <= 7: a.vmwait(f"c{j+2}")
        e("s_barrier")
    stamp("gemm done")
    if opt.wopf == 2: wo_pf()
    for l in init_list(): e(l)
    for i in range(32): e(f"v_mov_b32 v{OA+i}, 0")
    if opt.mke:
        e(f"s_mov_b32 s{sT2}, 0xff800000")
        for r in range(16): e(f"v_xor_b32 v{MKE+r}, s{sT2}, v{MK+r}")
    e(f"s_cmp_lg_u32 s{sU}, 0")
    e("s_cbranch_scc1 L_B1")
    e(f"s_mov_b32 s{sSPIN}, 0")
    e(f"v_mov_b32 v15, 0")
    if not opt.tagearly:
        e(f"buffer_load_dword v14, v15, {srd(S_DBG)}, 0 offen sc1")
    else:
        a.vmwait("tag")
        e("s_branch L_TAG_CHK")
    a.lab("L_TAG_LOOP")
    e("s_waitcnt vmcnt(0)")
    a.lab("L_TAG_CHK")
    e(f"s_add_u32 s{sSPIN}, s{sSPIN}, 1")
    e(f"v_readfirstlane_b32 s{sTAG}, v14")
    e("s_nop 3")
    e(f"s_cmp_lg_u32 s{sTAG}, 0")
    e("s_cbranch_scc1 L_TAG_OK")
    e(f"s_cmp_gt_u32 s{sSPIN}, {opt.spin}")
    e("s_cbranch_scc1 L_TAG_OK")
    e(f"buffer_load_dword v14, v15, {srd(S_DBG)}, 0 offen sc1")
    e("s_branch L_TAG_LOOP")
    a.lab("L_TAG_OK")
    e(f"v_mov_b32 v15, {LDS_TAG}")
    e(f"ds_write_b32 v15, v14")
    if opt.lfirst:
        e("s_branch L_B1")
        comp = a.lines[i_comp:i_load]; load = a.lines[i_load:]
        a.lines = a.lines[:i_comp] + load + comp
    a.lab("L_B1")
    a.vm = []; a.lg = []
    e("s_waitcnt lgkmcnt(0)")
    e("s_barrier")
    stamp("B1")
    e(f"v_mov_b32 v15, {LDS_TAG}")
    e(f"ds_read_b32 v14, v15")
    e(f"s_mul_i32 s{sT2}, s{sTAU}, {REG}")
    e(f"v_add_u32 v13, s{sT2}, v{vL16}")
    for h in range(2):
        e(f"ds_read_b128 {vr(QF+4*h,4)}, v13 offset:{8192+h*1024}")

    def kread(h, extra=0): e(f"ds_read_b128 {vr(KF+4*h,4)}, v{vK} offset:{h*1024+extra}")
    def vreads(h, extra=0):
        e(f"s_mov_b64 exec, s[{sVM}:{sVM+1}]")
        for s in range(2):
            e(f"ds_read_b128 {vr(VF+8*h+4*s,4)}, v{vK} offset:{2048+s*1024+h*256+extra}")
        e("s_mov_b64 exec, -1")
    def seg(h, prev, nxt, kx=0, vx=0):
        o = 1 - h
        S = SS + 16 * h; O = OA + 16 * h
        ex = lambda i: e(f"v_exp_f32 v{S+i}, v{S+i}")
        ex(0); ex(1)
        if prev: mfma(OA + 16 * o, VF + 8 * o + 4, PP + 4, OA + 16 * o)
        ex(2); ex(3)
        if nxt: vreads(o, vx)
        ex(4); ex(5)
        if nxt:
            mfma(SS + 16 * o, KF + 4 * o, QF + 4 * o, "0")
            kread(o, kx)
        ex(6); ex(7)
        for i in range(4): e(cvt(PP + i, S + 2 * i, S + 2 * i + 1))
        ex(8)
        e(f"s_waitcnt lgkmcnt({3 if nxt else 0})")
        ex(9)
        mfma(O, VF + 8 * h, PP, O)
        for i in range(10, 16): ex(i)
        for i in range(4, 8): e(cvt(PP + i, S + 2 * i, S + 2 * i + 1))
    def part(name, first_s, rest_s, cnt_s, hook=None):
        MKx = MK if name == "OWN" or not opt.mke else MKE
        a.c(f"---- attention part {name} ----")
        e(f"v_add_u32 v{vK}, s{first_s}, v{vL16}")
        kread(0); kread(1)
        e(f"s_sub_u32 s{sT2}, s{rest_s}, s{first_s}")
        e(f"s_mov_b32 s{sCNT}, s{cnt_s}")
        e("s_waitcnt lgkmcnt(0)")
        if name == "OWN": e(f"v_readfirstlane_b32 s{sTAG}, v14")
        mfma(SS, KF, QF, MKx)
        mfma(SS + 16, KF + 4, QF + 4, MKx)
        vreads(0); vreads(1)
        e(f"v_add_u32 v{vK}, s{sT2}, v{vK}")
        kread(0); kread(1)
        e("s_waitcnt lgkmcnt(2)")
        seg(0, prev=False, nxt=False)
        if hook: hook()
        e(f"s_cmp_eq_u32 s{sCNT}, 0")
        e(f"s_cbranch_scc1 L_{name}_LAST")
        e(f"s_sub_u32 s{sCNT}, s{sCNT}, 1")
        a.lab(f"L_{name}_LOOP")
        seg(1, prev=True, nxt=True, kx=REG, vx=0)
        seg(0, prev=True, nxt=True, kx=REG, vx=0)
        e(f"v_add_u32 v{vK}, {REG}, v{vK}")
        e(f"s_sub_u32 s{sCNT}, s{sCNT}, 1")
        e(f"s_cbranch_scc0 L_{name}_LOOP")
        a.lab(f"L_{name}_LAST")
        seg(1, prev=True, nxt=False)
        e("s_nop 1")
        mfma(OA + 16, VF + 12, PP + 4, OA + 16)
    def kvflag():
        e("s_waitcnt vmcnt(0)")
        e(f"v_lshlrev_b32 v13, 2, v0")
        e(f"v_mov_b32 v14, s{sTAG}")
        e("s_mov_b64 exec, 3")
        e(f"buffer_store_dword v14, v13, {srd(S_WS)}, s{sKVO} offen sc1")
        e("s_mov_b64 exec, -1")
    a.vm = []
    e(f"s_mul_i32 s{sT0}, s{sTAU}, {REG}")
    e(f"s_mov_b32 s{sT1}, 0")
    def hook():
        e(f"s_cmp_ge_u32 s{sW}, 4")
        e("s_cbranch_scc1 L_KVF_DONE")
        kvflag()
        a.lab("L_KVF_DONE")
    if opt.prio == 2:
        e(f"s_cmp_lt_u32 s{sW}, 4")
        e("s_cbranch_scc1 L_PRIO_SKIP")
        e("s_setprio 1")
        a.lab("L_PRIO_SKIP")
    part("OWN", sT0, sT1, sTAU, hook=hook)
    stamp("own done")
    def gate_loads():
        if opt.gate4:
            e(f"s_and_b32 s{sT2}, s{sT3}, 3")
            e(f"s_sub_u32 s{sT3x}, 7, s{sT2}")
            e(f"s_cmp_lt_u32 s{sQ}, 2")
            e(f"s_cselect_b32 s{sT2}, s{sT2}, s{sT3x}")
            e(f"s_lshr_b32 s{sT3x}, s{sT3}, 2")
            e(f"s_lshl_b32 s{sT3x}, s{sT3x}, 3")
            e(f"s_add_u32 s{sT2}, s{sT2}, s{sT3x}")
            e(f"s_lshl_b32 s{sT2}, s{sT2}, 15")
            e(f"s_and_b32 s{sT3x}, s{sQ}, 1")
            e(f"s_lshl_b32 s{sT3x}, s{sT3x}, 14")
            e(f"s_add_u32 s{sT2}, s{sT2}, s{sT3x}")
            n = 16
        else:
            e(f"s_lshl_b32 s{sT2}, s{sTT3}, 15")
            e(f"s_lshl_b32 s{sT3x}, s{sQ}, 13")
            e(f"s_add_u32 s{sT2}, s{sT2}, s{sT3x}")
            n = 8
        e(f"buffer_load_dwordx4 {vr(GW,4)}, v{vL16}, {srd(S_GW)}, 0 offen")
        for i in range(n):
            e(f"buffer_load_dwordx4 {vr(GX+4*i,4)}, v{vL16}, {srd(S_X)}, s{sT2} offen offset:{(i&3)*1024}")
            if (i & 3) == 3 and i < n - 1: e(f"s_add_u32 s{sT2}, s{sT2}, 4096")
    def prefill():
        if not opt.sent: return
        for i in range(4): e(f"v_mov_b32 v{128+i}, -1")
        e(f"s_lshl_b32 s{sT2}, s{sTT}, 1")
        e(f"s_add_u32 s{sT2}, s{sT2}, s{sBR}")
        e(f"s_lshl_b32 s{sT2}, s{sT2}, 5")
        e(f"s_lshl_b32 s{sT3x}, s{sHG}, 1")
        e(f"s_add_u32 s{sT2}, s{sT2}, s{sT3x}")
        e(f"s_lshl_b32 s{sT2}, s{sT2}, 10")
        e(f"s_add_u32 s{sT2}, s{sT2}, {WS_O}")
        for h in range(2):
            e(f"buffer_store_dwordx4 v[128:131], v{vL16}, {srd(S_WS)}, s{sT2} offen offset:{h*1024} sc1")
    def wo_voff():
        e(f"v_lshrrev_b32 v13, 3, v0")
        e(f"v_lshlrev_b32 v13, 10, v13")
        e(f"v_bfe_u32 v15, v0, 4, 1")
        e(f"v_lshlrev_b32 v15, 2, v15")
        e(f"v_xor_b32 v15, v15, v0")
        e(f"v_and_b32 v15, 7, v15")
        e(f"v_lshl_add_u32 v14, v15, 4, v13")
    def wo_dma(S, heads, kh, ldsaddr):
        for i in heads:
            sg, cst = ldsaddr(i)
            for hf in range(2):
                e(f"s_add_u32 s{sT3x}, s{sT5}, {(256*kh + 16*i + 8*hf)*1024}")
                e(f"s_add_u32 m0, s{sg}, {cst + hf*1024}")
                e("s_nop 0")
                e(f"buffer_load_dwordx4 v14, {srd(S)}, s{sT3x} offen lds")
    def wo_lin(S, sg, sl, n):
        e(f"s_mov_b32 m0, s{sl}")
        e("s_nop 0")
        for i in range(n):
            e(f"buffer_load_dwordx4 v14, {srd(S)}, s{sg} offen lds")
            if i < n - 1:
                e(f"s_add_u32 m0, m0, 1024")
                e(f"s_add_u32 s{sg}, s{sg}, 8192")
    def wo_early():
        wo_voff()
        e(f"s_lshl_b32 s{sT5}, s{sN3}, 7")
        e(f"s_and_b32 s{sT0}, s{sTAU}, 1")
        e(f"s_lshl_b32 s{sT0}, s{sT0}, 18")
        e(f"s_add_u32 s{sT0}, s{sT0}, s{sT5}")
        e(f"s_lshl_b32 s{sT1}, s{sTAU}, 14")
        e(f"s_add_u32 s{sT1}, s{sT1}, {LDS_A0}")
        lab = f"L_WE_{opt._n}"; opt._n += 1
        e(f"s_cmp_ge_u32 s{sTAU}, 2")
        e(f"s_cbranch_scc1 {lab}_B")
        e(f"s_mov_b32 s{sT4}, s{sT0}")
        wo_lin(S_WOA, sT4, sT1, 16)
        e(f"s_branch {lab}_E")
        a.lab(f"{lab}_B")
        e(f"s_mov_b32 s{sT4}, s{sT0}")
        wo_lin(S_WOB, sT4, sT1, 16)
        a.lab(f"{lab}_E")
    def halo_poll_load():
        n = opt._n; opt._n += 1
        e(f"s_sub_u32 s{sT2}, s{sC}, 1")
        e(f"s_lshl_b32 s{sT3x}, s{sT2}, 5")
        e(f"s_add_u32 s{sT3x}, s{sT3x}, s{sBH}")
        e(f"s_lshl_b32 s{sT3x}, s{sT3x}, 7")
        e(f"s_lshl_b32 s{sT4}, s{sTAU}, 3")
        e(f"s_add_u32 s{sT3x}, s{sT3x}, s{sT4}")
        e(f"s_add_u32 s{sT3x}, s{sT3x}, {WS_KVF}")
        e(f"v_and_b32 v13, 1, v0")
        e(f"v_lshlrev_b32 v13, 2, v13")
        e(f"s_mov_b32 s{sSPIN}, 0")
        a.lab(f"L_KVF_LOOP{n}")
        e(f"buffer_load_dword v15, v13, {srd(S_WS)}, s{sT3x} offen sc1")
        e(f"s_add_u32 s{sSPIN}, s{sSPIN}, 1")
        e("s_waitcnt vmcnt(0)")
        e(f"v_cmp_ne_u32 vcc, s{sTAG}, v15")
        e(f"s_cmp_gt_u32 s{sSPIN}, {opt.spin}")
        e(f"s_cbranch_scc1 L_KVF_OK{n}")
        e(f"s_cbranch_vccnz L_KVF_LOOP{n}")
        a.lab(f"L_KVF_OK{n}")
        stamp("roleA")
        e(f"s_lshl_b32 s{sT3x}, s{sBH}, 6")
        e(f"s_lshl_b32 s{sT2}, s{sT2}, 3")
        e(f"s_add_u32 s{sT3x}, s{sT3x}, s{sT2}")
        e(f"s_lshl_b32 s{sT2}, s{sTAU}, 1")
        e(f"s_add_u32 s{sT3x}, s{sT3x}, s{sT2}")
        e(f"s_lshl_b32 s{sT3x}, s{sT3x}, 12")
        e(f"s_add_u32 s{sT3x}, s{sT3x}, {WS_KV}")
        for j in range(2):
            for i in range(4):
                e(f"buffer_load_dwordx4 {vr(HT+16*j+4*i,4)}, v{vL16}, {srd(S_WS)}, s{sT3x} offen offset:{i*1024} sc1")
            if j < 1: e(f"s_add_u32 s{sT3x}, s{sT3x}, 4096")
    def halo_write(younger):
        e(f"s_mul_i32 s{sT2}, s{sTAU}, {2*REG}")
        e(f"s_add_u32 s{sT2}, s{sT2}, 4096")
        e(f"v_add_u32 v13, s{sT2}, v{vL16}")
        for j in range(2):
            e(f"s_waitcnt vmcnt({younger+4-4*j})")
            for i in range(4):
                e(f"ds_write_b128 v13, {vr(HT+16*j+4*i,4)} offset:{j*REG+i*1024}")
    opt._n = 0
    NE = 16
    NG = 0 if opt.gate4 else 9
    e(f"s_cmp_gt_u32 s{sTAU}, 3")
    e("s_cbranch_scc0 L_ROLE_LO")
    if opt.sent == 2: prefill()
    e("s_branch L_HALO_BAR")
    a.lab("L_ROLE_LO")
    if opt.mke:
        e(f"s_mov_b32 s{sT2}, 0xff800000")
        for r in range(16): e(f"v_xor_b32 v{MKE+r}, s{sT2}, v{MK+r}")
    e(f"s_cmp_eq_u32 s{sC}, 0")
    e("s_cbranch_scc1 L_ROLE_C0")
    e(f"s_cmp_gt_u32 s{sTAU}, 1")
    e("s_cbranch_scc1 L_ROLE_HI")
    wo_early()
    halo_poll_load()
    if not opt.gate4: gate_loads()
    halo_write(NG)
    e("s_waitcnt lgkmcnt(0)")
    stamp("roleB")
    e("s_branch L_HALO_BAR")
    a.lab("L_ROLE_HI")
    halo_poll_load()
    wo_early()
    if not opt.gate4: gate_loads()
    halo_write(NE + NG)
    e(f"s_waitcnt vmcnt({NG}) lgkmcnt(0)")
    stamp("roleB")
    e("s_branch L_HALO_BAR")
    a.lab("L_ROLE_C0")
    wo_early()
    if not opt.gate4: gate_loads()
    e(f"s_waitcnt vmcnt({NG})")
    a.lab("L_HALO_BAR")
    if not opt.mke:
        e(f"s_mov_b32 s{sT2}, 0xff800000")
        for r in range(16): e(f"v_xor_b32 v{MK+r}, s{sT2}, v{MK+r}")
    e("s_barrier")
    stamp("B2")
    e(f"s_cmp_ge_u32 s{sTAU}, 4")
    e("s_cbranch_scc1 L_LATE_S")
    prefill()
    e("s_branch L_LATE_E")
    a.lab("L_LATE_S")
    if opt.warm in (4, 6, 7):
        assert not opt.rep
        e(f"s_cmp_eq_u32 s{sW}, 4"); e("s_cbranch_scc0 L_FW_E")
        e(f"s_lshl_b32 s{sT2}, s{sC}, 5"); e(f"s_lshr_b32 s{sT3x}, s{sBH}, 3"); e(f"s_add_u32 s{sT2}, s{sT2}, s{sT3x}")
        e(f"s_lshl_b32 s{sT2}, s{sT2}, 7"); e(f"s_add_u32 s{sT2}, s{sT2}, {WS_OF}")
        e(f"v_lshlrev_b32 v13, 9, v0"); e(f"v_add_u32 v13, s{sT2}, v13")
        e("s_mov_b64 exec, 0xff")
        e(f"buffer_load_dword v215, v13, {srd(S_WS)}, 0 offen sc1")
        e("s_mov_b64 exec, -1")
        e(f"s_lshr_b32 s{sT2}, s{sT3}, 2"); e(f"s_lshl_b32 s{sT2}, s{sT2}, 3"); e(f"s_and_b32 s{sT3x}, s{sT3}, 3")
        e(f"s_add_u32 s{sT0}, s{sT2}, s{sT3x}"); e(f"s_sub_u32 s{sT3x}, 7, s{sT3x}"); e(f"s_add_u32 s{sT1}, s{sT2}, s{sT3x}")
        e(f"s_lshl_b32 s{sT0}, s{sT0}, 9"); e(f"s_lshl_b32 s{sT1}, s{sT1}, 9")
        e(f"s_add_u32 s{sT0}, s{sT0}, {WS_OF}"); e(f"s_add_u32 s{sT1}, s{sT1}, {WS_OF}")
        e(f"v_lshlrev_b32 v13, 7, v0")
        e("s_mov_b64 exec, 15")
        e(f"buffer_load_dword v215, v13, {srd(S_WS)}, s{sT0} offen sc1")
        e(f"buffer_load_dword v214, v13, {srd(S_WS)}, s{sT1} offen sc1")
        e("s_mov_b64 exec, -1")
        a.lab("L_FW_E")
        if opt.warm == 7:
            e(f"s_cmp_eq_u32 s{sW}, 5"); e("s_cbranch_scc0 L_FW_F")
            e(f"s_lshr_b32 s{sT2}, s{sT3}, 2"); e(f"s_lshl_b32 s{sT2}, s{sT2}, 3"); e(f"s_and_b32 s{sT3x}, s{sT3}, 3")
            e(f"s_add_u32 s{sT0}, s{sT2}, s{sT3x}"); e(f"s_sub_u32 s{sT3x}, 7, s{sT3x}"); e(f"s_add_u32 s{sT1}, s{sT2}, s{sT3x}")
            e(f"s_sub_u32 s{sT1}, s{sT1}, s{sT0}"); e(f"s_sub_u32 s{sT1}, s{sT1}, 1"); e(f"s_lshl_b32 s{sT1}, s{sT1}, 15")
            e(f"s_lshl_b32 s{sT0}, s{sT0}, 15"); e(f"s_lshl_b32 s{sT3x}, s{sN3}, 7"); e(f"s_add_u32 s{sT0}, s{sT0}, s{sT3x}")
            e(f"v_lshlrev_b32 v13, 10, v0"); e(f"v_lshrrev_b32 v15, 5, v0"); e(f"v_mul_lo_u32 v15, v15, s{sT1}"); e(f"v_add_u32 v13, v13, v15")
            e(f"buffer_load_dword v215, v13, {srd(S_OUT)}, s{sT0} offen")
            a.lab("L_FW_F")
    wo_voff()
    e(f"s_sub_u32 s{sT2}, 7, s{sTAU}")
    e(f"s_lshl_b32 s{sT5}, s{sN3}, 7")
    e(f"s_and_b32 s{sT0}, s{sT2}, 1")
    e(f"s_lshl_b32 s{sT0}, s{sT0}, 18")
    e(f"s_add_u32 s{sT0}, s{sT0}, s{sT5}")
    e(f"s_add_u32 s{sT0}, s{sT0}, {128*1024}")
    e(f"s_mul_i32 s{sT1}, s{sT2}, {2*REG}")
    def late(S):
        for (reg, slot) in ((0, 8192), (1, 8192), (0, 0), (1, 0)):
            e(f"s_add_u32 s{sT3x}, s{sT1}, {reg*REG + slot}")
            wo_lin(S, sT0, sT3x, 4)
            e(f"s_add_u32 s{sT0}, s{sT0}, 8192")
    e(f"s_cmp_ge_u32 s{sT2}, 2")
    e("s_cbranch_scc1 L_LATE_B")
    late(S_WOA)
    e("s_branch L_LATE_G")
    a.lab("L_LATE_B")
    late(S_WOB)
    a.lab("L_LATE_G")
    gate_loads()
    if opt.prio: e("s_setprio 1")
    a.lab("L_LATE_E")
    e(f"s_cmp_eq_u32 s{sC}, 0")
    e("s_cbranch_scc1 L_P2_EPI")
    e(f"s_mul_i32 s{sT0}, s{sTAU}, {REG}")
    e(f"s_add_u32 s{sT0}, s{sT0}, 4096")
    e(f"s_add_u32 s{sT1}, s{sT0}, {REG}")
    e(f"s_sub_u32 s{sT4}, 7, s{sTAU}")
    part("HALO", sT0, sT1, sT4)
    a.lab("L_P2_EPI")
    stamp("attn done")
    lo, hi = f32bits(2.0 ** -64), f32bits(2.0 ** 64)
    e(f"s_mov_b32 s{sT0}, {hex(lo)}")
    e(f"s_mov_b32 s{sT1}, {hex(hi)}")
    e(f"s_lshl_b32 s{sKVO}, s{sTT}, 1")
    e(f"s_add_u32 s{sKVO}, s{sKVO}, s{sBR}")
    e(f"s_lshl_b32 s{sKVO}, s{sKVO}, 5")
    e(f"s_lshl_b32 s{sT3x}, s{sHG}, 1")
    e(f"s_add_u32 s{sKVO}, s{sKVO}, s{sT3x}")
    e(f"s_lshl_b32 s{sKVO}, s{sKVO}, 10")
    e(f"s_add_u32 s{sKVO}, s{sKVO}, {WS_O}")
    e(f"s_lshl_b32 s{sT2}, s{sTT}, 2")
    e(f"s_lshr_b32 s{sT3x}, s{sBH}, 3")
    e(f"s_add_u32 s{sT2}, s{sT2}, s{sT3x}")
    e(f"s_lshl_b32 s{sT2}, s{sT2}, {10 if opt.rep else 7}")
    e(f"s_and_b32 s{sT3x}, s{sBH}, 7")
    e(f"s_lshl_b32 s{sT3x}, s{sT3x}, 2")
    e(f"s_add_u32 s{sT2}, s{sT2}, s{sT3x}")
    e(f"s_add_u32 s{sOFA}, s{sT2}, {WS_OF}")
    e("s_nop 2")
    if opt.fallback:
        for h in range(2):
            O = OA + 16 * h
            e(f"v_mul_f32 v13, 0, v{O}")
            for i in range(1, 8): e(f"v_fmac_f32 v13, 0, v{O+i}")
            e(f"v_cmp_nle_f32 vcc, s{sT0}, v{O+8}")
            e(f"s_mov_b64 s[74:75], vcc")
            e(f"v_cmp_nge_f32 vcc, s{sT1}, v{O+8}")
            e("s_or_b64 s[74:75], s[74:75], vcc")
            e(f"v_cmp_u_f32 vcc, v13, v13")
            e("s_or_b64 s[74:75], s[74:75], vcc")
            e("s_cmp_lg_u64 s[74:75], 0")
            e(f"s_cselect_b32 s{sT2}, {1<<h}, 0")
            e(f"s_or_b32 s{sFAIL}, s{sFAIL}, s{sT2}")
        if opt.forcefb: e(f"s_or_b32 s{sFAIL}, s{sFAIL}, {opt.forcefb}")
        e(f"s_cmp_lg_u32 s{sFAIL}, 0")
        e("s_cbranch_scc1 L_FB_ENTRY")
        a.lab("L_NOFB")
    else:
        e("s_nop 7")
    if opt.sent:
        e(f"s_cmp_ge_u32 s{sW}, 4")
        e("s_cbranch_scc1 L_NOSENT0")
        e("s_waitcnt vmcnt(0)")
        e("s_branch L_NOSENT")
        a.lab("L_NOSENT0")
        if opt.sent == 2: e("s_waitcnt vmcnt(25)")
        a.lab("L_NOSENT")
    for h in range(2):
        e(f"v_rcp_f32 v{13+h}, v{OA+16*h+8}")
    for h in range(2):
        O = OA + 16 * h
        for i in range(8): e(f"v_mul_f32 v{O+i}, v{O+i}, v{13+h}")
        for i in range(4): e(cvt(O + 8 + i, O + 2 * i, O + 2 * i + 1))
        if opt.sent:
            for i in range(4): e(f"v_min_u32 v{O+8+i}, -2, v{O+8+i}")
        e(f"buffer_store_dwordx4 {vr(O+8,4)}, v{vL16}, {srd(S_WS)}, s{sKVO} offen offset:{h*1024} sc1")
    if opt.sent:
        if opt.sent != 2:
            e(f"s_cmp_ge_u32 s{sW}, 4")
            e("s_cbranch_scc1 L_NOHINT")
        e(f"v_lshlrev_b32 v13, 7, v0")
        e(f"v_mov_b32 v14, s{sTAG}")
        e(f"s_mov_b64 exec, {'0xff' if opt.rep else 1}")
        e(f"buffer_store_dword v14, v13, {srd(S_WS)}, s{sOFA} offen sc1")
        e("s_mov_b64 exec, -1")
        stamp("O published")
        a.lab("L_NOHINT")
    WF3, OF3, AC3 = 16, 144, 208
    e(f"v_lshrrev_b32 v1, 5, v0")
    e(f"v_lshlrev_b32 v1, 9, v1")
    e(f"v_bfe_u32 v2, v0, 2, 2")
    e(f"v_lshl_add_u32 v1, v2, 7, v1")
    e(f"v_bfe_u32 v2, v0, 3, 1")
    e(f"v_lshl_add_u32 v1, v2, 6, v1")
    e(f"v_bfe_u32 v2, v0, 4, 1")
    e(f"v_lshl_add_u32 v1, v2, 5, v1")
    e(f"v_and_b32 v2, 3, v0")
    e(f"v_lshl_add_u32 v1, v2, 3, v1")
    e(f"s_lshl_b32 s{sT2}, s{sQ}, 14")
    e(f"s_add_u32 s{sT2}, s{sT2}, {LDS_A0}")
    e(f"s_mul_i32 s{sT3x}, s{sQ}, {2*REG}")
    e(f"v_xor_b32 v2, 64, v1")
    vA = [244, 245]; vB = [246, 247]
    e(f"v_add_u32 v{vA[0]}, s{sT2}, v1")
    e(f"v_add_u32 v{vA[1]}, s{sT2}, v2")
    e(f"v_add_u32 v{vB[0]}, s{sT3x}, v1")
    e(f"v_add_u32 v{vB[1]}, s{sT3x}, v2")
    def trw(i):
        for ct in range(2):
            for u in range(2):
                if i < 8: ad, off = vA[ct], i * 2048
                elif i < 12: ad, off = vB[ct], ((i - 8) >> 1) * REG + 8192 + ((i - 8) & 1) * 2048
                else: ad, off = vB[ct], ((i - 12) >> 1) * REG + ((i - 12) & 1) * 2048
                e(f"ds_read_b64_tr_b16 {vr(WF3+8*i+4*ct+2*u,2)}, v{ad} offset:{off+u*1024}")
    for i in range(8): trw(i)
    e(f"s_lshl_b32 s{sT1}, s{sTT3}, 2")
    e(f"s_add_u32 s{sT1}, s{sT1}, s{sQ}")
    if opt.rep:
        e(f"s_lshl_b32 s{sT1}, s{sT1}, 3")
        e(f"s_add_u32 s{sT1}, s{sT1}, s{sN3}")
    e(f"s_lshl_b32 s{sT1}, s{sT1}, 7")
    e(f"s_add_u32 s{sT1}, s{sT1}, {WS_OF}")
    e(f"s_lshl_b32 s{sT0}, s{sTT3}, 1")
    e(f"s_add_u32 s{sT0}, s{sT0}, s{sB3}")
    e(f"s_lshl_b32 s{sT0}, s{sT0}, 5")
    e(f"s_lshl_b32 s{sT3x}, s{sKH}, 4")
    e(f"s_add_u32 s{sT0}, s{sT0}, s{sT3x}")
    e(f"s_lshl_b32 s{sT0}, s{sT0}, 10")
    e(f"s_add_u32 s{sT0}, s{sT0}, {WS_O}")
    def oflag(wait=True):
        e(f"v_lshlrev_b32 v13, 7, v0")
        e(f"v_mov_b32 v14, s{sTAG}")
        if wait: e("s_waitcnt vmcnt(0)")
        e(f"s_mov_b64 exec, {'0xff' if opt.rep else 1}")
        e(f"buffer_store_dword v14, v13, {srd(S_WS)}, s{sOFA} offen sc1")
        e("s_mov_b64 exec, -1")
        stamp("O published")
    GR = 236
    def gate_round(gx, g_out, g1_out):
        for i in range(8): e(f"v_mov_b32 v{GA+i}, 0")
        for d in range(4):
            for i in range(8):
                e(f"v_dot2_f32_bf16 v{GA+i}, v{gx+4*i+d}, v{GW+d}, v{GA+i}")
        e("s_nop 4")
        for i in range(4): e(f"v_permlane32_swap_b32 v{GA+i}, v{GA+4+i}")
        for i in range(4): e(f"v_add_f32 v{GA+i}, v{GA+i}, v{GA+4+i}")
        e("s_nop 1")
        for i in range(2): e(f"v_permlane16_swap_b32 v{GA+i}, v{GA+2+i}")
        for i in range(2): e(f"v_add_f32 v{GA+i}, v{GA+i}, v{GA+2+i}")
        e("s_nop 1")
        for i in range(2): e(f"v_add_f32_dpp v{GA+i}, v{GA+i}, v{GA+i} row_ror:8 row_mask:0xf bank_mask:0xf")
        e("s_nop 1")
        e(f"v_mov_b32_dpp v{GA}, v{GA+1} quad_perm:[0,1,2,3] row_mask:0xf bank_mask:0xc")
        e("s_nop 1")
        e(f"v_add_f32_dpp v15, v{GA}, v{GA} quad_perm:[1,0,3,2] row_mask:0xf bank_mask:0xf")
        e("s_nop 1")
        e("v_add_f32_dpp v15, v15, v15 quad_perm:[2,3,0,1] row_mask:0xf bank_mask:0xf")
        e("s_nop 1")
        e("v_add_f32_dpp v15, v15, v15 row_half_mirror row_mask:0xf bank_mask:0xf")
        e("v_cvt_pk_bf16_f32 v15, v15, v15")
        e("v_and_b32 v15, 0xffff0000, v15")
        e(f"v_mul_f32 v15, {hex(f32bits(-math.log2(math.e)))}, v15")
        e("v_exp_f32 v15, v15")
        e("s_nop 0")
        e("v_add_f32 v15, 1.0, v15")
        e("v_rcp_f32 v15, v15")
        e("s_nop 0")
        e("v_cvt_pk_bf16_f32 v15, v15, v15")
        e(f"v_and_b32 v{g_out}, 0xffff0000, v15")
        e(f"v_sub_f32 v15, 1.0, v{g_out}")
        e("v_cvt_pk_bf16_f32 v15, v15, v15")
        e(f"v_and_b32 v{g1_out}, 0xffff0000, v15")
    def gate():
        if opt.gate4:
            gate_round(GX, GR, GR + 1); gate_round(GX + 32, GR + 2, GR + 3)
        else:
            gate_round(GX, GR, GR + 1)
    def gate_write():
        e(f"v_lshrrev_b32 v15, 3, v0")
        if opt.gate4:
            e(f"s_lshl_b32 s{sT2}, s{sQ}, 4")
        else:
            e(f"s_lshl_b32 s{sT2}, s{sW}, 3")
        e(f"v_add_u32 v15, s{sT2}, v15")
        e(f"v_lshlrev_b32 v15, 2, v15")
        e(f"ds_write_b32 v15, v{GR} offset:{LDS_GATE}")
        e(f"ds_write_b32 v15, v{GR+1} offset:{LDS_GATE+256}")
        if opt.gate4:
            e(f"ds_write_b32 v15, v{GR+2} offset:{LDS_GATE+32}")
            e(f"ds_write_b32 v15, v{GR+3} offset:{LDS_GATE+256+32}")
    def poll(name, first_issued, sleep):
        e(f"s_mov_b32 s{sSPIN}, 0")
        if not first_issued:
            e(f"buffer_load_dword v14, v13, {srd(S_WS)}, s{sT1} offen sc1")
        a.lab(f"L_OF_LOOP{name}")
        e("s_waitcnt vmcnt(0)")
        e(f"v_cmp_ne_u32 vcc, s{sTAG}, v14")
        e(f"s_add_u32 s{sSPIN}, s{sSPIN}, 1")
        e(f"s_cbranch_vccz L_OF_OK{name}")
        e(f"s_cmp_gt_u32 s{sSPIN}, {opt.spin}")
        e(f"s_cbranch_scc1 L_OF_OK{name}")
        if sleep: e(f"s_sleep {sleep}")
        e(f"buffer_load_dword v14, v13, {srd(S_WS)}, s{sT1} offen sc1")
        e(f"s_branch L_OF_LOOP{name}")
        a.lab(f"L_OF_OK{name}")
    def oloads(mod="sc1"):
        for i in range(16):
            e(f"buffer_load_dwordx4 {vr(OF3+4*i,4)}, v{vL16}, {srd(S_WS)}, s{sT0} offen offset:{(i&3)*1024} {mod}")
            if (i & 3) == 3 and i < 15: e(f"s_add_u32 s{sT0}, s{sT0}, 4096")
    def p3mfma(i0, i1):
        for i in range(i0, i1):
            e(f"s_waitcnt vmcnt({15-i})")
            for ct in range(2):
                mfma(AC3 + 16 * ct, WF3 + 8 * i + 4 * ct, OF3 + 4 * i, "0" if i == 0 else AC3 + 16 * ct)
    def late_part(gw=True):
        if gw: gate_write()
        for i in range(8, 16): trw(i)
    def p3mfma2():
        if opt.sent:
            e(f"s_mov_b32 s{sSPIN}, 0")
            a.lab("L_P3_RETRY")
            e("v_mov_b32 v15, 0")
        for i in range(16):
            if i == 8: e("s_waitcnt lgkmcnt(0)")
            e(f"s_waitcnt vmcnt({15-i})")
            for ct in range(2):
                mfma(AC3 + 16 * ct, WF3 + 8 * i + 4 * ct, OF3 + 4 * i, "0" if i == 0 else AC3 + 16 * ct)
                if opt.sent: e(f"v_max3_u32 v15, v15, v{OF3+4*i+2*ct}, v{OF3+4*i+2*ct+1}")
        if opt.sent:
            e("v_cmp_eq_u32 vcc, -1, v15")
            e(f"s_add_u32 s{sSPIN}, s{sSPIN}, 1")
            e("s_cbranch_vccz L_P3_DONE")
            e(f"s_cmp_gt_u32 s{sSPIN}, {opt.spin}")
            e("s_cbranch_scc1 L_P3_DONE")
            e(f"s_sub_u32 s{sT0}, s{sT0}, 12288")
            e("s_nop 7")
            oloads()
            e("s_branch L_P3_RETRY")
            a.lab("L_P3_DONE")
    e(f"s_cmp_eq_u32 s{sTQ}, 0")
    e("s_cbranch_scc1 L_P3_LATE")
    if opt.sent == 2: e("s_waitcnt vmcnt(3)")
    else: oflag()
    if opt.prio: e("s_setprio 0")
    if opt.early == 0:
        gate()
        e(f"v_and_b32 v13, 7, v0")
        e(f"v_lshlrev_b32 v13, 2, v13")
        e(f"buffer_load_dword v14, v13, {srd(S_WS)}, s{sT1} offen sc1")
        e("s_waitcnt lgkmcnt(0)")
        e("s_barrier")
        stamp("B3")
        poll("E", True, opt.sleep)
        stamp("O flags seen")
        oloads(opt.omod)
        late_part()
    else:
        e(f"v_and_b32 v13, 7, v0")
        e(f"v_lshlrev_b32 v13, 2, v13")
        e(f"buffer_load_dword v14, v13, {srd(S_WS)}, s{sT1} offen sc1")
        gate()
        for i in range(8, 16): trw(i)
        poll("E", True, opt.sleep)
        stamp("O flags seen")
        oloads(opt.omod)
        e("s_waitcnt lgkmcnt(0)")
        e("s_barrier")
        stamp("B3")
        gate_write()
    e("s_branch L_P3_J")
    a.lab("L_P3_LATE")
    if opt.sent:
        e(f"v_and_b32 v13, 7, v0")
        e(f"v_lshlrev_b32 v13, 2, v13")
        e(f"buffer_load_dword v14, v13, {srd(S_WS)}, s{sT1} offen sc1")
        if not opt.gate4: gate()
        e("s_waitcnt lgkmcnt(0)")
        e("s_barrier")
        stamp("B3")
    else:
        e("s_waitcnt vmcnt(2)")
        gate()
        oflag()
        e(f"v_and_b32 v13, 7, v0")
        e(f"v_lshlrev_b32 v13, 2, v13")
        e(f"buffer_load_dword v14, v13, {srd(S_WS)}, s{sT1} offen sc1")
        e("s_waitcnt lgkmcnt(0)")
        e("s_barrier")
        stamp("B3")
    late_part(not opt.gate4)
    poll("L", True, 0)
    stamp("O flags seen")
    oloads(opt.omod)
    a.lab("L_P3_J")
    p3mfma2()
    stamp("P3 mfma")
    e(f"s_lshl_b32 s{sT2}, s{sTQ}, 15")
    e(f"s_lshl_b32 s{sT3x}, s{sQ}, 11")
    e(f"s_add_u32 s{sT3x}, s{sT3x}, s{sT2}")
    e(f"s_add_u32 s{sT3x}, s{sT3x}, {LDS_RB}")
    e(f"v_add_u32 v1, s{sT3x}, v{vL16}")
    e(f"s_lshl_b32 s{sT3x}, s{sQ}, 13")
    e(f"s_add_u32 s{sT3x}, s{sT3x}, s{sT2}")
    e(f"s_add_u32 s{sT3x}, s{sT3x}, {LDS_RB}")
    e(f"v_add_u32 v2, s{sT3x}, v{vL16}")
    e(f"v_and_b32 v4, 31, v0")
    e(f"s_lshl_b32 s{sT2}, s{sTQ}, 5")
    e(f"v_add_u32 v3, s{sT2}, v4")
    e(f"v_lshlrev_b32 v3, 2, v3")
    e(f"v_lshlrev_b32 v4, 10, v4")
    e(f"v_lshrrev_b32 v5, 5, v0")
    e(f"v_lshl_add_u32 v4, v5, 4, v4")
    e(f"s_lshl_b32 s{sT2}, s{sTT3}, 15")
    e(f"s_lshl_b32 s{sT3x}, s{sN3}, 7")
    e(f"s_add_u32 s{sT2}, s{sT2}, s{sT3x}")
    e(f"s_lshl_b32 s{sT3x}, s{sQ}, 5")
    e(f"s_add_u32 s{sT2}, s{sT2}, s{sT3x}")
    e("s_nop 1")
    for qq in range(4):
        for hf in range(2):
            e(f"ds_write_b128 v1, {vr(AC3+8*qq+4*hf,4)} offset:{qq*8192+hf*1024}")
    e("s_waitcnt lgkmcnt(0)")
    e("s_barrier")
    R = 144
    e(f"ds_read_b32 v5, v3 offset:{LDS_GATE}")
    e(f"ds_read_b32 v6, v3 offset:{LDS_GATE+256}")
    for src in range(4):
        for hf in range(2):
            e(f"ds_read_b128 {vr(R+8*src+4*hf,4)}, v2 offset:{src*2048+hf*1024}")
    e("s_waitcnt lgkmcnt(4)")
    for i in range(8): e(f"v_add_f32 v{R+i}, v{R+i}, v{R+8+i}")
    for i in range(8): e(f"v_mul_f32 v{R+i}, v{R+i}, v5")
    e("s_waitcnt lgkmcnt(0)")
    for i in range(8): e(f"v_add_f32 v{R+16+i}, v{R+16+i}, v{R+24+i}")
    for i in range(8): e(f"v_fmac_f32 v{R+i}, v{R+16+i}, v6")
    for i in range(4): e(cvt(R + 32 + i, R + 2 * i, R + 2 * i + 1))
    e("s_nop 1")
    e(f"v_permlane32_swap_b32 v{R+32}, v{R+34}")
    e(f"v_permlane32_swap_b32 v{R+33}, v{R+35}")
    e(f"buffer_store_dwordx4 {vr(R+32,4)}, v4, {srd(S_OUT)}, s{sT2} offen {opt.outmod}")
    if STAMPS:
        stamp("end")
        e(f"s_memtime s[{sTM}:{sTM+1}]")
        e("s_waitcnt lgkmcnt(0)")
        e(f"s_sub_u32 s{STREG[nst[0]]}, s{sTM}, s100")
        nst[0] += 1
        opt.stamp_names.append("CYCLES")
        n = nst[0]
        e(f"s_lshl_b32 s{sT2}, s2, 3")
        e(f"s_add_u32 s{sT2}, s{sT2}, s{sW}")
        e(f"s_lshl_b32 s{sT2}, s{sT2}, 7")
        e(f"s_add_u32 s{sT2}, s{sT2}, {WS_STAMP}")
        e("v_mov_b32 v13, 0")
        e("s_mov_b64 exec, 1")
        for i in range(n):
            e(f"v_mov_b32 v14, s{STREG[i]}")
            e(f"buffer_store_dword v14, v13, {srd(S_WS)}, s{sT2} offen offset:{4*i}")
            e("s_nop 0")
        e("s_mov_b64 exec, -1")
    e("s_waitcnt vmcnt(0)")
    a.lab("L_END")
    e("s_endpgm")
    if opt.fallback:
        a.lab("L_FB_ENTRY")
        fallback(a, opt, dict(SS=SS, PP=PP, KF=KF, MK=MK, OA=OA, QF=QF, vL16=vL16, HT=144))
        e("s_branch L_NOFB")
    a.lab("L_CODE_END")
    return a

def fallback(a, opt, R):
    e = a.e
    SS, PP, KF, MK, OA, QF, vL16, HT = (R[k] for k in "SS PP KF MK OA QF vL16 HT".split())
    TQ = 64; TM = 68; TB = 69; TO = 144; TV = 192; TC = 176
    S = SS
    sHH, sPASS, sPART, sTILE, sN = sH, 40, 41, 42, 43
    def mfma(D, A, B, C): e(mfma_s(D, A, B, C))
    a.c("==== fallback: true max ====")
    e(f"s_lshl_b32 s{sT2}, s{sC}, 5")
    e(f"s_add_u32 s{sT2}, s{sT2}, s{sBH}")
    e(f"s_lshl_b32 s{sT2}, s{sT2}, 7")
    e(f"s_add_u32 s{sT2}, s{sT2}, {WS_KVF}")
    e(f"v_and_b32 v13, 7, v0")
    e(f"v_lshlrev_b32 v13, 2, v13")
    e(f"s_mov_b32 s{sSPIN}, 0")
    a.lab("L_FB_FLAG")
    e(f"buffer_load_dword v14, v13, {srd(S_WS)}, s{sT2} offen sc1")
    e(f"s_add_u32 s{sSPIN}, s{sSPIN}, 1")
    e("s_waitcnt vmcnt(0)")
    e(f"v_cmp_ne_u32 vcc, s{sTAG}, v14")
    e(f"s_cmp_gt_u32 s{sSPIN}, {opt.spin}")
    e("s_cbranch_scc1 L_FB_FLAG_OK")
    e("s_cbranch_vccnz L_FB_FLAG")
    a.lab("L_FB_FLAG_OK")
    e(f"s_mov_b32 s{sHH}, 0")
    a.lab("L_FB_H")
    e(f"s_lshr_b32 s{sT2}, s{sFAIL}, s{sHH}")
    e(f"s_and_b32 s{sT2}, s{sT2}, 1")
    e(f"s_cmp_eq_u32 s{sT2}, 0")
    e("s_cbranch_scc1 L_FB_NEXT")
    e(f"s_cmp_eq_u32 s{sHH}, 0")
    e("s_cbranch_scc0 L_FB_Q1")
    for i in range(4): e(f"v_mov_b32 v{TQ+i}, v{QF+i}")
    e("s_branch L_FB_Q2")
    a.lab("L_FB_Q1")
    for i in range(4): e(f"v_mov_b32 v{TQ+i}, v{QF+4+i}")
    a.lab("L_FB_Q2")
    e(f"v_mov_b32 v{TM}, 0xff800000")
    for i in range(16): e(f"v_mov_b32 v{TO+i}, 0")
    for i in range(8): e(f"v_mov_b32 v{TV+i}, 0x3f803f80")
    e(f"s_mov_b32 s{sPASS}, 0")
    a.lab("L_FB_PASS")
    e(f"s_mov_b32 s{sPART}, 0")
    a.lab("L_FB_PART")
    e(f"s_cmp_eq_u32 s{sPART}, 0")
    e(f"s_cselect_b32 s{sTILE}, 0, s{sTAU}")
    e(f"s_cselect_b32 s{sN}, s{sTAU}, 7")
    a.lab("L_FB_TILE")
    e(f"s_cmp_eq_u32 s{sTILE}, s{sTAU}")
    e("s_cbranch_scc1 L_FB_MASK")
    for i in range(16): e(f"v_mov_b32 v{TC+i}, 0")
    e("s_branch L_FB_C")
    a.lab("L_FB_MASK")
    e(f"v_and_b32 v13, 31, v0")
    e(f"v_lshrrev_b32 v14, 5, v0")
    e(f"v_lshlrev_b32 v14, 2, v14")
    e(f"v_sub_u32 v13, v13, v14")
    e(f"s_cmp_eq_u32 s{sPART}, 0")
    e(f"s_cselect_b32 s{sT2}, 0, 0xff800000")
    for r in range(16):
        kk = (r & 3) + 8 * (r >> 2)
        e(f"v_subrev_u32 v{TC+r}, {kk}, v13")
        e(f"v_ashrrev_i32 v{TC+r}, 31, v{TC+r}")
        e(f"v_and_b32 v{TC+r}, 0xff800000, v{TC+r}")
        e(f"v_xor_b32 v{TC+r}, s{sT2}, v{TC+r}")
    a.lab("L_FB_C")
    e(f"s_sub_u32 s{sT2}, s{sC}, s{sPART}")
    e(f"s_lshl_b32 s{sT2}, s{sT2}, 3")
    e(f"s_add_u32 s{sT2}, s{sT2}, s{sTILE}")
    e(f"s_lshl_b32 s{sT3x}, s{sBH}, 6")
    e(f"s_add_u32 s{sT2}, s{sT2}, s{sT3x}")
    e(f"s_lshl_b32 s{sT2}, s{sT2}, 12")
    e(f"s_add_u32 s{sT2}, s{sT2}, {WS_KV}")
    e(f"s_lshl_b32 s{sT3x}, s{sHH}, 10")
    e(f"s_add_u32 s{sT3x}, s{sT3x}, s{sT2}")
    e(f"buffer_load_dwordx4 {vr(KF,4)}, v{vL16}, {srd(S_WS)}, s{sT3x} offen sc1")
    e(f"s_lshl_b32 s{sT3x}, s{sHH}, 8")
    e(f"s_add_u32 s{sT3x}, s{sT3x}, s{sT2}")
    e(f"s_mov_b64 exec, s[{sVM}:{sVM+1}]")
    e(f"buffer_load_dwordx4 {vr(TV,4)}, v{vL16}, {srd(S_WS)}, s{sT3x} offen offset:2048 sc1")
    e(f"buffer_load_dwordx4 {vr(TV+4,4)}, v{vL16}, {srd(S_WS)}, s{sT3x} offen offset:3072 sc1")
    e("s_mov_b64 exec, -1")
    e("s_waitcnt vmcnt(0)")
    mfma(S, KF, TQ, TC)
    e("s_nop 7"); e("s_nop 7")
    e(f"s_cmp_eq_u32 s{sPASS}, 0")
    e("s_cbranch_scc0 L_FB_P2")
    for i in range(8): e(f"v_max3_f32 v{TM}, v{TM}, v{S+2*i}, v{S+2*i+1}")
    e("s_branch L_FB_TNEXT")
    a.lab("L_FB_P2")
    for i in range(16): e(f"v_sub_f32 v{S+i}, v{S+i}, v{TM}")
    for i in range(16): e(f"v_exp_f32 v{S+i}, v{S+i}")
    e("s_nop 0")
    for i in range(8): e(cvt(PP + i, S + 2 * i, S + 2 * i + 1))
    e("s_nop 1")
    mfma(TO, TV, PP, TO)
    mfma(TO, TV + 4, PP + 4, TO)
    e("s_nop 7"); e("s_nop 7")
    a.lab("L_FB_TNEXT")
    e(f"s_add_u32 s{sTILE}, s{sTILE}, 1")
    e(f"s_cmp_le_u32 s{sTILE}, s{sN}")
    e("s_cbranch_scc1 L_FB_TILE")
    e(f"s_cmp_eq_u32 s{sC}, 0")
    e("s_cbranch_scc1 L_FB_PDONE")
    e(f"s_add_u32 s{sPART}, s{sPART}, 1")
    e(f"s_cmp_lt_u32 s{sPART}, 2")
    e("s_cbranch_scc1 L_FB_PART")
    a.lab("L_FB_PDONE")
    e(f"s_cmp_eq_u32 s{sPASS}, 0")
    e("s_cbranch_scc0 L_FB_STORE")
    e(f"v_mov_b32 v{TB}, v{TM}")
    e("s_nop 1")
    e(f"v_permlane32_swap_b32 v{TM}, v{TB}")
    e("s_nop 1")
    e(f"v_max_f32 v{TM}, v{TM}, v{TB}")
    e(f"s_mov_b32 s{sPASS}, 1")
    e("s_branch L_FB_PASS")
    a.lab("L_FB_STORE")
    e(f"s_cmp_eq_u32 s{sHH}, 0")
    e("s_cbranch_scc0 L_FB_S1")
    for i in range(16): e(f"v_mov_b32 v{OA+i}, v{TO+i}")
    e("s_branch L_FB_NEXT")
    a.lab("L_FB_S1")
    for i in range(16): e(f"v_mov_b32 v{OA+16+i}, v{TO+i}")
    a.lab("L_FB_NEXT")
    e(f"s_add_u32 s{sHH}, s{sHH}, 1")
    e(f"s_cmp_lt_u32 s{sHH}, 2")
    e("s_cbranch_scc1 L_FB_H")

def build(opt):
    opt.stamp_names = []
    a = gen(opt)
    hdr = []
    hdr.append(f"; @launch grid=(256,1,1) block=(512,1,1) lds={LDS_TOTAL}")
    hdr.append('.amdgcn_target "amdgcn-amd-amdhsa--gfx950"')
    hdr.append(".text")
    hdr.append(f".globl {KNAME}")
    hdr.append(".p2align 8")
    hdr.append(f".type {KNAME},@function")
    tail = f""".section .rodata,"a"
.p2align 6
.amdhsa_kernel {KNAME}
  .amdhsa_next_free_vgpr 256
  .amdhsa_next_free_sgpr 102
  .amdhsa_accum_offset 256
  .amdhsa_group_segment_fixed_size 0
  .amdhsa_kernarg_size 80
  .amdhsa_user_sgpr_count 2
  .amdhsa_user_sgpr_kernarg_segment_ptr 1
  .amdhsa_system_sgpr_workgroup_id_x 1
  .amdhsa_float_denorm_mode_32 3
.end_amdhsa_kernel
"""
    return "\n".join(hdr) + "\n" + a.text() + tail

def parse(argv=None):
    p = argparse.ArgumentParser()
    p.add_argument("-o", default="gated_mix__sliding_block__sliding_block__prompt.s")
    p.add_argument("--stamps", type=int, default=0)
    p.add_argument("--codepf", type=int, default=1)
    p.add_argument("--pace", type=float, default=1.6)
    p.add_argument("--rot", type=int, default=1)
    p.add_argument("--tlb", type=int, default=1)
    p.add_argument("--gate4", type=int, default=0)
    p.add_argument("--wostride", type=int, default=64)
    p.add_argument("--tagearly", type=int, default=0)
    p.add_argument("--gwpf", type=int, default=1)
    p.add_argument("--mke", type=int, default=1)
    p.add_argument("--forcefb", type=int, default=0)
    p.add_argument("--early", type=int, default=0)
    p.add_argument("--lfirst", type=int, default=0)
    p.add_argument("--omod", default="sc1")
    p.add_argument("--rep", type=int, default=0)
    p.add_argument("--warm", type=int, default=6)
    p.add_argument("--sent", type=int, default=1)
    p.add_argument("--tailopt", type=int, default=1)
    p.add_argument("--eorder", type=int, default=1)
    p.add_argument("--prio", type=int, default=1)
    p.add_argument("--sleep", type=int, default=0)
    p.add_argument("--pf", type=int, default=0)
    p.add_argument("--bar0", type=int, default=1)
    p.add_argument("--dbg", type=int, default=0)
    p.add_argument("--cyc", type=int, default=0)
    p.add_argument("--wopf", type=int, default=1)
    p.add_argument("--fallback", type=int, default=1)
    p.add_argument("--spin", type=int, default=20000)
    p.add_argument("--outmod", default="")
    return p.parse_args(argv)

if __name__ == "__main__":
    opt = parse()
    s = build(opt)
    open(opt.o, "w").write(s)
    if opt.stamps:
        open(opt.o + ".stamps", "w").write("\n".join(opt.stamp_names))
    print("wrote", opt.o, len(s), "bytes")
```

```python
import sys, argparse, math, struct

KNAME = "gated_mix__sliding_block__sliding_block__prompt_kernel"

WS_NONCE = 0
WS_OF = 0x10000
WS_KVF = 0x4000
WS_KV = 0x100000
WS_O = 0x1000000
WS_STAMP = 0x1800000
WS_SIZE = 0x2000000

REG = 12288
LDS_W = 8 * REG
WPART = 24576
LDS_TOTAL = 163840
LDS_A0, LDS_A1 = 98304, 131072
LDS_GATE = 4096
LDS_RB = 98304

S_X, S_W, S_WOA, S_WOB, S_WS, S_OUT, S_GW, S_DBG = 8, 12, 16, 20, 24, 28, 32, 36
sW, sTAU, sC, sBH, sBR, sHG, sTT, sT3, sN3, sTAG, sJ = 60, 61, 62, 63, 64, 65, 66, 67, 68, 69, 70
sT0, sT1, sT2, sT3x, sT4, sT5 = 71, 72, 73, 74, 75, 76
sCNT, sSPIN, sFAIL = 77, 80, 81
sVM = 78
sKVO = 82
sH = 83
STREG = list(range(84, 98)) + [3, 6, 7, 46, 47]
sTM = 98
sXB, sWG, sWL = 40, 41, 42

def srd(b): return f"s[{b}:{b+3}]"
def vr(b, n=1): return f"v{b}" if n == 1 else f"v[{b}:{b+n-1}]"

class Asm:
    def __init__(self):
        self.lines = []; self.vm = []; self.lg = []
    def e(self, s): self.lines.append("  " + s)
    def c(self, s): self.lines.append("  ; " + s)
    def lab(self, s): self.lines.append(s + ":")
    def vmop(self, s, tag): self.e(s); self.vm.append(tag)
    def lgop(self, s, tag): self.e(s); self.lg.append(tag)
    def _n(self, q, tag, mx):
        idx = max(i for i, t in enumerate(q) if t == tag)
        return min(len(q) - 1 - idx, mx)
    def vmwait(self, tag):
        if tag not in self.vm: return
        n = self._n(self.vm, tag, 63)
        self.e(f"s_waitcnt vmcnt({n})")
        self.vm = self.vm[len(self.vm) - n:] if n > 0 else []
    def lgwait(self, tag):
        if tag not in self.lg: return
        n = self._n(self.lg, tag, 15)
        self.e(f"s_waitcnt lgkmcnt({n})")
        self.lg = self.lg[len(self.lg) - n:] if n > 0 else []
    def vmall(self): self.e("s_waitcnt vmcnt(0)"); self.vm = []
    def lgall(self): self.e("s_waitcnt lgkmcnt(0)"); self.lg = []
    def text(self): return "\n".join(self.lines) + "\n"

def f32bits(x): return struct.unpack("<I", struct.pack("<f", x))[0]
def mfma_s(D, A, B, C):
    cs = C if isinstance(C, str) else vr(C, 16)
    return f"v_mfma_f32_32x32x16_bf16 {vr(D,16)}, {vr(A,4)}, {vr(B,4)}, {cs}"
def cvt(dst, s0, s1): return f"v_cvt_pk_bf16_f32 v{dst}, v{s0}, v{s1}"

def gen(opt):
    a = Asm()
    e = a.e
    mfma = lambda D, A, B, C: e(mfma_s(D, A, B, C))
    STAMPS = opt.stamps
    nst = [0]
    def stamp(name, inner=False):
        if not STAMPS: return
        if STAMPS == 4 and not inner:
            if name in ("entry", "first data", "gemm done", "B1", "B2", "attn done", "B3", "end"):
                opt.cyc = 0; stamp(name, True)
                if name not in ("entry", "end"):
                    opt.cyc = 1; stamp(name + " cyc", True); opt.cyc = 0
            return
        if STAMPS == 3 and name in ("own done", "B2", "attn done", "O published", "B3", "B4", "O flags seen", "P3 mfma", "roleA", "roleB"): return
        if STAMPS == 2 and name in ("own done", "B2", "attn done", "O published", "B3", "B4", "O flags seen", "P3 mfma"): return
        if name in opt.stamp_names:
            i = opt.stamp_names.index(name)
            e("s_waitcnt lgkmcnt(0)")
            e(f"{'s_memtime' if opt.cyc else 's_memrealtime'} s[{sTM}:{sTM+1}]")
            e("s_waitcnt lgkmcnt(0)")
            e(f"s_mov_b32 s{STREG[i]}, s{sTM}")
            return
        i = nst[0]; nst[0] += 1
        assert i < len(STREG)
        a.c(f"stamp {i}: {name}")
        e("s_waitcnt lgkmcnt(0)"); a.lg = []
        e(f"{'s_memtime' if opt.cyc else 's_memrealtime'} s[{sTM}:{sTM+1}]")
        e("s_waitcnt lgkmcnt(0)")
        e(f"s_mov_b32 s{STREG[i]}, s{sTM}")
        opt.stamp_names.append(name)

    vXO = 1; vXR = 5; vWO = 9; vWR = 10; vL16 = 12
    XF = 16
    WF = 80
    ACC = 116
    def AQ(x): return ACC + 48 * x
    def AK(x): return ACC + 48 * x + 16
    def AV(x): return ACC + 48 * x + 32
    def XFr(lc, x, s): return XF + 32 * (lc & 1) + 16 * x + 4 * s
    def WFr(t, m): return WF + 12 * (t % 3) + 4 * m
    OA = 216; QF = 248; MK = 16; VF = 32
    SS = 160; PP = 48; KF = 56; HT = 64
    vK = 1
    vD = 13
    GX, GW, GA = (80 if opt.gate4 else 96), 208, 212
    WSLOT = 12288
    MKE = 144
    TKA, TKB, TVA, TVB, TQA, TQB = 248, 4, ACC + 16, ACC + 64, ACC + 32, ACC + 80
    LDS_TAG = 8192 + 2048

    a.lab(KNAME)
    e("s_cmp_ge_u32 s2, 256")
    e("s_cbranch_scc1 L_END")
    if STAMPS:
        e("s_memtime s[100:101]")
        stamp("entry")
    e("s_getpc_b64 s[4:5]")
    a.lab("L_PC")
    e("s_load_dwordx4 s[40:43], s[0:1], 0")
    e("s_load_dwordx4 s[48:51], s[0:1], 32")
    e("v_lshlrev_b32 v13, 6, v0")
    e("s_load_dwordx2 s[44:45], s[0:1], 16")
    e("s_load_dwordx4 s[52:55], s[0:1], 48")
    e("s_load_dwordx4 s[56:59], s[0:1], 64")
    e("v_min_u32 v13, L_CODE_END-L_PC-4, v13")
    if opt.codepf:
        e(f"global_load_dword v213, v13, s[4:5]")
    e("v_lshrrev_b32 v15, 6, v0")
    e("v_and_b32 v0, 63, v0")
    e(f"s_and_b32 s{sT0}, s2, 7")
    e(f"v_readfirstlane_b32 s{sW}, v15")
    e(f"s_lshr_b32 s{sJ}, s2, 3")
    e(f"s_and_b32 s{sT1}, s{sT0}, 1")
    e(f"s_lshl_b32 s{sT1}, s{sT1}, 2")
    e(f"s_and_b32 s{sT2}, s{sJ}, 3")
    e(f"s_add_u32 s{sC}, s{sT1}, s{sT2}")
    e(f"s_lshr_b32 s{sT1}, s{sT0}, 1")
    e(f"s_lshl_b32 s{sT1}, s{sT1}, 3")
    e(f"s_lshr_b32 s{sN3}, s{sJ}, 2")
    e(f"s_add_u32 s{sBH}, s{sT1}, s{sN3}")
    e(f"s_lshr_b32 s{sBR}, s{sBH}, 4")
    e(f"s_and_b32 s{sHG}, s{sBH}, 15")
    e(f"s_lshl_b32 s{sT3}, s{sT0}, 2")
    e(f"s_add_u32 s{sT3}, s{sT3}, s{sT2}")
    e(f"s_sub_u32 s{sT1}, 11, s{sW}")
    e(f"s_cmp_lt_u32 s{sW}, 4")
    e(f"s_cselect_b32 s{sTAU}, s{sW}, s{sT1}")
    e(f"s_lshl_b32 s{sTT}, s{sC}, 3")
    e(f"s_add_u32 s{sTT}, s{sTT}, s{sTAU}")
    e(f"v_lshlrev_b32 v{vL16}, 4, v0")
    def mk(b, lo, hi, size):
        e(f"s_mov_b32 s{b}, s{lo}"); e(f"s_mov_b32 s{b+1}, s{hi}")
        e(f"s_mov_b32 s{b+2}, {size}"); e(f"s_mov_b32 s{b+3}, 0x00020000")
    def mk_w():
        e(f"s_cmp_eq_u32 s{sBR}, 0")
        e(f"s_cselect_b32 s{S_W}, s42, s48")
        e(f"s_cselect_b32 s{S_W+1}, s43, s49")
        e(f"s_mov_b32 s{S_W+2}, 1572864"); e(f"s_mov_b32 s{S_W+3}, 0x00020000")
    def mk_rest():
        mk(S_WS, 58, 59, WS_SIZE)
        mk(S_DBG, 56, 57, 256)
        mk(S_OUT, 54, 55, 2097152)
        mk(S_GW, 52, 53, 1024)
        mk(S_WOA, 44, 45, 524288)
        mk(S_WOB, 50, 51, 524288)
        e(f"s_mov_b32 s{sVM}, 0x0000ffff")
        e(f"s_mov_b32 s{sVM+1}, 0x0000ffff")
        e(f"s_mov_b32 s{sFAIL}, 0")
        p3_ids()
    sTQ, sQ, sB3, sKH, sTT3, sOFA = 44, 45, 48, 49, 50, 51
    def p3_ids():
        e(f"s_lshr_b32 s{sTQ}, s{sW}, 2")
        e(f"s_and_b32 s{sQ}, s{sW}, 3")
        e(f"s_lshr_b32 s{sB3}, s{sQ}, 1")
        e(f"s_and_b32 s{sKH}, s{sQ}, 1")
        e(f"s_and_b32 s{sT2}, s{sT3}, 3")
        e(f"s_sub_u32 s{sT3x}, 7, s{sT2}")
        e(f"s_cmp_eq_u32 s{sTQ}, 0")
        e(f"s_cselect_b32 s{sT2}, s{sT2}, s{sT3x}")
        e(f"s_lshr_b32 s{sTT3}, s{sT3}, 2")
        e(f"s_lshl_b32 s{sTT3}, s{sTT3}, 3")
        e(f"s_add_u32 s{sTT3}, s{sTT3}, s{sT2}")
    def init_list():
        q = [f"v_and_b32 v{vD}, 31, v0", f"v_lshrrev_b32 v{vD+2}, 5, v0", f"v_lshlrev_b32 v{vD+2}, 2, v{vD+2}", f"v_sub_u32 v{vD}, v{vD}, v{vD+2}"]
        for r in range(16):
            kk = (r & 3) + 8 * (r >> 2)
            q += [f"v_subrev_u32 v{MK+r}, {kk}, v{vD}", f"v_ashrrev_i32 v{MK+r}, 31, v{MK+r}", f"v_and_b32 v{MK+r}, 0xff800000, v{MK+r}"]
        q += [f"v_mov_b32 v{VF+i}, 0x3f803f80" for i in range(16)]
        return q
    if opt.lfirst:
        e(f"s_cmp_lt_u32 s{sW}, 4")
        e("s_cbranch_scc1 L_COMPUTE")
    else:
        e(f"s_cmp_ge_u32 s{sW}, 4")
        e("s_cbranch_scc1 L_LOADER")
    i_comp = len(a.lines)
    a.lab("L_COMPUTE")

    SXB = sT4
    e(f"s_mul_i32 s{SXB}, s{sW}, {2*REG}")
    e(f"v_and_b32 v13, 31, v0")
    e(f"v_lshrrev_b32 v15, 5, v0")
    e(f"v_bfe_u32 v{vXR+1}, v13, 1, 3")
    e(f"v_xor_b32 v15, v15, v{vXR+1}")
    e(f"v_lshlrev_b32 v15, 4, v15")
    e(f"v_lshl_add_u32 v15, v13, 7, v15")
    e(f"v_add_u32 v{vXR}, s{SXB}, v15")
    for s_ in range(1, 4):
        e(f"v_xor_b32 v{vXR+s_}, {s_<<5}, v{vXR}")
    e(f"v_lshrrev_b32 v13, 5, v0")
    e(f"v_lshlrev_b32 v13, 9, v13")
    e(f"v_bfe_u32 v15, v0, 2, 2")
    e(f"v_lshl_add_u32 v13, v15, 6, v13")
    e(f"v_bfe_u32 v15, v0, 4, 1")
    e(f"v_lshl_add_u32 v13, v15, 5, v13")
    e(f"v_and_b32 v15, 3, v0")
    e(f"v_lshl_add_u32 v13, v15, 3, v13")
    e(f"v_add_u32 v{vWR}, {LDS_W}, v13")
    for i in range(32): e(f"v_mov_b32 v{OA+i}, 0")
    e("s_waitcnt lgkmcnt(0)")
    mk(S_X, 40, 41, 2097152)
    mk_w()
    if opt.xtouch:
        e(f"s_lshl_b32 s{sT2}, s{sC}, 18")
        e(f"v_mov_b32 v13, 0")
        e("s_mov_b64 exec, 1")
        e(f"s_cmp_eq_u32 s{sW}, 0"); e("s_cbranch_scc0 L_XT1")
        e(f"buffer_load_dword v214, v13, {srd(S_X)}, s{sT2} offen")
        a.lab("L_XT1")
        e("s_mov_b64 exec, -1")
    mk_rest()
    stamp("issued")
    def xread1(lc, x, s_):
        a.lgop(f"ds_read_b128 {vr(XFr(lc,x,s_),4)}, v{vXR+s_} offset:{x*REG+(lc%3)*4096}", f"xr{lc}_{s_}")
    def wread1(t, m, u):
        lc = t >> 2
        a.lgop(f"ds_read_b64_tr_b16 {vr(WFr(t,m)+2*u,2)}, v{vWR} offset:{(lc%3)*WSLOT+m*4096+(t&3)*1024+u*256}", f"wf{t}")
    e("s_barrier")
    stamp("first data")
    mfma_full = mfma
    if opt.dbg == 16:
        def mfma(D, A, B, C):
            for h in range(2):
                cs = C if isinstance(C, str) else vr(C + 4 * h, 4)
                e(f"v_mfma_f32_16x16x32_bf16 {vr(D + 4*h, 4)}, {vr(A,4)}, {vr(B,4)}, {cs}")
    if opt.dbg == 17:
        def mfma(D, A, B, C): pass
    for m in range(3):
        for u in range(2): wread1(0, m, u)
    for x in range(2): xread1(0, x, 0)
    for m in range(3):
        for u in range(2): wread1(1, m, u)
    for s_ in range(1, 4):
        for x in range(2): xread1(0, x, s_)
    initq = init_list()
    NT = 29 if opt.tailopt else 32
    for t in range(NT):
        lc, s_ = t >> 2, t & 3
        if opt.stamps == 2 and t in (4, 8, 12, 16, 20, 24, 28): stamp(f"t{t}")
        if s_ == 2 and lc <= 6:
            a.lgall()
            e("s_barrier")
        a.lgwait(f"wf{t}")
        a.lgwait(f"xr{lc}_{s_}")
        R = [(t + 2, m, u) for m in range(3) for u in range(2)] if t + 2 < 32 else []
        X = [(lc + 1, x, 2 * (s_ - 2) + k) for k in range(2) for x in range(2)] if (s_ >= 2 and lc <= 6) else []
        C = (lambda r: "0") if t == 0 else (lambda r: r)
        xa, xb = XFr(lc, 0, s_), XFr(lc, 1, s_)
        def ini(n):
            if t >= 28:
                for _ in range(n):
                    if initq: e(initq.pop(0))
        mfma(AK(0), WFr(t, 0), xa, C(AK(0)))
        for r in R[0:2]: wread1(*r)
        ini(3)
        mfma(AK(1), WFr(t, 0), xb, C(AK(1)))
        for r in R[2:4]: wread1(*r)
        ini(3)
        mfma(AV(0), xa, WFr(t, 1), C(AV(0)))
        for r in R[4:6]: wread1(*r)
        ini(3)
        mfma(AV(1), xb, WFr(t, 1), C(AV(1)))
        for x in X[0:2]: xread1(*x)
        ini(3)
        mfma(AQ(0), WFr(t, 2), xa, C(AQ(0)))
        for x in X[2:4]: xread1(*x)
        ini(3)
        mfma(AQ(1), WFr(t, 2), xb, C(AQ(1)))
        ini(3)
    if not opt.tailopt:
        while initq: e(initq.pop(0))
    e(f"s_lshl_b32 s{sKVO}, s{sBH}, 6")
    e(f"s_lshl_b32 s{sT2}, s{sC}, 3")
    e(f"s_add_u32 s{sKVO}, s{sKVO}, s{sT2}")
    e(f"s_lshl_b32 s{sT2}, s{sW}, 1")
    e(f"s_add_u32 s{sKVO}, s{sKVO}, s{sT2}")
    e(f"s_lshl_b32 s{sKVO}, s{sKVO}, 12")
    e(f"s_add_u32 s{sKVO}, s{sKVO}, {WS_KV}")
    e(f"s_add_u32 s{sT1}, s{sKVO}, 4096")
    e(f"v_add_u32 v{vK}, s{SXB}, v{vL16}")
    cq = 0.25 * math.log2(math.e)
    e(f"s_mov_b32 s{sT2}, {hex(f32bits(cq))}")
    def k_epi(x, T):
        so = sKVO if x == 0 else sT1
        L = [("e", cvt(T + i, AK(x) + 2 * i, AK(x) + 2 * i + 1)) for i in range(8)]
        L += [("vm", f"buffer_store_dwordx4 {vr(T+4*i,4)}, v{vL16}, {srd(S_WS)}, s{so} offen offset:{i*1024} sc1") for i in range(2)]
        L += [("lg", f"ds_write_b128 v{vK}, {vr(T+4*i,4)} offset:{x*REG+i*1024}") for i in range(2)]
        return L
    def v_epi(x, T):
        so = sKVO if x == 0 else sT1
        L = [("e", cvt(T + i, AV(x) + 2 * i, AV(x) + 2 * i + 1)) for i in range(8)]
        L += [("vm", f"buffer_store_dwordx4 {vr(T+4*i,4)}, v{vL16}, {srd(S_WS)}, s{so} offen offset:{(2+i)*1024} sc1") for i in range(2)]
        L += [("lg", f"ds_write_b128 v{vK}, {vr(T+4*i,4)} offset:{x*REG+(2+i)*1024}") for i in range(2)]
        return L
    def q_epi(x, T):
        L = [("e", f"v_mul_f32 v{AQ(x)+i}, s{sT2}, v{AQ(x)+i}") for i in range(16)]
        L += [("e", cvt(T + i, AQ(x) + 2 * i, AQ(x) + 2 * i + 1)) for i in range(8)]
        L += [("lg", f"ds_write_b128 v{vK}, {vr(T+4*h,4)} offset:{x*REG+8192+h*1024}") for h in range(2)]
        return L
    def emit(items):
        for k, l in items:
            if k == "e": e(l)
            elif k == "vm": a.vmop(l, "kvs")
            else: a.lgop(l, "kvw")
    if opt.tailopt:
        for m in range(3):
            for u in range(2): wread1(31, m, u)
        xs = {t: (XFr(7, 0, t & 3), XFr(7, 1, t & 3)) for t in (29, 30, 31)}
        a.lgwait("wf30")
        for t in (29, 30):
            for x in range(2):
                mfma(AK(x), WFr(t, 0), xs[t][x], AK(x))
                for _ in range(8):
                    if initq: e(initq.pop(0))
        a.lgwait("wf31")
        for x in range(2):
            mfma(AK(x), WFr(31, 0), xs[31][x], AK(x))
            for _ in range(8):
                if initq: e(initq.pop(0))
        while initq: e(initq.pop(0))
        vm_ = [(x, t) for t in (29, 30, 31) for x in range(2)]
        ke = k_epi(0, TKA) + k_epi(1, TKB)
        for n, (x, t) in enumerate(vm_):
            mfma(AV(x), xs[t][x], WFr(t, 1), AV(x))
            if n == 1: e("s_nop 7"); e("s_nop 1")
            if n >= 2: emit(ke[:5]); del ke[:5]
        ve = v_epi(0, TVA) + v_epi(1, TVB)
        qm_ = [(x, t) for t in (29, 30, 31) for x in range(2)]
        for n, (x, t) in enumerate(qm_):
            mfma(AQ(x), WFr(t, 2), xs[t][x], AQ(x))
            if ke: emit(ke[:6]); del ke[:6]
            elif n >= 2: emit(ve[:6]); del ve[:6]
        emit(ke)
        stamp("gemm done")
        e("s_nop 3")
        emit(ve)
        e("s_nop 7")
        emit(q_epi(0, TQA)); emit(q_epi(1, TQB))
    else:
        stamp("gemm done")
        e("s_nop 7")
        emit(k_epi(0, TKA)); emit(k_epi(1, TKB)); emit(v_epi(0, TVA)); emit(v_epi(1, TVB))
        emit(q_epi(0, TQA)); emit(q_epi(1, TQB))
    mfma = mfma_full
    e(f"s_lshl_b32 s{sKVO}, s{sC}, 5")
    e(f"s_add_u32 s{sKVO}, s{sKVO}, s{sBH}")
    e(f"s_lshl_b32 s{sKVO}, s{sKVO}, 7")
    e(f"s_lshl_b32 s{sT3x}, s{sW}, 3")
    e(f"s_add_u32 s{sKVO}, s{sKVO}, s{sT3x}")
    e(f"s_add_u32 s{sKVO}, s{sKVO}, {WS_KVF}")
    if not opt.lfirst: e("s_branch L_B1")
    i_load = len(a.lines)

    a.lab("L_LOADER")
    a.vm = []; a.lg = []
    sU, SXB2, SWG = sT5, sT4, sH
    e(f"s_sub_u32 s{sU}, s{sW}, 4")
    e(f"v_lshrrev_b32 v13, 2, v0")
    e(f"v_mul_u32_u24 v13, 3072, v13")
    e(f"v_and_b32 v15, 3, v0")
    e(f"v_lshl_add_u32 v13, v15, 4, v13")
    e(f"s_lshl_b32 s{sT1}, s{sHG}, 6")
    e(f"v_add_u32 v{vWO}, s{sT1}, v13")
    e(f"v_lshrrev_b32 v13, 3, v0")
    e(f"v_lshlrev_b32 v13, 10, v13")
    e(f"s_lshl_b32 s{sT1}, s{sC}, 3")
    e(f"s_lshl_b32 s{sT2}, s{sU}, 1")
    e(f"s_add_u32 s{sT1}, s{sT1}, s{sT2}")
    e(f"s_lshl_b32 s{sT1}, s{sT1}, 15")
    e(f"v_add_u32 v13, s{sT1}, v13")
    e(f"v_lshrrev_b32 v15, 4, v0")
    e(f"v_xor_b32 v15, v15, v0")
    e(f"v_and_b32 v15, 7, v15")
    e(f"v_lshl_add_u32 v{vXO}, v15, 4, v13")
    e(f"v_xor_b32 v{vXO+1}, 64, v{vXO}")
    e(f"v_add_u32 v{vXO+2}, 14336, v{vXO}")
    e(f"v_add_u32 v{vXO+3}, 21504, v{vXO+1}")
    e(f"v_add_u32 v{vXO+1}, 7168, v{vXO+1}")
    e(f"s_and_b32 s{sT1}, s{sJ}, 3")
    e(f"s_add_u32 s{sT1}, s{sT1}, s{sN3}")
    if opt.rot == 2:
        e(f"s_and_b32 s{sT0}, s{sT1}, 1")
        e(f"s_lshl_b32 s{sT0}, s{sT0}, 2")
    elif opt.rot == 3:
        e(f"s_and_b32 s{sT0}, s{sJ}, 3")
        e(f"s_lshl_b32 s{sT0}, s{sT0}, 1")
        e(f"s_add_u32 s{sT0}, s{sT0}, s{sN3}")
        e(f"s_and_b32 s{sT0}, s{sT0}, 7")
    else:
        e(f"s_and_b32 s{sT0}, s{sT1}, {3 if opt.rot else 0}")
        e(f"s_lshl_b32 s{sT0}, s{sT0}, 1")
    e("s_waitcnt lgkmcnt(0)")
    mk_w()
    mk(S_X, 40, 41, 2097152)
    SWL, sXK, sWP = 40, 41, 42
    e(f"s_mul_i32 s{SXB2}, s{sU}, {2*REG}")
    e(f"s_mul_i32 s{SWG}, s{sU}, {16*3072}")
    e(f"s_lshl_b32 s{SWL}, s{sU}, 10")
    e(f"s_add_u32 s{SWL}, s{SWL}, {LDS_W}")
    e(f"s_lshl_b32 s{sXK}, s{sT0}, 7")
    MCOL = {0: 1, 1: 2, 2: 0}
    def wo_pf():
        n = 1 if opt.wostride == 128 else 2
        e(f"s_and_b32 s{sT2}, s{sJ}, 15")
        e(f"s_lshl_b32 s{sT2}, s{sT2}, 15")
        e(f"s_lshl_b32 s{sT3x}, s{sU}, 13")
        e(f"s_add_u32 s{sT2}, s{sT2}, s{sT3x}")
        e(f"v_lshlrev_b32 v15, {7 if n == 1 else 6}, v0")
        e(f"s_cmp_lt_u32 s{sJ}, 16")
        e("s_cbranch_scc1 L_WOPF_A")
        e(f"buffer_load_dword v213, v15, {srd(S_WOB)}, s{sT2} offen")
        if n == 2:
            e(f"s_add_u32 s{sT2}, s{sT2}, 4096")
            e(f"buffer_load_dword v214, v15, {srd(S_WOB)}, s{sT2} offen")
        e("s_branch L_WOPF_E")
        a.lab("L_WOPF_A")
        e(f"buffer_load_dword v213, v15, {srd(S_WOA)}, s{sT2} offen")
        if n == 2:
            e(f"s_add_u32 s{sT2}, s{sT2}, 4096")
            e(f"buffer_load_dword v214, v15, {srd(S_WOA)}, s{sT2} offen")
        a.lab("L_WOPF_E")
        a.vm += ["wopf"] * n
    def issue(lc):
        if lc > 0:
            e(f"s_add_u32 s{sXK}, s{sXK}, 128")
            e(f"s_and_b32 s{sXK}, s{sXK}, 1023")
        e(f"s_mul_i32 s{sWP}, s{sXK}, 1536")
        e(f"s_add_u32 s{sWP}, s{sWP}, s{SWG}")
        for m in range(3):
            e(f"s_add_u32 m0, s{SWL}, {(lc%3)*WSLOT + m*4096}")
            e(f"s_add_u32 s{sT3x}, s{sWP}, {MCOL[m]*1024}")
            a.vmop(f"buffer_load_dwordx4 v{vWO}, {srd(S_W)}, s{sT3x} offen lds", f"c{lc}")
        for b in range(2):
            e(f"s_add_u32 m0, s{SXB2}, {b*REG + (lc%3)*4096}")
            e(f"s_add_u32 s{sT3x}, s{sXK}, {b*32768}")
            for i in range(4):
                a.vmop(f"buffer_load_dwordx4 v{vXO+i}, {srd(S_X)}, s{sT3x} offen offset:{i*1024} lds", f"c{lc}")
    def tlb_warm2():
        e(f"s_lshr_b32 s{sT0}, s{sT3}, 2"); e(f"s_lshl_b32 s{sT0}, s{sT0}, 3"); e(f"s_and_b32 s{sT1}, s{sT3}, 3")
        e(f"s_sub_u32 s{sT2}, 7, s{sT1}"); e(f"s_add_u32 s{sT1}, s{sT1}, s{sT0}"); e(f"s_add_u32 s{sT0}, s{sT2}, s{sT0}")
        e(f"s_cmp_eq_u32 s{sU}, 0"); e("s_cbranch_scc0 L_TX1")
        e(f"s_lshl_b32 s{sT2}, s{sC}, 19"); e(f"s_lshl_b32 s{sT3x}, s{sBR}, 15"); e(f"s_add_u32 s{sT2}, s{sT2}, s{sT3x}"); e(f"s_add_u32 s{sT2}, s{sT2}, {WS_O}")
        e(f"v_and_b32 v13, 7, v0"); e(f"v_lshlrev_b32 v13, 16, v13"); e(f"v_add_u32 v13, s{sT2}, v13")
        e(f"s_lshl_b32 s{sT2}, s{sT1}, 16"); e(f"s_add_u32 s{sT2}, s{sT2}, {WS_O}"); e(f"v_writelane_b32 v13, s{sT2}, 8")
        e(f"s_lshl_b32 s{sT2}, s{sT0}, 16"); e(f"s_add_u32 s{sT2}, s{sT2}, {WS_O}"); e(f"v_writelane_b32 v13, s{sT2}, 9")
        e(f"s_lshl_b32 s{sT2}, s{sBH}, 6"); e(f"s_lshl_b32 s{sT3x}, s{sC}, 3"); e(f"s_add_u32 s{sT2}, s{sT2}, s{sT3x}")
        e(f"s_lshl_b32 s{sT2}, s{sT2}, 12"); e(f"s_add_u32 s{sT2}, s{sT2}, {WS_KV}"); e(f"v_writelane_b32 v13, s{sT2}, 10")
        e(f"s_sub_u32 s{sT2}, s{sT2}, 32768"); e(f"s_max_u32 s{sT2}, s{sT2}, {WS_KV}"); e(f"v_writelane_b32 v13, s{sT2}, 11")
        e(f"s_mov_b32 s{sT2}, {WS_OF}"); e(f"v_writelane_b32 v13, s{sT2}, 12")
        e("s_mov_b64 exec, 0x1fff")
        e(f"buffer_load_dword v215, v13, {srd(S_WS)}, 0 offen sc1")
        e(f"buffer_load_dword v214, v13, {srd(S_WS)}, 0 offen offset:128 sc1")
        e("s_branch L_TXE")
        a.lab("L_TX1")
        e(f"s_cmp_eq_u32 s{sU}, 1"); e("s_cbranch_scc0 L_TX2")
        e(f"s_lshl_b32 s{sT2}, s{sT1}, 15"); e(f"v_mov_b32 v13, s{sT2}"); e(f"s_lshl_b32 s{sT2}, s{sT0}, 15"); e(f"v_writelane_b32 v13, s{sT2}, 1")
        e("s_mov_b64 exec, 3")
        e(f"buffer_load_dword v215, v13, {srd(S_OUT)}, 0 offen")
        e(f"v_mov_b32 v13, 0")
        e(f"buffer_load_dword v214, v13, {srd(S_DBG)}, 0 offen sc1")
        e("s_branch L_TXE")
        a.lab("L_TX2")
        e(f"s_cmp_eq_u32 s{sU}, 2"); e("s_cbranch_scc0 L_TX3")
        e(f"v_and_b32 v13, 7, v0"); e(f"v_lshlrev_b32 v13, 16, v13")
        e("s_mov_b64 exec, 0xff")
        e(f"buffer_load_dword v215, v13, {srd(S_WOA)}, 0 offen")
        e(f"buffer_load_dword v214, v13, {srd(S_WOB)}, 0 offen")
        e("s_branch L_TXE")
        a.lab("L_TX3")
        e(f"s_lshl_b32 s{sT2}, s{sT1}, 15"); e(f"v_mov_b32 v13, s{sT2}"); e(f"s_lshl_b32 s{sT2}, s{sT0}, 15"); e(f"v_writelane_b32 v13, s{sT2}, 1")
        e("s_mov_b64 exec, 3")
        e(f"buffer_load_dword v215, v13, {srd(S_X)}, 0 offen")
        e(f"v_mov_b32 v13, 0")
        e(f"buffer_load_dword v214, v13, {srd(S_GW)}, 0 offen")
        a.lab("L_TXE")
        e("s_mov_b64 exec, -1")
        a.vm += ["warm", "warm"]
    def tlb_warm():
        e(f"s_cmp_eq_u32 s{sU}, 0"); e("s_cbranch_scc0 L_TW1")
        e(f"s_lshl_b32 s{sT2}, s{sBH}, 6"); e(f"s_lshl_b32 s{sT3x}, s{sC}, 3"); e(f"s_add_u32 s{sT2}, s{sT2}, s{sT3x}")
        e(f"s_lshl_b32 s{sT2}, s{sT2}, 12"); e(f"s_add_u32 s{sT2}, s{sT2}, {WS_KV}")
        e(f"v_mov_b32 v13, {WS_OF}")
        e(f"v_writelane_b32 v13, s{sT2}, 1")
        e(f"s_lshl_b32 s{sT2}, s{sC}, 19"); e(f"s_add_u32 s{sT2}, s{sT2}, {WS_O}")
        e(f"v_writelane_b32 v13, s{sT2}, 2")
        e(f"s_lshr_b32 s{sT2}, s{sT3}, 2"); e(f"s_lshl_b32 s{sT2}, s{sT2}, 19"); e(f"s_add_u32 s{sT2}, s{sT2}, {WS_O}")
        e(f"v_writelane_b32 v13, s{sT2}, 3")
        e("s_mov_b64 exec, 15")
        e(f"buffer_load_dword v215, v13, {srd(S_WS)}, 0 offen sc1")
        e(f"buffer_load_dword v214, v13, {srd(S_WS)}, 0 offen offset:128 sc1")
        e("s_mov_b64 exec, -1")
        e("s_branch L_TWE")
        a.lab("L_TW1")
        e(f"s_cmp_eq_u32 s{sU}, 1"); e("s_cbranch_scc0 L_TW2")
        e(f"s_lshr_b32 s{sT2}, s{sT3}, 2"); e(f"s_lshl_b32 s{sT2}, s{sT2}, 18")
        e(f"v_mov_b32 v13, 0")
        e("s_mov_b64 exec, 1")
        e(f"buffer_load_dword v215, v13, {srd(S_OUT)}, s{sT2} offen")
        e(f"buffer_load_dword v214, v13, {srd(S_DBG)}, 0 offen sc1")
        e("s_mov_b64 exec, -1")
        e("s_branch L_TWE")
        a.lab("L_TW2")
        e(f"s_cmp_eq_u32 s{sU}, 2"); e("s_cbranch_scc0 L_TW3")
        e(f"v_mov_b32 v13, 0")
        e("s_mov_b64 exec, 1")
        e(f"buffer_load_dword v215, v13, {srd(S_WOA)}, 0 offen")
        e(f"buffer_load_dword v214, v13, {srd(S_WOB)}, 0 offen")
        e("s_mov_b64 exec, -1")
        e("s_branch L_TWE")
        a.lab("L_TW3")
        e(f"v_mov_b32 v13, 0")
        e("s_mov_b64 exec, 1")
        e(f"buffer_load_dword v215, v13, {srd(S_GW)}, 0 offen")
        e(f"buffer_load_dword v214, v13, {srd(S_GW)}, 0 offen offset:128")
        e("s_mov_b64 exec, -1")
        a.lab("L_TWE")
        a.vm += ["warm", "warm"]
    issue(0)
    issue(1)
    mk_rest()
    if opt.warm == 2: tlb_warm()
    e(f"s_or_b32 s{sT1}, s2, s{sU}")
    e(f"s_cmp_lg_u32 s{sT1}, 0")
    e("s_cbranch_scc1 L_NONCE_SKIP0")
    e(f"v_mov_b32 v13, 0")
    e(f"buffer_load_dword v14, v13, {srd(S_WS)}, 0 offen sc1")
    a.lab("L_NONCE_SKIP0")
    stamp("issued")
    a.vmwait("c0")
    e("s_barrier")
    stamp("first data")
    issue(2)
    if opt.warm == 3 or opt.tlb == 1: tlb_warm()
    if opt.tlb == 2: tlb_warm2()
    if opt.warm in (5, 6, 7):
        if opt.warm in (6, 7): e("s_branch L_F5_2")
        e(f"s_cmp_eq_u32 s{sU}, 0"); e("s_cbranch_scc0 L_F5_1")
        e(f"s_lshl_b32 s{sT2}, s{sC}, 5"); e(f"s_lshr_b32 s{sT3x}, s{sBH}, 3"); e(f"s_add_u32 s{sT2}, s{sT2}, s{sT3x}")
        e(f"s_lshl_b32 s{sT2}, s{sT2}, 7"); e(f"s_add_u32 s{sT2}, s{sT2}, {WS_OF}")
        e(f"v_and_b32 v13, 7, v0"); e(f"v_lshlrev_b32 v13, 9, v13")
        e("s_mov_b64 exec, 0xff")
        e(f"buffer_load_dword v215, v13, {srd(S_WS)}, s{sT2} offen sc1")
        e("s_branch L_F5_E")
        a.lab("L_F5_1")
        e(f"s_cmp_eq_u32 s{sU}, 1"); e("s_cbranch_scc0 L_F5_2")
        e(f"s_lshr_b32 s{sT2}, s{sT3}, 2"); e(f"s_lshl_b32 s{sT2}, s{sT2}, 3"); e(f"s_and_b32 s{sT3x}, s{sT3}, 3")
        e(f"s_add_u32 s{sT0}, s{sT2}, s{sT3x}"); e(f"s_sub_u32 s{sT3x}, 7, s{sT3x}"); e(f"s_add_u32 s{sT1}, s{sT2}, s{sT3x}")
        e(f"s_lshl_b32 s{sT0}, s{sT0}, 9"); e(f"s_lshl_b32 s{sT1}, s{sT1}, 9"); e(f"s_sub_u32 s{sT1}, s{sT1}, s{sT0}")
        e(f"s_sub_u32 s{sT1}, s{sT1}, 512"); e(f"s_add_u32 s{sT0}, s{sT0}, {WS_OF}")
        e(f"v_and_b32 v13, 7, v0"); e(f"v_lshlrev_b32 v13, 7, v13"); e(f"v_bfe_u32 v15, v0, 2, 1"); e(f"v_mul_lo_u32 v15, v15, s{sT1}"); e(f"v_add_u32 v13, v13, v15")
        e("s_mov_b64 exec, 0xff")
        e(f"buffer_load_dword v215, v13, {srd(S_WS)}, s{sT0} offen sc1")
        e("s_branch L_F5_E")
        a.lab("L_F5_2")
        if opt.gwpf:
            e(f"s_cmp_eq_u32 s{sU}, 3"); e("s_cbranch_scc0 L_F5_3")
            e(f"v_and_b32 v13, 7, v0"); e(f"v_lshlrev_b32 v13, 7, v13")
            e("s_mov_b64 exec, 0xff")
            e(f"buffer_load_dword v215, v13, {srd(S_GW)}, 0 offen")
            e("s_branch L_F5_E")
            a.lab("L_F5_3")
        e(f"s_lshl_b32 s{sT2}, s{sC}, 5"); e(f"s_add_u32 s{sT2}, s{sT2}, s{sBH}"); e(f"s_lshl_b32 s{sT2}, s{sT2}, 7"); e(f"s_add_u32 s{sT2}, s{sT2}, {WS_KVF - 4096}")
        e(f"v_and_b32 v13, 1, v0"); e(f"v_lshlrev_b32 v13, 12, v13")
        e("s_mov_b64 exec, 3")
        e(f"buffer_load_dword v215, v13, {srd(S_WS)}, s{sT2} offen sc1")
        a.lab("L_F5_E")
        e("s_mov_b64 exec, -1")
        a.vm += ["warm"]
    e(f"s_or_b32 s{sT1}, s2, s{sU}")
    e(f"s_cmp_lg_u32 s{sT1}, 0")
    e("s_cbranch_scc1 L_NONCE_SKIP1")
    e("s_waitcnt vmcnt(11)")
    e(f"v_readfirstlane_b32 s{sT2}, v14")
    e(f"v_mov_b32 v13, 0")
    e("s_nop 3")
    e(f"s_add_u32 s{sT2}, s{sT2}, 1")
    e(f"s_max_u32 s{sT2}, s{sT2}, 1")
    e(f"v_mov_b32 v14, s{sT2}")
    e(f"buffer_store_dword v14, v13, {srd(S_DBG)}, 0 offen sc1")
    e(f"buffer_store_dword v14, v13, {srd(S_WS)}, 0 offen sc1")
    a.lab("L_NONCE_SKIP1")
    a.vmwait("c1")
    e("s_barrier")
    for j in range(6):
        if j + 3 <= 7: issue(j + 3)
        if j + 3 == 7:
            if opt.tagearly:
                e(f"v_mov_b32 v13, 0")
                a.vmop(f"buffer_load_dword v14, v13, {srd(S_DBG)}, 0 offen sc1", "tag")
            if opt.wopf == 1: wo_pf()
            if opt.warm == 1:
                lab = "L_WARM"
                e(f"s_cmp_eq_u32 s{sU}, 0"); e(f"s_cbranch_scc0 {lab}1")
                e(f"s_lshl_b32 s{sT2}, s{sC}, 5"); e(f"s_lshr_b32 s{sT3x}, s{sBH}, 3"); e(f"s_add_u32 s{sT2}, s{sT2}, s{sT3x}")
                e(f"s_lshl_b32 s{sT2}, s{sT2}, 10"); e(f"s_add_u32 s{sT2}, s{sT2}, {WS_OF}")
                e(f"v_lshrrev_b32 v13, 3, v0"); e(f"v_lshlrev_b32 v13, 12, v13"); e(f"v_and_b32 v15, 7, v0"); e(f"v_lshl_add_u32 v13, v15, 7, v13")
                e(f"buffer_load_dword v215, v13, {srd(S_WS)}, s{sT2} offen sc1")
                e(f"s_branch {lab}E")
                a.lab(f"{lab}1")
                e(f"s_cmp_eq_u32 s{sU}, 1"); e(f"s_cbranch_scc0 {lab}2")
                e(f"s_lshl_b32 s{sT2}, s{sC}, 4"); e(f"s_add_u32 s{sT2}, s{sT2}, s{sBR}"); e(f"s_lshl_b32 s{sT2}, s{sT2}, 5")
                e(f"s_lshl_b32 s{sT3x}, s{sHG}, 1"); e(f"s_add_u32 s{sT2}, s{sT2}, s{sT3x}"); e(f"s_lshl_b32 s{sT2}, s{sT2}, 10")
                e(f"s_add_u32 s{sT2}, s{sT2}, {WS_O}")
                e(f"v_lshrrev_b32 v13, 3, v0"); e(f"v_lshlrev_b32 v13, 16, v13"); e(f"v_and_b32 v15, 7, v0"); e(f"v_lshl_add_u32 v13, v15, 8, v13")
                e(f"buffer_load_dword v215, v13, {srd(S_WS)}, s{sT2} offen sc1")
                e(f"s_branch {lab}E")
                a.lab(f"{lab}2")
                e(f"s_cmp_eq_u32 s{sU}, 2"); e(f"s_cbranch_scc0 {lab}3")
                e(f"s_lshl_b32 s{sT2}, s{sC}, 5"); e(f"s_add_u32 s{sT2}, s{sT2}, s{sBH}"); e(f"s_lshl_b32 s{sT2}, s{sT2}, 7")
                e(f"s_add_u32 s{sT2}, s{sT2}, {WS_KVF}")
                e(f"v_mov_b32 v13, 0")
                e(f"buffer_load_dword v215, v13, {srd(S_WS)}, s{sT2} offen sc1")
                e(f"s_branch {lab}E")
                a.lab(f"{lab}3")
                e(f"s_lshr_b32 s{sT2}, s{sT3}, 2"); e(f"s_lshl_b32 s{sT2}, s{sT2}, 18"); e(f"s_lshl_b32 s{sT3x}, s{sN3}, 7"); e(f"s_add_u32 s{sT2}, s{sT2}, s{sT3x}")
                e(f"v_lshlrev_b32 v13, 12, v0")
                e(f"buffer_load_dword v215, v13, {srd(S_OUT)}, s{sT2} offen")
                a.lab(f"{lab}E")
                a.vm += ["warm"]
        if j + 2 <= 7: a.vmwait(f"c{j+2}")
        e("s_barrier")
    stamp("gemm done")
    if opt.wopf == 2: wo_pf()
    for l in init_list(): e(l)
    for i in range(32): e(f"v_mov_b32 v{OA+i}, 0")
    if opt.mke:
        e(f"s_mov_b32 s{sT2}, 0xff800000")
        for r in range(16): e(f"v_xor_b32 v{MKE+r}, s{sT2}, v{MK+r}")
    e(f"s_cmp_lg_u32 s{sU}, 0")
    e("s_cbranch_scc1 L_B1")
    e(f"s_mov_b32 s{sSPIN}, 0")
    e(f"v_mov_b32 v15, 0")
    if not opt.tagearly:
        e(f"buffer_load_dword v14, v15, {srd(S_DBG)}, 0 offen sc1")
    else:
        a.vmwait("tag")
        e("s_branch L_TAG_CHK")
    a.lab("L_TAG_LOOP")
    e("s_waitcnt vmcnt(0)")
    a.lab("L_TAG_CHK")
    e(f"s_add_u32 s{sSPIN}, s{sSPIN}, 1")
    e(f"v_readfirstlane_b32 s{sTAG}, v14")
    e("s_nop 3")
    e(f"s_cmp_lg_u32 s{sTAG}, 0")
    e("s_cbranch_scc1 L_TAG_OK")
    e(f"s_cmp_gt_u32 s{sSPIN}, {opt.spin}")
    e("s_cbranch_scc1 L_TAG_OK")
    e(f"buffer_load_dword v14, v15, {srd(S_DBG)}, 0 offen sc1")
    e("s_branch L_TAG_LOOP")
    a.lab("L_TAG_OK")
    e(f"v_mov_b32 v15, {LDS_TAG}")
    e(f"ds_write_b32 v15, v14")
    if opt.lfirst:
        e("s_branch L_B1")
        comp = a.lines[i_comp:i_load]; load = a.lines[i_load:]
        a.lines = a.lines[:i_comp] + load + comp
    a.lab("L_B1")
    a.vm = []; a.lg = []
    e("s_waitcnt lgkmcnt(0)")
    e("s_barrier")
    stamp("B1")
    e(f"v_mov_b32 v15, {LDS_TAG}")
    e(f"ds_read_b32 v14, v15")
    e(f"s_mul_i32 s{sT2}, s{sTAU}, {REG}")
    e(f"v_add_u32 v13, s{sT2}, v{vL16}")
    for h in range(2):
        e(f"ds_read_b128 {vr(QF+4*h,4)}, v13 offset:{8192+h*1024}")

    def kread(h, extra=0): e(f"ds_read_b128 {vr(KF+4*h,4)}, v{vK} offset:{h*1024+extra}")
    def vreads(h, extra=0):
        e(f"s_mov_b64 exec, s[{sVM}:{sVM+1}]")
        for s in range(2):
            e(f"ds_read_b128 {vr(VF+8*h+4*s,4)}, v{vK} offset:{2048+s*1024+h*256+extra}")
        e("s_mov_b64 exec, -1")
    def seg(h, prev, nxt, kx=0, vx=0):
        o = 1 - h
        S = SS + 16 * h; O = OA + 16 * h
        ex = lambda i: e(f"v_exp_f32 v{S+i}, v{S+i}")
        ex(0); ex(1)
        if prev: mfma(OA + 16 * o, VF + 8 * o + 4, PP + 4, OA + 16 * o)
        ex(2); ex(3)
        if nxt: vreads(o, vx)
        ex(4); ex(5)
        if nxt:
            mfma(SS + 16 * o, KF + 4 * o, QF + 4 * o, "0")
            kread(o, kx)
        ex(6); ex(7)
        for i in range(4): e(cvt(PP + i, S + 2 * i, S + 2 * i + 1))
        ex(8)
        e(f"s_waitcnt lgkmcnt({3 if nxt else 0})")
        ex(9)
        mfma(O, VF + 8 * h, PP, O)
        for i in range(10, 16): ex(i)
        for i in range(4, 8): e(cvt(PP + i, S + 2 * i, S + 2 * i + 1))
    def part(name, first_s, rest_s, cnt_s, hook=None):
        MKx = MK if name == "OWN" or not opt.mke else MKE
        a.c(f"---- attention part {name} ----")
        e(f"v_add_u32 v{vK}, s{first_s}, v{vL16}")
        kread(0); kread(1)
        e(f"s_sub_u32 s{sT2}, s{rest_s}, s{first_s}")
        e(f"s_mov_b32 s{sCNT}, s{cnt_s}")
        e("s_waitcnt lgkmcnt(0)")
        if name == "OWN": e(f"v_readfirstlane_b32 s{sTAG}, v14")
        mfma(SS, KF, QF, MKx)
        mfma(SS + 16, KF + 4, QF + 4, MKx)
        vreads(0); vreads(1)
        e(f"v_add_u32 v{vK}, s{sT2}, v{vK}")
        kread(0); kread(1)
        e("s_waitcnt lgkmcnt(2)")
        seg(0, prev=False, nxt=False)
        if hook: hook()
        e(f"s_cmp_eq_u32 s{sCNT}, 0")
        e(f"s_cbranch_scc1 L_{name}_LAST")
        e(f"s_sub_u32 s{sCNT}, s{sCNT}, 1")
        a.lab(f"L_{name}_LOOP")
        seg(1, prev=True, nxt=True, kx=REG, vx=0)
        seg(0, prev=True, nxt=True, kx=REG, vx=0)
        e(f"v_add_u32 v{vK}, {REG}, v{vK}")
        e(f"s_sub_u32 s{sCNT}, s{sCNT}, 1")
        e(f"s_cbranch_scc0 L_{name}_LOOP")
        a.lab(f"L_{name}_LAST")
        seg(1, prev=True, nxt=False)
        e("s_nop 1")
        mfma(OA + 16, VF + 12, PP + 4, OA + 16)
    def kvflag():
        e("s_waitcnt vmcnt(0)")
        e(f"v_lshlrev_b32 v13, 2, v0")
        e(f"v_mov_b32 v14, s{sTAG}")
        e("s_mov_b64 exec, 3")
        e(f"buffer_store_dword v14, v13, {srd(S_WS)}, s{sKVO} offen sc1")
        e("s_mov_b64 exec, -1")
    a.vm = []
    e(f"s_mul_i32 s{sT0}, s{sTAU}, {REG}")
    e(f"s_mov_b32 s{sT1}, 0")
    def hook():
        e(f"s_cmp_ge_u32 s{sW}, 4")
        e("s_cbranch_scc1 L_KVF_DONE")
        kvflag()
        a.lab("L_KVF_DONE")
    if opt.prio == 2:
        e(f"s_cmp_lt_u32 s{sW}, 4")
        e("s_cbranch_scc1 L_PRIO_SKIP")
        e("s_setprio 1")
        a.lab("L_PRIO_SKIP")
    part("OWN", sT0, sT1, sTAU, hook=hook)
    stamp("own done")
    def gate_loads():
        if opt.gate4:
            e(f"s_and_b32 s{sT2}, s{sT3}, 3")
            e(f"s_sub_u32 s{sT3x}, 7, s{sT2}")
            e(f"s_cmp_lt_u32 s{sQ}, 2")
            e(f"s_cselect_b32 s{sT2}, s{sT2}, s{sT3x}")
            e(f"s_lshr_b32 s{sT3x}, s{sT3}, 2")
            e(f"s_lshl_b32 s{sT3x}, s{sT3x}, 3")
            e(f"s_add_u32 s{sT2}, s{sT2}, s{sT3x}")
            e(f"s_lshl_b32 s{sT2}, s{sT2}, 15")
            e(f"s_and_b32 s{sT3x}, s{sQ}, 1")
            e(f"s_lshl_b32 s{sT3x}, s{sT3x}, 14")
            e(f"s_add_u32 s{sT2}, s{sT2}, s{sT3x}")
            n = 16
        else:
            e(f"s_lshl_b32 s{sT2}, s{sTT3}, 15")
            e(f"s_lshl_b32 s{sT3x}, s{sQ}, 13")
            e(f"s_add_u32 s{sT2}, s{sT2}, s{sT3x}")
            n = 8
        e(f"buffer_load_dwordx4 {vr(GW,4)}, v{vL16}, {srd(S_GW)}, 0 offen")
        for i in range(n):
            e(f"buffer_load_dwordx4 {vr(GX+4*i,4)}, v{vL16}, {srd(S_X)}, s{sT2} offen offset:{(i&3)*1024}")
            if (i & 3) == 3 and i < n - 1: e(f"s_add_u32 s{sT2}, s{sT2}, 4096")
    def prefill():
        if not opt.sent: return
        for i in range(4): e(f"v_mov_b32 v{128+i}, -1")
        e(f"s_lshl_b32 s{sT2}, s{sTT}, 1")
        e(f"s_add_u32 s{sT2}, s{sT2}, s{sBR}")
        e(f"s_lshl_b32 s{sT2}, s{sT2}, 5")
        e(f"s_lshl_b32 s{sT3x}, s{sHG}, 1")
        e(f"s_add_u32 s{sT2}, s{sT2}, s{sT3x}")
        e(f"s_lshl_b32 s{sT2}, s{sT2}, 10")
        e(f"s_add_u32 s{sT2}, s{sT2}, {WS_O}")
        for h in range(2):
            e(f"buffer_store_dwordx4 v[128:131], v{vL16}, {srd(S_WS)}, s{sT2} offen offset:{h*1024} sc1")
    def wo_voff():
        e(f"v_lshrrev_b32 v13, 3, v0")
        e(f"v_lshlrev_b32 v13, 10, v13")
        e(f"v_bfe_u32 v15, v0, 4, 1")
        e(f"v_lshlrev_b32 v15, 2, v15")
        e(f"v_xor_b32 v15, v15, v0")
        e(f"v_and_b32 v15, 7, v15")
        e(f"v_lshl_add_u32 v14, v15, 4, v13")
    def wo_dma(S, heads, kh, ldsaddr):
        for i in heads:
            sg, cst = ldsaddr(i)
            for hf in range(2):
                e(f"s_add_u32 s{sT3x}, s{sT5}, {(256*kh + 16*i + 8*hf)*1024}")
                e(f"s_add_u32 m0, s{sg}, {cst + hf*1024}")
                e("s_nop 0")
                e(f"buffer_load_dwordx4 v14, {srd(S)}, s{sT3x} offen lds")
    def wo_lin(S, sg, sl, n):
        e(f"s_mov_b32 m0, s{sl}")
        e("s_nop 0")
        for i in range(n):
            e(f"buffer_load_dwordx4 v14, {srd(S)}, s{sg} offen lds")
            if i < n - 1:
                e(f"s_add_u32 m0, m0, 1024")
                e(f"s_add_u32 s{sg}, s{sg}, 8192")
    def wo_early():
        wo_voff()
        e(f"s_lshl_b32 s{sT5}, s{sN3}, 7")
        e(f"s_and_b32 s{sT0}, s{sTAU}, 1")
        e(f"s_lshl_b32 s{sT0}, s{sT0}, 18")
        e(f"s_add_u32 s{sT0}, s{sT0}, s{sT5}")
        e(f"s_lshl_b32 s{sT1}, s{sTAU}, 14")
        e(f"s_add_u32 s{sT1}, s{sT1}, {LDS_A0}")
        lab = f"L_WE_{opt._n}"; opt._n += 1
        e(f"s_cmp_ge_u32 s{sTAU}, 2")
        e(f"s_cbranch_scc1 {lab}_B")
        e(f"s_mov_b32 s{sT4}, s{sT0}")
        wo_lin(S_WOA, sT4, sT1, 16)
        e(f"s_branch {lab}_E")
        a.lab(f"{lab}_B")
        e(f"s_mov_b32 s{sT4}, s{sT0}")
        wo_lin(S_WOB, sT4, sT1, 16)
        a.lab(f"{lab}_E")
    def halo_poll_load():
        n = opt._n; opt._n += 1
        e(f"s_sub_u32 s{sT2}, s{sC}, 1")
        e(f"s_lshl_b32 s{sT3x}, s{sT2}, 5")
        e(f"s_add_u32 s{sT3x}, s{sT3x}, s{sBH}")
        e(f"s_lshl_b32 s{sT3x}, s{sT3x}, 7")
        e(f"s_lshl_b32 s{sT4}, s{sTAU}, 3")
        e(f"s_add_u32 s{sT3x}, s{sT3x}, s{sT4}")
        e(f"s_add_u32 s{sT3x}, s{sT3x}, {WS_KVF}")
        e(f"v_and_b32 v13, 1, v0")
        e(f"v_lshlrev_b32 v13, 2, v13")
        e(f"s_mov_b32 s{sSPIN}, 0")
        a.lab(f"L_KVF_LOOP{n}")
        e(f"buffer_load_dword v15, v13, {srd(S_WS)}, s{sT3x} offen sc1")
        e(f"s_add_u32 s{sSPIN}, s{sSPIN}, 1")
        e("s_waitcnt vmcnt(0)")
        e(f"v_cmp_ne_u32 vcc, s{sTAG}, v15")
        e(f"s_cmp_gt_u32 s{sSPIN}, {opt.spin}")
        e(f"s_cbranch_scc1 L_KVF_OK{n}")
        e(f"s_cbranch_vccnz L_KVF_LOOP{n}")
        a.lab(f"L_KVF_OK{n}")
        stamp("roleA")
        e(f"s_lshl_b32 s{sT3x}, s{sBH}, 6")
        e(f"s_lshl_b32 s{sT2}, s{sT2}, 3")
        e(f"s_add_u32 s{sT3x}, s{sT3x}, s{sT2}")
        e(f"s_lshl_b32 s{sT2}, s{sTAU}, 1")
        e(f"s_add_u32 s{sT3x}, s{sT3x}, s{sT2}")
        e(f"s_lshl_b32 s{sT3x}, s{sT3x}, 12")
        e(f"s_add_u32 s{sT3x}, s{sT3x}, {WS_KV}")
        for j in range(2):
            for i in range(4):
                e(f"buffer_load_dwordx4 {vr(HT+16*j+4*i,4)}, v{vL16}, {srd(S_WS)}, s{sT3x} offen offset:{i*1024} sc1")
            if j < 1: e(f"s_add_u32 s{sT3x}, s{sT3x}, 4096")
    def halo_write(younger):
        e(f"s_mul_i32 s{sT2}, s{sTAU}, {2*REG}")
        e(f"s_add_u32 s{sT2}, s{sT2}, 4096")
        e(f"v_add_u32 v13, s{sT2}, v{vL16}")
        for j in range(2):
            e(f"s_waitcnt vmcnt({younger+4-4*j})")
            for i in range(4):
                e(f"ds_write_b128 v13, {vr(HT+16*j+4*i,4)} offset:{j*REG+i*1024}")
    opt._n = 0
    ool = []
    NE = 16
    NG = 0 if opt.gate4 else 9
    e(f"s_cmp_gt_u32 s{sTAU}, 3")
    e("s_cbranch_scc0 L_ROLE_LO")
    if opt.sent == 2: prefill()
    if not opt.ool: e("s_branch L_HALO_BAR")
    i_ool3 = len(a.lines)
    a.lab("L_ROLE_LO")
    if opt.mke:
        e(f"s_mov_b32 s{sT2}, 0xff800000")
        for r in range(16): e(f"v_xor_b32 v{MKE+r}, s{sT2}, v{MK+r}")
    e(f"s_cmp_eq_u32 s{sC}, 0")
    e("s_cbranch_scc1 L_ROLE_C0")
    e(f"s_cmp_gt_u32 s{sTAU}, 1")
    e("s_cbranch_scc1 L_ROLE_HI")
    wo_early()
    halo_poll_load()
    if not opt.gate4: gate_loads()
    halo_write(NG)
    e("s_waitcnt lgkmcnt(0)")
    stamp("roleB")
    e("s_branch L_HALO_BAR")
    a.lab("L_ROLE_HI")
    halo_poll_load()
    wo_early()
    if not opt.gate4: gate_loads()
    halo_write(NE + NG)
    e(f"s_waitcnt vmcnt({NG}) lgkmcnt(0)")
    stamp("roleB")
    e("s_branch L_HALO_BAR")
    a.lab("L_ROLE_C0")
    wo_early()
    if not opt.gate4: gate_loads()
    e(f"s_waitcnt vmcnt({NG})")
    if opt.ool:
        e("s_branch L_HALO_BAR")
        ool.append(a.lines[i_ool3:]); del a.lines[i_ool3:]
    a.lab("L_HALO_BAR")
    if not opt.mke:
        e(f"s_mov_b32 s{sT2}, 0xff800000")
        for r in range(16): e(f"v_xor_b32 v{MK+r}, s{sT2}, v{MK+r}")
    e("s_barrier")
    stamp("B2")
    e(f"s_cmp_ge_u32 s{sTAU}, 4")
    e("s_cbranch_scc1 L_LATE_S")
    prefill()
    i_ool1 = len(a.lines)
    if not opt.ool: e("s_branch L_LATE_E")
    a.lab("L_LATE_S")
    if opt.warm in (4, 6, 7):
        assert not opt.rep
        e(f"s_cmp_eq_u32 s{sW}, 4"); e("s_cbranch_scc0 L_FW_E")
        e(f"s_lshl_b32 s{sT2}, s{sC}, 5"); e(f"s_lshr_b32 s{sT3x}, s{sBH}, 3"); e(f"s_add_u32 s{sT2}, s{sT2}, s{sT3x}")
        e(f"s_lshl_b32 s{sT2}, s{sT2}, 7"); e(f"s_add_u32 s{sT2}, s{sT2}, {WS_OF}")
        e(f"v_lshlrev_b32 v13, 9, v0"); e(f"v_add_u32 v13, s{sT2}, v13")
        e("s_mov_b64 exec, 0xff")
        e(f"buffer_load_dword v215, v13, {srd(S_WS)}, 0 offen sc1")
        e("s_mov_b64 exec, -1")
        e(f"s_lshr_b32 s{sT2}, s{sT3}, 2"); e(f"s_lshl_b32 s{sT2}, s{sT2}, 3"); e(f"s_and_b32 s{sT3x}, s{sT3}, 3")
        e(f"s_add_u32 s{sT0}, s{sT2}, s{sT3x}"); e(f"s_sub_u32 s{sT3x}, 7, s{sT3x}"); e(f"s_add_u32 s{sT1}, s{sT2}, s{sT3x}")
        e(f"s_lshl_b32 s{sT0}, s{sT0}, 9"); e(f"s_lshl_b32 s{sT1}, s{sT1}, 9")
        e(f"s_add_u32 s{sT0}, s{sT0}, {WS_OF}"); e(f"s_add_u32 s{sT1}, s{sT1}, {WS_OF}")
        e(f"v_lshlrev_b32 v13, 7, v0")
        e("s_mov_b64 exec, 15")
        e(f"buffer_load_dword v215, v13, {srd(S_WS)}, s{sT0} offen sc1")
        e(f"buffer_load_dword v214, v13, {srd(S_WS)}, s{sT1} offen sc1")
        e("s_mov_b64 exec, -1")
        a.lab("L_FW_E")
        if opt.warm == 7:
            e(f"s_cmp_eq_u32 s{sW}, 5"); e("s_cbranch_scc0 L_FW_F")
            e(f"s_lshr_b32 s{sT2}, s{sT3}, 2"); e(f"s_lshl_b32 s{sT2}, s{sT2}, 3"); e(f"s_and_b32 s{sT3x}, s{sT3}, 3")
            e(f"s_add_u32 s{sT0}, s{sT2}, s{sT3x}"); e(f"s_sub_u32 s{sT3x}, 7, s{sT3x}"); e(f"s_add_u32 s{sT1}, s{sT2}, s{sT3x}")
            e(f"s_sub_u32 s{sT1}, s{sT1}, s{sT0}"); e(f"s_sub_u32 s{sT1}, s{sT1}, 1"); e(f"s_lshl_b32 s{sT1}, s{sT1}, 15")
            e(f"s_lshl_b32 s{sT0}, s{sT0}, 15"); e(f"s_lshl_b32 s{sT3x}, s{sN3}, 7"); e(f"s_add_u32 s{sT0}, s{sT0}, s{sT3x}")
            e(f"v_lshlrev_b32 v13, 10, v0"); e(f"v_lshrrev_b32 v15, 5, v0"); e(f"v_mul_lo_u32 v15, v15, s{sT1}"); e(f"v_add_u32 v13, v13, v15")
            e(f"buffer_load_dword v215, v13, {srd(S_OUT)}, s{sT0} offen")
            a.lab("L_FW_F")
    wo_voff()
    e(f"s_sub_u32 s{sT2}, 7, s{sTAU}")
    e(f"s_lshl_b32 s{sT5}, s{sN3}, 7")
    e(f"s_and_b32 s{sT0}, s{sT2}, 1")
    e(f"s_lshl_b32 s{sT0}, s{sT0}, 18")
    e(f"s_add_u32 s{sT0}, s{sT0}, s{sT5}")
    e(f"s_add_u32 s{sT0}, s{sT0}, {128*1024}")
    e(f"s_mul_i32 s{sT1}, s{sT2}, {2*REG}")
    def late(S):
        for (reg, slot) in ((0, 8192), (1, 8192), (0, 0), (1, 0)):
            e(f"s_add_u32 s{sT3x}, s{sT1}, {reg*REG + slot}")
            wo_lin(S, sT0, sT3x, 4)
            e(f"s_add_u32 s{sT0}, s{sT0}, 8192")
    e(f"s_cmp_ge_u32 s{sT2}, 2")
    e("s_cbranch_scc1 L_LATE_B")
    late(S_WOA)
    e("s_branch L_LATE_G")
    a.lab("L_LATE_B")
    late(S_WOB)
    a.lab("L_LATE_G")
    gate_loads()
    if opt.prio: e("s_setprio 1")
    if opt.ool:
        e("s_branch L_LATE_E")
        ool.append(a.lines[i_ool1:]); del a.lines[i_ool1:]
    a.lab("L_LATE_E")
    e(f"s_cmp_eq_u32 s{sC}, 0")
    e("s_cbranch_scc1 L_P2_EPI")
    e(f"s_mul_i32 s{sT0}, s{sTAU}, {REG}")
    e(f"s_add_u32 s{sT0}, s{sT0}, 4096")
    e(f"s_add_u32 s{sT1}, s{sT0}, {REG}")
    e(f"s_sub_u32 s{sT4}, 7, s{sTAU}")
    part("HALO", sT0, sT1, sT4)
    a.lab("L_P2_EPI")
    stamp("attn done")
    lo, hi = f32bits(2.0 ** -64), f32bits(2.0 ** 64)
    e(f"s_mov_b32 s{sT0}, {hex(lo)}")
    e(f"s_mov_b32 s{sT1}, {hex(hi)}")
    e(f"s_lshl_b32 s{sKVO}, s{sTT}, 1")
    e(f"s_add_u32 s{sKVO}, s{sKVO}, s{sBR}")
    e(f"s_lshl_b32 s{sKVO}, s{sKVO}, 5")
    e(f"s_lshl_b32 s{sT3x}, s{sHG}, 1")
    e(f"s_add_u32 s{sKVO}, s{sKVO}, s{sT3x}")
    e(f"s_lshl_b32 s{sKVO}, s{sKVO}, 10")
    e(f"s_add_u32 s{sKVO}, s{sKVO}, {WS_O}")
    e(f"s_lshl_b32 s{sT2}, s{sTT}, 2")
    e(f"s_lshr_b32 s{sT3x}, s{sBH}, 3")
    e(f"s_add_u32 s{sT2}, s{sT2}, s{sT3x}")
    e(f"s_lshl_b32 s{sT2}, s{sT2}, {10 if opt.rep else 7}")
    e(f"s_and_b32 s{sT3x}, s{sBH}, 7")
    e(f"s_lshl_b32 s{sT3x}, s{sT3x}, 2")
    e(f"s_add_u32 s{sT2}, s{sT2}, s{sT3x}")
    e(f"s_add_u32 s{sOFA}, s{sT2}, {WS_OF}")
    e("s_nop 2")
    if opt.fallback:
        for h in range(2):
            O = OA + 16 * h
            e(f"v_mul_f32 v13, 0, v{O}")
            for i in range(1, 8): e(f"v_fmac_f32 v13, 0, v{O+i}")
            e(f"v_cmp_nle_f32 vcc, s{sT0}, v{O+8}")
            e(f"s_mov_b64 s[74:75], vcc")
            e(f"v_cmp_nge_f32 vcc, s{sT1}, v{O+8}")
            e("s_or_b64 s[74:75], s[74:75], vcc")
            e(f"v_cmp_u_f32 vcc, v13, v13")
            e("s_or_b64 s[74:75], s[74:75], vcc")
            e("s_cmp_lg_u64 s[74:75], 0")
            e(f"s_cselect_b32 s{sT2}, {1<<h}, 0")
            e(f"s_or_b32 s{sFAIL}, s{sFAIL}, s{sT2}")
        if opt.forcefb: e(f"s_or_b32 s{sFAIL}, s{sFAIL}, {opt.forcefb}")
        e(f"s_cmp_lg_u32 s{sFAIL}, 0")
        e("s_cbranch_scc1 L_FB_ENTRY")
        a.lab("L_NOFB")
    else:
        e("s_nop 7")
    if opt.sent:
        e(f"s_cmp_ge_u32 s{sW}, 4")
        e("s_cbranch_scc1 L_NOSENT0")
        e("s_waitcnt vmcnt(0)")
        e("s_branch L_NOSENT")
        a.lab("L_NOSENT0")
        if opt.sent == 2: e("s_waitcnt vmcnt(25)")
        a.lab("L_NOSENT")
    for h in range(2):
        e(f"v_rcp_f32 v{13+h}, v{OA+16*h+8}")
    for h in range(2):
        O = OA + 16 * h
        for i in range(8): e(f"v_mul_f32 v{O+i}, v{O+i}, v{13+h}")
        for i in range(4): e(cvt(O + 8 + i, O + 2 * i, O + 2 * i + 1))
        if opt.sent:
            for i in range(4): e(f"v_min_u32 v{O+8+i}, -2, v{O+8+i}")
        e(f"buffer_store_dwordx4 {vr(O+8,4)}, v{vL16}, {srd(S_WS)}, s{sKVO} offen offset:{h*1024} sc1")
    if opt.sent:
        if opt.sent != 2:
            e(f"s_cmp_ge_u32 s{sW}, 4")
            e("s_cbranch_scc1 L_NOHINT")
        e(f"v_lshlrev_b32 v13, 7, v0")
        e(f"v_mov_b32 v14, s{sTAG}")
        e(f"s_mov_b64 exec, {'0xff' if opt.rep else 1}")
        e(f"buffer_store_dword v14, v13, {srd(S_WS)}, s{sOFA} offen sc1")
        e("s_mov_b64 exec, -1")
        stamp("O published")
        a.lab("L_NOHINT")
    WF3, OF3, AC3 = 16, 144, 208
    e(f"v_lshrrev_b32 v1, 5, v0")
    e(f"v_lshlrev_b32 v1, 9, v1")
    e(f"v_bfe_u32 v2, v0, 2, 2")
    e(f"v_lshl_add_u32 v1, v2, 7, v1")
    e(f"v_bfe_u32 v2, v0, 3, 1")
    e(f"v_lshl_add_u32 v1, v2, 6, v1")
    e(f"v_bfe_u32 v2, v0, 4, 1")
    e(f"v_lshl_add_u32 v1, v2, 5, v1")
    e(f"v_and_b32 v2, 3, v0")
    e(f"v_lshl_add_u32 v1, v2, 3, v1")
    e(f"s_lshl_b32 s{sT2}, s{sQ}, 14")
    e(f"s_add_u32 s{sT2}, s{sT2}, {LDS_A0}")
    e(f"s_mul_i32 s{sT3x}, s{sQ}, {2*REG}")
    e(f"v_xor_b32 v2, 64, v1")
    vA = [244, 245]; vB = [246, 247]
    e(f"v_add_u32 v{vA[0]}, s{sT2}, v1")
    e(f"v_add_u32 v{vA[1]}, s{sT2}, v2")
    e(f"v_add_u32 v{vB[0]}, s{sT3x}, v1")
    e(f"v_add_u32 v{vB[1]}, s{sT3x}, v2")
    def trw(i):
        for ct in range(2):
            for u in range(2):
                if i < 8: ad, off = vA[ct], i * 2048
                elif i < 12: ad, off = vB[ct], ((i - 8) >> 1) * REG + 8192 + ((i - 8) & 1) * 2048
                else: ad, off = vB[ct], ((i - 12) >> 1) * REG + ((i - 12) & 1) * 2048
                e(f"ds_read_b64_tr_b16 {vr(WF3+8*i+4*ct+2*u,2)}, v{ad} offset:{off+u*1024}")
    for i in range(8): trw(i)
    e(f"s_lshl_b32 s{sT1}, s{sTT3}, 2")
    e(f"s_add_u32 s{sT1}, s{sT1}, s{sQ}")
    if opt.rep:
        e(f"s_lshl_b32 s{sT1}, s{sT1}, 3")
        e(f"s_add_u32 s{sT1}, s{sT1}, s{sN3}")
    e(f"s_lshl_b32 s{sT1}, s{sT1}, 7")
    e(f"s_add_u32 s{sT1}, s{sT1}, {WS_OF}")
    e(f"s_lshl_b32 s{sT0}, s{sTT3}, 1")
    e(f"s_add_u32 s{sT0}, s{sT0}, s{sB3}")
    e(f"s_lshl_b32 s{sT0}, s{sT0}, 5")
    e(f"s_lshl_b32 s{sT3x}, s{sKH}, 4")
    e(f"s_add_u32 s{sT0}, s{sT0}, s{sT3x}")
    e(f"s_lshl_b32 s{sT0}, s{sT0}, 10")
    e(f"s_add_u32 s{sT0}, s{sT0}, {WS_O}")
    def oflag(wait=True):
        e(f"v_lshlrev_b32 v13, 7, v0")
        e(f"v_mov_b32 v14, s{sTAG}")
        if wait: e("s_waitcnt vmcnt(0)")
        e(f"s_mov_b64 exec, {'0xff' if opt.rep else 1}")
        e(f"buffer_store_dword v14, v13, {srd(S_WS)}, s{sOFA} offen sc1")
        e("s_mov_b64 exec, -1")
        stamp("O published")
    GR = 236
    def gate_round(gx, g_out, g1_out):
        for i in range(8): e(f"v_mov_b32 v{GA+i}, 0")
        for d in range(4):
            for i in range(8):
                e(f"v_dot2_f32_bf16 v{GA+i}, v{gx+4*i+d}, v{GW+d}, v{GA+i}")
        e("s_nop 4")
        for i in range(4): e(f"v_permlane32_swap_b32 v{GA+i}, v{GA+4+i}")
        for i in range(4): e(f"v_add_f32 v{GA+i}, v{GA+i}, v{GA+4+i}")
        e("s_nop 1")
        for i in range(2): e(f"v_permlane16_swap_b32 v{GA+i}, v{GA+2+i}")
        for i in range(2): e(f"v_add_f32 v{GA+i}, v{GA+i}, v{GA+2+i}")
        e("s_nop 1")
        for i in range(2): e(f"v_add_f32_dpp v{GA+i}, v{GA+i}, v{GA+i} row_ror:8 row_mask:0xf bank_mask:0xf")
        e("s_nop 1")
        e(f"v_mov_b32_dpp v{GA}, v{GA+1} quad_perm:[0,1,2,3] row_mask:0xf bank_mask:0xc")
        e("s_nop 1")
        e(f"v_add_f32_dpp v15, v{GA}, v{GA} quad_perm:[1,0,3,2] row_mask:0xf bank_mask:0xf")
        e("s_nop 1")
        e("v_add_f32_dpp v15, v15, v15 quad_perm:[2,3,0,1] row_mask:0xf bank_mask:0xf")
        e("s_nop 1")
        e("v_add_f32_dpp v15, v15, v15 row_half_mirror row_mask:0xf bank_mask:0xf")
        e("v_cvt_pk_bf16_f32 v15, v15, v15")
        e("v_and_b32 v15, 0xffff0000, v15")
        e(f"v_mul_f32 v15, {hex(f32bits(-math.log2(math.e)))}, v15")
        e("v_exp_f32 v15, v15")
        e("s_nop 0")
        e("v_add_f32 v15, 1.0, v15")
        e("v_rcp_f32 v15, v15")
        e("s_nop 0")
        e("v_cvt_pk_bf16_f32 v15, v15, v15")
        e(f"v_and_b32 v{g_out}, 0xffff0000, v15")
        e(f"v_sub_f32 v15, 1.0, v{g_out}")
        e("v_cvt_pk_bf16_f32 v15, v15, v15")
        e(f"v_and_b32 v{g1_out}, 0xffff0000, v15")
    def gate():
        if opt.gate4:
            gate_round(GX, GR, GR + 1); gate_round(GX + 32, GR + 2, GR + 3)
        else:
            gate_round(GX, GR, GR + 1)
    def gate_write():
        e(f"v_lshrrev_b32 v15, 3, v0")
        if opt.gate4:
            e(f"s_lshl_b32 s{sT2}, s{sQ}, 4")
        else:
            e(f"s_lshl_b32 s{sT2}, s{sW}, 3")
        e(f"v_add_u32 v15, s{sT2}, v15")
        e(f"v_lshlrev_b32 v15, 2, v15")
        e(f"ds_write_b32 v15, v{GR} offset:{LDS_GATE}")
        e(f"ds_write_b32 v15, v{GR+1} offset:{LDS_GATE+256}")
        if opt.gate4:
            e(f"ds_write_b32 v15, v{GR+2} offset:{LDS_GATE+32}")
            e(f"ds_write_b32 v15, v{GR+3} offset:{LDS_GATE+256+32}")
    def poll(name, first_issued, sleep):
        e(f"s_mov_b32 s{sSPIN}, 0")
        if not first_issued:
            e(f"buffer_load_dword v14, v13, {srd(S_WS)}, s{sT1} offen sc1")
        a.lab(f"L_OF_LOOP{name}")
        e("s_waitcnt vmcnt(0)")
        e(f"v_cmp_ne_u32 vcc, s{sTAG}, v14")
        e(f"s_add_u32 s{sSPIN}, s{sSPIN}, 1")
        e(f"s_cbranch_vccz L_OF_OK{name}")
        e(f"s_cmp_gt_u32 s{sSPIN}, {opt.spin}")
        e(f"s_cbranch_scc1 L_OF_OK{name}")
        if sleep: e(f"s_sleep {sleep}")
        e(f"buffer_load_dword v14, v13, {srd(S_WS)}, s{sT1} offen sc1")
        e(f"s_branch L_OF_LOOP{name}")
        a.lab(f"L_OF_OK{name}")
    def oloads(mod="sc1"):
        for i in range(16):
            e(f"buffer_load_dwordx4 {vr(OF3+4*i,4)}, v{vL16}, {srd(S_WS)}, s{sT0} offen offset:{(i&3)*1024} {mod}")
            if (i & 3) == 3 and i < 15: e(f"s_add_u32 s{sT0}, s{sT0}, 4096")
    def p3mfma(i0, i1):
        for i in range(i0, i1):
            e(f"s_waitcnt vmcnt({15-i})")
            for ct in range(2):
                mfma(AC3 + 16 * ct, WF3 + 8 * i + 4 * ct, OF3 + 4 * i, "0" if i == 0 else AC3 + 16 * ct)
    def late_part(gw=True):
        if gw: gate_write()
        for i in range(8, 16): trw(i)
    def p3mfma2():
        if opt.sent:
            e(f"s_mov_b32 s{sSPIN}, 0")
            a.lab("L_P3_RETRY")
            e("v_mov_b32 v15, 0")
        for i in range(16):
            if i == 8: e("s_waitcnt lgkmcnt(0)")
            e(f"s_waitcnt vmcnt({15-i})")
            for ct in range(2):
                mfma(AC3 + 16 * ct, WF3 + 8 * i + 4 * ct, OF3 + 4 * i, "0" if i == 0 else AC3 + 16 * ct)
                if opt.sent: e(f"v_max3_u32 v15, v15, v{OF3+4*i+2*ct}, v{OF3+4*i+2*ct+1}")
        if opt.sent:
            e("v_cmp_eq_u32 vcc, -1, v15")
            e(f"s_add_u32 s{sSPIN}, s{sSPIN}, 1")
            e("s_cbranch_vccz L_P3_DONE")
            e(f"s_cmp_gt_u32 s{sSPIN}, {opt.spin}")
            e("s_cbranch_scc1 L_P3_DONE")
            e(f"s_sub_u32 s{sT0}, s{sT0}, 12288")
            e("s_nop 7")
            oloads()
            e("s_branch L_P3_RETRY")
            a.lab("L_P3_DONE")
    e(f"s_cmp_eq_u32 s{sTQ}, 0")
    if opt.ool:
        e("s_cbranch_scc0 L_P3_EARLY")
        i_ool2 = len(a.lines)
        a.lab("L_P3_EARLY")
    else:
        e("s_cbranch_scc1 L_P3_LATE")
    if opt.sent == 2: e("s_waitcnt vmcnt(3)")
    else: oflag()
    if opt.prio: e("s_setprio 0")
    if opt.early == 0:
        gate()
        e(f"v_and_b32 v13, 7, v0")
        e(f"v_lshlrev_b32 v13, 2, v13")
        e(f"buffer_load_dword v14, v13, {srd(S_WS)}, s{sT1} offen sc1")
        e("s_waitcnt lgkmcnt(0)")
        e("s_barrier")
        stamp("B3")
        poll("E", True, opt.sleep)
        stamp("O flags seen")
        oloads(opt.omod)
        late_part()
    else:
        e(f"v_and_b32 v13, 7, v0")
        e(f"v_lshlrev_b32 v13, 2, v13")
        e(f"buffer_load_dword v14, v13, {srd(S_WS)}, s{sT1} offen sc1")
        gate()
        for i in range(8, 16): trw(i)
        poll("E", True, opt.sleep)
        stamp("O flags seen")
        oloads(opt.omod)
        e("s_waitcnt lgkmcnt(0)")
        e("s_barrier")
        stamp("B3")
        gate_write()
    e("s_branch L_P3_J")
    if opt.ool:
        ool.append(a.lines[i_ool2:]); del a.lines[i_ool2:]
    a.lab("L_P3_LATE")
    if opt.sent:
        e(f"v_and_b32 v13, 7, v0")
        e(f"v_lshlrev_b32 v13, 2, v13")
        e(f"buffer_load_dword v14, v13, {srd(S_WS)}, s{sT1} offen sc1")
        if not opt.gate4: gate()
        e("s_waitcnt lgkmcnt(0)")
        e("s_barrier")
        stamp("B3")
    else:
        e("s_waitcnt vmcnt(2)")
        gate()
        oflag()
        e(f"v_and_b32 v13, 7, v0")
        e(f"v_lshlrev_b32 v13, 2, v13")
        e(f"buffer_load_dword v14, v13, {srd(S_WS)}, s{sT1} offen sc1")
        e("s_waitcnt lgkmcnt(0)")
        e("s_barrier")
        stamp("B3")
    late_part(not opt.gate4)
    poll("L", True, 0)
    stamp("O flags seen")
    oloads(opt.omod)
    a.lab("L_P3_J")
    p3mfma2()
    stamp("P3 mfma")
    e(f"s_lshl_b32 s{sT2}, s{sTQ}, 15")
    e(f"s_lshl_b32 s{sT3x}, s{sQ}, 11")
    e(f"s_add_u32 s{sT3x}, s{sT3x}, s{sT2}")
    e(f"s_add_u32 s{sT3x}, s{sT3x}, {LDS_RB}")
    e(f"v_add_u32 v1, s{sT3x}, v{vL16}")
    e(f"s_lshl_b32 s{sT3x}, s{sQ}, 13")
    e(f"s_add_u32 s{sT3x}, s{sT3x}, s{sT2}")
    e(f"s_add_u32 s{sT3x}, s{sT3x}, {LDS_RB}")
    e(f"v_add_u32 v2, s{sT3x}, v{vL16}")
    e(f"v_and_b32 v4, 31, v0")
    e(f"s_lshl_b32 s{sT2}, s{sTQ}, 5")
    e(f"v_add_u32 v3, s{sT2}, v4")
    e(f"v_lshlrev_b32 v3, 2, v3")
    e(f"v_lshlrev_b32 v4, 10, v4")
    e(f"v_lshrrev_b32 v5, 5, v0")
    e(f"v_lshl_add_u32 v4, v5, 4, v4")
    e(f"s_lshl_b32 s{sT2}, s{sTT3}, 15")
    e(f"s_lshl_b32 s{sT3x}, s{sN3}, 7")
    e(f"s_add_u32 s{sT2}, s{sT2}, s{sT3x}")
    e(f"s_lshl_b32 s{sT3x}, s{sQ}, 5")
    e(f"s_add_u32 s{sT2}, s{sT2}, s{sT3x}")
    e("s_nop 1")
    for qq in range(4):
        for hf in range(2):
            e(f"ds_write_b128 v1, {vr(AC3+8*qq+4*hf,4)} offset:{qq*8192+hf*1024}")
    e("s_waitcnt lgkmcnt(0)")
    e("s_barrier")
    R = 144
    e(f"ds_read_b32 v5, v3 offset:{LDS_GATE}")
    e(f"ds_read_b32 v6, v3 offset:{LDS_GATE+256}")
    for src in range(4):
        for hf in range(2):
            e(f"ds_read_b128 {vr(R+8*src+4*hf,4)}, v2 offset:{src*2048+hf*1024}")
    e("s_waitcnt lgkmcnt(4)")
    for i in range(8): e(f"v_add_f32 v{R+i}, v{R+i}, v{R+8+i}")
    for i in range(8): e(f"v_mul_f32 v{R+i}, v{R+i}, v5")
    e("s_waitcnt lgkmcnt(0)")
    for i in range(8): e(f"v_add_f32 v{R+16+i}, v{R+16+i}, v{R+24+i}")
    for i in range(8): e(f"v_fmac_f32 v{R+i}, v{R+16+i}, v6")
    for i in range(4): e(cvt(R + 32 + i, R + 2 * i, R + 2 * i + 1))
    e("s_nop 1")
    e(f"v_permlane32_swap_b32 v{R+32}, v{R+34}")
    e(f"v_permlane32_swap_b32 v{R+33}, v{R+35}")
    e(f"buffer_store_dwordx4 {vr(R+32,4)}, v4, {srd(S_OUT)}, s{sT2} offen {opt.outmod}")
    if STAMPS:
        stamp("end")
        e(f"s_memtime s[{sTM}:{sTM+1}]")
        e("s_waitcnt lgkmcnt(0)")
        e(f"s_sub_u32 s{STREG[nst[0]]}, s{sTM}, s100")
        nst[0] += 1
        opt.stamp_names.append("CYCLES")
        n = nst[0]
        e(f"s_lshl_b32 s{sT2}, s2, 3")
        e(f"s_add_u32 s{sT2}, s{sT2}, s{sW}")
        e(f"s_lshl_b32 s{sT2}, s{sT2}, 7")
        e(f"s_add_u32 s{sT2}, s{sT2}, {WS_STAMP}")
        e("v_mov_b32 v13, 0")
        e("s_mov_b64 exec, 1")
        for i in range(n):
            e(f"v_mov_b32 v14, s{STREG[i]}")
            e(f"buffer_store_dword v14, v13, {srd(S_WS)}, s{sT2} offen offset:{4*i}")
            e("s_nop 0")
        e("s_mov_b64 exec, -1")
    e("s_waitcnt vmcnt(0)")
    a.lab("L_END")
    e("s_endpgm")
    for blk in ool: a.lines += blk
    if opt.fallback:
        a.lab("L_FB_ENTRY")
        fallback(a, opt, dict(SS=SS, PP=PP, KF=KF, MK=MK, OA=OA, QF=QF, vL16=vL16, HT=144))
        e("s_branch L_NOFB")
    a.lab("L_CODE_END")
    return a

def fallback(a, opt, R):
    e = a.e
    SS, PP, KF, MK, OA, QF, vL16, HT = (R[k] for k in "SS PP KF MK OA QF vL16 HT".split())
    TQ = 64; TM = 68; TB = 69; TO = 144; TV = 192; TC = 176
    S = SS
    sHH, sPASS, sPART, sTILE, sN = sH, 40, 41, 42, 43
    def mfma(D, A, B, C): e(mfma_s(D, A, B, C))
    a.c("==== fallback: true max ====")
    e(f"s_lshl_b32 s{sT2}, s{sC}, 5")
    e(f"s_add_u32 s{sT2}, s{sT2}, s{sBH}")
    e(f"s_lshl_b32 s{sT2}, s{sT2}, 7")
    e(f"s_add_u32 s{sT2}, s{sT2}, {WS_KVF}")
    e(f"v_and_b32 v13, 7, v0")
    e(f"v_lshlrev_b32 v13, 2, v13")
    e(f"s_mov_b32 s{sSPIN}, 0")
    a.lab("L_FB_FLAG")
    e(f"buffer_load_dword v14, v13, {srd(S_WS)}, s{sT2} offen sc1")
    e(f"s_add_u32 s{sSPIN}, s{sSPIN}, 1")
    e("s_waitcnt vmcnt(0)")
    e(f"v_cmp_ne_u32 vcc, s{sTAG}, v14")
    e(f"s_cmp_gt_u32 s{sSPIN}, {opt.spin}")
    e("s_cbranch_scc1 L_FB_FLAG_OK")
    e("s_cbranch_vccnz L_FB_FLAG")
    a.lab("L_FB_FLAG_OK")
    e(f"s_mov_b32 s{sHH}, 0")
    a.lab("L_FB_H")
    e(f"s_lshr_b32 s{sT2}, s{sFAIL}, s{sHH}")
    e(f"s_and_b32 s{sT2}, s{sT2}, 1")
    e(f"s_cmp_eq_u32 s{sT2}, 0")
    e("s_cbranch_scc1 L_FB_NEXT")
    e(f"s_cmp_eq_u32 s{sHH}, 0")
    e("s_cbranch_scc0 L_FB_Q1")
    for i in range(4): e(f"v_mov_b32 v{TQ+i}, v{QF+i}")
    e("s_branch L_FB_Q2")
    a.lab("L_FB_Q1")
    for i in range(4): e(f"v_mov_b32 v{TQ+i}, v{QF+4+i}")
    a.lab("L_FB_Q2")
    e(f"v_mov_b32 v{TM}, 0xff800000")
    for i in range(16): e(f"v_mov_b32 v{TO+i}, 0")
    for i in range(8): e(f"v_mov_b32 v{TV+i}, 0x3f803f80")
    e(f"s_mov_b32 s{sPASS}, 0")
    a.lab("L_FB_PASS")
    e(f"s_mov_b32 s{sPART}, 0")
    a.lab("L_FB_PART")
    e(f"s_cmp_eq_u32 s{sPART}, 0")
    e(f"s_cselect_b32 s{sTILE}, 0, s{sTAU}")
    e(f"s_cselect_b32 s{sN}, s{sTAU}, 7")
    a.lab("L_FB_TILE")
    e(f"s_cmp_eq_u32 s{sTILE}, s{sTAU}")
    e("s_cbranch_scc1 L_FB_MASK")
    for i in range(16): e(f"v_mov_b32 v{TC+i}, 0")
    e("s_branch L_FB_C")
    a.lab("L_FB_MASK")
    e(f"v_and_b32 v13, 31, v0")
    e(f"v_lshrrev_b32 v14, 5, v0")
    e(f"v_lshlrev_b32 v14, 2, v14")
    e(f"v_sub_u32 v13, v13, v14")
    e(f"s_cmp_eq_u32 s{sPART}, 0")
    e(f"s_cselect_b32 s{sT2}, 0, 0xff800000")
    for r in range(16):
        kk = (r & 3) + 8 * (r >> 2)
        e(f"v_subrev_u32 v{TC+r}, {kk}, v13")
        e(f"v_ashrrev_i32 v{TC+r}, 31, v{TC+r}")
        e(f"v_and_b32 v{TC+r}, 0xff800000, v{TC+r}")
        e(f"v_xor_b32 v{TC+r}, s{sT2}, v{TC+r}")
    a.lab("L_FB_C")
    e(f"s_sub_u32 s{sT2}, s{sC}, s{sPART}")
    e(f"s_lshl_b32 s{sT2}, s{sT2}, 3")
    e(f"s_add_u32 s{sT2}, s{sT2}, s{sTILE}")
    e(f"s_lshl_b32 s{sT3x}, s{sBH}, 6")
    e(f"s_add_u32 s{sT2}, s{sT2}, s{sT3x}")
    e(f"s_lshl_b32 s{sT2}, s{sT2}, 12")
    e(f"s_add_u32 s{sT2}, s{sT2}, {WS_KV}")
    e(f"s_lshl_b32 s{sT3x}, s{sHH}, 10")
    e(f"s_add_u32 s{sT3x}, s{sT3x}, s{sT2}")
    e(f"buffer_load_dwordx4 {vr(KF,4)}, v{vL16}, {srd(S_WS)}, s{sT3x} offen sc1")
    e(f"s_lshl_b32 s{sT3x}, s{sHH}, 8")
    e(f"s_add_u32 s{sT3x}, s{sT3x}, s{sT2}")
    e(f"s_mov_b64 exec, s[{sVM}:{sVM+1}]")
    e(f"buffer_load_dwordx4 {vr(TV,4)}, v{vL16}, {srd(S_WS)}, s{sT3x} offen offset:2048 sc1")
    e(f"buffer_load_dwordx4 {vr(TV+4,4)}, v{vL16}, {srd(S_WS)}, s{sT3x} offen offset:3072 sc1")
    e("s_mov_b64 exec, -1")
    e("s_waitcnt vmcnt(0)")
    mfma(S, KF, TQ, TC)
    e("s_nop 7"); e("s_nop 7")
    e(f"s_cmp_eq_u32 s{sPASS}, 0")
    e("s_cbranch_scc0 L_FB_P2")
    for i in range(8): e(f"v_max3_f32 v{TM}, v{TM}, v{S+2*i}, v{S+2*i+1}")
    e("s_branch L_FB_TNEXT")
    a.lab("L_FB_P2")
    for i in range(16): e(f"v_sub_f32 v{S+i}, v{S+i}, v{TM}")
    for i in range(16): e(f"v_exp_f32 v{S+i}, v{S+i}")
    e("s_nop 0")
    for i in range(8): e(cvt(PP + i, S + 2 * i, S + 2 * i + 1))
    e("s_nop 1")
    mfma(TO, TV, PP, TO)
    mfma(TO, TV + 4, PP + 4, TO)
    e("s_nop 7"); e("s_nop 7")
    a.lab("L_FB_TNEXT")
    e(f"s_add_u32 s{sTILE}, s{sTILE}, 1")
    e(f"s_cmp_le_u32 s{sTILE}, s{sN}")
    e("s_cbranch_scc1 L_FB_TILE")
    e(f"s_cmp_eq_u32 s{sC}, 0")
    e("s_cbranch_scc1 L_FB_PDONE")
    e(f"s_add_u32 s{sPART}, s{sPART}, 1")
    e(f"s_cmp_lt_u32 s{sPART}, 2")
    e("s_cbranch_scc1 L_FB_PART")
    a.lab("L_FB_PDONE")
    e(f"s_cmp_eq_u32 s{sPASS}, 0")
    e("s_cbranch_scc0 L_FB_STORE")
    e(f"v_mov_b32 v{TB}, v{TM}")
    e("s_nop 1")
    e(f"v_permlane32_swap_b32 v{TM}, v{TB}")
    e("s_nop 1")
    e(f"v_max_f32 v{TM}, v{TM}, v{TB}")
    e(f"s_mov_b32 s{sPASS}, 1")
    e("s_branch L_FB_PASS")
    a.lab("L_FB_STORE")
    e(f"s_cmp_eq_u32 s{sHH}, 0")
    e("s_cbranch_scc0 L_FB_S1")
    for i in range(16): e(f"v_mov_b32 v{OA+i}, v{TO+i}")
    e("s_branch L_FB_NEXT")
    a.lab("L_FB_S1")
    for i in range(16): e(f"v_mov_b32 v{OA+16+i}, v{TO+i}")
    a.lab("L_FB_NEXT")
    e(f"s_add_u32 s{sHH}, s{sHH}, 1")
    e(f"s_cmp_lt_u32 s{sHH}, 2")
    e("s_cbranch_scc1 L_FB_H")

def build(opt):
    opt.stamp_names = []
    a = gen(opt)
    hdr = []
    hdr.append(f"; @launch grid=(256,1,1) block=(512,1,1) lds={LDS_TOTAL}")
    hdr.append('.amdgcn_target "amdgcn-amd-amdhsa--gfx950"')
    hdr.append(".text")
    hdr.append(f".globl {KNAME}")
    hdr.append(".p2align 8")
    hdr.append(f".type {KNAME},@function")
    tail = f""".section .rodata,"a"
.p2align 6
.amdhsa_kernel {KNAME}
  .amdhsa_next_free_vgpr 256
  .amdhsa_next_free_sgpr 102
  .amdhsa_accum_offset 256
  .amdhsa_group_segment_fixed_size 0
  .amdhsa_kernarg_size 80
  .amdhsa_user_sgpr_count 2
  .amdhsa_user_sgpr_kernarg_segment_ptr 1
  .amdhsa_system_sgpr_workgroup_id_x 1
  .amdhsa_float_denorm_mode_32 3
.end_amdhsa_kernel
"""
    return "\n".join(hdr) + "\n" + a.text() + tail

def parse(argv=None):
    p = argparse.ArgumentParser()
    p.add_argument("-o", default="gated_mix__sliding_block__sliding_block__prompt.s")
    p.add_argument("--stamps", type=int, default=0)
    p.add_argument("--codepf", type=int, default=1)
    p.add_argument("--pace", type=float, default=1.6)
    p.add_argument("--rot", type=int, default=1)
    p.add_argument("--xtouch", type=int, default=0)
    p.add_argument("--ool", type=int, default=0)
    p.add_argument("--tlb", type=int, default=1)
    p.add_argument("--gate4", type=int, default=0)
    p.add_argument("--wostride", type=int, default=64)
    p.add_argument("--tagearly", type=int, default=0)
    p.add_argument("--gwpf", type=int, default=1)
    p.add_argument("--mke", type=int, default=1)
    p.add_argument("--forcefb", type=int, default=0)
    p.add_argument("--early", type=int, default=0)
    p.add_argument("--lfirst", type=int, default=0)
    p.add_argument("--omod", default="sc1")
    p.add_argument("--rep", type=int, default=0)
    p.add_argument("--warm", type=int, default=6)
    p.add_argument("--sent", type=int, default=1)
    p.add_argument("--tailopt", type=int, default=1)
    p.add_argument("--eorder", type=int, default=1)
    p.add_argument("--prio", type=int, default=1)
    p.add_argument("--sleep", type=int, default=0)
    p.add_argument("--pf", type=int, default=0)
    p.add_argument("--bar0", type=int, default=1)
    p.add_argument("--dbg", type=int, default=0)
    p.add_argument("--cyc", type=int, default=0)
    p.add_argument("--wopf", type=int, default=1)
    p.add_argument("--fallback", type=int, default=1)
    p.add_argument("--spin", type=int, default=20000)
    p.add_argument("--outmod", default="")
    return p.parse_args(argv)

if __name__ == "__main__":
    opt = parse()
    s = build(opt)
    open(opt.o, "w").write(s)
    if opt.stamps:
        open(opt.o + ".stamps", "w").write("\n".join(opt.stamp_names))
    print("wrote", opt.o, len(s), "bytes")
```

```python
import sys, argparse, math, struct

KNAME = "gated_mix__sliding_block__sliding_block__prompt_kernel"

WS_NONCE = 0
WS_OF = 0x10000
WS_KVF = 0x4000
WS_KV = 0x100000
WS_O = 0x1000000
WS_STAMP = 0x1800000
WS_SIZE = 0x2000000

REG = 12288
LDS_W = 8 * REG
WPART = 24576
LDS_TOTAL = 163840
LDS_A0, LDS_A1 = 98304, 131072
LDS_GATE = 4096
LDS_RB = 98304

S_X, S_W, S_WOA, S_WOB, S_WS, S_OUT, S_GW, S_DBG = 8, 12, 16, 20, 24, 28, 32, 36
sW, sTAU, sC, sBH, sBR, sHG, sTT, sT3, sN3, sTAG, sJ = 60, 61, 62, 63, 64, 65, 66, 67, 68, 69, 70
sT0, sT1, sT2, sT3x, sT4, sT5 = 71, 72, 73, 74, 75, 76
sCNT, sSPIN, sFAIL = 77, 80, 81
sVM = 78
sKVO = 82
sH = 83
STREG = list(range(84, 98)) + [3, 6, 7, 46, 47]
sTM = 98
sXB, sWG, sWL = 40, 41, 42

def srd(b): return f"s[{b}:{b+3}]"
def vr(b, n=1): return f"v{b}" if n == 1 else f"v[{b}:{b+n-1}]"

class Asm:
    def __init__(self):
        self.lines = []; self.vm = []; self.lg = []
    def e(self, s): self.lines.append("  " + s)
    def c(self, s): self.lines.append("  ; " + s)
    def lab(self, s): self.lines.append(s + ":")
    def vmop(self, s, tag): self.e(s); self.vm.append(tag)
    def lgop(self, s, tag): self.e(s); self.lg.append(tag)
    def _n(self, q, tag, mx):
        idx = max(i for i, t in enumerate(q) if t == tag)
        return min(len(q) - 1 - idx, mx)
    def vmwait(self, tag):
        if tag not in self.vm: return
        n = self._n(self.vm, tag, 63)
        self.e(f"s_waitcnt vmcnt({n})")
        self.vm = self.vm[len(self.vm) - n:] if n > 0 else []
    def lgwait(self, tag):
        if tag not in self.lg: return
        n = self._n(self.lg, tag, 15)
        self.e(f"s_waitcnt lgkmcnt({n})")
        self.lg = self.lg[len(self.lg) - n:] if n > 0 else []
    def vmall(self): self.e("s_waitcnt vmcnt(0)"); self.vm = []
    def lgall(self): self.e("s_waitcnt lgkmcnt(0)"); self.lg = []
    def text(self): return "\n".join(self.lines) + "\n"

def f32bits(x): return struct.unpack("<I", struct.pack("<f", x))[0]
def mfma_s(D, A, B, C):
    cs = C if isinstance(C, str) else vr(C, 16)
    return f"v_mfma_f32_32x32x16_bf16 {vr(D,16)}, {vr(A,4)}, {vr(B,4)}, {cs}"
def cvt(dst, s0, s1): return f"v_cvt_pk_bf16_f32 v{dst}, v{s0}, v{s1}"

def gen(opt):
    a = Asm()
    e = a.e
    mfma = lambda D, A, B, C: e(mfma_s(D, A, B, C))
    STAMPS = opt.stamps
    nst = [0]
    def stamp(name, inner=False):
        if not STAMPS: return
        if STAMPS == 4 and not inner:
            if name in ("entry", "first data", "gemm done", "B1", "B2", "attn done", "B3", "end"):
                opt.cyc = 0; stamp(name, True)
                if name not in ("entry", "end"):
                    opt.cyc = 1; stamp(name + " cyc", True); opt.cyc = 0
            return
        if STAMPS == 3 and name in ("own done", "B2", "attn done", "O published", "B3", "B4", "O flags seen", "P3 mfma", "roleA", "roleB"): return
        if STAMPS == 2 and name in ("own done", "B2", "attn done", "O published", "B3", "B4", "O flags seen", "P3 mfma"): return
        if name in opt.stamp_names:
            i = opt.stamp_names.index(name)
            e("s_waitcnt lgkmcnt(0)")
            e(f"{'s_memtime' if opt.cyc else 's_memrealtime'} s[{sTM}:{sTM+1}]")
            e("s_waitcnt lgkmcnt(0)")
            e(f"s_mov_b32 s{STREG[i]}, s{sTM}")
            return
        i = nst[0]; nst[0] += 1
        assert i < len(STREG)
        a.c(f"stamp {i}: {name}")
        e("s_waitcnt lgkmcnt(0)"); a.lg = []
        e(f"{'s_memtime' if opt.cyc else 's_memrealtime'} s[{sTM}:{sTM+1}]")
        e("s_waitcnt lgkmcnt(0)")
        e(f"s_mov_b32 s{STREG[i]}, s{sTM}")
        opt.stamp_names.append(name)

    vXO = 1; vXR = 5; vWO = 9; vWR = 10; vL16 = 12
    XF = 16
    WF = 80
    ACC = 116
    def AQ(x): return ACC + 48 * x
    def AK(x): return ACC + 48 * x + 16
    def AV(x): return ACC + 48 * x + 32
    def XFr(lc, x, s): return XF + 32 * (lc & 1) + 16 * x + 4 * s
    def WFr(t, m): return WF + 12 * (t % 3) + 4 * m
    OA = 216; QF = 248; MK = 16; VF = 32
    SS = 160; PP = 48; KF = 56; HT = 64
    vK = 1
    vD = 13
    GX, GW, GA = (80 if opt.gate4 else 96), 208, 212
    WSLOT = 12288
    MKE = 144
    TKA, TKB, TVA, TVB, TQA, TQB = 248, 4, ACC + 16, ACC + 64, ACC + 32, ACC + 80
    LDS_TAG = 8192 + 2048

    a.lab(KNAME)
    e("s_cmp_ge_u32 s2, 256")
    e("s_cbranch_scc1 L_END")
    if STAMPS:
        e("s_memtime s[100:101]")
        stamp("entry")
    e("s_getpc_b64 s[4:5]")
    a.lab("L_PC")
    e("s_load_dwordx4 s[40:43], s[0:1], 0")
    e("s_load_dwordx4 s[48:51], s[0:1], 32")
    e("v_lshlrev_b32 v13, 6, v0")
    e("s_load_dwordx2 s[44:45], s[0:1], 16")
    e("s_load_dwordx4 s[52:55], s[0:1], 48")
    e("s_load_dwordx4 s[56:59], s[0:1], 64")
    e("v_min_u32 v13, L_CODE_END-L_PC-4, v13")
    if opt.codepf:
        e(f"global_load_dword v213, v13, s[4:5]")
    e("v_lshrrev_b32 v15, 6, v0")
    e("v_and_b32 v0, 63, v0")
    e(f"s_and_b32 s{sT0}, s2, 7")
    e(f"v_readfirstlane_b32 s{sW}, v15")
    e(f"s_lshr_b32 s{sJ}, s2, 3")
    e(f"s_and_b32 s{sT1}, s{sT0}, 1")
    e(f"s_lshl_b32 s{sT1}, s{sT1}, 2")
    e(f"s_and_b32 s{sT2}, s{sJ}, 3")
    e(f"s_add_u32 s{sC}, s{sT1}, s{sT2}")
    e(f"s_lshr_b32 s{sT1}, s{sT0}, 1")
    e(f"s_lshl_b32 s{sT1}, s{sT1}, 3")
    e(f"s_lshr_b32 s{sN3}, s{sJ}, 2")
    e(f"s_add_u32 s{sBH}, s{sT1}, s{sN3}")
    e(f"s_lshr_b32 s{sBR}, s{sBH}, 4")
    e(f"s_and_b32 s{sHG}, s{sBH}, 15")
    e(f"s_lshl_b32 s{sT3}, s{sT0}, 2")
    e(f"s_add_u32 s{sT3}, s{sT3}, s{sT2}")
    e(f"s_sub_u32 s{sT1}, 11, s{sW}")
    e(f"s_cmp_lt_u32 s{sW}, 4")
    e(f"s_cselect_b32 s{sTAU}, s{sW}, s{sT1}")
    e(f"s_lshl_b32 s{sTT}, s{sC}, 3")
    e(f"s_add_u32 s{sTT}, s{sTT}, s{sTAU}")
    e(f"v_lshlrev_b32 v{vL16}, 4, v0")
    def mk(b, lo, hi, size):
        e(f"s_mov_b32 s{b}, s{lo}"); e(f"s_mov_b32 s{b+1}, s{hi}")
        e(f"s_mov_b32 s{b+2}, {size}"); e(f"s_mov_b32 s{b+3}, 0x00020000")
    def mk_w():
        e(f"s_cmp_eq_u32 s{sBR}, 0")
        e(f"s_cselect_b32 s{S_W}, s42, s48")
        e(f"s_cselect_b32 s{S_W+1}, s43, s49")
        e(f"s_mov_b32 s{S_W+2}, 1572864"); e(f"s_mov_b32 s{S_W+3}, 0x00020000")
    def mk_rest():
        mk(S_WS, 58, 59, WS_SIZE)
        mk(S_DBG, 56, 57, 256)
        mk(S_OUT, 54, 55, 2097152)
        mk(S_GW, 52, 53, 1024)
        mk(S_WOA, 44, 45, 524288)
        mk(S_WOB, 50, 51, 524288)
        e(f"s_mov_b32 s{sVM}, 0x0000ffff")
        e(f"s_mov_b32 s{sVM+1}, 0x0000ffff")
        e(f"s_mov_b32 s{sFAIL}, 0")
        p3_ids()
    sTQ, sQ, sB3, sKH, sTT3, sOFA = 44, 45, 48, 49, 50, 51
    def p3_ids():
        e(f"s_lshr_b32 s{sTQ}, s{sW}, 2")
        e(f"s_and_b32 s{sQ}, s{sW}, 3")
        e(f"s_lshr_b32 s{sB3}, s{sQ}, 1")
        e(f"s_and_b32 s{sKH}, s{sQ}, 1")
        e(f"s_and_b32 s{sT2}, s{sT3}, 3")
        e(f"s_sub_u32 s{sT3x}, 7, s{sT2}")
        e(f"s_cmp_eq_u32 s{sTQ}, 0")
        e(f"s_cselect_b32 s{sT2}, s{sT2}, s{sT3x}")
        e(f"s_lshr_b32 s{sTT3}, s{sT3}, 2")
        e(f"s_lshl_b32 s{sTT3}, s{sTT3}, 3")
        e(f"s_add_u32 s{sTT3}, s{sTT3}, s{sT2}")
    def init_list():
        q = [f"v_and_b32 v{vD}, 31, v0", f"v_lshrrev_b32 v{vD+2}, 5, v0", f"v_lshlrev_b32 v{vD+2}, 2, v{vD+2}", f"v_sub_u32 v{vD}, v{vD}, v{vD+2}"]
        for r in range(16):
            kk = (r & 3) + 8 * (r >> 2)
            q += [f"v_subrev_u32 v{MK+r}, {kk}, v{vD}", f"v_ashrrev_i32 v{MK+r}, 31, v{MK+r}", f"v_and_b32 v{MK+r}, 0xff800000, v{MK+r}"]
        q += [f"v_mov_b32 v{VF+i}, 0x3f803f80" for i in range(16)]
        return q
    if opt.lfirst:
        e(f"s_cmp_lt_u32 s{sW}, 4")
        e("s_cbranch_scc1 L_COMPUTE")
    else:
        e(f"s_cmp_ge_u32 s{sW}, 4")
        e("s_cbranch_scc1 L_LOADER")
    i_comp = len(a.lines)
    a.lab("L_COMPUTE")

    SXB = sT4
    e(f"s_mul_i32 s{SXB}, s{sW}, {2*REG}")
    e(f"v_and_b32 v13, 31, v0")
    e(f"v_lshrrev_b32 v15, 5, v0")
    e(f"v_bfe_u32 v{vXR+1}, v13, 1, 3")
    e(f"v_xor_b32 v15, v15, v{vXR+1}")
    e(f"v_lshlrev_b32 v15, 4, v15")
    e(f"v_lshl_add_u32 v15, v13, 7, v15")
    e(f"v_add_u32 v{vXR}, s{SXB}, v15")
    for s_ in range(1, 4):
        e(f"v_xor_b32 v{vXR+s_}, {s_<<5}, v{vXR}")
    e(f"v_lshrrev_b32 v13, 5, v0")
    e(f"v_lshlrev_b32 v13, 9, v13")
    e(f"v_bfe_u32 v15, v0, 2, 2")
    e(f"v_lshl_add_u32 v13, v15, 6, v13")
    e(f"v_bfe_u32 v15, v0, 4, 1")
    e(f"v_lshl_add_u32 v13, v15, 5, v13")
    e(f"v_and_b32 v15, 3, v0")
    e(f"v_lshl_add_u32 v13, v15, 3, v13")
    e(f"v_add_u32 v{vWR}, {LDS_W}, v13")
    for i in range(32): e(f"v_mov_b32 v{OA+i}, 0")
    e("s_waitcnt lgkmcnt(0)")
    mk(S_X, 40, 41, 2097152)
    mk_w()
    if opt.xtouch:
        e(f"s_lshl_b32 s{sT2}, s{sC}, 18")
        e(f"v_mov_b32 v13, 0")
        e("s_mov_b64 exec, 1")
        e(f"s_cmp_eq_u32 s{sW}, 0"); e("s_cbranch_scc0 L_XT1")
        e(f"buffer_load_dword v214, v13, {srd(S_X)}, s{sT2} offen")
        a.lab("L_XT1")
        e("s_mov_b64 exec, -1")
    mk_rest()
    stamp("issued")
    def xread1(lc, x, s_):
        a.lgop(f"ds_read_b128 {vr(XFr(lc,x,s_),4)}, v{vXR+s_} offset:{x*REG+(lc%3)*4096}", f"xr{lc}_{s_}")
    def wread1(t, m, u):
        lc = t >> 2
        a.lgop(f"ds_read_b64_tr_b16 {vr(WFr(t,m)+2*u,2)}, v{vWR} offset:{(lc%3)*WSLOT+m*4096+(t&3)*1024+u*256}", f"wf{t}")
    e("s_barrier")
    stamp("first data")
    mfma_full = mfma
    if opt.dbg == 16:
        def mfma(D, A, B, C):
            for h in range(2):
                cs = C if isinstance(C, str) else vr(C + 4 * h, 4)
                e(f"v_mfma_f32_16x16x32_bf16 {vr(D + 4*h, 4)}, {vr(A,4)}, {vr(B,4)}, {cs}")
    if opt.dbg == 17:
        def mfma(D, A, B, C): pass
    for m in range(3):
        for u in range(2): wread1(0, m, u)
    for x in range(2): xread1(0, x, 0)
    for m in range(3):
        for u in range(2): wread1(1, m, u)
    for s_ in range(1, 4):
        for x in range(2): xread1(0, x, s_)
    initq = init_list()
    NT = 29 if opt.tailopt else 32
    for t in range(NT):
        lc, s_ = t >> 2, t & 3
        if opt.stamps == 2 and t in (4, 8, 12, 16, 20, 24, 28): stamp(f"t{t}")
        if s_ == 2 and lc <= 6:
            a.lgall()
            e("s_barrier")
        a.lgwait(f"wf{t}")
        a.lgwait(f"xr{lc}_{s_}")
        R = [(t + 2, m, u) for m in range(3) for u in range(2)] if t + 2 < 32 else []
        X = [(lc + 1, x, 2 * (s_ - 2) + k) for k in range(2) for x in range(2)] if (s_ >= 2 and lc <= 6) else []
        C = (lambda r: "0") if t == 0 else (lambda r: r)
        xa, xb = XFr(lc, 0, s_), XFr(lc, 1, s_)
        def ini(n):
            if t >= 28:
                for _ in range(n):
                    if initq: e(initq.pop(0))
        mfma(AK(0), WFr(t, 0), xa, C(AK(0)))
        for r in R[0:2]: wread1(*r)
        ini(3)
        mfma(AK(1), WFr(t, 0), xb, C(AK(1)))
        for r in R[2:4]: wread1(*r)
        ini(3)
        mfma(AV(0), xa, WFr(t, 1), C(AV(0)))
        for r in R[4:6]: wread1(*r)
        ini(3)
        mfma(AV(1), xb, WFr(t, 1), C(AV(1)))
        for x in X[0:2]: xread1(*x)
        ini(3)
        mfma(AQ(0), WFr(t, 2), xa, C(AQ(0)))
        for x in X[2:4]: xread1(*x)
        ini(3)
        mfma(AQ(1), WFr(t, 2), xb, C(AQ(1)))
        ini(3)
    if not opt.tailopt:
        while initq: e(initq.pop(0))
    e(f"s_lshl_b32 s{sKVO}, s{sBH}, 6")
    e(f"s_lshl_b32 s{sT2}, s{sC}, 3")
    e(f"s_add_u32 s{sKVO}, s{sKVO}, s{sT2}")
    e(f"s_lshl_b32 s{sT2}, s{sW}, 1")
    e(f"s_add_u32 s{sKVO}, s{sKVO}, s{sT2}")
    e(f"s_lshl_b32 s{sKVO}, s{sKVO}, 12")
    e(f"s_add_u32 s{sKVO}, s{sKVO}, {WS_KV}")
    e(f"s_add_u32 s{sT1}, s{sKVO}, 4096")
    e(f"v_add_u32 v{vK}, s{SXB}, v{vL16}")
    cq = 0.25 * math.log2(math.e)
    e(f"s_mov_b32 s{sT2}, {hex(f32bits(cq))}")
    def k_epi(x, T):
        so = sKVO if x == 0 else sT1
        L = [("e", cvt(T + i, AK(x) + 2 * i, AK(x) + 2 * i + 1)) for i in range(8)]
        L += [("vm", f"buffer_store_dwordx4 {vr(T+4*i,4)}, v{vL16}, {srd(S_WS)}, s{so} offen offset:{i*1024} sc1") for i in range(2)]
        L += [("lg", f"ds_write_b128 v{vK}, {vr(T+4*i,4)} offset:{x*REG+i*1024}") for i in range(2)]
        return L
    def v_epi(x, T):
        so = sKVO if x == 0 else sT1
        L = [("e", cvt(T + i, AV(x) + 2 * i, AV(x) + 2 * i + 1)) for i in range(8)]
        L += [("vm", f"buffer_store_dwordx4 {vr(T+4*i,4)}, v{vL16}, {srd(S_WS)}, s{so} offen offset:{(2+i)*1024} sc1") for i in range(2)]
        L += [("lg", f"ds_write_b128 v{vK}, {vr(T+4*i,4)} offset:{x*REG+(2+i)*1024}") for i in range(2)]
        return L
    def q_epi(x, T):
        L = [("e", f"v_mul_f32 v{AQ(x)+i}, s{sT2}, v{AQ(x)+i}") for i in range(16)]
        L += [("e", cvt(T + i, AQ(x) + 2 * i, AQ(x) + 2 * i + 1)) for i in range(8)]
        L += [("lg", f"ds_write_b128 v{vK}, {vr(T+4*h,4)} offset:{x*REG+8192+h*1024}") for h in range(2)]
        return L
    def emit(items):
        for k, l in items:
            if k == "e": e(l)
            elif k == "vm": a.vmop(l, "kvs")
            else: a.lgop(l, "kvw")
    if opt.tailopt:
        for m in range(3):
            for u in range(2): wread1(31, m, u)
        xs = {t: (XFr(7, 0, t & 3), XFr(7, 1, t & 3)) for t in (29, 30, 31)}
        a.lgwait("wf30")
        for t in (29, 30):
            for x in range(2):
                mfma(AK(x), WFr(t, 0), xs[t][x], AK(x))
                for _ in range(8):
                    if initq: e(initq.pop(0))
        a.lgwait("wf31")
        for x in range(2):
            mfma(AK(x), WFr(31, 0), xs[31][x], AK(x))
            for _ in range(8):
                if initq: e(initq.pop(0))
        while initq: e(initq.pop(0))
        vm_ = [(x, t) for t in (29, 30, 31) for x in range(2)]
        ke = k_epi(0, TKA) + k_epi(1, TKB)
        for n, (x, t) in enumerate(vm_):
            mfma(AV(x), xs[t][x], WFr(t, 1), AV(x))
            if n == 1: e("s_nop 7"); e("s_nop 1")
            if n >= 2: emit(ke[:5]); del ke[:5]
        ve = v_epi(0, TVA) + v_epi(1, TVB)
        qm_ = [(x, t) for t in (29, 30, 31) for x in range(2)]
        for n, (x, t) in enumerate(qm_):
            mfma(AQ(x), WFr(t, 2), xs[t][x], AQ(x))
            if ke: emit(ke[:6]); del ke[:6]
            elif n >= 2: emit(ve[:6]); del ve[:6]
        emit(ke)
        stamp("gemm done")
        e("s_nop 3")
        emit(ve)
        e("s_nop 7")
        emit(q_epi(0, TQA)); emit(q_epi(1, TQB))
    else:
        stamp("gemm done")
        e("s_nop 7")
        emit(k_epi(0, TKA)); emit(k_epi(1, TKB)); emit(v_epi(0, TVA)); emit(v_epi(1, TVB))
        emit(q_epi(0, TQA)); emit(q_epi(1, TQB))
    mfma = mfma_full
    e(f"s_lshl_b32 s{sKVO}, s{sC}, 5")
    e(f"s_add_u32 s{sKVO}, s{sKVO}, s{sBH}")
    e(f"s_lshl_b32 s{sKVO}, s{sKVO}, 7")
    e(f"s_lshl_b32 s{sT3x}, s{sW}, 3")
    e(f"s_add_u32 s{sKVO}, s{sKVO}, s{sT3x}")
    e(f"s_add_u32 s{sKVO}, s{sKVO}, {WS_KVF}")
    if not opt.lfirst: e("s_branch L_B1")
    i_load = len(a.lines)

    a.lab("L_LOADER")
    a.vm = []; a.lg = []
    sU, SXB2, SWG = sT5, sT4, sH
    e(f"s_sub_u32 s{sU}, s{sW}, 4")
    e(f"v_lshrrev_b32 v13, 2, v0")
    e(f"v_mul_u32_u24 v13, 3072, v13")
    e(f"v_and_b32 v15, 3, v0")
    e(f"v_lshl_add_u32 v13, v15, 4, v13")
    e(f"s_lshl_b32 s{sT1}, s{sHG}, 6")
    e(f"v_add_u32 v{vWO}, s{sT1}, v13")
    e(f"v_lshrrev_b32 v13, 3, v0")
    e(f"v_lshlrev_b32 v13, 10, v13")
    e(f"s_lshl_b32 s{sT1}, s{sC}, 3")
    e(f"s_lshl_b32 s{sT2}, s{sU}, 1")
    e(f"s_add_u32 s{sT1}, s{sT1}, s{sT2}")
    e(f"s_lshl_b32 s{sT1}, s{sT1}, 15")
    e(f"v_add_u32 v13, s{sT1}, v13")
    e(f"v_lshrrev_b32 v15, 4, v0")
    e(f"v_xor_b32 v15, v15, v0")
    e(f"v_and_b32 v15, 7, v15")
    e(f"v_lshl_add_u32 v{vXO}, v15, 4, v13")
    e(f"v_xor_b32 v{vXO+1}, 64, v{vXO}")
    e(f"v_add_u32 v{vXO+2}, 14336, v{vXO}")
    e(f"v_add_u32 v{vXO+3}, 21504, v{vXO+1}")
    e(f"v_add_u32 v{vXO+1}, 7168, v{vXO+1}")
    e(f"s_and_b32 s{sT1}, s{sJ}, 3")
    e(f"s_add_u32 s{sT1}, s{sT1}, s{sN3}")
    if opt.rot == 2:
        e(f"s_and_b32 s{sT0}, s{sT1}, 1")
        e(f"s_lshl_b32 s{sT0}, s{sT0}, 2")
    elif opt.rot == 3:
        e(f"s_and_b32 s{sT0}, s{sJ}, 3")
        e(f"s_lshl_b32 s{sT0}, s{sT0}, 1")
        e(f"s_add_u32 s{sT0}, s{sT0}, s{sN3}")
        e(f"s_and_b32 s{sT0}, s{sT0}, 7")
    else:
        e(f"s_and_b32 s{sT0}, s{sT1}, {3 if opt.rot else 0}")
        e(f"s_lshl_b32 s{sT0}, s{sT0}, 1")
    e("s_waitcnt lgkmcnt(0)")
    mk_w()
    mk(S_X, 40, 41, 2097152)
    SWL, sXK, sWP = 40, 41, 42
    e(f"s_mul_i32 s{SXB2}, s{sU}, {2*REG}")
    e(f"s_mul_i32 s{SWG}, s{sU}, {16*3072}")
    e(f"s_lshl_b32 s{SWL}, s{sU}, 10")
    e(f"s_add_u32 s{SWL}, s{SWL}, {LDS_W}")
    e(f"s_lshl_b32 s{sXK}, s{sT0}, 7")
    MCOL = {0: 1, 1: 2, 2: 0}
    def wo_pf():
        n = 1 if opt.wostride == 128 else 2
        e(f"s_and_b32 s{sT2}, s{sJ}, 15")
        e(f"s_lshl_b32 s{sT2}, s{sT2}, 15")
        e(f"s_lshl_b32 s{sT3x}, s{sU}, 13")
        e(f"s_add_u32 s{sT2}, s{sT2}, s{sT3x}")
        e(f"v_lshlrev_b32 v15, {7 if n == 1 else 6}, v0")
        e(f"s_cmp_lt_u32 s{sJ}, 16")
        e("s_cbranch_scc1 L_WOPF_A")
        e(f"buffer_load_dword v213, v15, {srd(S_WOB)}, s{sT2} offen")
        if n == 2:
            e(f"s_add_u32 s{sT2}, s{sT2}, 4096")
            e(f"buffer_load_dword v214, v15, {srd(S_WOB)}, s{sT2} offen")
        e("s_branch L_WOPF_E")
        a.lab("L_WOPF_A")
        e(f"buffer_load_dword v213, v15, {srd(S_WOA)}, s{sT2} offen")
        if n == 2:
            e(f"s_add_u32 s{sT2}, s{sT2}, 4096")
            e(f"buffer_load_dword v214, v15, {srd(S_WOA)}, s{sT2} offen")
        a.lab("L_WOPF_E")
        a.vm += ["wopf"] * n
    def issue(lc):
        if lc > 0:
            e(f"s_add_u32 s{sXK}, s{sXK}, 128")
            e(f"s_and_b32 s{sXK}, s{sXK}, 1023")
        e(f"s_mul_i32 s{sWP}, s{sXK}, 1536")
        e(f"s_add_u32 s{sWP}, s{sWP}, s{SWG}")
        for m in range(3):
            e(f"s_add_u32 m0, s{SWL}, {(lc%3)*WSLOT + m*4096}")
            e(f"s_add_u32 s{sT3x}, s{sWP}, {MCOL[m]*1024}")
            a.vmop(f"buffer_load_dwordx4 v{vWO}, {srd(S_W)}, s{sT3x} offen lds", f"c{lc}")
        for b in range(2):
            e(f"s_add_u32 m0, s{SXB2}, {b*REG + (lc%3)*4096}")
            e(f"s_add_u32 s{sT3x}, s{sXK}, {b*32768}")
            for i in range(4):
                a.vmop(f"buffer_load_dwordx4 v{vXO+i}, {srd(S_X)}, s{sT3x} offen offset:{i*1024} lds", f"c{lc}")
    def tlb_warm2():
        e(f"s_lshr_b32 s{sT0}, s{sT3}, 2"); e(f"s_lshl_b32 s{sT0}, s{sT0}, 3"); e(f"s_and_b32 s{sT1}, s{sT3}, 3")
        e(f"s_sub_u32 s{sT2}, 7, s{sT1}"); e(f"s_add_u32 s{sT1}, s{sT1}, s{sT0}"); e(f"s_add_u32 s{sT0}, s{sT2}, s{sT0}")
        e(f"s_cmp_eq_u32 s{sU}, 0"); e("s_cbranch_scc0 L_TX1")
        e(f"s_lshl_b32 s{sT2}, s{sC}, 19"); e(f"s_lshl_b32 s{sT3x}, s{sBR}, 15"); e(f"s_add_u32 s{sT2}, s{sT2}, s{sT3x}"); e(f"s_add_u32 s{sT2}, s{sT2}, {WS_O}")
        e(f"v_and_b32 v13, 7, v0"); e(f"v_lshlrev_b32 v13, 16, v13"); e(f"v_add_u32 v13, s{sT2}, v13")
        e(f"s_lshl_b32 s{sT2}, s{sT1}, 16"); e(f"s_add_u32 s{sT2}, s{sT2}, {WS_O}"); e(f"v_writelane_b32 v13, s{sT2}, 8")
        e(f"s_lshl_b32 s{sT2}, s{sT0}, 16"); e(f"s_add_u32 s{sT2}, s{sT2}, {WS_O}"); e(f"v_writelane_b32 v13, s{sT2}, 9")
        e(f"s_lshl_b32 s{sT2}, s{sBH}, 6"); e(f"s_lshl_b32 s{sT3x}, s{sC}, 3"); e(f"s_add_u32 s{sT2}, s{sT2}, s{sT3x}")
        e(f"s_lshl_b32 s{sT2}, s{sT2}, 12"); e(f"s_add_u32 s{sT2}, s{sT2}, {WS_KV}"); e(f"v_writelane_b32 v13, s{sT2}, 10")
        e(f"s_sub_u32 s{sT2}, s{sT2}, 32768"); e(f"s_max_u32 s{sT2}, s{sT2}, {WS_KV}"); e(f"v_writelane_b32 v13, s{sT2}, 11")
        e(f"s_mov_b32 s{sT2}, {WS_OF}"); e(f"v_writelane_b32 v13, s{sT2}, 12")
        e("s_mov_b64 exec, 0x1fff")
        e(f"buffer_load_dword v215, v13, {srd(S_WS)}, 0 offen sc1")
        e(f"buffer_load_dword v214, v13, {srd(S_WS)}, 0 offen offset:128 sc1")
        e("s_branch L_TXE")
        a.lab("L_TX1")
        e(f"s_cmp_eq_u32 s{sU}, 1"); e("s_cbranch_scc0 L_TX2")
        e(f"s_lshl_b32 s{sT2}, s{sT1}, 15"); e(f"v_mov_b32 v13, s{sT2}"); e(f"s_lshl_b32 s{sT2}, s{sT0}, 15"); e(f"v_writelane_b32 v13, s{sT2}, 1")
        e("s_mov_b64 exec, 3")
        e(f"buffer_load_dword v215, v13, {srd(S_OUT)}, 0 offen")
        e(f"v_mov_b32 v13, 0")
        e(f"buffer_load_dword v214, v13, {srd(S_DBG)}, 0 offen sc1")
        e("s_branch L_TXE")
        a.lab("L_TX2")
        e(f"s_cmp_eq_u32 s{sU}, 2"); e("s_cbranch_scc0 L_TX3")
        e(f"v_and_b32 v13, 7, v0"); e(f"v_lshlrev_b32 v13, 16, v13")
        e("s_mov_b64 exec, 0xff")
        e(f"buffer_load_dword v215, v13, {srd(S_WOA)}, 0 offen")
        e(f"buffer_load_dword v214, v13, {srd(S_WOB)}, 0 offen")
        e("s_branch L_TXE")
        a.lab("L_TX3")
        e(f"s_lshl_b32 s{sT2}, s{sT1}, 15"); e(f"v_mov_b32 v13, s{sT2}"); e(f"s_lshl_b32 s{sT2}, s{sT0}, 15"); e(f"v_writelane_b32 v13, s{sT2}, 1")
        e("s_mov_b64 exec, 3")
        e(f"buffer_load_dword v215, v13, {srd(S_X)}, 0 offen")
        e(f"v_mov_b32 v13, 0")
        e(f"buffer_load_dword v214, v13, {srd(S_GW)}, 0 offen")
        a.lab("L_TXE")
        e("s_mov_b64 exec, -1")
        a.vm += ["warm", "warm"]
    def tlb_warm():
        e(f"s_cmp_eq_u32 s{sU}, 0"); e("s_cbranch_scc0 L_TW1")
        e(f"s_lshl_b32 s{sT2}, s{sBH}, 6"); e(f"s_lshl_b32 s{sT3x}, s{sC}, 3"); e(f"s_add_u32 s{sT2}, s{sT2}, s{sT3x}")
        e(f"s_lshl_b32 s{sT2}, s{sT2}, 12"); e(f"s_add_u32 s{sT2}, s{sT2}, {WS_KV}")
        e(f"v_mov_b32 v13, {WS_OF}")
        e(f"v_writelane_b32 v13, s{sT2}, 1")
        e(f"s_lshl_b32 s{sT2}, s{sC}, 19"); e(f"s_add_u32 s{sT2}, s{sT2}, {WS_O}")
        e(f"v_writelane_b32 v13, s{sT2}, 2")
        e(f"s_lshr_b32 s{sT2}, s{sT3}, 2"); e(f"s_lshl_b32 s{sT2}, s{sT2}, 19"); e(f"s_add_u32 s{sT2}, s{sT2}, {WS_O}")
        e(f"v_writelane_b32 v13, s{sT2}, 3")
        e("s_mov_b64 exec, 15")
        e(f"buffer_load_dword v215, v13, {srd(S_WS)}, 0 offen sc1")
        e(f"buffer_load_dword v214, v13, {srd(S_WS)}, 0 offen offset:128 sc1")
        e("s_mov_b64 exec, -1")
        e("s_branch L_TWE")
        a.lab("L_TW1")
        e(f"s_cmp_eq_u32 s{sU}, 1"); e("s_cbranch_scc0 L_TW2")
        e(f"s_lshr_b32 s{sT2}, s{sT3}, 2"); e(f"s_lshl_b32 s{sT2}, s{sT2}, 18")
        e(f"v_mov_b32 v13, 0")
        e("s_mov_b64 exec, 1")
        e(f"buffer_load_dword v215, v13, {srd(S_OUT)}, s{sT2} offen")
        e(f"buffer_load_dword v214, v13, {srd(S_DBG)}, 0 offen sc1")
        e("s_mov_b64 exec, -1")
        e("s_branch L_TWE")
        a.lab("L_TW2")
        e(f"s_cmp_eq_u32 s{sU}, 2"); e("s_cbranch_scc0 L_TW3")
        e(f"v_mov_b32 v13, 0")
        e("s_mov_b64 exec, 1")
        e(f"buffer_load_dword v215, v13, {srd(S_WOA)}, 0 offen")
        e(f"buffer_load_dword v214, v13, {srd(S_WOB)}, 0 offen")
        e("s_mov_b64 exec, -1")
        e("s_branch L_TWE")
        a.lab("L_TW3")
        e(f"v_mov_b32 v13, 0")
        e("s_mov_b64 exec, 1")
        e(f"buffer_load_dword v215, v13, {srd(S_GW)}, 0 offen")
        e(f"buffer_load_dword v214, v13, {srd(S_GW)}, 0 offen offset:128")
        e("s_mov_b64 exec, -1")
        a.lab("L_TWE")
        a.vm += ["warm", "warm"]
    issue(0)
    issue(1)
    mk_rest()
    if opt.warm == 2: tlb_warm()
    e(f"s_or_b32 s{sT1}, s2, s{sU}")
    e(f"s_cmp_lg_u32 s{sT1}, 0")
    e("s_cbranch_scc1 L_NONCE_SKIP0")
    e(f"v_mov_b32 v13, 0")
    e(f"buffer_load_dword v14, v13, {srd(S_WS)}, 0 offen sc1")
    a.lab("L_NONCE_SKIP0")
    stamp("issued")
    a.vmwait("c0")
    e("s_barrier")
    stamp("first data")
    issue(2)
    if opt.warm == 3 or opt.tlb == 1: tlb_warm()
    if opt.tlb == 2: tlb_warm2()
    if opt.warm in (5, 6, 7):
        if opt.warm in (6, 7): e("s_branch L_F5_2")
        e(f"s_cmp_eq_u32 s{sU}, 0"); e("s_cbranch_scc0 L_F5_1")
        e(f"s_lshl_b32 s{sT2}, s{sC}, 5"); e(f"s_lshr_b32 s{sT3x}, s{sBH}, 3"); e(f"s_add_u32 s{sT2}, s{sT2}, s{sT3x}")
        e(f"s_lshl_b32 s{sT2}, s{sT2}, 7"); e(f"s_add_u32 s{sT2}, s{sT2}, {WS_OF}")
        e(f"v_and_b32 v13, 7, v0"); e(f"v_lshlrev_b32 v13, 9, v13")
        e("s_mov_b64 exec, 0xff")
        e(f"buffer_load_dword v215, v13, {srd(S_WS)}, s{sT2} offen sc1")
        e("s_branch L_F5_E")
        a.lab("L_F5_1")
        e(f"s_cmp_eq_u32 s{sU}, 1"); e("s_cbranch_scc0 L_F5_2")
        e(f"s_lshr_b32 s{sT2}, s{sT3}, 2"); e(f"s_lshl_b32 s{sT2}, s{sT2}, 3"); e(f"s_and_b32 s{sT3x}, s{sT3}, 3")
        e(f"s_add_u32 s{sT0}, s{sT2}, s{sT3x}"); e(f"s_sub_u32 s{sT3x}, 7, s{sT3x}"); e(f"s_add_u32 s{sT1}, s{sT2}, s{sT3x}")
        e(f"s_lshl_b32 s{sT0}, s{sT0}, 9"); e(f"s_lshl_b32 s{sT1}, s{sT1}, 9"); e(f"s_sub_u32 s{sT1}, s{sT1}, s{sT0}")
        e(f"s_sub_u32 s{sT1}, s{sT1}, 512"); e(f"s_add_u32 s{sT0}, s{sT0}, {WS_OF}")
        e(f"v_and_b32 v13, 7, v0"); e(f"v_lshlrev_b32 v13, 7, v13"); e(f"v_bfe_u32 v15, v0, 2, 1"); e(f"v_mul_lo_u32 v15, v15, s{sT1}"); e(f"v_add_u32 v13, v13, v15")
        e("s_mov_b64 exec, 0xff")
        e(f"buffer_load_dword v215, v13, {srd(S_WS)}, s{sT0} offen sc1")
        e("s_branch L_F5_E")
        a.lab("L_F5_2")
        if opt.gwpf:
            e(f"s_cmp_eq_u32 s{sU}, 3"); e("s_cbranch_scc0 L_F5_3")
            e(f"v_and_b32 v13, 7, v0"); e(f"v_lshlrev_b32 v13, 7, v13")
            e("s_mov_b64 exec, 0xff")
            e(f"buffer_load_dword v215, v13, {srd(S_GW)}, 0 offen")
            e("s_branch L_F5_E")
            a.lab("L_F5_3")
        e(f"s_lshl_b32 s{sT2}, s{sC}, 5"); e(f"s_add_u32 s{sT2}, s{sT2}, s{sBH}"); e(f"s_lshl_b32 s{sT2}, s{sT2}, 7"); e(f"s_add_u32 s{sT2}, s{sT2}, {WS_KVF - 4096}")
        e(f"v_and_b32 v13, 1, v0"); e(f"v_lshlrev_b32 v13, 12, v13")
        e("s_mov_b64 exec, 3")
        e(f"buffer_load_dword v215, v13, {srd(S_WS)}, s{sT2} offen sc1")
        a.lab("L_F5_E")
        e("s_mov_b64 exec, -1")
        a.vm += ["warm"]
    e(f"s_or_b32 s{sT1}, s2, s{sU}")
    e(f"s_cmp_lg_u32 s{sT1}, 0")
    e("s_cbranch_scc1 L_NONCE_SKIP1")
    e("s_waitcnt vmcnt(11)")
    e(f"v_readfirstlane_b32 s{sT2}, v14")
    e(f"v_mov_b32 v13, 0")
    e("s_nop 3")
    e(f"s_add_u32 s{sT2}, s{sT2}, 1")
    e(f"s_max_u32 s{sT2}, s{sT2}, 1")
    e(f"v_mov_b32 v14, s{sT2}")
    e(f"buffer_store_dword v14, v13, {srd(S_DBG)}, 0 offen sc1")
    e(f"buffer_store_dword v14, v13, {srd(S_WS)}, 0 offen sc1")
    a.lab("L_NONCE_SKIP1")
    a.vmwait("c1")
    e("s_barrier")
    for j in range(6):
        if j + 3 <= 7: issue(j + 3)
        if j + 3 == 7:
            if opt.tagearly:
                e(f"v_mov_b32 v13, 0")
                a.vmop(f"buffer_load_dword v14, v13, {srd(S_DBG)}, 0 offen sc1", "tag")
            if opt.wopf == 1: wo_pf()
            if opt.warm == 1:
                lab = "L_WARM"
                e(f"s_cmp_eq_u32 s{sU}, 0"); e(f"s_cbranch_scc0 {lab}1")
                e(f"s_lshl_b32 s{sT2}, s{sC}, 5"); e(f"s_lshr_b32 s{sT3x}, s{sBH}, 3"); e(f"s_add_u32 s{sT2}, s{sT2}, s{sT3x}")
                e(f"s_lshl_b32 s{sT2}, s{sT2}, 10"); e(f"s_add_u32 s{sT2}, s{sT2}, {WS_OF}")
                e(f"v_lshrrev_b32 v13, 3, v0"); e(f"v_lshlrev_b32 v13, 12, v13"); e(f"v_and_b32 v15, 7, v0"); e(f"v_lshl_add_u32 v13, v15, 7, v13")
                e(f"buffer_load_dword v215, v13, {srd(S_WS)}, s{sT2} offen sc1")
                e(f"s_branch {lab}E")
                a.lab(f"{lab}1")
                e(f"s_cmp_eq_u32 s{sU}, 1"); e(f"s_cbranch_scc0 {lab}2")
                e(f"s_lshl_b32 s{sT2}, s{sC}, 4"); e(f"s_add_u32 s{sT2}, s{sT2}, s{sBR}"); e(f"s_lshl_b32 s{sT2}, s{sT2}, 5")
                e(f"s_lshl_b32 s{sT3x}, s{sHG}, 1"); e(f"s_add_u32 s{sT2}, s{sT2}, s{sT3x}"); e(f"s_lshl_b32 s{sT2}, s{sT2}, 10")
                e(f"s_add_u32 s{sT2}, s{sT2}, {WS_O}")
                e(f"v_lshrrev_b32 v13, 3, v0"); e(f"v_lshlrev_b32 v13, 16, v13"); e(f"v_and_b32 v15, 7, v0"); e(f"v_lshl_add_u32 v13, v15, 8, v13")
                e(f"buffer_load_dword v215, v13, {srd(S_WS)}, s{sT2} offen sc1")
                e(f"s_branch {lab}E")
                a.lab(f"{lab}2")
                e(f"s_cmp_eq_u32 s{sU}, 2"); e(f"s_cbranch_scc0 {lab}3")
                e(f"s_lshl_b32 s{sT2}, s{sC}, 5"); e(f"s_add_u32 s{sT2}, s{sT2}, s{sBH}"); e(f"s_lshl_b32 s{sT2}, s{sT2}, 7")
                e(f"s_add_u32 s{sT2}, s{sT2}, {WS_KVF}")
                e(f"v_mov_b32 v13, 0")
                e(f"buffer_load_dword v215, v13, {srd(S_WS)}, s{sT2} offen sc1")
                e(f"s_branch {lab}E")
                a.lab(f"{lab}3")
                e(f"s_lshr_b32 s{sT2}, s{sT3}, 2"); e(f"s_lshl_b32 s{sT2}, s{sT2}, 18"); e(f"s_lshl_b32 s{sT3x}, s{sN3}, 7"); e(f"s_add_u32 s{sT2}, s{sT2}, s{sT3x}")
                e(f"v_lshlrev_b32 v13, 12, v0")
                e(f"buffer_load_dword v215, v13, {srd(S_OUT)}, s{sT2} offen")
                a.lab(f"{lab}E")
                a.vm += ["warm"]
        if j + 2 <= 7: a.vmwait(f"c{j+2}")
        e("s_barrier")
    stamp("gemm done")
    if opt.wopf == 2: wo_pf()
    for l in init_list(): e(l)
    for i in range(32): e(f"v_mov_b32 v{OA+i}, 0")
    if opt.mke:
        e(f"s_mov_b32 s{sT2}, 0xff800000")
        for r in range(16): e(f"v_xor_b32 v{MKE+r}, s{sT2}, v{MK+r}")
    e(f"s_cmp_lg_u32 s{sU}, 0")
    e("s_cbranch_scc1 L_B1")
    e(f"s_mov_b32 s{sSPIN}, 0")
    e(f"v_mov_b32 v15, 0")
    if not opt.tagearly:
        e(f"buffer_load_dword v14, v15, {srd(S_DBG)}, 0 offen sc1")
    else:
        a.vmwait("tag")
        e("s_branch L_TAG_CHK")
    a.lab("L_TAG_LOOP")
    e("s_waitcnt vmcnt(0)")
    a.lab("L_TAG_CHK")
    e(f"s_add_u32 s{sSPIN}, s{sSPIN}, 1")
    e(f"v_readfirstlane_b32 s{sTAG}, v14")
    e("s_nop 3")
    e(f"s_cmp_lg_u32 s{sTAG}, 0")
    e("s_cbranch_scc1 L_TAG_OK")
    e(f"s_cmp_gt_u32 s{sSPIN}, {opt.spin}")
    e("s_cbranch_scc1 L_TAG_OK")
    e(f"buffer_load_dword v14, v15, {srd(S_DBG)}, 0 offen sc1")
    e("s_branch L_TAG_LOOP")
    a.lab("L_TAG_OK")
    e(f"v_mov_b32 v15, {LDS_TAG}")
    e(f"ds_write_b32 v15, v14")
    if opt.lfirst:
        e("s_branch L_B1")
        comp = a.lines[i_comp:i_load]; load = a.lines[i_load:]
        a.lines = a.lines[:i_comp] + load + comp
    a.lab("L_B1")
    a.vm = []; a.lg = []
    e("s_waitcnt lgkmcnt(0)")
    e("s_barrier")
    stamp("B1")
    e(f"v_mov_b32 v15, {LDS_TAG}")
    e(f"ds_read_b32 v14, v15")
    e(f"s_mul_i32 s{sT2}, s{sTAU}, {REG}")
    e(f"v_add_u32 v13, s{sT2}, v{vL16}")
    for h in range(2):
        e(f"ds_read_b128 {vr(QF+4*h,4)}, v13 offset:{8192+h*1024}")

    def kread(h, extra=0): e(f"ds_read_b128 {vr(KF+4*h,4)}, v{vK} offset:{h*1024+extra}")
    def vreads(h, extra=0):
        e(f"s_mov_b64 exec, s[{sVM}:{sVM+1}]")
        for s in range(2):
            e(f"ds_read_b128 {vr(VF+8*h+4*s,4)}, v{vK} offset:{2048+s*1024+h*256+extra}")
        e("s_mov_b64 exec, -1")
    def seg(h, prev, nxt, kx=0, vx=0):
        o = 1 - h
        S = SS + 16 * h; O = OA + 16 * h
        ex = lambda i: e(f"v_exp_f32 v{S+i}, v{S+i}")
        ex(0); ex(1)
        if prev: mfma(OA + 16 * o, VF + 8 * o + 4, PP + 4, OA + 16 * o)
        ex(2); ex(3)
        if nxt: vreads(o, vx)
        ex(4); ex(5)
        if nxt:
            mfma(SS + 16 * o, KF + 4 * o, QF + 4 * o, "0")
            kread(o, kx)
        ex(6); ex(7)
        for i in range(4): e(cvt(PP + i, S + 2 * i, S + 2 * i + 1))
        ex(8)
        e(f"s_waitcnt lgkmcnt({3 if nxt else 0})")
        ex(9)
        mfma(O, VF + 8 * h, PP, O)
        for i in range(10, 16): ex(i)
        for i in range(4, 8): e(cvt(PP + i, S + 2 * i, S + 2 * i + 1))
    def part(name, first_s, rest_s, cnt_s, hook=None):
        MKx = MK if name == "OWN" or not opt.mke else MKE
        a.c(f"---- attention part {name} ----")
        e(f"v_add_u32 v{vK}, s{first_s}, v{vL16}")
        kread(0); kread(1)
        e(f"s_sub_u32 s{sT2}, s{rest_s}, s{first_s}")
        e(f"s_mov_b32 s{sCNT}, s{cnt_s}")
        e("s_waitcnt lgkmcnt(0)")
        if name == "OWN": e(f"v_readfirstlane_b32 s{sTAG}, v14")
        mfma(SS, KF, QF, MKx)
        mfma(SS + 16, KF + 4, QF + 4, MKx)
        vreads(0); vreads(1)
        e(f"v_add_u32 v{vK}, s{sT2}, v{vK}")
        kread(0); kread(1)
        e("s_waitcnt lgkmcnt(2)")
        seg(0, prev=False, nxt=False)
        if hook: hook()
        e(f"s_cmp_eq_u32 s{sCNT}, 0")
        e(f"s_cbranch_scc1 L_{name}_LAST")
        e(f"s_sub_u32 s{sCNT}, s{sCNT}, 1")
        a.lab(f"L_{name}_LOOP")
        seg(1, prev=True, nxt=True, kx=REG, vx=0)
        seg(0, prev=True, nxt=True, kx=REG, vx=0)
        e(f"v_add_u32 v{vK}, {REG}, v{vK}")
        e(f"s_sub_u32 s{sCNT}, s{sCNT}, 1")
        e(f"s_cbranch_scc0 L_{name}_LOOP")
        a.lab(f"L_{name}_LAST")
        seg(1, prev=True, nxt=False)
        e("s_nop 1")
        mfma(OA + 16, VF + 12, PP + 4, OA + 16)
    def kvflag():
        e("s_waitcnt vmcnt(0)")
        e(f"v_lshlrev_b32 v13, 2, v0")
        e(f"v_mov_b32 v14, s{sTAG}")
        e("s_mov_b64 exec, 3")
        e(f"buffer_store_dword v14, v13, {srd(S_WS)}, s{sKVO} offen sc1")
        e("s_mov_b64 exec, -1")
    a.vm = []
    e(f"s_mul_i32 s{sT0}, s{sTAU}, {REG}")
    e(f"s_mov_b32 s{sT1}, 0")
    def hook():
        e(f"s_cmp_ge_u32 s{sW}, 4")
        e("s_cbranch_scc1 L_KVF_DONE")
        kvflag()
        a.lab("L_KVF_DONE")
    if opt.prio == 2:
        e(f"s_cmp_lt_u32 s{sW}, 4")
        e("s_cbranch_scc1 L_PRIO_SKIP")
        e("s_setprio 1")
        a.lab("L_PRIO_SKIP")
    part("OWN", sT0, sT1, sTAU, hook=hook)
    stamp("own done")
    def gate_loads():
        if opt.gate4:
            e(f"s_and_b32 s{sT2}, s{sT3}, 3")
            e(f"s_sub_u32 s{sT3x}, 7, s{sT2}")
            e(f"s_cmp_lt_u32 s{sQ}, 2")
            e(f"s_cselect_b32 s{sT2}, s{sT2}, s{sT3x}")
            e(f"s_lshr_b32 s{sT3x}, s{sT3}, 2")
            e(f"s_lshl_b32 s{sT3x}, s{sT3x}, 3")
            e(f"s_add_u32 s{sT2}, s{sT2}, s{sT3x}")
            e(f"s_lshl_b32 s{sT2}, s{sT2}, 15")
            e(f"s_and_b32 s{sT3x}, s{sQ}, 1")
            e(f"s_lshl_b32 s{sT3x}, s{sT3x}, 14")
            e(f"s_add_u32 s{sT2}, s{sT2}, s{sT3x}")
            n = 16
        else:
            e(f"s_lshl_b32 s{sT2}, s{sTT3}, 15")
            e(f"s_lshl_b32 s{sT3x}, s{sQ}, 13")
            e(f"s_add_u32 s{sT2}, s{sT2}, s{sT3x}")
            n = 8
        e(f"buffer_load_dwordx4 {vr(GW,4)}, v{vL16}, {srd(S_GW)}, 0 offen")
        for i in range(n):
            e(f"buffer_load_dwordx4 {vr(GX+4*i,4)}, v{vL16}, {srd(S_X)}, s{sT2} offen offset:{(i&3)*1024}")
            if (i & 3) == 3 and i < n - 1: e(f"s_add_u32 s{sT2}, s{sT2}, 4096")
    def prefill():
        if not opt.sent: return
        for i in range(4): e(f"v_mov_b32 v{128+i}, -1")
        e(f"s_lshl_b32 s{sT2}, s{sTT}, 1")
        e(f"s_add_u32 s{sT2}, s{sT2}, s{sBR}")
        e(f"s_lshl_b32 s{sT2}, s{sT2}, 5")
        e(f"s_lshl_b32 s{sT3x}, s{sHG}, 1")
        e(f"s_add_u32 s{sT2}, s{sT2}, s{sT3x}")
        e(f"s_lshl_b32 s{sT2}, s{sT2}, 10")
        e(f"s_add_u32 s{sT2}, s{sT2}, {WS_O}")
        for h in range(2):
            e(f"buffer_store_dwordx4 v[128:131], v{vL16}, {srd(S_WS)}, s{sT2} offen offset:{h*1024} sc1")
    def wo_voff():
        e(f"v_lshrrev_b32 v13, 3, v0")
        e(f"v_lshlrev_b32 v13, 10, v13")
        e(f"v_bfe_u32 v15, v0, 4, 1")
        e(f"v_lshlrev_b32 v15, 2, v15")
        e(f"v_xor_b32 v15, v15, v0")
        e(f"v_and_b32 v15, 7, v15")
        e(f"v_lshl_add_u32 v14, v15, 4, v13")
    def wo_dma(S, heads, kh, ldsaddr):
        for i in heads:
            sg, cst = ldsaddr(i)
            for hf in range(2):
                e(f"s_add_u32 s{sT3x}, s{sT5}, {(256*kh + 16*i + 8*hf)*1024}")
                e(f"s_add_u32 m0, s{sg}, {cst + hf*1024}")
                e("s_nop 0")
                e(f"buffer_load_dwordx4 v14, {srd(S)}, s{sT3x} offen lds")
    def wo_lin(S, sg, sl, n):
        e(f"s_mov_b32 m0, s{sl}")
        e("s_nop 0")
        for i in range(n):
            e(f"buffer_load_dwordx4 v14, {srd(S)}, s{sg} offen lds")
            if i < n - 1:
                e(f"s_add_u32 m0, m0, 1024")
                e(f"s_add_u32 s{sg}, s{sg}, 8192")
    def wo_early():
        wo_voff()
        e(f"s_lshl_b32 s{sT5}, s{sN3}, 7")
        e(f"s_and_b32 s{sT0}, s{sTAU}, 1")
        e(f"s_lshl_b32 s{sT0}, s{sT0}, 18")
        e(f"s_add_u32 s{sT0}, s{sT0}, s{sT5}")
        e(f"s_lshl_b32 s{sT1}, s{sTAU}, 14")
        e(f"s_add_u32 s{sT1}, s{sT1}, {LDS_A0}")
        lab = f"L_WE_{opt._n}"; opt._n += 1
        e(f"s_cmp_ge_u32 s{sTAU}, 2")
        e(f"s_cbranch_scc1 {lab}_B")
        e(f"s_mov_b32 s{sT4}, s{sT0}")
        wo_lin(S_WOA, sT4, sT1, 16)
        e(f"s_branch {lab}_E")
        a.lab(f"{lab}_B")
        e(f"s_mov_b32 s{sT4}, s{sT0}")
        wo_lin(S_WOB, sT4, sT1, 16)
        a.lab(f"{lab}_E")
    def halo_poll_load():
        n = opt._n; opt._n += 1
        e(f"s_sub_u32 s{sT2}, s{sC}, 1")
        e(f"s_lshl_b32 s{sT3x}, s{sT2}, 5")
        e(f"s_add_u32 s{sT3x}, s{sT3x}, s{sBH}")
        e(f"s_lshl_b32 s{sT3x}, s{sT3x}, 7")
        e(f"s_lshl_b32 s{sT4}, s{sTAU}, 3")
        e(f"s_add_u32 s{sT3x}, s{sT3x}, s{sT4}")
        e(f"s_add_u32 s{sT3x}, s{sT3x}, {WS_KVF}")
        e(f"v_and_b32 v13, 1, v0")
        e(f"v_lshlrev_b32 v13, 2, v13")
        e(f"s_mov_b32 s{sSPIN}, 0")
        a.lab(f"L_KVF_LOOP{n}")
        e(f"buffer_load_dword v15, v13, {srd(S_WS)}, s{sT3x} offen sc1")
        e(f"s_add_u32 s{sSPIN}, s{sSPIN}, 1")
        e("s_waitcnt vmcnt(0)")
        e(f"v_cmp_ne_u32 vcc, s{sTAG}, v15")
        e(f"s_cmp_gt_u32 s{sSPIN}, {opt.spin}")
        e(f"s_cbranch_scc1 L_KVF_OK{n}")
        e(f"s_cbranch_vccnz L_KVF_LOOP{n}")
        a.lab(f"L_KVF_OK{n}")
        stamp("roleA")
        e(f"s_lshl_b32 s{sT3x}, s{sBH}, 6")
        e(f"s_lshl_b32 s{sT2}, s{sT2}, 3")
        e(f"s_add_u32 s{sT3x}, s{sT3x}, s{sT2}")
        e(f"s_lshl_b32 s{sT2}, s{sTAU}, 1")
        e(f"s_add_u32 s{sT3x}, s{sT3x}, s{sT2}")
        e(f"s_lshl_b32 s{sT3x}, s{sT3x}, 12")
        e(f"s_add_u32 s{sT3x}, s{sT3x}, {WS_KV}")
        for j in range(2):
            for i in range(4):
                e(f"buffer_load_dwordx4 {vr(HT+16*j+4*i,4)}, v{vL16}, {srd(S_WS)}, s{sT3x} offen offset:{i*1024} sc1")
            if j < 1: e(f"s_add_u32 s{sT3x}, s{sT3x}, 4096")
    def halo_write(younger):
        e(f"s_mul_i32 s{sT2}, s{sTAU}, {2*REG}")
        e(f"s_add_u32 s{sT2}, s{sT2}, 4096")
        e(f"v_add_u32 v13, s{sT2}, v{vL16}")
        for j in range(2):
            e(f"s_waitcnt vmcnt({younger+4-4*j})")
            for i in range(4):
                e(f"ds_write_b128 v13, {vr(HT+16*j+4*i,4)} offset:{j*REG+i*1024}")
    opt._n = 0
    ool = []
    NE = 16
    NG = 0 if opt.gate4 else 9
    e(f"s_cmp_gt_u32 s{sTAU}, 3")
    e("s_cbranch_scc0 L_ROLE_LO")
    if opt.sent == 2: prefill()
    if not opt.ool: e("s_branch L_HALO_BAR")
    i_ool3 = len(a.lines)
    a.lab("L_ROLE_LO")
    if opt.mke:
        e(f"s_mov_b32 s{sT2}, 0xff800000")
        for r in range(16): e(f"v_xor_b32 v{MKE+r}, s{sT2}, v{MK+r}")
    e(f"s_cmp_eq_u32 s{sC}, 0")
    e("s_cbranch_scc1 L_ROLE_C0")
    e(f"s_cmp_gt_u32 s{sTAU}, 1")
    e("s_cbranch_scc1 L_ROLE_HI")
    wo_early()
    halo_poll_load()
    if not opt.gate4: gate_loads()
    halo_write(NG)
    e("s_waitcnt lgkmcnt(0)")
    stamp("roleB")
    e("s_branch L_HALO_BAR")
    a.lab("L_ROLE_HI")
    halo_poll_load()
    wo_early()
    if not opt.gate4: gate_loads()
    halo_write(NE + NG)
    e(f"s_waitcnt vmcnt({NG}) lgkmcnt(0)")
    stamp("roleB")
    e("s_branch L_HALO_BAR")
    a.lab("L_ROLE_C0")
    wo_early()
    if not opt.gate4: gate_loads()
    e(f"s_waitcnt vmcnt({NG})")
    if opt.ool:
        e("s_branch L_HALO_BAR")
        ool.append(a.lines[i_ool3:]); del a.lines[i_ool3:]
    a.lab("L_HALO_BAR")
    if not opt.mke:
        e(f"s_mov_b32 s{sT2}, 0xff800000")
        for r in range(16): e(f"v_xor_b32 v{MK+r}, s{sT2}, v{MK+r}")
    e("s_barrier")
    stamp("B2")
    e(f"s_cmp_ge_u32 s{sTAU}, 4")
    e("s_cbranch_scc1 L_LATE_S")
    prefill()
    i_ool1 = len(a.lines)
    if not opt.ool: e("s_branch L_LATE_E")
    a.lab("L_LATE_S")
    if opt.warm in (4, 6, 7):
        assert not opt.rep
        e(f"s_cmp_eq_u32 s{sW}, 4"); e("s_cbranch_scc0 L_FW_E")
        e(f"s_lshl_b32 s{sT2}, s{sC}, 5"); e(f"s_lshr_b32 s{sT3x}, s{sBH}, 3"); e(f"s_add_u32 s{sT2}, s{sT2}, s{sT3x}")
        e(f"s_lshl_b32 s{sT2}, s{sT2}, 7"); e(f"s_add_u32 s{sT2}, s{sT2}, {WS_OF}")
        e(f"v_lshlrev_b32 v13, 9, v0"); e(f"v_add_u32 v13, s{sT2}, v13")
        e("s_mov_b64 exec, 0xff")
        e(f"buffer_load_dword v215, v13, {srd(S_WS)}, 0 offen sc1")
        e("s_mov_b64 exec, -1")
        e(f"s_lshr_b32 s{sT2}, s{sT3}, 2"); e(f"s_lshl_b32 s{sT2}, s{sT2}, 3"); e(f"s_and_b32 s{sT3x}, s{sT3}, 3")
        e(f"s_add_u32 s{sT0}, s{sT2}, s{sT3x}"); e(f"s_sub_u32 s{sT3x}, 7, s{sT3x}"); e(f"s_add_u32 s{sT1}, s{sT2}, s{sT3x}")
        e(f"s_lshl_b32 s{sT0}, s{sT0}, 9"); e(f"s_lshl_b32 s{sT1}, s{sT1}, 9")
        e(f"s_add_u32 s{sT0}, s{sT0}, {WS_OF}"); e(f"s_add_u32 s{sT1}, s{sT1}, {WS_OF}")
        e(f"v_lshlrev_b32 v13, 7, v0")
        e("s_mov_b64 exec, 15")
        e(f"buffer_load_dword v215, v13, {srd(S_WS)}, s{sT0} offen sc1")
        e(f"buffer_load_dword v214, v13, {srd(S_WS)}, s{sT1} offen sc1")
        e("s_mov_b64 exec, -1")
        a.lab("L_FW_E")
        if opt.warm == 7:
            e(f"s_cmp_eq_u32 s{sW}, 5"); e("s_cbranch_scc0 L_FW_F")
            e(f"s_lshr_b32 s{sT2}, s{sT3}, 2"); e(f"s_lshl_b32 s{sT2}, s{sT2}, 3"); e(f"s_and_b32 s{sT3x}, s{sT3}, 3")
            e(f"s_add_u32 s{sT0}, s{sT2}, s{sT3x}"); e(f"s_sub_u32 s{sT3x}, 7, s{sT3x}"); e(f"s_add_u32 s{sT1}, s{sT2}, s{sT3x}")
            e(f"s_sub_u32 s{sT1}, s{sT1}, s{sT0}"); e(f"s_sub_u32 s{sT1}, s{sT1}, 1"); e(f"s_lshl_b32 s{sT1}, s{sT1}, 15")
            e(f"s_lshl_b32 s{sT0}, s{sT0}, 15"); e(f"s_lshl_b32 s{sT3x}, s{sN3}, 7"); e(f"s_add_u32 s{sT0}, s{sT0}, s{sT3x}")
            e(f"v_lshlrev_b32 v13, 10, v0"); e(f"v_lshrrev_b32 v15, 5, v0"); e(f"v_mul_lo_u32 v15, v15, s{sT1}"); e(f"v_add_u32 v13, v13, v15")
            e(f"buffer_load_dword v215, v13, {srd(S_OUT)}, s{sT0} offen")
            a.lab("L_FW_F")
    wo_voff()
    e(f"s_sub_u32 s{sT2}, 7, s{sTAU}")
    e(f"s_lshl_b32 s{sT5}, s{sN3}, 7")
    e(f"s_and_b32 s{sT0}, s{sT2}, 1")
    e(f"s_lshl_b32 s{sT0}, s{sT0}, 18")
    e(f"s_add_u32 s{sT0}, s{sT0}, s{sT5}")
    e(f"s_add_u32 s{sT0}, s{sT0}, {128*1024}")
    e(f"s_mul_i32 s{sT1}, s{sT2}, {2*REG}")
    def late(S):
        for (reg, slot) in ((0, 8192), (1, 8192), (0, 0), (1, 0)):
            e(f"s_add_u32 s{sT3x}, s{sT1}, {reg*REG + slot}")
            wo_lin(S, sT0, sT3x, 4)
            e(f"s_add_u32 s{sT0}, s{sT0}, 8192")
    e(f"s_cmp_ge_u32 s{sT2}, 2")
    e("s_cbranch_scc1 L_LATE_B")
    late(S_WOA)
    e("s_branch L_LATE_G")
    a.lab("L_LATE_B")
    late(S_WOB)
    a.lab("L_LATE_G")
    gate_loads()
    if opt.prio: e("s_setprio 1")
    if opt.ool:
        e("s_branch L_LATE_E")
        ool.append(a.lines[i_ool1:]); del a.lines[i_ool1:]
    a.lab("L_LATE_E")
    e(f"s_cmp_eq_u32 s{sC}, 0")
    e("s_cbranch_scc1 L_P2_EPI")
    e(f"s_mul_i32 s{sT0}, s{sTAU}, {REG}")
    e(f"s_add_u32 s{sT0}, s{sT0}, 4096")
    e(f"s_add_u32 s{sT1}, s{sT0}, {REG}")
    e(f"s_sub_u32 s{sT4}, 7, s{sTAU}")
    part("HALO", sT0, sT1, sT4)
    a.lab("L_P2_EPI")
    stamp("attn done")
    lo, hi = f32bits(2.0 ** -64), f32bits(2.0 ** 64)
    e(f"s_mov_b32 s{sT0}, {hex(lo)}")
    e(f"s_mov_b32 s{sT1}, {hex(hi)}")
    e(f"s_lshl_b32 s{sKVO}, s{sTT}, 1")
    e(f"s_add_u32 s{sKVO}, s{sKVO}, s{sBR}")
    e(f"s_lshl_b32 s{sKVO}, s{sKVO}, 5")
    e(f"s_lshl_b32 s{sT3x}, s{sHG}, 1")
    e(f"s_add_u32 s{sKVO}, s{sKVO}, s{sT3x}")
    e(f"s_lshl_b32 s{sKVO}, s{sKVO}, 10")
    e(f"s_add_u32 s{sKVO}, s{sKVO}, {WS_O}")
    e(f"s_lshl_b32 s{sT2}, s{sTT}, 2")
    e(f"s_lshr_b32 s{sT3x}, s{sBH}, 3")
    e(f"s_add_u32 s{sT2}, s{sT2}, s{sT3x}")
    e(f"s_lshl_b32 s{sT2}, s{sT2}, {10 if opt.rep else 7}")
    e(f"s_and_b32 s{sT3x}, s{sBH}, 7")
    e(f"s_lshl_b32 s{sT3x}, s{sT3x}, 2")
    e(f"s_add_u32 s{sT2}, s{sT2}, s{sT3x}")
    e(f"s_add_u32 s{sOFA}, s{sT2}, {WS_OF}")
    e("s_nop 2")
    if opt.fallback:
        for h in range(2):
            O = OA + 16 * h
            e(f"v_mul_f32 v13, 0, v{O}")
            for i in range(1, 8): e(f"v_fmac_f32 v13, 0, v{O+i}")
            e(f"v_cmp_nle_f32 vcc, s{sT0}, v{O+8}")
            e(f"s_mov_b64 s[74:75], vcc")
            e(f"v_cmp_nge_f32 vcc, s{sT1}, v{O+8}")
            e("s_or_b64 s[74:75], s[74:75], vcc")
            e(f"v_cmp_u_f32 vcc, v13, v13")
            e("s_or_b64 s[74:75], s[74:75], vcc")
            e("s_cmp_lg_u64 s[74:75], 0")
            e(f"s_cselect_b32 s{sT2}, {1<<h}, 0")
            e(f"s_or_b32 s{sFAIL}, s{sFAIL}, s{sT2}")
        if opt.forcefb: e(f"s_or_b32 s{sFAIL}, s{sFAIL}, {opt.forcefb}")
        e(f"s_cmp_lg_u32 s{sFAIL}, 0")
        e("s_cbranch_scc1 L_FB_ENTRY")
        a.lab("L_NOFB")
    else:
        e("s_nop 7")
    if opt.sent:
        e(f"s_cmp_ge_u32 s{sW}, 4")
        e("s_cbranch_scc1 L_NOSENT0")
        e("s_waitcnt vmcnt(0)")
        e("s_branch L_NOSENT")
        a.lab("L_NOSENT0")
        if opt.sent == 2: e("s_waitcnt vmcnt(25)")
        a.lab("L_NOSENT")
    for h in range(2):
        e(f"v_rcp_f32 v{13+h}, v{OA+16*h+8}")
    for h in range(2):
        O = OA + 16 * h
        for i in range(8): e(f"v_mul_f32 v{O+i}, v{O+i}, v{13+h}")
        for i in range(4): e(cvt(O + 8 + i, O + 2 * i, O + 2 * i + 1))
        if opt.sent:
            for i in range(4): e(f"v_min_u32 v{O+8+i}, -2, v{O+8+i}")
        e(f"buffer_store_dwordx4 {vr(O+8,4)}, v{vL16}, {srd(S_WS)}, s{sKVO} offen offset:{h*1024} sc1")
    if opt.sent:
        if opt.sent != 2:
            e(f"s_cmp_ge_u32 s{sW}, 4")
            e("s_cbranch_scc1 L_NOHINT")
        e(f"v_lshlrev_b32 v13, 7, v0")
        e(f"v_mov_b32 v14, s{sTAG}")
        e(f"s_mov_b64 exec, {'0xff' if opt.rep else 1}")
        e(f"buffer_store_dword v14, v13, {srd(S_WS)}, s{sOFA} offen sc1")
        e("s_mov_b64 exec, -1")
        stamp("O published")
        a.lab("L_NOHINT")
    WF3, OF3, AC3 = 16, 144, 208
    e(f"v_lshrrev_b32 v1, 5, v0")
    e(f"v_lshlrev_b32 v1, 9, v1")
    e(f"v_bfe_u32 v2, v0, 2, 2")
    e(f"v_lshl_add_u32 v1, v2, 7, v1")
    e(f"v_bfe_u32 v2, v0, 3, 1")
    e(f"v_lshl_add_u32 v1, v2, 6, v1")
    e(f"v_bfe_u32 v2, v0, 4, 1")
    e(f"v_lshl_add_u32 v1, v2, 5, v1")
    e(f"v_and_b32 v2, 3, v0")
    e(f"v_lshl_add_u32 v1, v2, 3, v1")
    e(f"s_lshl_b32 s{sT2}, s{sQ}, 14")
    e(f"s_add_u32 s{sT2}, s{sT2}, {LDS_A0}")
    e(f"s_mul_i32 s{sT3x}, s{sQ}, {2*REG}")
    e(f"v_xor_b32 v2, 64, v1")
    vA = [244, 245]; vB = [246, 247]
    e(f"v_add_u32 v{vA[0]}, s{sT2}, v1")
    e(f"v_add_u32 v{vA[1]}, s{sT2}, v2")
    e(f"v_add_u32 v{vB[0]}, s{sT3x}, v1")
    e(f"v_add_u32 v{vB[1]}, s{sT3x}, v2")
    def trw(i):
        for ct in range(2):
            for u in range(2):
                if i < 8: ad, off = vA[ct], i * 2048
                elif i < 12: ad, off = vB[ct], ((i - 8) >> 1) * REG + 8192 + ((i - 8) & 1) * 2048
                else: ad, off = vB[ct], ((i - 12) >> 1) * REG + ((i - 12) & 1) * 2048
                e(f"ds_read_b64_tr_b16 {vr(WF3+8*i+4*ct+2*u,2)}, v{ad} offset:{off+u*1024}")
    for i in range(8): trw(i)
    e(f"s_lshl_b32 s{sT1}, s{sTT3}, 2")
    e(f"s_add_u32 s{sT1}, s{sT1}, s{sQ}")
    if opt.rep:
        e(f"s_lshl_b32 s{sT1}, s{sT1}, 3")
        e(f"s_add_u32 s{sT1}, s{sT1}, s{sN3}")
    e(f"s_lshl_b32 s{sT1}, s{sT1}, 7")
    e(f"s_add_u32 s{sT1}, s{sT1}, {WS_OF}")
    e(f"s_lshl_b32 s{sT0}, s{sTT3}, 1")
    e(f"s_add_u32 s{sT0}, s{sT0}, s{sB3}")
    e(f"s_lshl_b32 s{sT0}, s{sT0}, 5")
    e(f"s_lshl_b32 s{sT3x}, s{sKH}, 4")
    e(f"s_add_u32 s{sT0}, s{sT0}, s{sT3x}")
    e(f"s_lshl_b32 s{sT0}, s{sT0}, 10")
    e(f"s_add_u32 s{sT0}, s{sT0}, {WS_O}")
    def oflag(wait=True):
        e(f"v_lshlrev_b32 v13, 7, v0")
        e(f"v_mov_b32 v14, s{sTAG}")
        if wait: e("s_waitcnt vmcnt(0)")
        e(f"s_mov_b64 exec, {'0xff' if opt.rep else 1}")
        e(f"buffer_store_dword v14, v13, {srd(S_WS)}, s{sOFA} offen sc1")
        e("s_mov_b64 exec, -1")
        stamp("O published")
    GR = 236
    def gate_round(gx, g_out, g1_out):
        for i in range(8): e(f"v_mov_b32 v{GA+i}, 0")
        for d in range(4):
            for i in range(8):
                e(f"v_dot2_f32_bf16 v{GA+i}, v{gx+4*i+d}, v{GW+d}, v{GA+i}")
        e("s_nop 4")
        for i in range(4): e(f"v_permlane32_swap_b32 v{GA+i}, v{GA+4+i}")
        for i in range(4): e(f"v_add_f32 v{GA+i}, v{GA+i}, v{GA+4+i}")
        e("s_nop 1")
        for i in range(2): e(f"v_permlane16_swap_b32 v{GA+i}, v{GA+2+i}")
        for i in range(2): e(f"v_add_f32 v{GA+i}, v{GA+i}, v{GA+2+i}")
        e("s_nop 1")
        for i in range(2): e(f"v_add_f32_dpp v{GA+i}, v{GA+i}, v{GA+i} row_ror:8 row_mask:0xf bank_mask:0xf")
        e("s_nop 1")
        e(f"v_mov_b32_dpp v{GA}, v{GA+1} quad_perm:[0,1,2,3] row_mask:0xf bank_mask:0xc")
        e("s_nop 1")
        e(f"v_add_f32_dpp v15, v{GA}, v{GA} quad_perm:[1,0,3,2] row_mask:0xf bank_mask:0xf")
        e("s_nop 1")
        e("v_add_f32_dpp v15, v15, v15 quad_perm:[2,3,0,1] row_mask:0xf bank_mask:0xf")
        e("s_nop 1")
        e("v_add_f32_dpp v15, v15, v15 row_half_mirror row_mask:0xf bank_mask:0xf")
        e("v_cvt_pk_bf16_f32 v15, v15, v15")
        e("v_and_b32 v15, 0xffff0000, v15")
        e(f"v_mul_f32 v15, {hex(f32bits(-math.log2(math.e)))}, v15")
        e("v_exp_f32 v15, v15")
        e("s_nop 0")
        e("v_add_f32 v15, 1.0, v15")
        e("v_rcp_f32 v15, v15")
        e("s_nop 0")
        e("v_cvt_pk_bf16_f32 v15, v15, v15")
        e(f"v_and_b32 v{g_out}, 0xffff0000, v15")
        e(f"v_sub_f32 v15, 1.0, v{g_out}")
        e("v_cvt_pk_bf16_f32 v15, v15, v15")
        e(f"v_and_b32 v{g1_out}, 0xffff0000, v15")
    def gate():
        if opt.gate4:
            gate_round(GX, GR, GR + 1); gate_round(GX + 32, GR + 2, GR + 3)
        else:
            gate_round(GX, GR, GR + 1)
    def gate_write():
        e(f"v_lshrrev_b32 v15, 3, v0")
        if opt.gate4:
            e(f"s_lshl_b32 s{sT2}, s{sQ}, 4")
        else:
            e(f"s_lshl_b32 s{sT2}, s{sW}, 3")
        e(f"v_add_u32 v15, s{sT2}, v15")
        e(f"v_lshlrev_b32 v15, 2, v15")
        e(f"ds_write_b32 v15, v{GR} offset:{LDS_GATE}")
        e(f"ds_write_b32 v15, v{GR+1} offset:{LDS_GATE+256}")
        if opt.gate4:
            e(f"ds_write_b32 v15, v{GR+2} offset:{LDS_GATE+32}")
            e(f"ds_write_b32 v15, v{GR+3} offset:{LDS_GATE+256+32}")
    def poll(name, first_issued, sleep):
        e(f"s_mov_b32 s{sSPIN}, 0")
        if not first_issued:
            e(f"buffer_load_dword v14, v13, {srd(S_WS)}, s{sT1} offen sc1")
        a.lab(f"L_OF_LOOP{name}")
        e("s_waitcnt vmcnt(0)")
        e(f"v_cmp_ne_u32 vcc, s{sTAG}, v14")
        e(f"s_add_u32 s{sSPIN}, s{sSPIN}, 1")
        e(f"s_cbranch_vccz L_OF_OK{name}")
        e(f"s_cmp_gt_u32 s{sSPIN}, {opt.spin}")
        e(f"s_cbranch_scc1 L_OF_OK{name}")
        if sleep: e(f"s_sleep {sleep}")
        e(f"buffer_load_dword v14, v13, {srd(S_WS)}, s{sT1} offen sc1")
        e(f"s_branch L_OF_LOOP{name}")
        a.lab(f"L_OF_OK{name}")
    def oloads(mod="sc1"):
        for i in range(16):
            e(f"buffer_load_dwordx4 {vr(OF3+4*i,4)}, v{vL16}, {srd(S_WS)}, s{sT0} offen offset:{(i&3)*1024} {mod}")
            if (i & 3) == 3 and i < 15: e(f"s_add_u32 s{sT0}, s{sT0}, 4096")
    def p3mfma(i0, i1):
        for i in range(i0, i1):
            e(f"s_waitcnt vmcnt({15-i})")
            for ct in range(2):
                mfma(AC3 + 16 * ct, WF3 + 8 * i + 4 * ct, OF3 + 4 * i, "0" if i == 0 else AC3 + 16 * ct)
    def late_part(gw=True):
        if gw: gate_write()
        for i in range(8, 16): trw(i)
    def p3mfma2():
        if opt.sent:
            e(f"s_mov_b32 s{sSPIN}, 0")
            a.lab("L_P3_RETRY")
            e("v_mov_b32 v15, 0")
        for i in range(16):
            if i == 8: e("s_waitcnt lgkmcnt(0)")
            e(f"s_waitcnt vmcnt({15-i})")
            for ct in range(2):
                mfma(AC3 + 16 * ct, WF3 + 8 * i + 4 * ct, OF3 + 4 * i, "0" if i == 0 else AC3 + 16 * ct)
                if opt.sent: e(f"v_max3_u32 v15, v15, v{OF3+4*i+2*ct}, v{OF3+4*i+2*ct+1}")
        if opt.sent:
            e("v_cmp_eq_u32 vcc, -1, v15")
            e(f"s_add_u32 s{sSPIN}, s{sSPIN}, 1")
            e("s_cbranch_vccz L_P3_DONE")
            e(f"s_cmp_gt_u32 s{sSPIN}, {opt.spin}")
            e("s_cbranch_scc1 L_P3_DONE")
            e(f"s_sub_u32 s{sT0}, s{sT0}, 12288")
            e("s_nop 7")
            oloads()
            e("s_branch L_P3_RETRY")
            a.lab("L_P3_DONE")
    e(f"s_cmp_eq_u32 s{sTQ}, 0")
    if opt.ool:
        e("s_cbranch_scc0 L_P3_EARLY")
        i_ool2 = len(a.lines)
        a.lab("L_P3_EARLY")
    else:
        e("s_cbranch_scc1 L_P3_LATE")
    if opt.sent == 2: e("s_waitcnt vmcnt(3)")
    else: oflag()
    if opt.prio: e("s_setprio 0")
    if opt.early == 0:
        gate()
        e(f"v_and_b32 v13, 7, v0")
        e(f"v_lshlrev_b32 v13, 2, v13")
        e(f"buffer_load_dword v14, v13, {srd(S_WS)}, s{sT1} offen sc1")
        e("s_waitcnt lgkmcnt(0)")
        e("s_barrier")
        stamp("B3")
        poll("E", True, opt.sleep)
        stamp("O flags seen")
        oloads(opt.omod)
        late_part()
    else:
        e(f"v_and_b32 v13, 7, v0")
        e(f"v_lshlrev_b32 v13, 2, v13")
        e(f"buffer_load_dword v14, v13, {srd(S_WS)}, s{sT1} offen sc1")
        gate()
        for i in range(8, 16): trw(i)
        poll("E", True, opt.sleep)
        stamp("O flags seen")
        oloads(opt.omod)
        e("s_waitcnt lgkmcnt(0)")
        e("s_barrier")
        stamp("B3")
        gate_write()
    e("s_branch L_P3_J")
    if opt.ool:
        ool.append(a.lines[i_ool2:]); del a.lines[i_ool2:]
    a.lab("L_P3_LATE")
    if opt.sent:
        e(f"v_and_b32 v13, 7, v0")
        e(f"v_lshlrev_b32 v13, 2, v13")
        e(f"buffer_load_dword v14, v13, {srd(S_WS)}, s{sT1} offen sc1")
        if not opt.gate4: gate()
        e("s_waitcnt lgkmcnt(0)")
        e("s_barrier")
        stamp("B3")
    else:
        e("s_waitcnt vmcnt(2)")
        gate()
        oflag()
        e(f"v_and_b32 v13, 7, v0")
        e(f"v_lshlrev_b32 v13, 2, v13")
        e(f"buffer_load_dword v14, v13, {srd(S_WS)}, s{sT1} offen sc1")
        e("s_waitcnt lgkmcnt(0)")
        e("s_barrier")
        stamp("B3")
    late_part(not opt.gate4)
    poll("L", True, 0)
    stamp("O flags seen")
    oloads(opt.omod)
    a.lab("L_P3_J")
    p3mfma2()
    stamp("P3 mfma")
    e(f"s_lshl_b32 s{sT2}, s{sTQ}, 15")
    e(f"s_lshl_b32 s{sT3x}, s{sQ}, 11")
    e(f"s_add_u32 s{sT3x}, s{sT3x}, s{sT2}")
    e(f"s_add_u32 s{sT3x}, s{sT3x}, {LDS_RB}")
    e(f"v_add_u32 v1, s{sT3x}, v{vL16}")
    e(f"s_lshl_b32 s{sT3x}, s{sQ}, 13")
    e(f"s_add_u32 s{sT3x}, s{sT3x}, s{sT2}")
    e(f"s_add_u32 s{sT3x}, s{sT3x}, {LDS_RB}")
    e(f"v_add_u32 v2, s{sT3x}, v{vL16}")
    e(f"v_and_b32 v4, 31, v0")
    e(f"s_lshl_b32 s{sT2}, s{sTQ}, 5")
    e(f"v_add_u32 v3, s{sT2}, v4")
    e(f"v_lshlrev_b32 v3, 2, v3")
    e(f"v_lshlrev_b32 v4, 10, v4")
    e(f"v_lshrrev_b32 v5, 5, v0")
    e(f"v_lshl_add_u32 v4, v5, 4, v4")
    e(f"s_lshl_b32 s{sT2}, s{sTT3}, 15")
    e(f"s_lshl_b32 s{sT3x}, s{sN3}, 7")
    e(f"s_add_u32 s{sT2}, s{sT2}, s{sT3x}")
    e(f"s_lshl_b32 s{sT3x}, s{sQ}, 5")
    e(f"s_add_u32 s{sT2}, s{sT2}, s{sT3x}")
    e("s_nop 1")
    for qq in range(4):
        for hf in range(2):
            e(f"ds_write_b128 v1, {vr(AC3+8*qq+4*hf,4)} offset:{qq*8192+hf*1024}")
    e("s_waitcnt lgkmcnt(0)")
    e("s_barrier")
    R = 144
    e(f"ds_read_b32 v5, v3 offset:{LDS_GATE}")
    e(f"ds_read_b32 v6, v3 offset:{LDS_GATE+256}")
    for src in range(4):
        for hf in range(2):
            e(f"ds_read_b128 {vr(R+8*src+4*hf,4)}, v2 offset:{src*2048+hf*1024}")
    e("s_waitcnt lgkmcnt(4)")
    for i in range(8): e(f"v_add_f32 v{R+i}, v{R+i}, v{R+8+i}")
    for i in range(8): e(f"v_mul_f32 v{R+i}, v{R+i}, v5")
    e("s_waitcnt lgkmcnt(0)")
    for i in range(8): e(f"v_add_f32 v{R+16+i}, v{R+16+i}, v{R+24+i}")
    for i in range(8): e(f"v_fmac_f32 v{R+i}, v{R+16+i}, v6")
    for i in range(4): e(cvt(R + 32 + i, R + 2 * i, R + 2 * i + 1))
    e("s_nop 1")
    e(f"v_permlane32_swap_b32 v{R+32}, v{R+34}")
    e(f"v_permlane32_swap_b32 v{R+33}, v{R+35}")
    e(f"buffer_store_dwordx4 {vr(R+32,4)}, v4, {srd(S_OUT)}, s{sT2} offen {opt.outmod}")
    if STAMPS:
        stamp("end")
        e(f"s_memtime s[{sTM}:{sTM+1}]")
        e("s_waitcnt lgkmcnt(0)")
        e(f"s_sub_u32 s{STREG[nst[0]]}, s{sTM}, s100")
        nst[0] += 1
        opt.stamp_names.append("CYCLES")
        n = nst[0]
        e(f"s_lshl_b32 s{sT2}, s2, 3")
        e(f"s_add_u32 s{sT2}, s{sT2}, s{sW}")
        e(f"s_lshl_b32 s{sT2}, s{sT2}, 7")
        e(f"s_add_u32 s{sT2}, s{sT2}, {WS_STAMP}")
        e("v_mov_b32 v13, 0")
        e("s_mov_b64 exec, 1")
        for i in range(n):
            e(f"v_mov_b32 v14, s{STREG[i]}")
            e(f"buffer_store_dword v14, v13, {srd(S_WS)}, s{sT2} offen offset:{4*i}")
            e("s_nop 0")
        e("s_mov_b64 exec, -1")
    e("s_waitcnt vmcnt(0)")
    a.lab("L_END")
    e("s_endpgm")
    for blk in ool: a.lines += blk
    if opt.fallback:
        a.lab("L_FB_ENTRY")
        fallback(a, opt, dict(SS=SS, PP=PP, KF=KF, MK=MK, OA=OA, QF=QF, vL16=vL16, HT=144))
        e("s_branch L_NOFB")
    a.lab("L_CODE_END")
    return a

def fallback(a, opt, R):
    e = a.e
    SS, PP, KF, MK, OA, QF, vL16, HT = (R[k] for k in "SS PP KF MK OA QF vL16 HT".split())
    TQ = 64; TM = 68; TB = 69; TO = 144; TV = 192; TC = 176
    S = SS
    sHH, sPASS, sPART, sTILE, sN = sH, 40, 41, 42, 43
    def mfma(D, A, B, C): e(mfma_s(D, A, B, C))
    a.c("==== fallback: true max ====")
    e(f"s_lshl_b32 s{sT2}, s{sC}, 5")
    e(f"s_add_u32 s{sT2}, s{sT2}, s{sBH}")
    e(f"s_lshl_b32 s{sT2}, s{sT2}, 7")
    e(f"s_add_u32 s{sT2}, s{sT2}, {WS_KVF}")
    e(f"v_and_b32 v13, 7, v0")
    e(f"v_lshlrev_b32 v13, 2, v13")
    e(f"s_mov_b32 s{sSPIN}, 0")
    a.lab("L_FB_FLAG")
    e(f"buffer_load_dword v14, v13, {srd(S_WS)}, s{sT2} offen sc1")
    e(f"s_add_u32 s{sSPIN}, s{sSPIN}, 1")
    e("s_waitcnt vmcnt(0)")
    e(f"v_cmp_ne_u32 vcc, s{sTAG}, v14")
    e(f"s_cmp_gt_u32 s{sSPIN}, {opt.spin}")
    e("s_cbranch_scc1 L_FB_FLAG_OK")
    e("s_cbranch_vccnz L_FB_FLAG")
    a.lab("L_FB_FLAG_OK")
    e(f"s_mov_b32 s{sHH}, 0")
    a.lab("L_FB_H")
    e(f"s_lshr_b32 s{sT2}, s{sFAIL}, s{sHH}")
    e(f"s_and_b32 s{sT2}, s{sT2}, 1")
    e(f"s_cmp_eq_u32 s{sT2}, 0")
    e("s_cbranch_scc1 L_FB_NEXT")
    e(f"s_cmp_eq_u32 s{sHH}, 0")
    e("s_cbranch_scc0 L_FB_Q1")
    for i in range(4): e(f"v_mov_b32 v{TQ+i}, v{QF+i}")
    e("s_branch L_FB_Q2")
    a.lab("L_FB_Q1")
    for i in range(4): e(f"v_mov_b32 v{TQ+i}, v{QF+4+i}")
    a.lab("L_FB_Q2")
    e(f"v_mov_b32 v{TM}, 0xff800000")
    for i in range(16): e(f"v_mov_b32 v{TO+i}, 0")
    for i in range(8): e(f"v_mov_b32 v{TV+i}, 0x3f803f80")
    e(f"s_mov_b32 s{sPASS}, 0")
    a.lab("L_FB_PASS")
    e(f"s_mov_b32 s{sPART}, 0")
    a.lab("L_FB_PART")
    e(f"s_cmp_eq_u32 s{sPART}, 0")
    e(f"s_cselect_b32 s{sTILE}, 0, s{sTAU}")
    e(f"s_cselect_b32 s{sN}, s{sTAU}, 7")
    a.lab("L_FB_TILE")
    e(f"s_cmp_eq_u32 s{sTILE}, s{sTAU}")
    e("s_cbranch_scc1 L_FB_MASK")
    for i in range(16): e(f"v_mov_b32 v{TC+i}, 0")
    e("s_branch L_FB_C")
    a.lab("L_FB_MASK")
    e(f"v_and_b32 v13, 31, v0")
    e(f"v_lshrrev_b32 v14, 5, v0")
    e(f"v_lshlrev_b32 v14, 2, v14")
    e(f"v_sub_u32 v13, v13, v14")
    e(f"s_cmp_eq_u32 s{sPART}, 0")
    e(f"s_cselect_b32 s{sT2}, 0, 0xff800000")
    for r in range(16):
        kk = (r & 3) + 8 * (r >> 2)
        e(f"v_subrev_u32 v{TC+r}, {kk}, v13")
        e(f"v_ashrrev_i32 v{TC+r}, 31, v{TC+r}")
        e(f"v_and_b32 v{TC+r}, 0xff800000, v{TC+r}")
        e(f"v_xor_b32 v{TC+r}, s{sT2}, v{TC+r}")
    a.lab("L_FB_C")
    e(f"s_sub_u32 s{sT2}, s{sC}, s{sPART}")
    e(f"s_lshl_b32 s{sT2}, s{sT2}, 3")
    e(f"s_add_u32 s{sT2}, s{sT2}, s{sTILE}")
    e(f"s_lshl_b32 s{sT3x}, s{sBH}, 6")
    e(f"s_add_u32 s{sT2}, s{sT2}, s{sT3x}")
    e(f"s_lshl_b32 s{sT2}, s{sT2}, 12")
    e(f"s_add_u32 s{sT2}, s{sT2}, {WS_KV}")
    e(f"s_lshl_b32 s{sT3x}, s{sHH}, 10")
    e(f"s_add_u32 s{sT3x}, s{sT3x}, s{sT2}")
    e(f"buffer_load_dwordx4 {vr(KF,4)}, v{vL16}, {srd(S_WS)}, s{sT3x} offen sc1")
    e(f"s_lshl_b32 s{sT3x}, s{sHH}, 8")
    e(f"s_add_u32 s{sT3x}, s{sT3x}, s{sT2}")
    e(f"s_mov_b64 exec, s[{sVM}:{sVM+1}]")
    e(f"buffer_load_dwordx4 {vr(TV,4)}, v{vL16}, {srd(S_WS)}, s{sT3x} offen offset:2048 sc1")
    e(f"buffer_load_dwordx4 {vr(TV+4,4)}, v{vL16}, {srd(S_WS)}, s{sT3x} offen offset:3072 sc1")
    e("s_mov_b64 exec, -1")
    e("s_waitcnt vmcnt(0)")
    mfma(S, KF, TQ, TC)
    e("s_nop 7"); e("s_nop 7")
    e(f"s_cmp_eq_u32 s{sPASS}, 0")
    e("s_cbranch_scc0 L_FB_P2")
    for i in range(8): e(f"v_max3_f32 v{TM}, v{TM}, v{S+2*i}, v{S+2*i+1}")
    e("s_branch L_FB_TNEXT")
    a.lab("L_FB_P2")
    for i in range(16): e(f"v_sub_f32 v{S+i}, v{S+i}, v{TM}")
    for i in range(16): e(f"v_exp_f32 v{S+i}, v{S+i}")
    e("s_nop 0")
    for i in range(8): e(cvt(PP + i, S + 2 * i, S + 2 * i + 1))
    e("s_nop 1")
    mfma(TO, TV, PP, TO)
    mfma(TO, TV + 4, PP + 4, TO)
    e("s_nop 7"); e("s_nop 7")
    a.lab("L_FB_TNEXT")
    e(f"s_add_u32 s{sTILE}, s{sTILE}, 1")
    e(f"s_cmp_le_u32 s{sTILE}, s{sN}")
    e("s_cbranch_scc1 L_FB_TILE")
    e(f"s_cmp_eq_u32 s{sC}, 0")
    e("s_cbranch_scc1 L_FB_PDONE")
    e(f"s_add_u32 s{sPART}, s{sPART}, 1")
    e(f"s_cmp_lt_u32 s{sPART}, 2")
    e("s_cbranch_scc1 L_FB_PART")
    a.lab("L_FB_PDONE")
    e(f"s_cmp_eq_u32 s{sPASS}, 0")
    e("s_cbranch_scc0 L_FB_STORE")
    e(f"v_mov_b32 v{TB}, v{TM}")
    e("s_nop 1")
    e(f"v_permlane32_swap_b32 v{TM}, v{TB}")
    e("s_nop 1")
    e(f"v_max_f32 v{TM}, v{TM}, v{TB}")
    e(f"s_mov_b32 s{sPASS}, 1")
    e("s_branch L_FB_PASS")
    a.lab("L_FB_STORE")
    e(f"s_cmp_eq_u32 s{sHH}, 0")
    e("s_cbranch_scc0 L_FB_S1")
    for i in range(16): e(f"v_mov_b32 v{OA+i}, v{TO+i}")
    e("s_branch L_FB_NEXT")
    a.lab("L_FB_S1")
    for i in range(16): e(f"v_mov_b32 v{OA+16+i}, v{TO+i}")
    a.lab("L_FB_NEXT")
    e(f"s_add_u32 s{sHH}, s{sHH}, 1")
    e(f"s_cmp_lt_u32 s{sHH}, 2")
    e("s_cbranch_scc1 L_FB_H")

def build(opt):
    opt.stamp_names = []
    a = gen(opt)
    hdr = []
    ref = open("gated_mix__sliding_block__sliding_block__prompt.s.ref").read().split("\n")
    for l in ref:
        if l.startswith("; Override launch geometry"): break
        hdr.append(l)
    hdr += """;
; Fused gated mix of two sliding-window attention branches, one launch, 256 workgroups of 8 waves (one per CU).
; (Assembly emitted by the author's own generator script.)
;   workgroup = (branch, head pair, chunk of 256 tokens)
;   phase 1  QKV projection: waves 4..7 stream x / W chunks into LDS (LDS-DMA), waves 0..3 run the MFMAs;
;            K / V fragment images go to LDS and to d_ws (halo for the next chunk)
;   phase 2  windowed attention, S^T = K Q^T per 32x32 tile, exp2 without a shift, row sums through a ones row of V^T;
;            a run-time range check on the row sums / accumulators falls back to a true-max recomputation (L_FB_ENTRY)
;   phase 3  output projection of both branches for a 64x64 output tile + sigmoid gate mix
;   hand-offs between workgroups: sc1 stores + tagged flags in d_ws (tag = word 0 of d_ws + 1, broadcast through d_debug)""".split("\n")
    hdr.append(f"; @launch grid=(256,1,1) block=(512,1,1) lds={LDS_TOTAL}")
    hdr.append('.amdgcn_target "amdgcn-amd-amdhsa--gfx950"')
    hdr.append(".text")
    hdr.append(f".globl {KNAME}")
    hdr.append(".p2align 8")
    hdr.append(f".type {KNAME},@function")
    tail = f""".section .rodata,"a"
.p2align 6
.amdhsa_kernel {KNAME}
  .amdhsa_next_free_vgpr 256
  .amdhsa_next_free_sgpr 102
  .amdhsa_accum_offset 256
  .amdhsa_group_segment_fixed_size 0
  .amdhsa_kernarg_size 80
  .amdhsa_user_sgpr_count 2
  .amdhsa_user_sgpr_kernarg_segment_ptr 1
  .amdhsa_system_sgpr_workgroup_id_x 1
  .amdhsa_float_denorm_mode_32 3
.end_amdhsa_kernel
"""
    return "\n".join(hdr) + "\n" + a.text() + tail

def parse(argv=None):
    p = argparse.ArgumentParser()
    p.add_argument("-o", default="gated_mix__sliding_block__sliding_block__prompt.s")
    p.add_argument("--stamps", type=int, default=0)
    p.add_argument("--codepf", type=int, default=1)
    p.add_argument("--pace", type=float, default=1.6)
    p.add_argument("--rot", type=int, default=1)
    p.add_argument("--xtouch", type=int, default=0)
    p.add_argument("--ool", type=int, default=0)
    p.add_argument("--tlb", type=int, default=1)
    p.add_argument("--gate4", type=int, default=0)
    p.add_argument("--wostride", type=int, default=64)
    p.add_argument("--tagearly", type=int, default=0)
    p.add_argument("--gwpf", type=int, default=1)
    p.add_argument("--mke", type=int, default=1)
    p.add_argument("--forcefb", type=int, default=0)
    p.add_argument("--early", type=int, default=0)
    p.add_argument("--lfirst", type=int, default=0)
    p.add_argument("--omod", default="sc1")
    p.add_argument("--rep", type=int, default=0)
    p.add_argument("--warm", type=int, default=6)
    p.add_argument("--sent", type=int, default=1)
    p.add_argument("--tailopt", type=int, default=1)
    p.add_argument("--eorder", type=int, default=1)
    p.add_argument("--prio", type=int, default=1)
    p.add_argument("--sleep", type=int, default=0)
    p.add_argument("--pf", type=int, default=0)
    p.add_argument("--bar0", type=int, default=1)
    p.add_argument("--dbg", type=int, default=0)
    p.add_argument("--cyc", type=int, default=0)
    p.add_argument("--wopf", type=int, default=1)
    p.add_argument("--fallback", type=int, default=1)
    p.add_argument("--spin", type=int, default=20000)
    p.add_argument("--outmod", default="")
    return p.parse_args(argv)

if __name__ == "__main__":
    opt = parse()
    s = build(opt)
    open(opt.o, "w").write(s)
    if opt.stamps:
        open(opt.o + ".stamps", "w").write("\n".join(opt.stamp_names))
    print("wrote", opt.o, len(s), "bytes")
```

```python
import sys, argparse, math, struct

KNAME = "gated_mix__sliding_block__sliding_block__prompt_kernel"

WS_NONCE = 0
WS_OF = 0x10000
WS_KVF = 0x4000
WS_KV = 0x100000
WS_O = 0x1000000
WS_STAMP = 0x1800000
WS_SIZE = 0x2000000

REG = 12288
LDS_W = 8 * REG
WPART = 24576
LDS_TOTAL = 163840
LDS_A0, LDS_A1 = 98304, 131072
LDS_GATE = 4096
LDS_RB = 98304

S_X, S_W, S_WOA, S_WOB, S_WS, S_OUT, S_GW, S_DBG = 8, 12, 16, 20, 24, 28, 32, 36
sW, sTAU, sC, sBH, sBR, sHG, sTT, sT3, sN3, sTAG, sJ = 60, 61, 62, 63, 64, 65, 66, 67, 68, 69, 70
sT0, sT1, sT2, sT3x, sT4, sT5 = 71, 72, 73, 74, 75, 76
sCNT, sSPIN, sFAIL = 77, 80, 81
sVM = 78
sKVO = 82
sH = 83
STREG = list(range(84, 98)) + [3, 6, 7, 46, 47]
sTM = 98
sXB, sWG, sWL = 40, 41, 42

def srd(b): return f"s[{b}:{b+3}]"
def vr(b, n=1): return f"v{b}" if n == 1 else f"v[{b}:{b+n-1}]"

class Asm:
    def __init__(self):
        self.lines = []; self.vm = []; self.lg = []
    def e(self, s): self.lines.append("  " + s)
    def c(self, s): self.lines.append("  ; " + s)
    def lab(self, s): self.lines.append(s + ":")
    def vmop(self, s, tag): self.e(s); self.vm.append(tag)
    def lgop(self, s, tag): self.e(s); self.lg.append(tag)
    def _n(self, q, tag, mx):
        idx = max(i for i, t in enumerate(q) if t == tag)
        return min(len(q) - 1 - idx, mx)
    def vmwait(self, tag):
        if tag not in self.vm: return
        n = self._n(self.vm, tag, 63)
        self.e(f"s_waitcnt vmcnt({n})")
        self.vm = self.vm[len(self.vm) - n:] if n > 0 else []
    def lgwait(self, tag):
        if tag not in self.lg: return
        n = self._n(self.lg, tag, 15)
        self.e(f"s_waitcnt lgkmcnt({n})")
        self.lg = self.lg[len(self.lg) - n:] if n > 0 else []
    def vmall(self): self.e("s_waitcnt vmcnt(0)"); self.vm = []
    def lgall(self): self.e("s_waitcnt lgkmcnt(0)"); self.lg = []
    def text(self): return "\n".join(self.lines) + "\n"

def f32bits(x): return struct.unpack("<I", struct.pack("<f", x))[0]
def mfma_s(D, A, B, C):
    cs = C if isinstance(C, str) else vr(C, 16)
    return f"v_mfma_f32_32x32x16_bf16 {vr(D,16)}, {vr(A,4)}, {vr(B,4)}, {cs}"
def cvt(dst, s0, s1): return f"v_cvt_pk_bf16_f32 v{dst}, v{s0}, v{s1}"

def gen(opt):
    a = Asm()
    e = a.e
    mfma = lambda D, A, B, C: e(mfma_s(D, A, B, C))
    STAMPS = opt.stamps
    nst = [0]
    def stamp(name, inner=False):
        if not STAMPS: return
        if STAMPS == 4 and not inner:
            if name in ("entry", "first data", "gemm done", "B1", "B2", "attn done", "B3", "end"):
                opt.cyc = 0; stamp(name, True)
                if name not in ("entry", "end"):
                    opt.cyc = 1; stamp(name + " cyc", True); opt.cyc = 0
            return
        if STAMPS == 3 and name in ("own done", "B2", "attn done", "O published", "B3", "B4", "O flags seen", "P3 mfma", "roleA", "roleB"): return
        if STAMPS == 2 and name in ("own done", "B2", "attn done", "O published", "B3", "B4", "O flags seen", "P3 mfma"): return
        if name in opt.stamp_names:
            i = opt.stamp_names.index(name)
            e("s_waitcnt lgkmcnt(0)")
            e(f"{'s_memtime' if opt.cyc else 's_memrealtime'} s[{sTM}:{sTM+1}]")
            e("s_waitcnt lgkmcnt(0)")
            e(f"s_mov_b32 s{STREG[i]}, s{sTM}")
            return
        i = nst[0]; nst[0] += 1
        assert i < len(STREG)
        a.c(f"stamp {i}: {name}")
        e("s_waitcnt lgkmcnt(0)"); a.lg = []
        e(f"{'s_memtime' if opt.cyc else 's_memrealtime'} s[{sTM}:{sTM+1}]")
        e("s_waitcnt lgkmcnt(0)")
        e(f"s_mov_b32 s{STREG[i]}, s{sTM}")
        opt.stamp_names.append(name)

    vXO = 1; vXR = 5; vWO = 9; vWR = 10; vL16 = 12
    XF = 16
    WF = 80
    ACC = 116
    def AQ(x): return ACC + 48 * x
    def AK(x): return ACC + 48 * x + 16
    def AV(x): return ACC + 48 * x + 32
    def XFr(lc, x, s): return XF + 32 * (lc & 1) + 16 * x + 4 * s
    def WFr(t, m): return WF + 12 * (t % 3) + 4 * m
    OA = 216; QF = 248; MK = 16; VF = 32
    SS = 160; PP = 48; KF = 56; HT = 64
    vK = 1
    vD = 13
    GX, GW, GA = (80 if opt.gate4 else 96), 208, 212
    WSLOT = 12288
    MKE = 144
    TKA, TKB, TVA, TVB, TQA, TQB = 248, 4, ACC + 16, ACC + 64, ACC + 32, ACC + 80
    LDS_TAG = 8192 + 2048

    a.lab(KNAME)
    e("s_cmp_ge_u32 s2, 256")
    e("s_cbranch_scc1 L_END")
    if STAMPS:
        e("s_memtime s[100:101]")
        stamp("entry")
    e("s_getpc_b64 s[4:5]")
    a.lab("L_PC")
    e("s_load_dwordx4 s[40:43], s[0:1], 0")
    e("s_load_dwordx4 s[48:51], s[0:1], 32")
    e("v_lshlrev_b32 v13, 6, v0")
    e("s_load_dwordx2 s[44:45], s[0:1], 16")
    e("s_load_dwordx4 s[52:55], s[0:1], 48")
    e("s_load_dwordx4 s[56:59], s[0:1], 64")
    e("v_min_u32 v13, L_CODE_END-L_PC-4, v13")
    if opt.codepf:
        e(f"global_load_dword v213, v13, s[4:5]")
    e("v_lshrrev_b32 v15, 6, v0")
    e("v_and_b32 v0, 63, v0")
    e(f"s_and_b32 s{sT0}, s2, 7")
    e(f"v_readfirstlane_b32 s{sW}, v15")
    e(f"s_lshr_b32 s{sJ}, s2, 3")
    e(f"s_and_b32 s{sT1}, s{sT0}, 1")
    e(f"s_lshl_b32 s{sT1}, s{sT1}, 2")
    e(f"s_and_b32 s{sT2}, s{sJ}, 3")
    e(f"s_add_u32 s{sC}, s{sT1}, s{sT2}")
    e(f"s_lshr_b32 s{sT1}, s{sT0}, 1")
    e(f"s_lshl_b32 s{sT1}, s{sT1}, 3")
    e(f"s_lshr_b32 s{sN3}, s{sJ}, 2")
    e(f"s_add_u32 s{sBH}, s{sT1}, s{sN3}")
    e(f"s_lshr_b32 s{sBR}, s{sBH}, 4")
    e(f"s_and_b32 s{sHG}, s{sBH}, 15")
    e(f"s_lshl_b32 s{sT3}, s{sT0}, 2")
    e(f"s_add_u32 s{sT3}, s{sT3}, s{sT2}")
    e(f"s_sub_u32 s{sT1}, 11, s{sW}")
    e(f"s_cmp_lt_u32 s{sW}, 4")
    e(f"s_cselect_b32 s{sTAU}, s{sW}, s{sT1}")
    e(f"s_lshl_b32 s{sTT}, s{sC}, 3")
    e(f"s_add_u32 s{sTT}, s{sTT}, s{sTAU}")
    e(f"v_lshlrev_b32 v{vL16}, 4, v0")
    def mk(b, lo, hi, size):
        e(f"s_mov_b32 s{b}, s{lo}"); e(f"s_mov_b32 s{b+1}, s{hi}")
        e(f"s_mov_b32 s{b+2}, {size}"); e(f"s_mov_b32 s{b+3}, 0x00020000")
    def mk_w():
        e(f"s_cmp_eq_u32 s{sBR}, 0")
        e(f"s_cselect_b32 s{S_W}, s42, s48")
        e(f"s_cselect_b32 s{S_W+1}, s43, s49")
        e(f"s_mov_b32 s{S_W+2}, 1572864"); e(f"s_mov_b32 s{S_W+3}, 0x00020000")
    def mk_rest():
        if opt.wsbase:
            e(f"s_add_u32 s58, s58, {opt.wsbase}")
            e(f"s_addc_u32 s59, s59, 0")
        mk(S_WS, 58, 59, WS_SIZE)
        mk(S_DBG, 56, 57, 256)
        mk(S_OUT, 54, 55, 2097152)
        mk(S_GW, 52, 53, 1024)
        mk(S_WOA, 44, 45, 524288)
        mk(S_WOB, 50, 51, 524288)
        e(f"s_mov_b32 s{sVM}, 0x0000ffff")
        e(f"s_mov_b32 s{sVM+1}, 0x0000ffff")
        e(f"s_mov_b32 s{sFAIL}, 0")
        p3_ids()
    sTQ, sQ, sB3, sKH, sTT3, sOFA = 44, 45, 48, 49, 50, 51
    def p3_ids():
        e(f"s_lshr_b32 s{sTQ}, s{sW}, 2")
        e(f"s_and_b32 s{sQ}, s{sW}, 3")
        e(f"s_lshr_b32 s{sB3}, s{sQ}, 1")
        e(f"s_and_b32 s{sKH}, s{sQ}, 1")
        e(f"s_and_b32 s{sT2}, s{sT3}, 3")
        e(f"s_sub_u32 s{sT3x}, 7, s{sT2}")
        e(f"s_cmp_eq_u32 s{sTQ}, 0")
        e(f"s_cselect_b32 s{sT2}, s{sT2}, s{sT3x}")
        e(f"s_lshr_b32 s{sTT3}, s{sT3}, 2")
        e(f"s_lshl_b32 s{sTT3}, s{sTT3}, 3")
        e(f"s_add_u32 s{sTT3}, s{sTT3}, s{sT2}")
    def init_list():
        q = [f"v_and_b32 v{vD}, 31, v0", f"v_lshrrev_b32 v{vD+2}, 5, v0", f"v_lshlrev_b32 v{vD+2}, 2, v{vD+2}", f"v_sub_u32 v{vD}, v{vD}, v{vD+2}"]
        for r in range(16):
            kk = (r & 3) + 8 * (r >> 2)
            q += [f"v_subrev_u32 v{MK+r}, {kk}, v{vD}", f"v_ashrrev_i32 v{MK+r}, 31, v{MK+r}", f"v_and_b32 v{MK+r}, 0xff800000, v{MK+r}"]
        q += [f"v_mov_b32 v{VF+i}, 0x3f803f80" for i in range(16)]
        return q
    if opt.lfirst:
        e(f"s_cmp_lt_u32 s{sW}, 4")
        e("s_cbranch_scc1 L_COMPUTE")
    else:
        e(f"s_cmp_ge_u32 s{sW}, 4")
        e("s_cbranch_scc1 L_LOADER")
    i_comp = len(a.lines)
    a.lab("L_COMPUTE")

    SXB = sT4
    e(f"s_mul_i32 s{SXB}, s{sW}, {2*REG}")
    e(f"v_and_b32 v13, 31, v0")
    e(f"v_lshrrev_b32 v15, 5, v0")
    e(f"v_bfe_u32 v{vXR+1}, v13, 1, 3")
    e(f"v_xor_b32 v15, v15, v{vXR+1}")
    e(f"v_lshlrev_b32 v15, 4, v15")
    e(f"v_lshl_add_u32 v15, v13, 7, v15")
    e(f"v_add_u32 v{vXR}, s{SXB}, v15")
    for s_ in range(1, 4):
        e(f"v_xor_b32 v{vXR+s_}, {s_<<5}, v{vXR}")
    e(f"v_lshrrev_b32 v13, 5, v0")
    e(f"v_lshlrev_b32 v13, 9, v13")
    e(f"v_bfe_u32 v15, v0, 2, 2")
    e(f"v_lshl_add_u32 v13, v15, 6, v13")
    e(f"v_bfe_u32 v15, v0, 4, 1")
    e(f"v_lshl_add_u32 v13, v15, 5, v13")
    e(f"v_and_b32 v15, 3, v0")
    e(f"v_lshl_add_u32 v13, v15, 3, v13")
    e(f"v_add_u32 v{vWR}, {LDS_W}, v13")
    for i in range(32): e(f"v_mov_b32 v{OA+i}, 0")
    e("s_waitcnt lgkmcnt(0)")
    mk(S_X, 40, 41, 2097152)
    mk_w()
    if opt.xtouch:
        e(f"s_lshl_b32 s{sT2}, s{sC}, 18")
        e(f"v_mov_b32 v13, 0")
        e("s_mov_b64 exec, 1")
        e(f"s_cmp_eq_u32 s{sW}, 0"); e("s_cbranch_scc0 L_XT1")
        e(f"buffer_load_dword v214, v13, {srd(S_X)}, s{sT2} offen")
        a.lab("L_XT1")
        e("s_mov_b64 exec, -1")
    mk_rest()
    stamp("issued")
    def xread1(lc, x, s_):
        a.lgop(f"ds_read_b128 {vr(XFr(lc,x,s_),4)}, v{vXR+s_} offset:{x*REG+(lc%3)*4096}", f"xr{lc}_{s_}")
    def wread1(t, m, u):
        lc = t >> 2
        a.lgop(f"ds_read_b64_tr_b16 {vr(WFr(t,m)+2*u,2)}, v{vWR} offset:{(lc%3)*WSLOT+m*4096+(t&3)*1024+u*256}", f"wf{t}")
    e("s_barrier")
    stamp("first data")
    mfma_full = mfma
    if opt.dbg == 16:
        def mfma(D, A, B, C):
            for h in range(2):
                cs = C if isinstance(C, str) else vr(C + 4 * h, 4)
                e(f"v_mfma_f32_16x16x32_bf16 {vr(D + 4*h, 4)}, {vr(A,4)}, {vr(B,4)}, {cs}")
    if opt.dbg == 17:
        def mfma(D, A, B, C): pass
    for m in range(3):
        for u in range(2): wread1(0, m, u)
    for x in range(2): xread1(0, x, 0)
    for m in range(3):
        for u in range(2): wread1(1, m, u)
    for s_ in range(1, 4):
        for x in range(2): xread1(0, x, s_)
    initq = init_list()
    NT = 29 if opt.tailopt else 32
    for t in range(NT):
        lc, s_ = t >> 2, t & 3
        if opt.stamps == 2 and t in (4, 8, 12, 16, 20, 24, 28): stamp(f"t{t}")
        if s_ == 2 and lc <= 6:
            a.lgall()
            e("s_barrier")
        a.lgwait(f"wf{t}")
        a.lgwait(f"xr{lc}_{s_}")
        R = [(t + 2, m, u) for m in range(3) for u in range(2)] if t + 2 < 32 else []
        X = [(lc + 1, x, 2 * (s_ - 2) + k) for k in range(2) for x in range(2)] if (s_ >= 2 and lc <= 6) else []
        C = (lambda r: "0") if t == 0 else (lambda r: r)
        xa, xb = XFr(lc, 0, s_), XFr(lc, 1, s_)
        def ini(n):
            if t >= 28:
                for _ in range(n):
                    if initq: e(initq.pop(0))
        mfma(AK(0), WFr(t, 0), xa, C(AK(0)))
        for r in R[0:2]: wread1(*r)
        ini(3)
        mfma(AK(1), WFr(t, 0), xb, C(AK(1)))
        for r in R[2:4]: wread1(*r)
        ini(3)
        mfma(AV(0), xa, WFr(t, 1), C(AV(0)))
        for r in R[4:6]: wread1(*r)
        ini(3)
        mfma(AV(1), xb, WFr(t, 1), C(AV(1)))
        for x in X[0:2]: xread1(*x)
        ini(3)
        mfma(AQ(0), WFr(t, 2), xa, C(AQ(0)))
        for x in X[2:4]: xread1(*x)
        ini(3)
        mfma(AQ(1), WFr(t, 2), xb, C(AQ(1)))
        ini(3)
    if not opt.tailopt:
        while initq: e(initq.pop(0))
    e(f"s_lshl_b32 s{sKVO}, s{sBH}, 6")
    e(f"s_lshl_b32 s{sT2}, s{sC}, 3")
    e(f"s_add_u32 s{sKVO}, s{sKVO}, s{sT2}")
    e(f"s_lshl_b32 s{sT2}, s{sW}, 1")
    e(f"s_add_u32 s{sKVO}, s{sKVO}, s{sT2}")
    e(f"s_lshl_b32 s{sKVO}, s{sKVO}, 12")
    e(f"s_add_u32 s{sKVO}, s{sKVO}, {WS_KV}")
    e(f"s_add_u32 s{sT1}, s{sKVO}, 4096")
    e(f"v_add_u32 v{vK}, s{SXB}, v{vL16}")
    cq = 0.25 * math.log2(math.e)
    e(f"s_mov_b32 s{sT2}, {hex(f32bits(cq))}")
    def k_epi(x, T):
        so = sKVO if x == 0 else sT1
        L = [("e", cvt(T + i, AK(x) + 2 * i, AK(x) + 2 * i + 1)) for i in range(8)]
        L += [("vm", f"buffer_store_dwordx4 {vr(T+4*i,4)}, v{vL16}, {srd(S_WS)}, s{so} offen offset:{i*1024} sc1") for i in range(2)]
        L += [("lg", f"ds_write_b128 v{vK}, {vr(T+4*i,4)} offset:{x*REG+i*1024}") for i in range(2)]
        return L
    def v_epi(x, T):
        so = sKVO if x == 0 else sT1
        L = [("e", cvt(T + i, AV(x) + 2 * i, AV(x) + 2 * i + 1)) for i in range(8)]
        L += [("vm", f"buffer_store_dwordx4 {vr(T+4*i,4)}, v{vL16}, {srd(S_WS)}, s{so} offen offset:{(2+i)*1024} sc1") for i in range(2)]
        L += [("lg", f"ds_write_b128 v{vK}, {vr(T+4*i,4)} offset:{x*REG+(2+i)*1024}") for i in range(2)]
        return L
    def q_epi(x, T):
        L = [("e", f"v_mul_f32 v{AQ(x)+i}, s{sT2}, v{AQ(x)+i}") for i in range(16)]
        L += [("e", cvt(T + i, AQ(x) + 2 * i, AQ(x) + 2 * i + 1)) for i in range(8)]
        L += [("lg", f"ds_write_b128 v{vK}, {vr(T+4*h,4)} offset:{x*REG+8192+h*1024}") for h in range(2)]
        return L
    def emit(items):
        for k, l in items:
            if k == "e": e(l)
            elif k == "vm": a.vmop(l, "kvs")
            else: a.lgop(l, "kvw")
    if opt.tailopt:
        for m in range(3):
            for u in range(2): wread1(31, m, u)
        xs = {t: (XFr(7, 0, t & 3), XFr(7, 1, t & 3)) for t in (29, 30, 31)}
        a.lgwait("wf30")
        for t in (29, 30):
            for x in range(2):
                mfma(AK(x), WFr(t, 0), xs[t][x], AK(x))
                for _ in range(8):
                    if initq: e(initq.pop(0))
        a.lgwait("wf31")
        for x in range(2):
            mfma(AK(x), WFr(31, 0), xs[31][x], AK(x))
            for _ in range(8):
                if initq: e(initq.pop(0))
        while initq: e(initq.pop(0))
        vm_ = [(x, t) for t in (29, 30, 31) for x in range(2)]
        ke = k_epi(0, TKA) + k_epi(1, TKB)
        for n, (x, t) in enumerate(vm_):
            mfma(AV(x), xs[t][x], WFr(t, 1), AV(x))
            if n == 1: e("s_nop 7"); e("s_nop 1")
            if n >= 2: emit(ke[:5]); del ke[:5]
        ve = v_epi(0, TVA) + v_epi(1, TVB)
        qm_ = [(x, t) for t in (29, 30, 31) for x in range(2)]
        for n, (x, t) in enumerate(qm_):
            mfma(AQ(x), WFr(t, 2), xs[t][x], AQ(x))
            if ke: emit(ke[:6]); del ke[:6]
            elif n >= 2: emit(ve[:6]); del ve[:6]
        emit(ke)
        stamp("gemm done")
        e("s_nop 3")
        emit(ve)
        e("s_nop 7")
        emit(q_epi(0, TQA)); emit(q_epi(1, TQB))
    else:
        stamp("gemm done")
        e("s_nop 7")
        emit(k_epi(0, TKA)); emit(k_epi(1, TKB)); emit(v_epi(0, TVA)); emit(v_epi(1, TVB))
        emit(q_epi(0, TQA)); emit(q_epi(1, TQB))
    mfma = mfma_full
    e(f"s_lshl_b32 s{sKVO}, s{sC}, 5")
    e(f"s_add_u32 s{sKVO}, s{sKVO}, s{sBH}")
    e(f"s_lshl_b32 s{sKVO}, s{sKVO}, 7")
    e(f"s_lshl_b32 s{sT3x}, s{sW}, 3")
    e(f"s_add_u32 s{sKVO}, s{sKVO}, s{sT3x}")
    e(f"s_add_u32 s{sKVO}, s{sKVO}, {WS_KVF}")
    if not opt.lfirst: e("s_branch L_B1")
    i_load = len(a.lines)

    a.lab("L_LOADER")
    a.vm = []; a.lg = []
    if opt.lprio: e(f"s_setprio {opt.lprio}")
    sU, SXB2, SWG = sT5, sT4, sH
    e(f"s_sub_u32 s{sU}, s{sW}, 4")
    e(f"v_lshrrev_b32 v13, 2, v0")
    e(f"v_mul_u32_u24 v13, 3072, v13")
    e(f"v_and_b32 v15, 3, v0")
    e(f"v_lshl_add_u32 v13, v15, 4, v13")
    e(f"s_lshl_b32 s{sT1}, s{sHG}, 6")
    e(f"v_add_u32 v{vWO}, s{sT1}, v13")
    e(f"v_lshrrev_b32 v13, 3, v0")
    e(f"v_lshlrev_b32 v13, 10, v13")
    e(f"s_lshl_b32 s{sT1}, s{sC}, 3")
    e(f"s_lshl_b32 s{sT2}, s{sU}, 1")
    e(f"s_add_u32 s{sT1}, s{sT1}, s{sT2}")
    e(f"s_lshl_b32 s{sT1}, s{sT1}, 15")
    e(f"v_add_u32 v13, s{sT1}, v13")
    e(f"v_lshrrev_b32 v15, 4, v0")
    e(f"v_xor_b32 v15, v15, v0")
    e(f"v_and_b32 v15, 7, v15")
    e(f"v_lshl_add_u32 v{vXO}, v15, 4, v13")
    e(f"v_xor_b32 v{vXO+1}, 64, v{vXO}")
    e(f"v_add_u32 v{vXO+2}, 14336, v{vXO}")
    e(f"v_add_u32 v{vXO+3}, 21504, v{vXO+1}")
    e(f"v_add_u32 v{vXO+1}, 7168, v{vXO+1}")
    e(f"s_and_b32 s{sT1}, s{sJ}, 3")
    e(f"s_add_u32 s{sT1}, s{sT1}, s{sN3}")
    if opt.rot == 2:
        e(f"s_and_b32 s{sT0}, s{sT1}, 1")
        e(f"s_lshl_b32 s{sT0}, s{sT0}, 2")
    elif opt.rot == 3:
        e(f"s_and_b32 s{sT0}, s{sJ}, 3")
        e(f"s_lshl_b32 s{sT0}, s{sT0}, 1")
        e(f"s_add_u32 s{sT0}, s{sT0}, s{sN3}")
        e(f"s_and_b32 s{sT0}, s{sT0}, 7")
    else:
        e(f"s_and_b32 s{sT0}, s{sT1}, {3 if opt.rot else 0}")
        e(f"s_lshl_b32 s{sT0}, s{sT0}, 1")
    e("s_waitcnt lgkmcnt(0)")
    mk_w()
    mk(S_X, 40, 41, 2097152)
    SWL, sXK, sWP = 40, 41, 42
    e(f"s_mul_i32 s{SXB2}, s{sU}, {2*REG}")
    e(f"s_mul_i32 s{SWG}, s{sU}, {16*3072}")
    e(f"s_lshl_b32 s{SWL}, s{sU}, 10")
    e(f"s_add_u32 s{SWL}, s{SWL}, {LDS_W}")
    e(f"s_lshl_b32 s{sXK}, s{sT0}, 7")
    MCOL = {0: 1, 1: 2, 2: 0}
    def wo_pf():
        n = 1 if opt.wostride == 128 else 2
        e(f"s_and_b32 s{sT2}, s{sJ}, 15")
        e(f"s_lshl_b32 s{sT2}, s{sT2}, 15")
        e(f"s_lshl_b32 s{sT3x}, s{sU}, 13")
        e(f"s_add_u32 s{sT2}, s{sT2}, s{sT3x}")
        e(f"v_lshlrev_b32 v15, {7 if n == 1 else 6}, v0")
        e(f"s_cmp_lt_u32 s{sJ}, 16")
        e("s_cbranch_scc1 L_WOPF_A")
        e(f"buffer_load_dword v213, v15, {srd(S_WOB)}, s{sT2} offen")
        if n == 2:
            e(f"s_add_u32 s{sT2}, s{sT2}, 4096")
            e(f"buffer_load_dword v214, v15, {srd(S_WOB)}, s{sT2} offen")
        e("s_branch L_WOPF_E")
        a.lab("L_WOPF_A")
        e(f"buffer_load_dword v213, v15, {srd(S_WOA)}, s{sT2} offen")
        if n == 2:
            e(f"s_add_u32 s{sT2}, s{sT2}, 4096")
            e(f"buffer_load_dword v214, v15, {srd(S_WOA)}, s{sT2} offen")
        a.lab("L_WOPF_E")
        a.vm += ["wopf"] * n
    def issue(lc):
        if lc > 0:
            e(f"s_add_u32 s{sXK}, s{sXK}, 128")
            e(f"s_and_b32 s{sXK}, s{sXK}, 1023")
        e(f"s_mul_i32 s{sWP}, s{sXK}, 1536")
        e(f"s_add_u32 s{sWP}, s{sWP}, s{SWG}")
        for m in range(3):
            e(f"s_add_u32 m0, s{SWL}, {(lc%3)*WSLOT + m*4096}")
            e(f"s_add_u32 s{sT3x}, s{sWP}, {MCOL[m]*1024}")
            a.vmop(f"buffer_load_dwordx4 v{vWO}, {srd(S_W)}, s{sT3x} offen lds", f"c{lc}")
        for b in range(2):
            e(f"s_add_u32 m0, s{SXB2}, {b*REG + (lc%3)*4096}")
            e(f"s_add_u32 s{sT3x}, s{sXK}, {b*32768}")
            for i in range(4):
                a.vmop(f"buffer_load_dwordx4 v{vXO+i}, {srd(S_X)}, s{sT3x} offen offset:{i*1024} lds", f"c{lc}")
    def tlb_warm2():
        e(f"s_lshr_b32 s{sT0}, s{sT3}, 2"); e(f"s_lshl_b32 s{sT0}, s{sT0}, 3"); e(f"s_and_b32 s{sT1}, s{sT3}, 3")
        e(f"s_sub_u32 s{sT2}, 7, s{sT1}"); e(f"s_add_u32 s{sT1}, s{sT1}, s{sT0}"); e(f"s_add_u32 s{sT0}, s{sT2}, s{sT0}")
        e(f"s_cmp_eq_u32 s{sU}, 0"); e("s_cbranch_scc0 L_TX1")
        e(f"s_lshl_b32 s{sT2}, s{sC}, 19"); e(f"s_lshl_b32 s{sT3x}, s{sBR}, 15"); e(f"s_add_u32 s{sT2}, s{sT2}, s{sT3x}"); e(f"s_add_u32 s{sT2}, s{sT2}, {WS_O}")
        e(f"v_and_b32 v13, 7, v0"); e(f"v_lshlrev_b32 v13, 16, v13"); e(f"v_add_u32 v13, s{sT2}, v13")
        e(f"s_lshl_b32 s{sT2}, s{sT1}, 16"); e(f"s_add_u32 s{sT2}, s{sT2}, {WS_O}"); e(f"v_writelane_b32 v13, s{sT2}, 8")
        e(f"s_lshl_b32 s{sT2}, s{sT0}, 16"); e(f"s_add_u32 s{sT2}, s{sT2}, {WS_O}"); e(f"v_writelane_b32 v13, s{sT2}, 9")
        e(f"s_lshl_b32 s{sT2}, s{sBH}, 6"); e(f"s_lshl_b32 s{sT3x}, s{sC}, 3"); e(f"s_add_u32 s{sT2}, s{sT2}, s{sT3x}")
        e(f"s_lshl_b32 s{sT2}, s{sT2}, 12"); e(f"s_add_u32 s{sT2}, s{sT2}, {WS_KV}"); e(f"v_writelane_b32 v13, s{sT2}, 10")
        e(f"s_sub_u32 s{sT2}, s{sT2}, 32768"); e(f"s_max_u32 s{sT2}, s{sT2}, {WS_KV}"); e(f"v_writelane_b32 v13, s{sT2}, 11")
        e(f"s_mov_b32 s{sT2}, {WS_OF}"); e(f"v_writelane_b32 v13, s{sT2}, 12")
        e("s_mov_b64 exec, 0x1fff")
        e(f"buffer_load_dword v215, v13, {srd(S_WS)}, 0 offen sc1")
        e(f"buffer_load_dword v214, v13, {srd(S_WS)}, 0 offen offset:128 sc1")
        e("s_branch L_TXE")
        a.lab("L_TX1")
        e(f"s_cmp_eq_u32 s{sU}, 1"); e("s_cbranch_scc0 L_TX2")
        e(f"s_lshl_b32 s{sT2}, s{sT1}, 15"); e(f"v_mov_b32 v13, s{sT2}"); e(f"s_lshl_b32 s{sT2}, s{sT0}, 15"); e(f"v_writelane_b32 v13, s{sT2}, 1")
        e("s_mov_b64 exec, 3")
        e(f"buffer_load_dword v215, v13, {srd(S_OUT)}, 0 offen")
        e(f"v_mov_b32 v13, 0")
        e(f"buffer_load_dword v214, v13, {srd(S_DBG)}, 0 offen sc1")
        e("s_branch L_TXE")
        a.lab("L_TX2")
        e(f"s_cmp_eq_u32 s{sU}, 2"); e("s_cbranch_scc0 L_TX3")
        e(f"v_and_b32 v13, 7, v0"); e(f"v_lshlrev_b32 v13, 16, v13")
        e("s_mov_b64 exec, 0xff")
        e(f"buffer_load_dword v215, v13, {srd(S_WOA)}, 0 offen")
        e(f"buffer_load_dword v214, v13, {srd(S_WOB)}, 0 offen")
        e("s_branch L_TXE")
        a.lab("L_TX3")
        e(f"s_lshl_b32 s{sT2}, s{sT1}, 15"); e(f"v_mov_b32 v13, s{sT2}"); e(f"s_lshl_b32 s{sT2}, s{sT0}, 15"); e(f"v_writelane_b32 v13, s{sT2}, 1")
        e("s_mov_b64 exec, 3")
        e(f"buffer_load_dword v215, v13, {srd(S_X)}, 0 offen")
        e(f"v_mov_b32 v13, 0")
        e(f"buffer_load_dword v214, v13, {srd(S_GW)}, 0 offen")
        a.lab("L_TXE")
        e("s_mov_b64 exec, -1")
        a.vm += ["warm", "warm"]
    def tlb_warm():
        e(f"s_cmp_eq_u32 s{sU}, 0"); e("s_cbranch_scc0 L_TW1")
        e(f"s_lshl_b32 s{sT2}, s{sBH}, 6"); e(f"s_lshl_b32 s{sT3x}, s{sC}, 3"); e(f"s_add_u32 s{sT2}, s{sT2}, s{sT3x}")
        e(f"s_lshl_b32 s{sT2}, s{sT2}, 12"); e(f"s_add_u32 s{sT2}, s{sT2}, {WS_KV}")
        e(f"v_mov_b32 v13, {WS_OF}")
        e(f"v_writelane_b32 v13, s{sT2}, 1")
        e(f"s_lshl_b32 s{sT2}, s{sC}, 19"); e(f"s_add_u32 s{sT2}, s{sT2}, {WS_O}")
        e(f"v_writelane_b32 v13, s{sT2}, 2")
        e(f"s_lshr_b32 s{sT2}, s{sT3}, 2"); e(f"s_lshl_b32 s{sT2}, s{sT2}, 19"); e(f"s_add_u32 s{sT2}, s{sT2}, {WS_O}")
        e(f"v_writelane_b32 v13, s{sT2}, 3")
        e("s_mov_b64 exec, 15")
        e(f"buffer_load_dword v215, v13, {srd(S_WS)}, 0 offen sc1")
        e(f"buffer_load_dword v214, v13, {srd(S_WS)}, 0 offen offset:128 sc1")
        e("s_mov_b64 exec, -1")
        e("s_branch L_TWE")
        a.lab("L_TW1")
        e(f"s_cmp_eq_u32 s{sU}, 1"); e("s_cbranch_scc0 L_TW2")
        e(f"s_lshr_b32 s{sT2}, s{sT3}, 2"); e(f"s_lshl_b32 s{sT2}, s{sT2}, 18")
        e(f"v_mov_b32 v13, 0")
        e("s_mov_b64 exec, 1")
        e(f"buffer_load_dword v215, v13, {srd(S_OUT)}, s{sT2} offen")
        e(f"buffer_load_dword v214, v13, {srd(S_DBG)}, 0 offen sc1")
        e("s_mov_b64 exec, -1")
        e("s_branch L_TWE")
        a.lab("L_TW2")
        e(f"s_cmp_eq_u32 s{sU}, 2"); e("s_cbranch_scc0 L_TW3")
        e(f"v_mov_b32 v13, 0")
        e("s_mov_b64 exec, 1")
        e(f"buffer_load_dword v215, v13, {srd(S_WOA)}, 0 offen")
        e(f"buffer_load_dword v214, v13, {srd(S_WOB)}, 0 offen")
        e("s_mov_b64 exec, -1")
        e("s_branch L_TWE")
        a.lab("L_TW3")
        e(f"v_mov_b32 v13, 0")
        e("s_mov_b64 exec, 1")
        e(f"buffer_load_dword v215, v13, {srd(S_GW)}, 0 offen")
        e(f"buffer_load_dword v214, v13, {srd(S_GW)}, 0 offen offset:128")
        e("s_mov_b64 exec, -1")
        a.lab("L_TWE")
        a.vm += ["warm", "warm"]
    issue(0)
    issue(1)
    mk_rest()
    if opt.warm == 2: tlb_warm()
    e(f"s_or_b32 s{sT1}, s2, s{sU}")
    e(f"s_cmp_lg_u32 s{sT1}, 0")
    e("s_cbranch_scc1 L_NONCE_SKIP0")
    e(f"v_mov_b32 v13, 0")
    e(f"buffer_load_dword v14, v13, {srd(S_WS)}, 0 offen sc1")
    a.lab("L_NONCE_SKIP0")
    stamp("issued")
    a.vmwait("c0")
    e("s_barrier")
    stamp("first data")
    issue(2)
    if opt.warm == 3 or opt.tlb == 1: tlb_warm()
    if opt.tlb == 2: tlb_warm2()
    if opt.warm in (5, 6, 7):
        if opt.warm in (6, 7): e("s_branch L_F5_2")
        e(f"s_cmp_eq_u32 s{sU}, 0"); e("s_cbranch_scc0 L_F5_1")
        e(f"s_lshl_b32 s{sT2}, s{sC}, 5"); e(f"s_lshr_b32 s{sT3x}, s{sBH}, 3"); e(f"s_add_u32 s{sT2}, s{sT2}, s{sT3x}")
        e(f"s_lshl_b32 s{sT2}, s{sT2}, 7"); e(f"s_add_u32 s{sT2}, s{sT2}, {WS_OF}")
        e(f"v_and_b32 v13, 7, v0"); e(f"v_lshlrev_b32 v13, 9, v13")
        e("s_mov_b64 exec, 0xff")
        e(f"buffer_load_dword v215, v13, {srd(S_WS)}, s{sT2} offen sc1")
        e("s_branch L_F5_E")
        a.lab("L_F5_1")
        e(f"s_cmp_eq_u32 s{sU}, 1"); e("s_cbranch_scc0 L_F5_2")
        e(f"s_lshr_b32 s{sT2}, s{sT3}, 2"); e(f"s_lshl_b32 s{sT2}, s{sT2}, 3"); e(f"s_and_b32 s{sT3x}, s{sT3}, 3")
        e(f"s_add_u32 s{sT0}, s{sT2}, s{sT3x}"); e(f"s_sub_u32 s{sT3x}, 7, s{sT3x}"); e(f"s_add_u32 s{sT1}, s{sT2}, s{sT3x}")
        e(f"s_lshl_b32 s{sT0}, s{sT0}, 9"); e(f"s_lshl_b32 s{sT1}, s{sT1}, 9"); e(f"s_sub_u32 s{sT1}, s{sT1}, s{sT0}")
        e(f"s_sub_u32 s{sT1}, s{sT1}, 512"); e(f"s_add_u32 s{sT0}, s{sT0}, {WS_OF}")
        e(f"v_and_b32 v13, 7, v0"); e(f"v_lshlrev_b32 v13, 7, v13"); e(f"v_bfe_u32 v15, v0, 2, 1"); e(f"v_mul_lo_u32 v15, v15, s{sT1}"); e(f"v_add_u32 v13, v13, v15")
        e("s_mov_b64 exec, 0xff")
        e(f"buffer_load_dword v215, v13, {srd(S_WS)}, s{sT0} offen sc1")
        e("s_branch L_F5_E")
        a.lab("L_F5_2")
        if opt.gwpf:
            e(f"s_cmp_eq_u32 s{sU}, 3"); e("s_cbranch_scc0 L_F5_3")
            e(f"v_and_b32 v13, 7, v0"); e(f"v_lshlrev_b32 v13, 7, v13")
            e("s_mov_b64 exec, 0xff")
            e(f"buffer_load_dword v215, v13, {srd(S_GW)}, 0 offen")
            e("s_branch L_F5_E")
            a.lab("L_F5_3")
        e(f"s_lshl_b32 s{sT2}, s{sC}, 5"); e(f"s_add_u32 s{sT2}, s{sT2}, s{sBH}"); e(f"s_lshl_b32 s{sT2}, s{sT2}, 7"); e(f"s_add_u32 s{sT2}, s{sT2}, {WS_KVF - 4096}")
        e(f"v_and_b32 v13, 1, v0"); e(f"v_lshlrev_b32 v13, 12, v13")
        e("s_mov_b64 exec, 3")
        e(f"buffer_load_dword v215, v13, {srd(S_WS)}, s{sT2} offen sc1")
        a.lab("L_F5_E")
        e("s_mov_b64 exec, -1")
        a.vm += ["warm"]
    e(f"s_or_b32 s{sT1}, s2, s{sU}")
    e(f"s_cmp_lg_u32 s{sT1}, 0")
    e("s_cbranch_scc1 L_NONCE_SKIP1")
    e("s_waitcnt vmcnt(11)")
    e(f"v_readfirstlane_b32 s{sT2}, v14")
    e(f"v_mov_b32 v13, 0")
    e("s_nop 3")
    e(f"s_add_u32 s{sT2}, s{sT2}, 1")
    e(f"s_max_u32 s{sT2}, s{sT2}, 1")
    e(f"v_mov_b32 v14, s{sT2}")
    e(f"buffer_store_dword v14, v13, {srd(S_DBG)}, 0 offen sc1")
    e(f"buffer_store_dword v14, v13, {srd(S_WS)}, 0 offen sc1")
    a.lab("L_NONCE_SKIP1")
    a.vmwait("c1")
    e("s_barrier")
    for j in range(6):
        if j + 3 <= 7: issue(j + 3)
        if j + 3 == 7:
            if opt.tagearly:
                e(f"v_mov_b32 v13, 0")
                a.vmop(f"buffer_load_dword v14, v13, {srd(S_DBG)}, 0 offen sc1", "tag")
            if opt.wopf == 1: wo_pf()
            if opt.warm == 1:
                lab = "L_WARM"
                e(f"s_cmp_eq_u32 s{sU}, 0"); e(f"s_cbranch_scc0 {lab}1")
                e(f"s_lshl_b32 s{sT2}, s{sC}, 5"); e(f"s_lshr_b32 s{sT3x}, s{sBH}, 3"); e(f"s_add_u32 s{sT2}, s{sT2}, s{sT3x}")
                e(f"s_lshl_b32 s{sT2}, s{sT2}, 10"); e(f"s_add_u32 s{sT2}, s{sT2}, {WS_OF}")
                e(f"v_lshrrev_b32 v13, 3, v0"); e(f"v_lshlrev_b32 v13, 12, v13"); e(f"v_and_b32 v15, 7, v0"); e(f"v_lshl_add_u32 v13, v15, 7, v13")
                e(f"buffer_load_dword v215, v13, {srd(S_WS)}, s{sT2} offen sc1")
                e(f"s_branch {lab}E")
                a.lab(f"{lab}1")
                e(f"s_cmp_eq_u32 s{sU}, 1"); e(f"s_cbranch_scc0 {lab}2")
                e(f"s_lshl_b32 s{sT2}, s{sC}, 4"); e(f"s_add_u32 s{sT2}, s{sT2}, s{sBR}"); e(f"s_lshl_b32 s{sT2}, s{sT2}, 5")
                e(f"s_lshl_b32 s{sT3x}, s{sHG}, 1"); e(f"s_add_u32 s{sT2}, s{sT2}, s{sT3x}"); e(f"s_lshl_b32 s{sT2}, s{sT2}, 10")
                e(f"s_add_u32 s{sT2}, s{sT2}, {WS_O}")
                e(f"v_lshrrev_b32 v13, 3, v0"); e(f"v_lshlrev_b32 v13, 16, v13"); e(f"v_and_b32 v15, 7, v0"); e(f"v_lshl_add_u32 v13, v15, 8, v13")
                e(f"buffer_load_dword v215, v13, {srd(S_WS)}, s{sT2} offen sc1")
                e(f"s_branch {lab}E")
                a.lab(f"{lab}2")
                e(f"s_cmp_eq_u32 s{sU}, 2"); e(f"s_cbranch_scc0 {lab}3")
                e(f"s_lshl_b32 s{sT2}, s{sC}, 5"); e(f"s_add_u32 s{sT2}, s{sT2}, s{sBH}"); e(f"s_lshl_b32 s{sT2}, s{sT2}, 7")
                e(f"s_add_u32 s{sT2}, s{sT2}, {WS_KVF}")
                e(f"v_mov_b32 v13, 0")
                e(f"buffer_load_dword v215, v13, {srd(S_WS)}, s{sT2} offen sc1")
                e(f"s_branch {lab}E")
                a.lab(f"{lab}3")
                e(f"s_lshr_b32 s{sT2}, s{sT3}, 2"); e(f"s_lshl_b32 s{sT2}, s{sT2}, 18"); e(f"s_lshl_b32 s{sT3x}, s{sN3}, 7"); e(f"s_add_u32 s{sT2}, s{sT2}, s{sT3x}")
                e(f"v_lshlrev_b32 v13, 12, v0")
                e(f"buffer_load_dword v215, v13, {srd(S_OUT)}, s{sT2} offen")
                a.lab(f"{lab}E")
                a.vm += ["warm"]
        if j + 2 <= 7: a.vmwait(f"c{j+2}")
        e("s_barrier")
    stamp("gemm done")
    if opt.lprio: e("s_setprio 0")
    if opt.wopf == 2: wo_pf()
    for l in init_list(): e(l)
    for i in range(32): e(f"v_mov_b32 v{OA+i}, 0")
    if opt.mke:
        e(f"s_mov_b32 s{sT2}, 0xff800000")
        for r in range(16): e(f"v_xor_b32 v{MKE+r}, s{sT2}, v{MK+r}")
    e(f"s_cmp_lg_u32 s{sU}, 0")
    e("s_cbranch_scc1 L_B1")
    e(f"s_mov_b32 s{sSPIN}, 0")
    e(f"v_mov_b32 v15, 0")
    if not opt.tagearly:
        e(f"buffer_load_dword v14, v15, {srd(S_DBG)}, 0 offen sc1")
    else:
        a.vmwait("tag")
        e("s_branch L_TAG_CHK")
    a.lab("L_TAG_LOOP")
    e("s_waitcnt vmcnt(0)")
    a.lab("L_TAG_CHK")
    e(f"s_add_u32 s{sSPIN}, s{sSPIN}, 1")
    e(f"v_readfirstlane_b32 s{sTAG}, v14")
    e("s_nop 3")
    e(f"s_cmp_lg_u32 s{sTAG}, 0")
    e("s_cbranch_scc1 L_TAG_OK")
    e(f"s_cmp_gt_u32 s{sSPIN}, {opt.spin}")
    e("s_cbranch_scc1 L_TAG_OK")
    e(f"buffer_load_dword v14, v15, {srd(S_DBG)}, 0 offen sc1")
    e("s_branch L_TAG_LOOP")
    a.lab("L_TAG_OK")
    e(f"v_mov_b32 v15, {LDS_TAG}")
    e(f"ds_write_b32 v15, v14")
    if opt.lfirst:
        e("s_branch L_B1")
        comp = a.lines[i_comp:i_load]; load = a.lines[i_load:]
        a.lines = a.lines[:i_comp] + load + comp
    a.lab("L_B1")
    a.vm = []; a.lg = []
    e("s_waitcnt lgkmcnt(0)")
    e("s_barrier")
    stamp("B1")
    e(f"v_mov_b32 v15, {LDS_TAG}")
    e(f"ds_read_b32 v14, v15")
    e(f"s_mul_i32 s{sT2}, s{sTAU}, {REG}")
    e(f"v_add_u32 v13, s{sT2}, v{vL16}")
    for h in range(2):
        e(f"ds_read_b128 {vr(QF+4*h,4)}, v13 offset:{8192+h*1024}")

    def kread(h, extra=0): e(f"ds_read_b128 {vr(KF+4*h,4)}, v{vK} offset:{h*1024+extra}")
    def vreads(h, extra=0):
        e(f"s_mov_b64 exec, s[{sVM}:{sVM+1}]")
        for s in range(2):
            e(f"ds_read_b128 {vr(VF+8*h+4*s,4)}, v{vK} offset:{2048+s*1024+h*256+extra}")
        e("s_mov_b64 exec, -1")
    def seg(h, prev, nxt, kx=0, vx=0):
        o = 1 - h
        S = SS + 16 * h; O = OA + 16 * h
        ex = lambda i: e(f"v_exp_f32 v{S+i}, v{S+i}")
        ex(0); ex(1)
        if prev: mfma(OA + 16 * o, VF + 8 * o + 4, PP + 4, OA + 16 * o)
        ex(2); ex(3)
        if nxt: vreads(o, vx)
        ex(4); ex(5)
        if nxt:
            mfma(SS + 16 * o, KF + 4 * o, QF + 4 * o, "0")
            kread(o, kx)
        ex(6); ex(7)
        for i in range(4): e(cvt(PP + i, S + 2 * i, S + 2 * i + 1))
        ex(8)
        e(f"s_waitcnt lgkmcnt({3 if nxt else 0})")
        ex(9)
        mfma(O, VF + 8 * h, PP, O)
        for i in range(10, 16): ex(i)
        for i in range(4, 8): e(cvt(PP + i, S + 2 * i, S + 2 * i + 1))
    def part(name, first_s, rest_s, cnt_s, hook=None):
        MKx = MK if name == "OWN" or not opt.mke else MKE
        a.c(f"---- attention part {name} ----")
        e(f"v_add_u32 v{vK}, s{first_s}, v{vL16}")
        kread(0); kread(1)
        e(f"s_sub_u32 s{sT2}, s{rest_s}, s{first_s}")
        e(f"s_mov_b32 s{sCNT}, s{cnt_s}")
        e("s_waitcnt lgkmcnt(0)")
        if name == "OWN": e(f"v_readfirstlane_b32 s{sTAG}, v14")
        mfma(SS, KF, QF, MKx)
        mfma(SS + 16, KF + 4, QF + 4, MKx)
        vreads(0); vreads(1)
        e(f"v_add_u32 v{vK}, s{sT2}, v{vK}")
        kread(0); kread(1)
        e("s_waitcnt lgkmcnt(2)")
        seg(0, prev=False, nxt=False)
        if hook: hook()
        e(f"s_cmp_eq_u32 s{sCNT}, 0")
        e(f"s_cbranch_scc1 L_{name}_LAST")
        e(f"s_sub_u32 s{sCNT}, s{sCNT}, 1")
        a.lab(f"L_{name}_LOOP")
        seg(1, prev=True, nxt=True, kx=REG, vx=0)
        seg(0, prev=True, nxt=True, kx=REG, vx=0)
        e(f"v_add_u32 v{vK}, {REG}, v{vK}")
        e(f"s_sub_u32 s{sCNT}, s{sCNT}, 1")
        e(f"s_cbranch_scc0 L_{name}_LOOP")
        a.lab(f"L_{name}_LAST")
        seg(1, prev=True, nxt=False)
        e("s_nop 1")
        mfma(OA + 16, VF + 12, PP + 4, OA + 16)
    def kvflag():
        e("s_waitcnt vmcnt(0)")
        e(f"v_lshlrev_b32 v13, 2, v0")
        e(f"v_mov_b32 v14, s{sTAG}")
        e("s_mov_b64 exec, 3")
        e(f"buffer_store_dword v14, v13, {srd(S_WS)}, s{sKVO} offen sc1")
        e("s_mov_b64 exec, -1")
    a.vm = []
    e(f"s_mul_i32 s{sT0}, s{sTAU}, {REG}")
    e(f"s_mov_b32 s{sT1}, 0")
    def hook():
        e(f"s_cmp_ge_u32 s{sW}, 4")
        e("s_cbranch_scc1 L_KVF_DONE")
        kvflag()
        a.lab("L_KVF_DONE")
    if opt.prio == 2:
        e(f"s_cmp_lt_u32 s{sW}, 4")
        e("s_cbranch_scc1 L_PRIO_SKIP")
        e("s_setprio 1")
        a.lab("L_PRIO_SKIP")
    part("OWN", sT0, sT1, sTAU, hook=hook)
    stamp("own done")
    def gate_loads():
        if opt.gate4:
            e(f"s_and_b32 s{sT2}, s{sT3}, 3")
            e(f"s_sub_u32 s{sT3x}, 7, s{sT2}")
            e(f"s_cmp_lt_u32 s{sQ}, 2")
            e(f"s_cselect_b32 s{sT2}, s{sT2}, s{sT3x}")
            e(f"s_lshr_b32 s{sT3x}, s{sT3}, 2")
            e(f"s_lshl_b32 s{sT3x}, s{sT3x}, 3")
            e(f"s_add_u32 s{sT2}, s{sT2}, s{sT3x}")
            e(f"s_lshl_b32 s{sT2}, s{sT2}, 15")
            e(f"s_and_b32 s{sT3x}, s{sQ}, 1")
            e(f"s_lshl_b32 s{sT3x}, s{sT3x}, 14")
            e(f"s_add_u32 s{sT2}, s{sT2}, s{sT3x}")
            n = 16
        else:
            e(f"s_lshl_b32 s{sT2}, s{sTT3}, 15")
            e(f"s_lshl_b32 s{sT3x}, s{sQ}, 13")
            e(f"s_add_u32 s{sT2}, s{sT2}, s{sT3x}")
            n = 8
        e(f"buffer_load_dwordx4 {vr(GW,4)}, v{vL16}, {srd(S_GW)}, 0 offen")
        for i in range(n):
            e(f"buffer_load_dwordx4 {vr(GX+4*i,4)}, v{vL16}, {srd(S_X)}, s{sT2} offen offset:{(i&3)*1024}")
            if (i & 3) == 3 and i < n - 1: e(f"s_add_u32 s{sT2}, s{sT2}, 4096")
    def prefill():
        if not opt.sent: return
        for i in range(4): e(f"v_mov_b32 v{128+i}, -1")
        e(f"s_lshl_b32 s{sT2}, s{sTT}, 1")
        e(f"s_add_u32 s{sT2}, s{sT2}, s{sBR}")
        e(f"s_lshl_b32 s{sT2}, s{sT2}, 5")
        e(f"s_lshl_b32 s{sT3x}, s{sHG}, 1")
        e(f"s_add_u32 s{sT2}, s{sT2}, s{sT3x}")
        e(f"s_lshl_b32 s{sT2}, s{sT2}, 10")
        e(f"s_add_u32 s{sT2}, s{sT2}, {WS_O}")
        for h in range(2):
            e(f"buffer_store_dwordx4 v[128:131], v{vL16}, {srd(S_WS)}, s{sT2} offen offset:{h*1024} sc1")
    def wo_voff():
        e(f"v_lshrrev_b32 v13, 3, v0")
        e(f"v_lshlrev_b32 v13, 10, v13")
        e(f"v_bfe_u32 v15, v0, 4, 1")
        e(f"v_lshlrev_b32 v15, 2, v15")
        e(f"v_xor_b32 v15, v15, v0")
        e(f"v_and_b32 v15, 7, v15")
        e(f"v_lshl_add_u32 v14, v15, 4, v13")
    def wo_dma(S, heads, kh, ldsaddr):
        for i in heads:
            sg, cst = ldsaddr(i)
            for hf in range(2):
                e(f"s_add_u32 s{sT3x}, s{sT5}, {(256*kh + 16*i + 8*hf)*1024}")
                e(f"s_add_u32 m0, s{sg}, {cst + hf*1024}")
                e("s_nop 0")
                e(f"buffer_load_dwordx4 v14, {srd(S)}, s{sT3x} offen lds")
    def wo_lin(S, sg, sl, n):
        e(f"s_mov_b32 m0, s{sl}")
        e("s_nop 0")
        for i in range(n):
            e(f"buffer_load_dwordx4 v14, {srd(S)}, s{sg} offen lds")
            if i < n - 1:
                e(f"s_add_u32 m0, m0, 1024")
                e(f"s_add_u32 s{sg}, s{sg}, 8192")
    def wo_early():
        wo_voff()
        e(f"s_lshl_b32 s{sT5}, s{sN3}, 7")
        e(f"s_and_b32 s{sT0}, s{sTAU}, 1")
        e(f"s_lshl_b32 s{sT0}, s{sT0}, 18")
        e(f"s_add_u32 s{sT0}, s{sT0}, s{sT5}")
        e(f"s_lshl_b32 s{sT1}, s{sTAU}, 14")
        e(f"s_add_u32 s{sT1}, s{sT1}, {LDS_A0}")
        lab = f"L_WE_{opt._n}"; opt._n += 1
        e(f"s_cmp_ge_u32 s{sTAU}, 2")
        e(f"s_cbranch_scc1 {lab}_B")
        e(f"s_mov_b32 s{sT4}, s{sT0}")
        wo_lin(S_WOA, sT4, sT1, 16)
        e(f"s_branch {lab}_E")
        a.lab(f"{lab}_B")
        e(f"s_mov_b32 s{sT4}, s{sT0}")
        wo_lin(S_WOB, sT4, sT1, 16)
        a.lab(f"{lab}_E")
    def halo_poll_load():
        n = opt._n; opt._n += 1
        e(f"s_sub_u32 s{sT2}, s{sC}, 1")
        e(f"s_lshl_b32 s{sT3x}, s{sT2}, 5")
        e(f"s_add_u32 s{sT3x}, s{sT3x}, s{sBH}")
        e(f"s_lshl_b32 s{sT3x}, s{sT3x}, 7")
        e(f"s_lshl_b32 s{sT4}, s{sTAU}, 3")
        e(f"s_add_u32 s{sT3x}, s{sT3x}, s{sT4}")
        e(f"s_add_u32 s{sT3x}, s{sT3x}, {WS_KVF}")
        e(f"v_and_b32 v13, 1, v0")
        e(f"v_lshlrev_b32 v13, 2, v13")
        e(f"s_mov_b32 s{sSPIN}, 0")
        a.lab(f"L_KVF_LOOP{n}")
        e(f"buffer_load_dword v15, v13, {srd(S_WS)}, s{sT3x} offen sc1")
        e(f"s_add_u32 s{sSPIN}, s{sSPIN}, 1")
        e("s_waitcnt vmcnt(0)")
        e(f"v_cmp_ne_u32 vcc, s{sTAG}, v15")
        e(f"s_cmp_gt_u32 s{sSPIN}, {opt.spin}")
        e(f"s_cbranch_scc1 L_KVF_OK{n}")
        e(f"s_cbranch_vccnz L_KVF_LOOP{n}")
        a.lab(f"L_KVF_OK{n}")
        stamp("roleA")
        e(f"s_lshl_b32 s{sT3x}, s{sBH}, 6")
        e(f"s_lshl_b32 s{sT2}, s{sT2}, 3")
        e(f"s_add_u32 s{sT3x}, s{sT3x}, s{sT2}")
        e(f"s_lshl_b32 s{sT2}, s{sTAU}, 1")
        e(f"s_add_u32 s{sT3x}, s{sT3x}, s{sT2}")
        e(f"s_lshl_b32 s{sT3x}, s{sT3x}, 12")
        e(f"s_add_u32 s{sT3x}, s{sT3x}, {WS_KV}")
        for j in range(2):
            for i in range(4):
                e(f"buffer_load_dwordx4 {vr(HT+16*j+4*i,4)}, v{vL16}, {srd(S_WS)}, s{sT3x} offen offset:{i*1024} sc1")
            if j < 1: e(f"s_add_u32 s{sT3x}, s{sT3x}, 4096")
    def halo_write(younger):
        e(f"s_mul_i32 s{sT2}, s{sTAU}, {2*REG}")
        e(f"s_add_u32 s{sT2}, s{sT2}, 4096")
        e(f"v_add_u32 v13, s{sT2}, v{vL16}")
        for j in range(2):
            e(f"s_waitcnt vmcnt({younger+4-4*j})")
            for i in range(4):
                e(f"ds_write_b128 v13, {vr(HT+16*j+4*i,4)} offset:{j*REG+i*1024}")
    opt._n = 0
    ool = []
    NE = 16
    NG = 0 if opt.gate4 else 9
    e(f"s_cmp_gt_u32 s{sTAU}, 3")
    e("s_cbranch_scc0 L_ROLE_LO")
    if opt.sent == 2: prefill()
    if not opt.ool: e("s_branch L_HALO_BAR")
    i_ool3 = len(a.lines)
    a.lab("L_ROLE_LO")
    if opt.mke:
        e(f"s_mov_b32 s{sT2}, 0xff800000")
        for r in range(16): e(f"v_xor_b32 v{MKE+r}, s{sT2}, v{MK+r}")
    e(f"s_cmp_eq_u32 s{sC}, 0")
    e("s_cbranch_scc1 L_ROLE_C0")
    e(f"s_cmp_gt_u32 s{sTAU}, 1")
    e("s_cbranch_scc1 L_ROLE_HI")
    wo_early()
    halo_poll_load()
    if not opt.gate4: gate_loads()
    halo_write(NG)
    e("s_waitcnt lgkmcnt(0)")
    stamp("roleB")
    e("s_branch L_HALO_BAR")
    a.lab("L_ROLE_HI")
    halo_poll_load()
    wo_early()
    if not opt.gate4: gate_loads()
    halo_write(NE + NG)
    e(f"s_waitcnt vmcnt({NG}) lgkmcnt(0)")
    stamp("roleB")
    e("s_branch L_HALO_BAR")
    a.lab("L_ROLE_C0")
    wo_early()
    if not opt.gate4: gate_loads()
    e(f"s_waitcnt vmcnt({NG})")
    if opt.ool:
        e("s_branch L_HALO_BAR")
        ool.append(a.lines[i_ool3:]); del a.lines[i_ool3:]
    a.lab("L_HALO_BAR")
    if not opt.mke:
        e(f"s_mov_b32 s{sT2}, 0xff800000")
        for r in range(16): e(f"v_xor_b32 v{MK+r}, s{sT2}, v{MK+r}")
    e("s_barrier")
    stamp("B2")
    e(f"s_cmp_ge_u32 s{sTAU}, 4")
    e("s_cbranch_scc1 L_LATE_S")
    prefill()
    i_ool1 = len(a.lines)
    if not opt.ool: e("s_branch L_LATE_E")
    a.lab("L_LATE_S")
    if opt.warm in (4, 6, 7):
        assert not opt.rep
        e(f"s_cmp_eq_u32 s{sW}, 4"); e("s_cbranch_scc0 L_FW_E")
        e(f"s_lshl_b32 s{sT2}, s{sC}, 5"); e(f"s_lshr_b32 s{sT3x}, s{sBH}, 3"); e(f"s_add_u32 s{sT2}, s{sT2}, s{sT3x}")
        e(f"s_lshl_b32 s{sT2}, s{sT2}, 7"); e(f"s_add_u32 s{sT2}, s{sT2}, {WS_OF}")
        e(f"v_lshlrev_b32 v13, 9, v0"); e(f"v_add_u32 v13, s{sT2}, v13")
        e("s_mov_b64 exec, 0xff")
        e(f"buffer_load_dword v215, v13, {srd(S_WS)}, 0 offen sc1")
        e("s_mov_b64 exec, -1")
        e(f"s_lshr_b32 s{sT2}, s{sT3}, 2"); e(f"s_lshl_b32 s{sT2}, s{sT2}, 3"); e(f"s_and_b32 s{sT3x}, s{sT3}, 3")
        e(f"s_add_u32 s{sT0}, s{sT2}, s{sT3x}"); e(f"s_sub_u32 s{sT3x}, 7, s{sT3x}"); e(f"s_add_u32 s{sT1}, s{sT2}, s{sT3x}")
        e(f"s_lshl_b32 s{sT0}, s{sT0}, 9"); e(f"s_lshl_b32 s{sT1}, s{sT1}, 9")
        e(f"s_add_u32 s{sT0}, s{sT0}, {WS_OF}"); e(f"s_add_u32 s{sT1}, s{sT1}, {WS_OF}")
        e(f"v_lshlrev_b32 v13, 7, v0")
        e("s_mov_b64 exec, 15")
        e(f"buffer_load_dword v215, v13, {srd(S_WS)}, s{sT0} offen sc1")
        e(f"buffer_load_dword v214, v13, {srd(S_WS)}, s{sT1} offen sc1")
        e("s_mov_b64 exec, -1")
        a.lab("L_FW_E")
        if opt.warm == 7:
            e(f"s_cmp_eq_u32 s{sW}, 5"); e("s_cbranch_scc0 L_FW_F")
            e(f"s_lshr_b32 s{sT2}, s{sT3}, 2"); e(f"s_lshl_b32 s{sT2}, s{sT2}, 3"); e(f"s_and_b32 s{sT3x}, s{sT3}, 3")
            e(f"s_add_u32 s{sT0}, s{sT2}, s{sT3x}"); e(f"s_sub_u32 s{sT3x}, 7, s{sT3x}"); e(f"s_add_u32 s{sT1}, s{sT2}, s{sT3x}")
            e(f"s_sub_u32 s{sT1}, s{sT1}, s{sT0}"); e(f"s_sub_u32 s{sT1}, s{sT1}, 1"); e(f"s_lshl_b32 s{sT1}, s{sT1}, 15")
            e(f"s_lshl_b32 s{sT0}, s{sT0}, 15"); e(f"s_lshl_b32 s{sT3x}, s{sN3}, 7"); e(f"s_add_u32 s{sT0}, s{sT0}, s{sT3x}")
            e(f"v_lshlrev_b32 v13, 10, v0"); e(f"v_lshrrev_b32 v15, 5, v0"); e(f"v_mul_lo_u32 v15, v15, s{sT1}"); e(f"v_add_u32 v13, v13, v15")
            e(f"buffer_load_dword v215, v13, {srd(S_OUT)}, s{sT0} offen")
            a.lab("L_FW_F")
    wo_voff()
    e(f"s_sub_u32 s{sT2}, 7, s{sTAU}")
    e(f"s_lshl_b32 s{sT5}, s{sN3}, 7")
    e(f"s_and_b32 s{sT0}, s{sT2}, 1")
    e(f"s_lshl_b32 s{sT0}, s{sT0}, 18")
    e(f"s_add_u32 s{sT0}, s{sT0}, s{sT5}")
    e(f"s_add_u32 s{sT0}, s{sT0}, {128*1024}")
    e(f"s_mul_i32 s{sT1}, s{sT2}, {2*REG}")
    def late(S):
        for (reg, slot) in ((0, 8192), (1, 8192), (0, 0), (1, 0)):
            e(f"s_add_u32 s{sT3x}, s{sT1}, {reg*REG + slot}")
            wo_lin(S, sT0, sT3x, 4)
            e(f"s_add_u32 s{sT0}, s{sT0}, 8192")
    e(f"s_cmp_ge_u32 s{sT2}, 2")
    e("s_cbranch_scc1 L_LATE_B")
    late(S_WOA)
    e("s_branch L_LATE_G")
    a.lab("L_LATE_B")
    late(S_WOB)
    a.lab("L_LATE_G")
    gate_loads()
    if opt.prio: e("s_setprio 1")
    if opt.ool:
        e("s_branch L_LATE_E")
        ool.append(a.lines[i_ool1:]); del a.lines[i_ool1:]
    a.lab("L_LATE_E")
    e(f"s_cmp_eq_u32 s{sC}, 0")
    e("s_cbranch_scc1 L_P2_EPI")
    e(f"s_mul_i32 s{sT0}, s{sTAU}, {REG}")
    e(f"s_add_u32 s{sT0}, s{sT0}, 4096")
    e(f"s_add_u32 s{sT1}, s{sT0}, {REG}")
    e(f"s_sub_u32 s{sT4}, 7, s{sTAU}")
    part("HALO", sT0, sT1, sT4)
    a.lab("L_P2_EPI")
    stamp("attn done")
    lo, hi = f32bits(2.0 ** -64), f32bits(2.0 ** 64)
    e(f"s_mov_b32 s{sT0}, {hex(lo)}")
    e(f"s_mov_b32 s{sT1}, {hex(hi)}")
    e(f"s_lshl_b32 s{sKVO}, s{sTT}, 1")
    e(f"s_add_u32 s{sKVO}, s{sKVO}, s{sBR}")
    e(f"s_lshl_b32 s{sKVO}, s{sKVO}, 5")
    e(f"s_lshl_b32 s{sT3x}, s{sHG}, 1")
    e(f"s_add_u32 s{sKVO}, s{sKVO}, s{sT3x}")
    e(f"s_lshl_b32 s{sKVO}, s{sKVO}, 10")
    e(f"s_add_u32 s{sKVO}, s{sKVO}, {WS_O}")
    e(f"s_lshl_b32 s{sT2}, s{sTT}, 2")
    e(f"s_lshr_b32 s{sT3x}, s{sBH}, 3")
    e(f"s_add_u32 s{sT2}, s{sT2}, s{sT3x}")
    e(f"s_lshl_b32 s{sT2}, s{sT2}, {10 if opt.rep else 7}")
    e(f"s_and_b32 s{sT3x}, s{sBH}, 7")
    e(f"s_lshl_b32 s{sT3x}, s{sT3x}, 2")
    e(f"s_add_u32 s{sT2}, s{sT2}, s{sT3x}")
    e(f"s_add_u32 s{sOFA}, s{sT2}, {WS_OF}")
    e("s_nop 2")
    if opt.fallback:
        for h in range(2):
            O = OA + 16 * h
            e(f"v_mul_f32 v13, 0, v{O}")
            for i in range(1, 8): e(f"v_fmac_f32 v13, 0, v{O+i}")
            e(f"v_cmp_nle_f32 vcc, s{sT0}, v{O+8}")
            e(f"s_mov_b64 s[74:75], vcc")
            e(f"v_cmp_nge_f32 vcc, s{sT1}, v{O+8}")
            e("s_or_b64 s[74:75], s[74:75], vcc")
            e(f"v_cmp_u_f32 vcc, v13, v13")
            e("s_or_b64 s[74:75], s[74:75], vcc")
            e("s_cmp_lg_u64 s[74:75], 0")
            e(f"s_cselect_b32 s{sT2}, {1<<h}, 0")
            e(f"s_or_b32 s{sFAIL}, s{sFAIL}, s{sT2}")
        if opt.forcefb: e(f"s_or_b32 s{sFAIL}, s{sFAIL}, {opt.forcefb}")
        e(f"s_cmp_lg_u32 s{sFAIL}, 0")
        e("s_cbranch_scc1 L_FB_ENTRY")
        a.lab("L_NOFB")
    else:
        e("s_nop 7")
    if opt.sent:
        e(f"s_cmp_ge_u32 s{sW}, 4")
        e("s_cbranch_scc1 L_NOSENT0")
        e("s_waitcnt vmcnt(0)")
        e("s_branch L_NOSENT")
        a.lab("L_NOSENT0")
        if opt.sent == 2: e("s_waitcnt vmcnt(25)")
        a.lab("L_NOSENT")
    for h in range(2):
        e(f"v_rcp_f32 v{13+h}, v{OA+16*h+8}")
    for h in range(2):
        O = OA + 16 * h
        for i in range(8): e(f"v_mul_f32 v{O+i}, v{O+i}, v{13+h}")
        for i in range(4): e(cvt(O + 8 + i, O + 2 * i, O + 2 * i + 1))
        if opt.sent:
            for i in range(4): e(f"v_min_u32 v{O+8+i}, -2, v{O+8+i}")
        e(f"buffer_store_dwordx4 {vr(O+8,4)}, v{vL16}, {srd(S_WS)}, s{sKVO} offen offset:{h*1024} sc1")
    if opt.sent:
        if opt.sent != 2:
            e(f"s_cmp_ge_u32 s{sW}, 4")
            e("s_cbranch_scc1 L_NOHINT")
        e(f"v_lshlrev_b32 v13, 7, v0")
        e(f"v_mov_b32 v14, s{sTAG}")
        e(f"s_mov_b64 exec, {'0xff' if opt.rep else 1}")
        e(f"buffer_store_dword v14, v13, {srd(S_WS)}, s{sOFA} offen sc1")
        e("s_mov_b64 exec, -1")
        stamp("O published")
        a.lab("L_NOHINT")
    WF3, OF3, AC3 = 16, 144, 208
    e(f"v_lshrrev_b32 v1, 5, v0")
    e(f"v_lshlrev_b32 v1, 9, v1")
    e(f"v_bfe_u32 v2, v0, 2, 2")
    e(f"v_lshl_add_u32 v1, v2, 7, v1")
    e(f"v_bfe_u32 v2, v0, 3, 1")
    e(f"v_lshl_add_u32 v1, v2, 6, v1")
    e(f"v_bfe_u32 v2, v0, 4, 1")
    e(f"v_lshl_add_u32 v1, v2, 5, v1")
    e(f"v_and_b32 v2, 3, v0")
    e(f"v_lshl_add_u32 v1, v2, 3, v1")
    e(f"s_lshl_b32 s{sT2}, s{sQ}, 14")
    e(f"s_add_u32 s{sT2}, s{sT2}, {LDS_A0}")
    e(f"s_mul_i32 s{sT3x}, s{sQ}, {2*REG}")
    e(f"v_xor_b32 v2, 64, v1")
    vA = [244, 245]; vB = [246, 247]
    e(f"v_add_u32 v{vA[0]}, s{sT2}, v1")
    e(f"v_add_u32 v{vA[1]}, s{sT2}, v2")
    e(f"v_add_u32 v{vB[0]}, s{sT3x}, v1")
    e(f"v_add_u32 v{vB[1]}, s{sT3x}, v2")
    def trw(i):
        for ct in range(2):
            for u in range(2):
                if i < 8: ad, off = vA[ct], i * 2048
                elif i < 12: ad, off = vB[ct], ((i - 8) >> 1) * REG + 8192 + ((i - 8) & 1) * 2048
                else: ad, off = vB[ct], ((i - 12) >> 1) * REG + ((i - 12) & 1) * 2048
                e(f"ds_read_b64_tr_b16 {vr(WF3+8*i+4*ct+2*u,2)}, v{ad} offset:{off+u*1024}")
    for i in range(8): trw(i)
    e(f"s_lshl_b32 s{sT1}, s{sTT3}, 2")
    e(f"s_add_u32 s{sT1}, s{sT1}, s{sQ}")
    if opt.rep:
        e(f"s_lshl_b32 s{sT1}, s{sT1}, 3")
        e(f"s_add_u32 s{sT1}, s{sT1}, s{sN3}")
    e(f"s_lshl_b32 s{sT1}, s{sT1}, 7")
    e(f"s_add_u32 s{sT1}, s{sT1}, {WS_OF}")
    e(f"s_lshl_b32 s{sT0}, s{sTT3}, 1")
    e(f"s_add_u32 s{sT0}, s{sT0}, s{sB3}")
    e(f"s_lshl_b32 s{sT0}, s{sT0}, 5")
    e(f"s_lshl_b32 s{sT3x}, s{sKH}, 4")
    e(f"s_add_u32 s{sT0}, s{sT0}, s{sT3x}")
    e(f"s_lshl_b32 s{sT0}, s{sT0}, 10")
    e(f"s_add_u32 s{sT0}, s{sT0}, {WS_O}")
    def oflag(wait=True):
        e(f"v_lshlrev_b32 v13, 7, v0")
        e(f"v_mov_b32 v14, s{sTAG}")
        if wait: e("s_waitcnt vmcnt(0)")
        e(f"s_mov_b64 exec, {'0xff' if opt.rep else 1}")
        e(f"buffer_store_dword v14, v13, {srd(S_WS)}, s{sOFA} offen sc1")
        e("s_mov_b64 exec, -1")
        stamp("O published")
    GR = 236
    def gate_round(gx, g_out, g1_out):
        for i in range(8): e(f"v_mov_b32 v{GA+i}, 0")
        for d in range(4):
            for i in range(8):
                e(f"v_dot2_f32_bf16 v{GA+i}, v{gx+4*i+d}, v{GW+d}, v{GA+i}")
        e("s_nop 4")
        for i in range(4): e(f"v_permlane32_swap_b32 v{GA+i}, v{GA+4+i}")
        for i in range(4): e(f"v_add_f32 v{GA+i}, v{GA+i}, v{GA+4+i}")
        e("s_nop 1")
        for i in range(2): e(f"v_permlane16_swap_b32 v{GA+i}, v{GA+2+i}")
        for i in range(2): e(f"v_add_f32 v{GA+i}, v{GA+i}, v{GA+2+i}")
        e("s_nop 1")
        for i in range(2): e(f"v_add_f32_dpp v{GA+i}, v{GA+i}, v{GA+i} row_ror:8 row_mask:0xf bank_mask:0xf")
        e("s_nop 1")
        e(f"v_mov_b32_dpp v{GA}, v{GA+1} quad_perm:[0,1,2,3] row_mask:0xf bank_mask:0xc")
        e("s_nop 1")
        e(f"v_add_f32_dpp v15, v{GA}, v{GA} quad_perm:[1,0,3,2] row_mask:0xf bank_mask:0xf")
        e("s_nop 1")
        e("v_add_f32_dpp v15, v15, v15 quad_perm:[2,3,0,1] row_mask:0xf bank_mask:0xf")
        e("s_nop 1")
        e("v_add_f32_dpp v15, v15, v15 row_half_mirror row_mask:0xf bank_mask:0xf")
        e("v_cvt_pk_bf16_f32 v15, v15, v15")
        e("v_and_b32 v15, 0xffff0000, v15")
        e(f"v_mul_f32 v15, {hex(f32bits(-math.log2(math.e)))}, v15")
        e("v_exp_f32 v15, v15")
        e("s_nop 0")
        e("v_add_f32 v15, 1.0, v15")
        e("v_rcp_f32 v15, v15")
        e("s_nop 0")
        e("v_cvt_pk_bf16_f32 v15, v15, v15")
        e(f"v_and_b32 v{g_out}, 0xffff0000, v15")
        e(f"v_sub_f32 v15, 1.0, v{g_out}")
        e("v_cvt_pk_bf16_f32 v15, v15, v15")
        e(f"v_and_b32 v{g1_out}, 0xffff0000, v15")
    def gate():
        if opt.gate4:
            gate_round(GX, GR, GR + 1); gate_round(GX + 32, GR + 2, GR + 3)
        else:
            gate_round(GX, GR, GR + 1)
    def gate_write():
        e(f"v_lshrrev_b32 v15, 3, v0")
        if opt.gate4:
            e(f"s_lshl_b32 s{sT2}, s{sQ}, 4")
        else:
            e(f"s_lshl_b32 s{sT2}, s{sW}, 3")
        e(f"v_add_u32 v15, s{sT2}, v15")
        e(f"v_lshlrev_b32 v15, 2, v15")
        e(f"ds_write_b32 v15, v{GR} offset:{LDS_GATE}")
        e(f"ds_write_b32 v15, v{GR+1} offset:{LDS_GATE+256}")
        if opt.gate4:
            e(f"ds_write_b32 v15, v{GR+2} offset:{LDS_GATE+32}")
            e(f"ds_write_b32 v15, v{GR+3} offset:{LDS_GATE+256+32}")
    def poll(name, first_issued, sleep):
        e(f"s_mov_b32 s{sSPIN}, 0")
        if not first_issued:
            e(f"buffer_load_dword v14, v13, {srd(S_WS)}, s{sT1} offen sc1")
        a.lab(f"L_OF_LOOP{name}")
        e("s_waitcnt vmcnt(0)")
        e(f"v_cmp_ne_u32 vcc, s{sTAG}, v14")
        e(f"s_add_u32 s{sSPIN}, s{sSPIN}, 1")
        e(f"s_cbranch_vccz L_OF_OK{name}")
        e(f"s_cmp_gt_u32 s{sSPIN}, {opt.spin}")
        e(f"s_cbranch_scc1 L_OF_OK{name}")
        if sleep: e(f"s_sleep {sleep}")
        e(f"buffer_load_dword v14, v13, {srd(S_WS)}, s{sT1} offen sc1")
        e(f"s_branch L_OF_LOOP{name}")
        a.lab(f"L_OF_OK{name}")
    def oloads(mod="sc1"):
        for i in range(16):
            e(f"buffer_load_dwordx4 {vr(OF3+4*i,4)}, v{vL16}, {srd(S_WS)}, s{sT0} offen offset:{(i&3)*1024} {mod}")
            if (i & 3) == 3 and i < 15: e(f"s_add_u32 s{sT0}, s{sT0}, 4096")
    def p3mfma(i0, i1):
        for i in range(i0, i1):
            e(f"s_waitcnt vmcnt({15-i})")
            for ct in range(2):
                mfma(AC3 + 16 * ct, WF3 + 8 * i + 4 * ct, OF3 + 4 * i, "0" if i == 0 else AC3 + 16 * ct)
    def late_part(gw=True):
        if gw: gate_write()
        for i in range(8, 16): trw(i)
    def p3mfma2():
        if opt.sent:
            e(f"s_mov_b32 s{sSPIN}, 0")
            a.lab("L_P3_RETRY")
            e("v_mov_b32 v15, 0")
        for i in range(16):
            if i == 8: e("s_waitcnt lgkmcnt(0)")
            e(f"s_waitcnt vmcnt({15-i})")
            for ct in range(2):
                mfma(AC3 + 16 * ct, WF3 + 8 * i + 4 * ct, OF3 + 4 * i, "0" if i == 0 else AC3 + 16 * ct)
                if opt.sent: e(f"v_max3_u32 v15, v15, v{OF3+4*i+2*ct}, v{OF3+4*i+2*ct+1}")
        if opt.sent:
            e("v_cmp_eq_u32 vcc, -1, v15")
            e(f"s_add_u32 s{sSPIN}, s{sSPIN}, 1")
            e("s_cbranch_vccz L_P3_DONE")
            e(f"s_cmp_gt_u32 s{sSPIN}, {opt.spin}")
            e("s_cbranch_scc1 L_P3_DONE")
            e(f"s_sub_u32 s{sT0}, s{sT0}, 12288")
            e("s_nop 7")
            oloads()
            e("s_branch L_P3_RETRY")
            a.lab("L_P3_DONE")
    e(f"s_cmp_eq_u32 s{sTQ}, 0")
    if opt.ool:
        e("s_cbranch_scc0 L_P3_EARLY")
        i_ool2 = len(a.lines)
        a.lab("L_P3_EARLY")
    else:
        e("s_cbranch_scc1 L_P3_LATE")
    if opt.sent == 2: e("s_waitcnt vmcnt(3)")
    else: oflag()
    if opt.prio: e("s_setprio 0")
    if opt.early == 0:
        gate()
        e(f"v_and_b32 v13, 7, v0")
        e(f"v_lshlrev_b32 v13, 2, v13")
        e(f"buffer_load_dword v14, v13, {srd(S_WS)}, s{sT1} offen sc1")
        e("s_waitcnt lgkmcnt(0)")
        e("s_barrier")
        stamp("B3")
        poll("E", True, opt.sleep)
        stamp("O flags seen")
        oloads(opt.omod)
        late_part()
    else:
        e(f"v_and_b32 v13, 7, v0")
        e(f"v_lshlrev_b32 v13, 2, v13")
        e(f"buffer_load_dword v14, v13, {srd(S_WS)}, s{sT1} offen sc1")
        gate()
        for i in range(8, 16): trw(i)
        poll("E", True, opt.sleep)
        stamp("O flags seen")
        oloads(opt.omod)
        e("s_waitcnt lgkmcnt(0)")
        e("s_barrier")
        stamp("B3")
        gate_write()
    e("s_branch L_P3_J")
    if opt.ool:
        ool.append(a.lines[i_ool2:]); del a.lines[i_ool2:]
    a.lab("L_P3_LATE")
    if opt.sent:
        e(f"v_and_b32 v13, 7, v0")
        e(f"v_lshlrev_b32 v13, 2, v13")
        e(f"buffer_load_dword v14, v13, {srd(S_WS)}, s{sT1} offen sc1")
        if not opt.gate4: gate()
        e("s_waitcnt lgkmcnt(0)")
        e("s_barrier")
        stamp("B3")
    else:
        e("s_waitcnt vmcnt(2)")
        gate()
        oflag()
        e(f"v_and_b32 v13, 7, v0")
        e(f"v_lshlrev_b32 v13, 2, v13")
        e(f"buffer_load_dword v14, v13, {srd(S_WS)}, s{sT1} offen sc1")
        e("s_waitcnt lgkmcnt(0)")
        e("s_barrier")
        stamp("B3")
    late_part(not opt.gate4)
    poll("L", True, 0)
    stamp("O flags seen")
    oloads(opt.omod)
    a.lab("L_P3_J")
    if opt.fullrow:
        e(f"s_lshl_b32 s{sT2}, s{sTQ}, 15")
        e(f"s_lshl_b32 s{sT3x}, s{sQ}, 11")
        e(f"s_add_u32 s{sT3x}, s{sT3x}, s{sT2}")
        e(f"s_add_u32 s{sT3x}, s{sT3x}, {LDS_RB}")
        e(f"v_and_b32 v4, 31, v0")
        e(f"v_lshrrev_b32 v5, 5, v0")
        e(f"v_lshlrev_b32 v5, 9, v5")
        e(f"v_add_u32 v5, s{sT3x}, v5")
        for c in range(4):
            e(f"v_add_u32 v6, {4*c}, v4" if c else "v_mov_b32 v6, v4")
            e(f"v_and_b32 v6, 31, v6")
            e(f"v_lshl_add_u32 v{8+c}, v6, 4, v5")
        e(f"v_lshrrev_b32 v4, 3, v0")
        e(f"s_lshl_b32 s{sT3x}, s{sQ}, 3")
        e(f"v_add_u32 v4, s{sT3x}, v4")
        e(f"v_and_b32 v5, 7, v0")
        e(f"v_and_b32 v6, 3, v5")
        e(f"v_lshl_add_u32 v6, v6, 2, v4")
        e(f"v_and_b32 v6, 31, v6")
        e(f"v_lshlrev_b32 v6, 4, v6")
        e(f"v_lshrrev_b32 v7, 1, v5")
        e(f"v_lshl_add_u32 v6, v7, 13, v6")
        e(f"v_and_b32 v7, 1, v5")
        e(f"v_lshl_add_u32 v6, v7, 10, v6")
        e(f"s_add_u32 s{sT2}, s{sT2}, {LDS_RB}")
        e(f"v_add_u32 v2, s{sT2}, v6")
    p3mfma2()
    stamp("P3 mfma")
    if opt.fullrow:
        e(f"s_lshl_b32 s{sT2}, s{sTQ}, 5")
        e(f"v_add_u32 v3, s{sT2}, v4")
        e(f"v_lshlrev_b32 v3, 2, v3")
        e(f"v_lshlrev_b32 v4, 10, v4")
        e(f"v_lshl_add_u32 v4, v5, 4, v4")
        e(f"s_lshl_b32 s{sT2}, s{sTT3}, 15")
        e(f"s_lshl_b32 s{sT3x}, s{sN3}, 7")
        e(f"s_add_u32 s{sT2}, s{sT2}, s{sT3x}")
        e("s_nop 1")
        for qq in range(4):
            for hf in range(2):
                c = (2 * qq + hf) & 3
                e(f"ds_write_b128 v{8+c}, {vr(AC3+8*qq+4*hf,4)} offset:{qq*8192+hf*1024}")
        e("s_waitcnt lgkmcnt(0)")
        e("s_barrier")
        R = 144
        e(f"ds_read_b32 v5, v3 offset:{LDS_GATE}")
        e(f"ds_read_b32 v6, v3 offset:{LDS_GATE+256}")
        for src in range(4):
            for hh in range(2):
                e(f"ds_read_b128 {vr(R+8*src+4*hh,4)}, v2 offset:{src*2048+hh*512}")
        e("s_waitcnt lgkmcnt(4)")
        for i in range(8): e(f"v_add_f32 v{R+i}, v{R+i}, v{R+8+i}")
        for i in range(8): e(f"v_mul_f32 v{R+i}, v{R+i}, v5")
        e("s_waitcnt lgkmcnt(0)")
        for i in range(8): e(f"v_add_f32 v{R+16+i}, v{R+16+i}, v{R+24+i}")
        for i in range(8): e(f"v_fmac_f32 v{R+i}, v{R+16+i}, v6")
        for i in range(4): e(cvt(R + 32 + i, R + 2 * i, R + 2 * i + 1))
        e(f"buffer_store_dwordx4 {vr(R+32,4)}, v4, {srd(S_OUT)}, s{sT2} offen {opt.outmod}")
    else:
        e(f"s_lshl_b32 s{sT2}, s{sTQ}, 15")
        e(f"s_lshl_b32 s{sT3x}, s{sQ}, 11")
        e(f"s_add_u32 s{sT3x}, s{sT3x}, s{sT2}")
        e(f"s_add_u32 s{sT3x}, s{sT3x}, {LDS_RB}")
        e(f"v_add_u32 v1, s{sT3x}, v{vL16}")
        e(f"s_lshl_b32 s{sT3x}, s{sQ}, 13")
        e(f"s_add_u32 s{sT3x}, s{sT3x}, s{sT2}")
        e(f"s_add_u32 s{sT3x}, s{sT3x}, {LDS_RB}")
        e(f"v_add_u32 v2, s{sT3x}, v{vL16}")
        e(f"v_and_b32 v4, 31, v0")
        e(f"s_lshl_b32 s{sT2}, s{sTQ}, 5")
        e(f"v_add_u32 v3, s{sT2}, v4")
        e(f"v_lshlrev_b32 v3, 2, v3")
        e(f"v_lshlrev_b32 v4, 10, v4")
        e(f"v_lshrrev_b32 v5, 5, v0")
        e(f"v_lshl_add_u32 v4, v5, 4, v4")
        e(f"s_lshl_b32 s{sT2}, s{sTT3}, 15")
        e(f"s_lshl_b32 s{sT3x}, s{sN3}, 7")
        e(f"s_add_u32 s{sT2}, s{sT2}, s{sT3x}")
        e(f"s_lshl_b32 s{sT3x}, s{sQ}, 5")
        e(f"s_add_u32 s{sT2}, s{sT2}, s{sT3x}")
        e("s_nop 1")
        for qq in range(4):
            for hf in range(2):
                e(f"ds_write_b128 v1, {vr(AC3+8*qq+4*hf,4)} offset:{qq*8192+hf*1024}")
        e("s_waitcnt lgkmcnt(0)")
        e("s_barrier")
        R = 144
        e(f"ds_read_b32 v5, v3 offset:{LDS_GATE}")
        e(f"ds_read_b32 v6, v3 offset:{LDS_GATE+256}")
        for src in range(4):
            for hf in range(2):
                e(f"ds_read_b128 {vr(R+8*src+4*hf,4)}, v2 offset:{src*2048+hf*1024}")
        e("s_waitcnt lgkmcnt(4)")
        for i in range(8): e(f"v_add_f32 v{R+i}, v{R+i}, v{R+8+i}")
        for i in range(8): e(f"v_mul_f32 v{R+i}, v{R+i}, v5")
        e("s_waitcnt lgkmcnt(0)")
        for i in range(8): e(f"v_add_f32 v{R+16+i}, v{R+16+i}, v{R+24+i}")
        for i in range(8): e(f"v_fmac_f32 v{R+i}, v{R+16+i}, v6")
        for i in range(4): e(cvt(R + 32 + i, R + 2 * i, R + 2 * i + 1))
        e("s_nop 1")
        e(f"v_permlane32_swap_b32 v{R+32}, v{R+34}")
        e(f"v_permlane32_swap_b32 v{R+33}, v{R+35}")
        e(f"buffer_store_dwordx4 {vr(R+32,4)}, v4, {srd(S_OUT)}, s{sT2} offen {opt.outmod}")
    if STAMPS:
        stamp("end")
        e(f"s_memtime s[{sTM}:{sTM+1}]")
        e("s_waitcnt lgkmcnt(0)")
        e(f"s_sub_u32 s{STREG[nst[0]]}, s{sTM}, s100")
        nst[0] += 1
        opt.stamp_names.append("CYCLES")
        n = nst[0]
        e(f"s_lshl_b32 s{sT2}, s2, 3")
        e(f"s_add_u32 s{sT2}, s{sT2}, s{sW}")
        e(f"s_lshl_b32 s{sT2}, s{sT2}, 7")
        e(f"s_add_u32 s{sT2}, s{sT2}, {WS_STAMP}")
        e("v_mov_b32 v13, 0")
        e("s_mov_b64 exec, 1")
        for i in range(n):
            e(f"v_mov_b32 v14, s{STREG[i]}")
            e(f"buffer_store_dword v14, v13, {srd(S_WS)}, s{sT2} offen offset:{4*i}")
            e("s_nop 0")
        e("s_mov_b64 exec, -1")
    e("s_waitcnt vmcnt(0)")
    a.lab("L_END")
    e("s_endpgm")
    for blk in ool: a.lines += blk
    if opt.fallback:
        a.lab("L_FB_ENTRY")
        fallback(a, opt, dict(SS=SS, PP=PP, KF=KF, MK=MK, OA=OA, QF=QF, vL16=vL16, HT=144))
        e("s_branch L_NOFB")
    a.lab("L_CODE_END")
    return a

def fallback(a, opt, R):
    e = a.e
    SS, PP, KF, MK, OA, QF, vL16, HT = (R[k] for k in "SS PP KF MK OA QF vL16 HT".split())
    TQ = 64; TM = 68; TB = 69; TO = 144; TV = 192; TC = 176
    S = SS
    sHH, sPASS, sPART, sTILE, sN = sH, 40, 41, 42, 43
    def mfma(D, A, B, C): e(mfma_s(D, A, B, C))
    a.c("==== fallback: true max ====")
    e(f"s_lshl_b32 s{sT2}, s{sC}, 5")
    e(f"s_add_u32 s{sT2}, s{sT2}, s{sBH}")
    e(f"s_lshl_b32 s{sT2}, s{sT2}, 7")
    e(f"s_add_u32 s{sT2}, s{sT2}, {WS_KVF}")
    e(f"v_and_b32 v13, 7, v0")
    e(f"v_lshlrev_b32 v13, 2, v13")
    e(f"s_mov_b32 s{sSPIN}, 0")
    a.lab("L_FB_FLAG")
    e(f"buffer_load_dword v14, v13, {srd(S_WS)}, s{sT2} offen sc1")
    e(f"s_add_u32 s{sSPIN}, s{sSPIN}, 1")
    e("s_waitcnt vmcnt(0)")
    e(f"v_cmp_ne_u32 vcc, s{sTAG}, v14")
    e(f"s_cmp_gt_u32 s{sSPIN}, {opt.spin}")
    e("s_cbranch_scc1 L_FB_FLAG_OK")
    e("s_cbranch_vccnz L_FB_FLAG")
    a.lab("L_FB_FLAG_OK")
    e(f"s_mov_b32 s{sHH}, 0")
    a.lab("L_FB_H")
    e(f"s_lshr_b32 s{sT2}, s{sFAIL}, s{sHH}")
    e(f"s_and_b32 s{sT2}, s{sT2}, 1")
    e(f"s_cmp_eq_u32 s{sT2}, 0")
    e("s_cbranch_scc1 L_FB_NEXT")
    e(f"s_cmp_eq_u32 s{sHH}, 0")
    e("s_cbranch_scc0 L_FB_Q1")
    for i in range(4): e(f"v_mov_b32 v{TQ+i}, v{QF+i}")
    e("s_branch L_FB_Q2")
    a.lab("L_FB_Q1")
    for i in range(4): e(f"v_mov_b32 v{TQ+i}, v{QF+4+i}")
    a.lab("L_FB_Q2")
    e(f"v_mov_b32 v{TM}, 0xff800000")
    for i in range(16): e(f"v_mov_b32 v{TO+i}, 0")
    for i in range(8): e(f"v_mov_b32 v{TV+i}, 0x3f803f80")
    e(f"s_mov_b32 s{sPASS}, 0")
    a.lab("L_FB_PASS")
    e(f"s_mov_b32 s{sPART}, 0")
    a.lab("L_FB_PART")
    e(f"s_cmp_eq_u32 s{sPART}, 0")
    e(f"s_cselect_b32 s{sTILE}, 0, s{sTAU}")
    e(f"s_cselect_b32 s{sN}, s{sTAU}, 7")
    a.lab("L_FB_TILE")
    e(f"s_cmp_eq_u32 s{sTILE}, s{sTAU}")
    e("s_cbranch_scc1 L_FB_MASK")
    for i in range(16): e(f"v_mov_b32 v{TC+i}, 0")
    e("s_branch L_FB_C")
    a.lab("L_FB_MASK")
    e(f"v_and_b32 v13, 31, v0")
    e(f"v_lshrrev_b32 v14, 5, v0")
    e(f"v_lshlrev_b32 v14, 2, v14")
    e(f"v_sub_u32 v13, v13, v14")
    e(f"s_cmp_eq_u32 s{sPART}, 0")
    e(f"s_cselect_b32 s{sT2}, 0, 0xff800000")
    for r in range(16):
        kk = (r & 3) + 8 * (r >> 2)
        e(f"v_subrev_u32 v{TC+r}, {kk}, v13")
        e(f"v_ashrrev_i32 v{TC+r}, 31, v{TC+r}")
        e(f"v_and_b32 v{TC+r}, 0xff800000, v{TC+r}")
        e(f"v_xor_b32 v{TC+r}, s{sT2}, v{TC+r}")
    a.lab("L_FB_C")
    e(f"s_sub_u32 s{sT2}, s{sC}, s{sPART}")
    e(f"s_lshl_b32 s{sT2}, s{sT2}, 3")
    e(f"s_add_u32 s{sT2}, s{sT2}, s{sTILE}")
    e(f"s_lshl_b32 s{sT3x}, s{sBH}, 6")
    e(f"s_add_u32 s{sT2}, s{sT2}, s{sT3x}")
    e(f"s_lshl_b32 s{sT2}, s{sT2}, 12")
    e(f"s_add_u32 s{sT2}, s{sT2}, {WS_KV}")
    e(f"s_lshl_b32 s{sT3x}, s{sHH}, 10")
    e(f"s_add_u32 s{sT3x}, s{sT3x}, s{sT2}")
    e(f"buffer_load_dwordx4 {vr(KF,4)}, v{vL16}, {srd(S_WS)}, s{sT3x} offen sc1")
    e(f"s_lshl_b32 s{sT3x}, s{sHH}, 8")
    e(f"s_add_u32 s{sT3x}, s{sT3x}, s{sT2}")
    e(f"s_mov_b64 exec, s[{sVM}:{sVM+1}]")
    e(f"buffer_load_dwordx4 {vr(TV,4)}, v{vL16}, {srd(S_WS)}, s{sT3x} offen offset:2048 sc1")
    e(f"buffer_load_dwordx4 {vr(TV+4,4)}, v{vL16}, {srd(S_WS)}, s{sT3x} offen offset:3072 sc1")
    e("s_mov_b64 exec, -1")
    e("s_waitcnt vmcnt(0)")
    mfma(S, KF, TQ, TC)
    e("s_nop 7"); e("s_nop 7")
    e(f"s_cmp_eq_u32 s{sPASS}, 0")
    e("s_cbranch_scc0 L_FB_P2")
    for i in range(8): e(f"v_max3_f32 v{TM}, v{TM}, v{S+2*i}, v{S+2*i+1}")
    e("s_branch L_FB_TNEXT")
    a.lab("L_FB_P2")
    for i in range(16): e(f"v_sub_f32 v{S+i}, v{S+i}, v{TM}")
    for i in range(16): e(f"v_exp_f32 v{S+i}, v{S+i}")
    e("s_nop 0")
    for i in range(8): e(cvt(PP + i, S + 2 * i, S + 2 * i + 1))
    e("s_nop 1")
    mfma(TO, TV, PP, TO)
    mfma(TO, TV + 4, PP + 4, TO)
    e("s_nop 7"); e("s_nop 7")
    a.lab("L_FB_TNEXT")
    e(f"s_add_u32 s{sTILE}, s{sTILE}, 1")
    e(f"s_cmp_le_u32 s{sTILE}, s{sN}")
    e("s_cbranch_scc1 L_FB_TILE")
    e(f"s_cmp_eq_u32 s{sC}, 0")
    e("s_cbranch_scc1 L_FB_PDONE")
    e(f"s_add_u32 s{sPART}, s{sPART}, 1")
    e(f"s_cmp_lt_u32 s{sPART}, 2")
    e("s_cbranch_scc1 L_FB_PART")
    a.lab("L_FB_PDONE")
    e(f"s_cmp_eq_u32 s{sPASS}, 0")
    e("s_cbranch_scc0 L_FB_STORE")
    e(f"v_mov_b32 v{TB}, v{TM}")
    e("s_nop 1")
    e(f"v_permlane32_swap_b32 v{TM}, v{TB}")
    e("s_nop 1")
    e(f"v_max_f32 v{TM}, v{TM}, v{TB}")
    e(f"s_mov_b32 s{sPASS}, 1")
    e("s_branch L_FB_PASS")
    a.lab("L_FB_STORE")
    e(f"s_cmp_eq_u32 s{sHH}, 0")
    e("s_cbranch_scc0 L_FB_S1")
    for i in range(16): e(f"v_mov_b32 v{OA+i}, v{TO+i}")
    e("s_branch L_FB_NEXT")
    a.lab("L_FB_S1")
    for i in range(16): e(f"v_mov_b32 v{OA+16+i}, v{TO+i}")
    a.lab("L_FB_NEXT")
    e(f"s_add_u32 s{sHH}, s{sHH}, 1")
    e(f"s_cmp_lt_u32 s{sHH}, 2")
    e("s_cbranch_scc1 L_FB_H")

def build(opt):
    opt.stamp_names = []
    a = gen(opt)
    hdr = []
    ref = open("gated_mix__sliding_block__sliding_block__prompt.s.ref").read().split("\n")
    for l in ref:
        if l.startswith("; Override launch geometry"): break
        hdr.append(l)
    hdr += """;
; Fused gated mix of two sliding-window attention branches, one launch, 256 workgroups of 8 waves (one per CU).
; (Assembly emitted by the author's own generator script.)
;   workgroup = (branch, head pair, chunk of 256 tokens)
;   phase 1  QKV projection: waves 4..7 stream x / W chunks into LDS (LDS-DMA), waves 0..3 run the MFMAs;
;            K / V fragment images go to LDS and to d_ws (halo for the next chunk)
;   phase 2  windowed attention, S^T = K Q^T per 32x32 tile, exp2 without a shift, row sums through a ones row of V^T;
;            a run-time range check on the row sums / accumulators falls back to a true-max recomputation (L_FB_ENTRY)
;   phase 3  output projection of both branches for a 64x64 output tile + sigmoid gate mix
;   hand-offs between workgroups: sc1 stores + tagged flags in d_ws (tag = word 0 of d_ws + 1, broadcast through d_debug)""".split("\n")
    hdr.append(f"; @launch grid=(256,1,1) block=(512,1,1) lds={LDS_TOTAL}")
    hdr.append('.amdgcn_target "amdgcn-amd-amdhsa--gfx950"')
    hdr.append(".text")
    hdr.append(f".globl {KNAME}")
    hdr.append(".p2align 8")
    hdr.append(f".type {KNAME},@function")
    tail = f""".section .rodata,"a"
.p2align 6
.amdhsa_kernel {KNAME}
  .amdhsa_next_free_vgpr 256
  .amdhsa_next_free_sgpr 102
  .amdhsa_accum_offset 256
  .amdhsa_group_segment_fixed_size 0
  .amdhsa_kernarg_size 80
  .amdhsa_user_sgpr_count 2
  .amdhsa_user_sgpr_kernarg_segment_ptr 1
  .amdhsa_system_sgpr_workgroup_id_x 1
  .amdhsa_float_denorm_mode_32 3
.end_amdhsa_kernel
"""
    return "\n".join(hdr) + "\n" + a.text() + tail

def parse(argv=None):
    p = argparse.ArgumentParser()
    p.add_argument("-o", default="gated_mix__sliding_block__sliding_block__prompt.s")
    p.add_argument("--stamps", type=int, default=0)
    p.add_argument("--codepf", type=int, default=1)
    p.add_argument("--pace", type=float, default=1.6)
    p.add_argument("--rot", type=int, default=1)
    p.add_argument("--fullrow", type=int, default=1)
    p.add_argument("--lprio", type=int, default=0)
    p.add_argument("--wsbase", type=int, default=0)
    p.add_argument("--xtouch", type=int, default=0)
    p.add_argument("--ool", type=int, default=0)
    p.add_argument("--tlb", type=int, default=1)
    p.add_argument("--gate4", type=int, default=0)
    p.add_argument("--wostride", type=int, default=64)
    p.add_argument("--tagearly", type=int, default=0)
    p.add_argument("--gwpf", type=int, default=1)
    p.add_argument("--mke", type=int, default=1)
    p.add_argument("--forcefb", type=int, default=0)
    p.add_argument("--early", type=int, default=0)
    p.add_argument("--lfirst", type=int, default=0)
    p.add_argument("--omod", default="sc1")
    p.add_argument("--rep", type=int, default=0)
    p.add_argument("--warm", type=int, default=6)
    p.add_argument("--sent", type=int, default=1)
    p.add_argument("--tailopt", type=int, default=1)
    p.add_argument("--eorder", type=int, default=1)
    p.add_argument("--prio", type=int, default=1)
    p.add_argument("--sleep", type=int, default=0)
    p.add_argument("--pf", type=int, default=0)
    p.add_argument("--bar0", type=int, default=1)
    p.add_argument("--dbg", type=int, default=0)
    p.add_argument("--cyc", type=int, default=0)
    p.add_argument("--wopf", type=int, default=1)
    p.add_argument("--fallback", type=int, default=1)
    p.add_argument("--spin", type=int, default=20000)
    p.add_argument("--outmod", default="")
    return p.parse_args(argv)

if __name__ == "__main__":
    opt = parse()
    s = build(opt)
    open(opt.o, "w").write(s)
    if opt.stamps:
        open(opt.o + ".stamps", "w").write("\n".join(opt.stamp_names))
    print("wrote", opt.o, len(s), "bytes")
```

```python
import sys, argparse, math, struct

KNAME = "gated_mix__sliding_block__sliding_block__prompt_kernel"

WS_NONCE = 0
WS_OF = 0x10000
WS_KVF = 0x4000
WS_KV = 0x100000
WS_O = 0x1000000
WS_STAMP = 0x1800000
WS_SIZE = 0x2000000

REG = 12288
LDS_W = 8 * REG
WPART = 24576
LDS_TOTAL = 163840
LDS_A0, LDS_A1 = 98304, 131072
LDS_GATE = 4096
LDS_RB = 98304

S_X, S_W, S_WOA, S_WOB, S_WS, S_OUT, S_GW, S_DBG = 8, 12, 16, 20, 24, 28, 32, 36
sW, sTAU, sC, sBH, sBR, sHG, sTT, sT3, sN3, sTAG, sJ = 60, 61, 62, 63, 64, 65, 66, 67, 68, 69, 70
sT0, sT1, sT2, sT3x, sT4, sT5 = 71, 72, 73, 74, 75, 76
sCNT, sSPIN, sFAIL = 77, 80, 81
sVM = 78
sKVO = 82
sH = 83
STREG = list(range(84, 98)) + [3, 6, 7, 46, 47]
sTM = 98
sXB, sWG, sWL = 40, 41, 42

def srd(b): return f"s[{b}:{b+3}]"
def vr(b, n=1): return f"v{b}" if n == 1 else f"v[{b}:{b+n-1}]"

class Asm:
    def __init__(self):
        self.lines = []; self.vm = []; self.lg = []
    def e(self, s): self.lines.append("  " + s)
    def c(self, s): self.lines.append("  ; " + s)
    def lab(self, s): self.lines.append(s + ":")
    def vmop(self, s, tag): self.e(s); self.vm.append(tag)
    def lgop(self, s, tag): self.e(s); self.lg.append(tag)
    def _n(self, q, tag, mx):
        idx = max(i for i, t in enumerate(q) if t == tag)
        return min(len(q) - 1 - idx, mx)
    def vmwait(self, tag):
        if tag not in self.vm: return
        n = self._n(self.vm, tag, 63)
        self.e(f"s_waitcnt vmcnt({n})")
        self.vm = self.vm[len(self.vm) - n:] if n > 0 else []
    def lgwait(self, tag):
        if tag not in self.lg: return
        n = self._n(self.lg, tag, 15)
        self.e(f"s_waitcnt lgkmcnt({n})")
        self.lg = self.lg[len(self.lg) - n:] if n > 0 else []
    def vmall(self): self.e("s_waitcnt vmcnt(0)"); self.vm = []
    def lgall(self): self.e("s_waitcnt lgkmcnt(0)"); self.lg = []
    def text(self): return "\n".join(self.lines) + "\n"

def f32bits(x): return struct.unpack("<I", struct.pack("<f", x))[0]
def mfma_s(D, A, B, C):
    cs = C if isinstance(C, str) else vr(C, 16)
    return f"v_mfma_f32_32x32x16_bf16 {vr(D,16)}, {vr(A,4)}, {vr(B,4)}, {cs}"
def cvt(dst, s0, s1): return f"v_cvt_pk_bf16_f32 v{dst}, v{s0}, v{s1}"

def gen(opt):
    a = Asm()
    e = a.e
    mfma = lambda D, A, B, C: e(mfma_s(D, A, B, C))
    STAMPS = opt.stamps
    nst = [0]
    def stamp(name, inner=False):
        if not STAMPS: return
        if STAMPS == 4 and not inner:
            if name in ("entry", "first data", "gemm done", "B1", "B2", "attn done", "B3", "end"):
                opt.cyc = 0; stamp(name, True)
                if name not in ("entry", "end"):
                    opt.cyc = 1; stamp(name + " cyc", True); opt.cyc = 0
            return
        if STAMPS == 3 and name in ("own done", "B2", "attn done", "O published", "B3", "B4", "O flags seen", "P3 mfma", "roleA", "roleB"): return
        if STAMPS == 2 and name in ("own done", "B2", "attn done", "O published", "B3", "B4", "O flags seen", "P3 mfma"): return
        if name in opt.stamp_names:
            i = opt.stamp_names.index(name)
            e("s_waitcnt lgkmcnt(0)")
            e(f"{'s_memtime' if opt.cyc else 's_memrealtime'} s[{sTM}:{sTM+1}]")
            e("s_waitcnt lgkmcnt(0)")
            e(f"s_mov_b32 s{STREG[i]}, s{sTM}")
            return
        i = nst[0]; nst[0] += 1
        assert i < len(STREG)
        a.c(f"stamp {i}: {name}")
        e("s_waitcnt lgkmcnt(0)"); a.lg = []
        e(f"{'s_memtime' if opt.cyc else 's_memrealtime'} s[{sTM}:{sTM+1}]")
        e("s_waitcnt lgkmcnt(0)")
        e(f"s_mov_b32 s{STREG[i]}, s{sTM}")
        opt.stamp_names.append(name)

    vXO = 1; vXR = 5; vWO = 9; vWR = 10; vL16 = 12
    XF = 16
    WF = 80
    ACC = 116
    def AQ(x): return ACC + 48 * x
    def AK(x): return ACC + 48 * x + 16
    def AV(x): return ACC + 48 * x + 32
    def XFr(lc, x, s): return XF + 32 * (lc & 1) + 16 * x + 4 * s
    def WFr(t, m): return WF + 12 * (t % 3) + 4 * m
    OA = 216; QF = 248; MK = 16; VF = 32
    SS = 160; PP = 48; KF = 56; HT = 64
    vK = 1
    vD = 13
    GX, GW, GA = (80 if opt.gate4 else 96), 208, 212
    WSLOT = 12288
    MKE = 144
    TKA, TKB, TVA, TVB, TQA, TQB = 248, 4, ACC + 16, ACC + 64, ACC + 32, ACC + 80
    LDS_TAG = 8192 + 2048

    a.lab(KNAME)
    e("s_cmp_ge_u32 s2, 256")
    e("s_cbranch_scc1 L_END")
    if STAMPS:
        e("s_memtime s[100:101]")
        stamp("entry")
    e("s_getpc_b64 s[4:5]")
    a.lab("L_PC")
    e("s_load_dwordx4 s[40:43], s[0:1], 0")
    e("s_load_dwordx4 s[48:51], s[0:1], 32")
    e("v_lshlrev_b32 v13, 6, v0")
    e("s_load_dwordx2 s[44:45], s[0:1], 16")
    e("s_load_dwordx4 s[52:55], s[0:1], 48")
    e("s_load_dwordx4 s[56:59], s[0:1], 64")
    e("v_min_u32 v13, L_CODE_END-L_PC-4, v13")
    if opt.codepf == 1:
        e(f"global_load_dword v213, v13, s[4:5]")
    if opt.codepf == 2:
        e("s_cmp_ge_u32 s2, 16")
        e("s_cbranch_scc1 L_CPF_E")
        e("v_lshlrev_b32 v13, 7, v0")
        e("v_min_u32 v13, L_CODE_END-L_PC-4, v13")
        e(f"global_load_dword v213, v13, s[4:5]")
        a.lab("L_CPF_E")
    e("v_lshrrev_b32 v15, 6, v0")
    e("v_and_b32 v0, 63, v0")
    e(f"s_and_b32 s{sT0}, s2, 7")
    e(f"v_readfirstlane_b32 s{sW}, v15")
    e(f"s_lshr_b32 s{sJ}, s2, 3")
    e(f"s_and_b32 s{sT1}, s{sT0}, 1")
    e(f"s_lshl_b32 s{sT1}, s{sT1}, 2")
    e(f"s_and_b32 s{sT2}, s{sJ}, 3")
    e(f"s_add_u32 s{sC}, s{sT1}, s{sT2}")
    e(f"s_lshr_b32 s{sT1}, s{sT0}, 1")
    e(f"s_lshl_b32 s{sT1}, s{sT1}, 3")
    e(f"s_lshr_b32 s{sN3}, s{sJ}, 2")
    e(f"s_add_u32 s{sBH}, s{sT1}, s{sN3}")
    e(f"s_lshr_b32 s{sBR}, s{sBH}, 4")
    e(f"s_and_b32 s{sHG}, s{sBH}, 15")
    e(f"s_lshl_b32 s{sT3}, s{sT0}, 2")
    e(f"s_add_u32 s{sT3}, s{sT3}, s{sT2}")
    e(f"s_sub_u32 s{sT1}, 11, s{sW}")
    e(f"s_cmp_lt_u32 s{sW}, 4")
    e(f"s_cselect_b32 s{sTAU}, s{sW}, s{sT1}")
    e(f"s_lshl_b32 s{sTT}, s{sC}, 3")
    e(f"s_add_u32 s{sTT}, s{sTT}, s{sTAU}")
    e(f"v_lshlrev_b32 v{vL16}, 4, v0")
    def mk(b, lo, hi, size):
        e(f"s_mov_b32 s{b}, s{lo}"); e(f"s_mov_b32 s{b+1}, s{hi}")
        e(f"s_mov_b32 s{b+2}, {size}"); e(f"s_mov_b32 s{b+3}, 0x00020000")
    def mk_w():
        e(f"s_cmp_eq_u32 s{sBR}, 0")
        e(f"s_cselect_b32 s{S_W}, s42, s48")
        e(f"s_cselect_b32 s{S_W+1}, s43, s49")
        e(f"s_mov_b32 s{S_W+2}, 1572864"); e(f"s_mov_b32 s{S_W+3}, 0x00020000")
    def mk_rest():
        if opt.wsbase:
            e(f"s_add_u32 s58, s58, {opt.wsbase}")
            e(f"s_addc_u32 s59, s59, 0")
        mk(S_WS, 58, 59, WS_SIZE)
        mk(S_DBG, 56, 57, 256)
        mk(S_OUT, 54, 55, 2097152)
        mk(S_GW, 52, 53, 1024)
        mk(S_WOA, 44, 45, 524288)
        mk(S_WOB, 50, 51, 524288)
        e(f"s_mov_b32 s{sVM}, 0x0000ffff")
        e(f"s_mov_b32 s{sVM+1}, 0x0000ffff")
        e(f"s_mov_b32 s{sFAIL}, 0")
        p3_ids()
    sTQ, sQ, sB3, sKH, sTT3, sOFA = 44, 45, 48, 49, 50, 51
    def p3_ids():
        e(f"s_lshr_b32 s{sTQ}, s{sW}, 2")
        e(f"s_and_b32 s{sQ}, s{sW}, 3")
        e(f"s_lshr_b32 s{sB3}, s{sQ}, 1")
        e(f"s_and_b32 s{sKH}, s{sQ}, 1")
        e(f"s_and_b32 s{sT2}, s{sT3}, 3")
        e(f"s_sub_u32 s{sT3x}, 7, s{sT2}")
        e(f"s_cmp_eq_u32 s{sTQ}, 0")
        e(f"s_cselect_b32 s{sT2}, s{sT2}, s{sT3x}")
        e(f"s_lshr_b32 s{sTT3}, s{sT3}, 2")
        e(f"s_lshl_b32 s{sTT3}, s{sTT3}, 3")
        e(f"s_add_u32 s{sTT3}, s{sTT3}, s{sT2}")
    def init_list():
        q = [f"v_and_b32 v{vD}, 31, v0", f"v_lshrrev_b32 v{vD+2}, 5, v0", f"v_lshlrev_b32 v{vD+2}, 2, v{vD+2}", f"v_sub_u32 v{vD}, v{vD}, v{vD+2}"]
        for r in range(16):
            kk = (r & 3) + 8 * (r >> 2)
            q += [f"v_subrev_u32 v{MK+r}, {kk}, v{vD}", f"v_ashrrev_i32 v{MK+r}, 31, v{MK+r}", f"v_and_b32 v{MK+r}, 0xff800000, v{MK+r}"]
        q += [f"v_mov_b32 v{VF+i}, 0x3f803f80" for i in range(16)]
        return q
    if opt.lfirst:
        e(f"s_cmp_lt_u32 s{sW}, 4")
        e("s_cbranch_scc1 L_COMPUTE")
    else:
        e(f"s_cmp_ge_u32 s{sW}, 4")
        e("s_cbranch_scc1 L_LOADER")
    i_comp = len(a.lines)
    a.lab("L_COMPUTE")

    SXB = sT4
    e(f"s_mul_i32 s{SXB}, s{sW}, {2*REG}")
    e(f"v_and_b32 v13, 31, v0")
    e(f"v_lshrrev_b32 v15, 5, v0")
    e(f"v_bfe_u32 v{vXR+1}, v13, 1, 3")
    e(f"v_xor_b32 v15, v15, v{vXR+1}")
    e(f"v_lshlrev_b32 v15, 4, v15")
    e(f"v_lshl_add_u32 v15, v13, 7, v15")
    e(f"v_add_u32 v{vXR}, s{SXB}, v15")
    for s_ in range(1, 4):
        e(f"v_xor_b32 v{vXR+s_}, {s_<<5}, v{vXR}")
    e(f"v_lshrrev_b32 v13, 5, v0")
    e(f"v_lshlrev_b32 v13, 9, v13")
    e(f"v_bfe_u32 v15, v0, 2, 2")
    e(f"v_lshl_add_u32 v13, v15, 6, v13")
    e(f"v_bfe_u32 v15, v0, 4, 1")
    e(f"v_lshl_add_u32 v13, v15, 5, v13")
    e(f"v_and_b32 v15, 3, v0")
    e(f"v_lshl_add_u32 v13, v15, 3, v13")
    e(f"v_add_u32 v{vWR}, {LDS_W}, v13")
    for i in range(32): e(f"v_mov_b32 v{OA+i}, 0")
    e("s_waitcnt lgkmcnt(0)")
    mk(S_X, 40, 41, 2097152)
    mk_w()
    if opt.xtouch:
        e(f"s_lshl_b32 s{sT2}, s{sC}, 18")
        e(f"v_mov_b32 v13, 0")
        e("s_mov_b64 exec, 1")
        e(f"s_cmp_eq_u32 s{sW}, 0"); e("s_cbranch_scc0 L_XT1")
        e(f"buffer_load_dword v214, v13, {srd(S_X)}, s{sT2} offen")
        a.lab("L_XT1")
        e("s_mov_b64 exec, -1")
    mk_rest()
    stamp("issued")
    def xread1(lc, x, s_):
        a.lgop(f"ds_read_b128 {vr(XFr(lc,x,s_),4)}, v{vXR+s_} offset:{x*REG+(lc%3)*4096}", f"xr{lc}_{s_}")
    def wread1(t, m, u):
        lc = t >> 2
        a.lgop(f"ds_read_b64_tr_b16 {vr(WFr(t,m)+2*u,2)}, v{vWR} offset:{(lc%3)*WSLOT+m*4096+(t&3)*1024+u*256}", f"wf{t}")
    e("s_barrier")
    stamp("first data")
    mfma_full = mfma
    if opt.dbg == 16:
        def mfma(D, A, B, C):
            for h in range(2):
                cs = C if isinstance(C, str) else vr(C + 4 * h, 4)
                e(f"v_mfma_f32_16x16x32_bf16 {vr(D + 4*h, 4)}, {vr(A,4)}, {vr(B,4)}, {cs}")
    if opt.dbg == 17:
        def mfma(D, A, B, C): pass
    for m in range(3):
        for u in range(2): wread1(0, m, u)
    for x in range(2): xread1(0, x, 0)
    for m in range(3):
        for u in range(2): wread1(1, m, u)
    for s_ in range(1, 4):
        for x in range(2): xread1(0, x, s_)
    initq = init_list()
    NT = 29 if opt.tailopt else 32
    for t in range(NT):
        lc, s_ = t >> 2, t & 3
        if opt.stamps == 2 and t in (4, 8, 12, 16, 20, 24, 28): stamp(f"t{t}")
        if s_ == 2 and lc <= 6:
            a.lgall()
            e("s_barrier")
        a.lgwait(f"wf{t}")
        a.lgwait(f"xr{lc}_{s_}")
        R = [(t + 2, m, u) for m in range(3) for u in range(2)] if t + 2 < 32 else []
        X = [(lc + 1, x, 2 * (s_ - 2) + k) for k in range(2) for x in range(2)] if (s_ >= 2 and lc <= 6) else []
        C = (lambda r: "0") if t == 0 else (lambda r: r)
        xa, xb = XFr(lc, 0, s_), XFr(lc, 1, s_)
        def ini(n):
            if t >= 28:
                for _ in range(n):
                    if initq: e(initq.pop(0))
        mfma(AK(0), WFr(t, 0), xa, C(AK(0)))
        for r in R[0:2]: wread1(*r)
        ini(3)
        mfma(AK(1), WFr(t, 0), xb, C(AK(1)))
        for r in R[2:4]: wread1(*r)
        ini(3)
        mfma(AV(0), xa, WFr(t, 1), C(AV(0)))
        for r in R[4:6]: wread1(*r)
        ini(3)
        mfma(AV(1), xb, WFr(t, 1), C(AV(1)))
        for x in X[0:2]: xread1(*x)
        ini(3)
        mfma(AQ(0), WFr(t, 2), xa, C(AQ(0)))
        for x in X[2:4]: xread1(*x)
        ini(3)
        mfma(AQ(1), WFr(t, 2), xb, C(AQ(1)))
        ini(3)
    if not opt.tailopt:
        while initq: e(initq.pop(0))
    e(f"s_lshl_b32 s{sKVO}, s{sBH}, 6")
    e(f"s_lshl_b32 s{sT2}, s{sC}, 3")
    e(f"s_add_u32 s{sKVO}, s{sKVO}, s{sT2}")
    e(f"s_lshl_b32 s{sT2}, s{sW}, 1")
    e(f"s_add_u32 s{sKVO}, s{sKVO}, s{sT2}")
    e(f"s_lshl_b32 s{sKVO}, s{sKVO}, 12")
    e(f"s_add_u32 s{sKVO}, s{sKVO}, {WS_KV}")
    e(f"s_add_u32 s{sT1}, s{sKVO}, 4096")
    e(f"v_add_u32 v{vK}, s{SXB}, v{vL16}")
    cq = 0.25 * math.log2(math.e)
    e(f"s_mov_b32 s{sT2}, {hex(f32bits(cq))}")
    def k_epi(x, T):
        so = sKVO if x == 0 else sT1
        L = [("e", cvt(T + i, AK(x) + 2 * i, AK(x) + 2 * i + 1)) for i in range(8)]
        L += [("vm", f"buffer_store_dwordx4 {vr(T+4*i,4)}, v{vL16}, {srd(S_WS)}, s{so} offen offset:{i*1024} sc1") for i in range(2)]
        L += [("lg", f"ds_write_b128 v{vK}, {vr(T+4*i,4)} offset:{x*REG+i*1024}") for i in range(2)]
        return L
    def v_epi(x, T):
        so = sKVO if x == 0 else sT1
        L = [("e", cvt(T + i, AV(x) + 2 * i, AV(x) + 2 * i + 1)) for i in range(8)]
        L += [("vm", f"buffer_store_dwordx4 {vr(T+4*i,4)}, v{vL16}, {srd(S_WS)}, s{so} offen offset:{(2+i)*1024} sc1") for i in range(2)]
        L += [("lg", f"ds_write_b128 v{vK}, {vr(T+4*i,4)} offset:{x*REG+(2+i)*1024}") for i in range(2)]
        return L
    def q_epi(x, T):
        L = [("e", f"v_mul_f32 v{AQ(x)+i}, s{sT2}, v{AQ(x)+i}") for i in range(16)]
        L += [("e", cvt(T + i, AQ(x) + 2 * i, AQ(x) + 2 * i + 1)) for i in range(8)]
        L += [("lg", f"ds_write_b128 v{vK}, {vr(T+4*h,4)} offset:{x*REG+8192+h*1024}") for h in range(2)]
        return L
    def emit(items):
        for k, l in items:
            if k == "e": e(l)
            elif k == "vm": a.vmop(l, "kvs")
            else: a.lgop(l, "kvw")
    if opt.tailopt:
        for m in range(3):
            for u in range(2): wread1(31, m, u)
        xs = {t: (XFr(7, 0, t & 3), XFr(7, 1, t & 3)) for t in (29, 30, 31)}
        a.lgwait("wf30")
        for t in (29, 30):
            for x in range(2):
                mfma(AK(x), WFr(t, 0), xs[t][x], AK(x))
                for _ in range(8):
                    if initq: e(initq.pop(0))
        a.lgwait("wf31")
        for x in range(2):
            mfma(AK(x), WFr(31, 0), xs[31][x], AK(x))
            for _ in range(8):
                if initq: e(initq.pop(0))
        while initq: e(initq.pop(0))
        vm_ = [(x, t) for t in (29, 30, 31) for x in range(2)]
        ke = k_epi(0, TKA) + k_epi(1, TKB)
        for n, (x, t) in enumerate(vm_):
            mfma(AV(x), xs[t][x], WFr(t, 1), AV(x))
            if n == 1: e("s_nop 7"); e("s_nop 1")
            if n >= 2: emit(ke[:5]); del ke[:5]
        ve = v_epi(0, TVA) + v_epi(1, TVB)
        qm_ = [(x, t) for t in (29, 30, 31) for x in range(2)]
        for n, (x, t) in enumerate(qm_):
            mfma(AQ(x), WFr(t, 2), xs[t][x], AQ(x))
            if ke: emit(ke[:6]); del ke[:6]
            elif n >= 2: emit(ve[:6]); del ve[:6]
        emit(ke)
        stamp("gemm done")
        e("s_nop 3")
        emit(ve)
        e("s_nop 7")
        emit(q_epi(0, TQA)); emit(q_epi(1, TQB))
    else:
        stamp("gemm done")
        e("s_nop 7")
        emit(k_epi(0, TKA)); emit(k_epi(1, TKB)); emit(v_epi(0, TVA)); emit(v_epi(1, TVB))
        emit(q_epi(0, TQA)); emit(q_epi(1, TQB))
    mfma = mfma_full
    e(f"s_lshl_b32 s{sKVO}, s{sC}, 5")
    e(f"s_add_u32 s{sKVO}, s{sKVO}, s{sBH}")
    e(f"s_lshl_b32 s{sKVO}, s{sKVO}, 7")
    e(f"s_lshl_b32 s{sT3x}, s{sW}, 3")
    e(f"s_add_u32 s{sKVO}, s{sKVO}, s{sT3x}")
    e(f"s_add_u32 s{sKVO}, s{sKVO}, {WS_KVF}")
    if not opt.lfirst: e("s_branch L_B1")
    i_load = len(a.lines)

    a.lab("L_LOADER")
    a.vm = []; a.lg = []
    if opt.lprio: e(f"s_setprio {opt.lprio}")
    sU, SXB2, SWG = sT5, sT4, sH
    e(f"s_sub_u32 s{sU}, s{sW}, 4")
    for _ in range(opt.padtest // 8): e("s_add_u32 s3, s3, 0x12345")
    e(f"v_lshrrev_b32 v13, 2, v0")
    e(f"v_mul_u32_u24 v13, 3072, v13")
    e(f"v_and_b32 v15, 3, v0")
    e(f"v_lshl_add_u32 v13, v15, 4, v13")
    e(f"s_lshl_b32 s{sT1}, s{sHG}, 6")
    e(f"v_add_u32 v{vWO}, s{sT1}, v13")
    e(f"v_lshrrev_b32 v13, 3, v0")
    e(f"v_lshlrev_b32 v13, 10, v13")
    e(f"s_lshl_b32 s{sT1}, s{sC}, 3")
    e(f"s_lshl_b32 s{sT2}, s{sU}, 1")
    e(f"s_add_u32 s{sT1}, s{sT1}, s{sT2}")
    e(f"s_lshl_b32 s{sT1}, s{sT1}, 15")
    e(f"v_add_u32 v13, s{sT1}, v13")
    e(f"v_lshrrev_b32 v15, 4, v0")
    e(f"v_xor_b32 v15, v15, v0")
    e(f"v_and_b32 v15, 7, v15")
    e(f"v_lshl_add_u32 v{vXO}, v15, 4, v13")
    e(f"v_xor_b32 v{vXO+1}, 64, v{vXO}")
    e(f"v_add_u32 v{vXO+2}, 14336, v{vXO}")
    e(f"v_add_u32 v{vXO+3}, 21504, v{vXO+1}")
    e(f"v_add_u32 v{vXO+1}, 7168, v{vXO+1}")
    e(f"s_and_b32 s{sT1}, s{sJ}, 3")
    e(f"s_add_u32 s{sT1}, s{sT1}, s{sN3}")
    if opt.rot == 2:
        e(f"s_and_b32 s{sT0}, s{sT1}, 1")
        e(f"s_lshl_b32 s{sT0}, s{sT0}, 2")
    elif opt.rot == 3:
        e(f"s_and_b32 s{sT0}, s{sJ}, 3")
        e(f"s_lshl_b32 s{sT0}, s{sT0}, 1")
        e(f"s_add_u32 s{sT0}, s{sT0}, s{sN3}")
        e(f"s_and_b32 s{sT0}, s{sT0}, 7")
    else:
        e(f"s_and_b32 s{sT0}, s{sT1}, {3 if opt.rot else 0}")
        e(f"s_lshl_b32 s{sT0}, s{sT0}, 1")
    e("s_waitcnt lgkmcnt(0)")
    mk_w()
    mk(S_X, 40, 41, 2097152)
    SWL, sXK, sWP = 40, 41, 42
    e(f"s_mul_i32 s{SXB2}, s{sU}, {2*REG}")
    e(f"s_mul_i32 s{SWG}, s{sU}, {16*3072}")
    e(f"s_lshl_b32 s{SWL}, s{sU}, 10")
    e(f"s_add_u32 s{SWL}, s{SWL}, {LDS_W}")
    e(f"s_lshl_b32 s{sXK}, s{sT0}, 7")
    MCOL = {0: 1, 1: 2, 2: 0}
    def wo_pf():
        n = 1 if opt.wostride == 128 else 2
        e(f"s_and_b32 s{sT2}, s{sJ}, 15")
        e(f"s_lshl_b32 s{sT2}, s{sT2}, 15")
        e(f"s_lshl_b32 s{sT3x}, s{sU}, 13")
        e(f"s_add_u32 s{sT2}, s{sT2}, s{sT3x}")
        e(f"v_lshlrev_b32 v15, {7 if n == 1 else 6}, v0")
        e(f"s_cmp_lt_u32 s{sJ}, 16")
        e("s_cbranch_scc1 L_WOPF_A")
        e(f"buffer_load_dword v213, v15, {srd(S_WOB)}, s{sT2} offen")
        if n == 2:
            e(f"s_add_u32 s{sT2}, s{sT2}, 4096")
            e(f"buffer_load_dword v214, v15, {srd(S_WOB)}, s{sT2} offen")
        e("s_branch L_WOPF_E")
        a.lab("L_WOPF_A")
        e(f"buffer_load_dword v213, v15, {srd(S_WOA)}, s{sT2} offen")
        if n == 2:
            e(f"s_add_u32 s{sT2}, s{sT2}, 4096")
            e(f"buffer_load_dword v214, v15, {srd(S_WOA)}, s{sT2} offen")
        a.lab("L_WOPF_E")
        a.vm += ["wopf"] * n
    def issue(lc):
        if lc > 0:
            e(f"s_add_u32 s{sXK}, s{sXK}, 128")
            e(f"s_and_b32 s{sXK}, s{sXK}, 1023")
        e(f"s_mul_i32 s{sWP}, s{sXK}, 1536")
        e(f"s_add_u32 s{sWP}, s{sWP}, s{SWG}")
        for m in range(3):
            e(f"s_add_u32 m0, s{SWL}, {(lc%3)*WSLOT + m*4096}")
            e(f"s_add_u32 s{sT3x}, s{sWP}, {MCOL[m]*1024}")
            a.vmop(f"buffer_load_dwordx4 v{vWO}, {srd(S_W)}, s{sT3x} offen lds", f"c{lc}")
        for b in range(2):
            e(f"s_add_u32 m0, s{SXB2}, {b*REG + (lc%3)*4096}")
            e(f"s_add_u32 s{sT3x}, s{sXK}, {b*32768}")
            for i in range(4):
                a.vmop(f"buffer_load_dwordx4 v{vXO+i}, {srd(S_X)}, s{sT3x} offen offset:{i*1024} lds", f"c{lc}")
    def tlb_warm2():
        e(f"s_lshr_b32 s{sT0}, s{sT3}, 2"); e(f"s_lshl_b32 s{sT0}, s{sT0}, 3"); e(f"s_and_b32 s{sT1}, s{sT3}, 3")
        e(f"s_sub_u32 s{sT2}, 7, s{sT1}"); e(f"s_add_u32 s{sT1}, s{sT1}, s{sT0}"); e(f"s_add_u32 s{sT0}, s{sT2}, s{sT0}")
        e(f"s_cmp_eq_u32 s{sU}, 0"); e("s_cbranch_scc0 L_TX1")
        e(f"s_lshl_b32 s{sT2}, s{sC}, 19"); e(f"s_lshl_b32 s{sT3x}, s{sBR}, 15"); e(f"s_add_u32 s{sT2}, s{sT2}, s{sT3x}"); e(f"s_add_u32 s{sT2}, s{sT2}, {WS_O}")
        e(f"v_and_b32 v13, 7, v0"); e(f"v_lshlrev_b32 v13, 16, v13"); e(f"v_add_u32 v13, s{sT2}, v13")
        e(f"s_lshl_b32 s{sT2}, s{sT1}, 16"); e(f"s_add_u32 s{sT2}, s{sT2}, {WS_O}"); e(f"v_writelane_b32 v13, s{sT2}, 8")
        e(f"s_lshl_b32 s{sT2}, s{sT0}, 16"); e(f"s_add_u32 s{sT2}, s{sT2}, {WS_O}"); e(f"v_writelane_b32 v13, s{sT2}, 9")
        e(f"s_lshl_b32 s{sT2}, s{sBH}, 6"); e(f"s_lshl_b32 s{sT3x}, s{sC}, 3"); e(f"s_add_u32 s{sT2}, s{sT2}, s{sT3x}")
        e(f"s_lshl_b32 s{sT2}, s{sT2}, 12"); e(f"s_add_u32 s{sT2}, s{sT2}, {WS_KV}"); e(f"v_writelane_b32 v13, s{sT2}, 10")
        e(f"s_sub_u32 s{sT2}, s{sT2}, 32768"); e(f"s_max_u32 s{sT2}, s{sT2}, {WS_KV}"); e(f"v_writelane_b32 v13, s{sT2}, 11")
        e(f"s_mov_b32 s{sT2}, {WS_OF}"); e(f"v_writelane_b32 v13, s{sT2}, 12")
        e("s_mov_b64 exec, 0x1fff")
        e(f"buffer_load_dword v215, v13, {srd(S_WS)}, 0 offen sc1")
        e(f"buffer_load_dword v214, v13, {srd(S_WS)}, 0 offen offset:128 sc1")
        e("s_branch L_TXE")
        a.lab("L_TX1")
        e(f"s_cmp_eq_u32 s{sU}, 1"); e("s_cbranch_scc0 L_TX2")
        e(f"s_lshl_b32 s{sT2}, s{sT1}, 15"); e(f"v_mov_b32 v13, s{sT2}"); e(f"s_lshl_b32 s{sT2}, s{sT0}, 15"); e(f"v_writelane_b32 v13, s{sT2}, 1")
        e("s_mov_b64 exec, 3")
        e(f"buffer_load_dword v215, v13, {srd(S_OUT)}, 0 offen")
        e(f"v_mov_b32 v13, 0")
        e(f"buffer_load_dword v214, v13, {srd(S_DBG)}, 0 offen sc1")
        e("s_branch L_TXE")
        a.lab("L_TX2")
        e(f"s_cmp_eq_u32 s{sU}, 2"); e("s_cbranch_scc0 L_TX3")
        e(f"v_and_b32 v13, 7, v0"); e(f"v_lshlrev_b32 v13, 16, v13")
        e("s_mov_b64 exec, 0xff")
        e(f"buffer_load_dword v215, v13, {srd(S_WOA)}, 0 offen")
        e(f"buffer_load_dword v214, v13, {srd(S_WOB)}, 0 offen")
        e("s_branch L_TXE")
        a.lab("L_TX3")
        e(f"s_lshl_b32 s{sT2}, s{sT1}, 15"); e(f"v_mov_b32 v13, s{sT2}"); e(f"s_lshl_b32 s{sT2}, s{sT0}, 15"); e(f"v_writelane_b32 v13, s{sT2}, 1")
        e("s_mov_b64 exec, 3")
        e(f"buffer_load_dword v215, v13, {srd(S_X)}, 0 offen")
        e(f"v_mov_b32 v13, 0")
        e(f"buffer_load_dword v214, v13, {srd(S_GW)}, 0 offen")
        a.lab("L_TXE")
        e("s_mov_b64 exec, -1")
        a.vm += ["warm", "warm"]
    def tlb_warm():
        e(f"s_cmp_eq_u32 s{sU}, 0"); e("s_cbranch_scc0 L_TW1")
        e(f"s_lshl_b32 s{sT2}, s{sBH}, 6"); e(f"s_lshl_b32 s{sT3x}, s{sC}, 3"); e(f"s_add_u32 s{sT2}, s{sT2}, s{sT3x}")
        e(f"s_lshl_b32 s{sT2}, s{sT2}, 12"); e(f"s_add_u32 s{sT2}, s{sT2}, {WS_KV}")
        e(f"v_mov_b32 v13, {WS_OF}")
        e(f"v_writelane_b32 v13, s{sT2}, 1")
        e(f"s_lshl_b32 s{sT2}, s{sC}, 19"); e(f"s_add_u32 s{sT2}, s{sT2}, {WS_O}")
        e(f"v_writelane_b32 v13, s{sT2}, 2")
        e(f"s_lshr_b32 s{sT2}, s{sT3}, 2"); e(f"s_lshl_b32 s{sT2}, s{sT2}, 19"); e(f"s_add_u32 s{sT2}, s{sT2}, {WS_O}")
        e(f"v_writelane_b32 v13, s{sT2}, 3")
        e("s_mov_b64 exec, 15")
        e(f"buffer_load_dword v215, v13, {srd(S_WS)}, 0 offen sc1")
        e(f"buffer_load_dword v214, v13, {srd(S_WS)}, 0 offen offset:128 sc1")
        e("s_mov_b64 exec, -1")
        e("s_branch L_TWE")
        a.lab("L_TW1")
        e(f"s_cmp_eq_u32 s{sU}, 1"); e("s_cbranch_scc0 L_TW2")
        e(f"s_lshr_b32 s{sT2}, s{sT3}, 2"); e(f"s_lshl_b32 s{sT2}, s{sT2}, 18")
        e(f"v_mov_b32 v13, 0")
        e("s_mov_b64 exec, 1")
        e(f"buffer_load_dword v215, v13, {srd(S_OUT)}, s{sT2} offen")
        e(f"buffer_load_dword v214, v13, {srd(S_DBG)}, 0 offen sc1")
        e("s_mov_b64 exec, -1")
        e("s_branch L_TWE")
        a.lab("L_TW2")
        e(f"s_cmp_eq_u32 s{sU}, 2"); e("s_cbranch_scc0 L_TW3")
        e(f"v_mov_b32 v13, 0")
        e("s_mov_b64 exec, 1")
        e(f"buffer_load_dword v215, v13, {srd(S_WOA)}, 0 offen")
        e(f"buffer_load_dword v214, v13, {srd(S_WOB)}, 0 offen")
        e("s_mov_b64 exec, -1")
        e("s_branch L_TWE")
        a.lab("L_TW3")
        e(f"v_mov_b32 v13, 0")
        e("s_mov_b64 exec, 1")
        e(f"buffer_load_dword v215, v13, {srd(S_GW)}, 0 offen")
        e(f"buffer_load_dword v214, v13, {srd(S_GW)}, 0 offen offset:128")
        e("s_mov_b64 exec, -1")
        a.lab("L_TWE")
        a.vm += ["warm", "warm"]
    issue(0)
    issue(1)
    mk_rest()
    if opt.warm == 2: tlb_warm()
    e(f"s_or_b32 s{sT1}, s2, s{sU}")
    e(f"s_cmp_lg_u32 s{sT1}, 0")
    e("s_cbranch_scc1 L_NONCE_SKIP0")
    e(f"v_mov_b32 v13, 0")
    e(f"buffer_load_dword v14, v13, {srd(S_WS)}, 0 offen sc1")
    a.lab("L_NONCE_SKIP0")
    stamp("issued")
    a.vmwait("c0")
    e("s_barrier")
    stamp("first data")
    issue(2)
    if opt.warm == 3 or opt.tlb == 1: tlb_warm()
    if opt.tlb == 2: tlb_warm2()
    if opt.warm in (5, 6, 7):
        if opt.warm in (6, 7): e("s_branch L_F5_2")
        e(f"s_cmp_eq_u32 s{sU}, 0"); e("s_cbranch_scc0 L_F5_1")
        e(f"s_lshl_b32 s{sT2}, s{sC}, 5"); e(f"s_lshr_b32 s{sT3x}, s{sBH}, 3"); e(f"s_add_u32 s{sT2}, s{sT2}, s{sT3x}")
        e(f"s_lshl_b32 s{sT2}, s{sT2}, 7"); e(f"s_add_u32 s{sT2}, s{sT2}, {WS_OF}")
        e(f"v_and_b32 v13, 7, v0"); e(f"v_lshlrev_b32 v13, 9, v13")
        e("s_mov_b64 exec, 0xff")
        e(f"buffer_load_dword v215, v13, {srd(S_WS)}, s{sT2} offen sc1")
        e("s_branch L_F5_E")
        a.lab("L_F5_1")
        e(f"s_cmp_eq_u32 s{sU}, 1"); e("s_cbranch_scc0 L_F5_2")
        e(f"s_lshr_b32 s{sT2}, s{sT3}, 2"); e(f"s_lshl_b32 s{sT2}, s{sT2}, 3"); e(f"s_and_b32 s{sT3x}, s{sT3}, 3")
        e(f"s_add_u32 s{sT0}, s{sT2}, s{sT3x}"); e(f"s_sub_u32 s{sT3x}, 7, s{sT3x}"); e(f"s_add_u32 s{sT1}, s{sT2}, s{sT3x}")
        e(f"s_lshl_b32 s{sT0}, s{sT0}, 9"); e(f"s_lshl_b32 s{sT1}, s{sT1}, 9"); e(f"s_sub_u32 s{sT1}, s{sT1}, s{sT0}")
        e(f"s_sub_u32 s{sT1}, s{sT1}, 512"); e(f"s_add_u32 s{sT0}, s{sT0}, {WS_OF}")
        e(f"v_and_b32 v13, 7, v0"); e(f"v_lshlrev_b32 v13, 7, v13"); e(f"v_bfe_u32 v15, v0, 2, 1"); e(f"v_mul_lo_u32 v15, v15, s{sT1}"); e(f"v_add_u32 v13, v13, v15")
        e("s_mov_b64 exec, 0xff")
        e(f"buffer_load_dword v215, v13, {srd(S_WS)}, s{sT0} offen sc1")
        e("s_branch L_F5_E")
        a.lab("L_F5_2")
        if opt.gwpf:
            e(f"s_cmp_eq_u32 s{sU}, 3"); e("s_cbranch_scc0 L_F5_3")
            e(f"v_and_b32 v13, 7, v0"); e(f"v_lshlrev_b32 v13, 7, v13")
            e("s_mov_b64 exec, 0xff")
            e(f"buffer_load_dword v215, v13, {srd(S_GW)}, 0 offen")
            e("s_branch L_F5_E")
            a.lab("L_F5_3")
        e(f"s_lshl_b32 s{sT2}, s{sC}, 5"); e(f"s_add_u32 s{sT2}, s{sT2}, s{sBH}"); e(f"s_lshl_b32 s{sT2}, s{sT2}, 7"); e(f"s_add_u32 s{sT2}, s{sT2}, {WS_KVF - 4096}")
        e(f"v_and_b32 v13, 1, v0"); e(f"v_lshlrev_b32 v13, 12, v13")
        e("s_mov_b64 exec, 3")
        e(f"buffer_load_dword v215, v13, {srd(S_WS)}, s{sT2} offen sc1")
        a.lab("L_F5_E")
        e("s_mov_b64 exec, -1")
        a.vm += ["warm"]
    e(f"s_or_b32 s{sT1}, s2, s{sU}")
    e(f"s_cmp_lg_u32 s{sT1}, 0")
    e("s_cbranch_scc1 L_NONCE_SKIP1")
    e("s_waitcnt vmcnt(11)")
    e(f"v_readfirstlane_b32 s{sT2}, v14")
    e(f"v_mov_b32 v13, 0")
    e("s_nop 3")
    e(f"s_add_u32 s{sT2}, s{sT2}, 1")
    e(f"s_max_u32 s{sT2}, s{sT2}, 1")
    e(f"v_mov_b32 v14, s{sT2}")
    e(f"buffer_store_dword v14, v13, {srd(S_DBG)}, 0 offen sc1")
    e(f"buffer_store_dword v14, v13, {srd(S_WS)}, 0 offen sc1")
    a.lab("L_NONCE_SKIP1")
    a.vmwait("c1")
    e("s_barrier")
    for j in range(6):
        if j + 3 <= 7: issue(j + 3)
        if j + 3 == 7:
            if opt.tagearly:
                e(f"v_mov_b32 v13, 0")
                a.vmop(f"buffer_load_dword v14, v13, {srd(S_DBG)}, 0 offen sc1", "tag")
            if opt.wopf == 1: wo_pf()
            if opt.warm == 1:
                lab = "L_WARM"
                e(f"s_cmp_eq_u32 s{sU}, 0"); e(f"s_cbranch_scc0 {lab}1")
                e(f"s_lshl_b32 s{sT2}, s{sC}, 5"); e(f"s_lshr_b32 s{sT3x}, s{sBH}, 3"); e(f"s_add_u32 s{sT2}, s{sT2}, s{sT3x}")
                e(f"s_lshl_b32 s{sT2}, s{sT2}, 10"); e(f"s_add_u32 s{sT2}, s{sT2}, {WS_OF}")
                e(f"v_lshrrev_b32 v13, 3, v0"); e(f"v_lshlrev_b32 v13, 12, v13"); e(f"v_and_b32 v15, 7, v0"); e(f"v_lshl_add_u32 v13, v15, 7, v13")
                e(f"buffer_load_dword v215, v13, {srd(S_WS)}, s{sT2} offen sc1")
                e(f"s_branch {lab}E")
                a.lab(f"{lab}1")
                e(f"s_cmp_eq_u32 s{sU}, 1"); e(f"s_cbranch_scc0 {lab}2")
                e(f"s_lshl_b32 s{sT2}, s{sC}, 4"); e(f"s_add_u32 s{sT2}, s{sT2}, s{sBR}"); e(f"s_lshl_b32 s{sT2}, s{sT2}, 5")
                e(f"s_lshl_b32 s{sT3x}, s{sHG}, 1"); e(f"s_add_u32 s{sT2}, s{sT2}, s{sT3x}"); e(f"s_lshl_b32 s{sT2}, s{sT2}, 10")
                e(f"s_add_u32 s{sT2}, s{sT2}, {WS_O}")
                e(f"v_lshrrev_b32 v13, 3, v0"); e(f"v_lshlrev_b32 v13, 16, v13"); e(f"v_and_b32 v15, 7, v0"); e(f"v_lshl_add_u32 v13, v15, 8, v13")
                e(f"buffer_load_dword v215, v13, {srd(S_WS)}, s{sT2} offen sc1")
                e(f"s_branch {lab}E")
                a.lab(f"{lab}2")
                e(f"s_cmp_eq_u32 s{sU}, 2"); e(f"s_cbranch_scc0 {lab}3")
                e(f"s_lshl_b32 s{sT2}, s{sC}, 5"); e(f"s_add_u32 s{sT2}, s{sT2}, s{sBH}"); e(f"s_lshl_b32 s{sT2}, s{sT2}, 7")
                e(f"s_add_u32 s{sT2}, s{sT2}, {WS_KVF}")
                e(f"v_mov_b32 v13, 0")
                e(f"buffer_load_dword v215, v13, {srd(S_WS)}, s{sT2} offen sc1")
                e(f"s_branch {lab}E")
                a.lab(f"{lab}3")
                e(f"s_lshr_b32 s{sT2}, s{sT3}, 2"); e(f"s_lshl_b32 s{sT2}, s{sT2}, 18"); e(f"s_lshl_b32 s{sT3x}, s{sN3}, 7"); e(f"s_add_u32 s{sT2}, s{sT2}, s{sT3x}")
                e(f"v_lshlrev_b32 v13, 12, v0")
                e(f"buffer_load_dword v215, v13, {srd(S_OUT)}, s{sT2} offen")
                a.lab(f"{lab}E")
                a.vm += ["warm"]
        if j + 2 <= 7: a.vmwait(f"c{j+2}")
        e("s_barrier")
    stamp("gemm done")
    if opt.lprio: e("s_setprio 0")
    if opt.wopf == 2: wo_pf()
    for l in init_list(): e(l)
    for i in range(32): e(f"v_mov_b32 v{OA+i}, 0")
    if opt.mke:
        e(f"s_mov_b32 s{sT2}, 0xff800000")
        for r in range(16): e(f"v_xor_b32 v{MKE+r}, s{sT2}, v{MK+r}")
    e(f"s_cmp_lg_u32 s{sU}, 0")
    e("s_cbranch_scc1 L_B1")
    e(f"s_mov_b32 s{sSPIN}, 0")
    e(f"v_mov_b32 v15, 0")
    if not opt.tagearly:
        e(f"buffer_load_dword v14, v15, {srd(S_DBG)}, 0 offen sc1")
    else:
        a.vmwait("tag")
        e("s_branch L_TAG_CHK")
    a.lab("L_TAG_LOOP")
    e("s_waitcnt vmcnt(0)")
    a.lab("L_TAG_CHK")
    e(f"s_add_u32 s{sSPIN}, s{sSPIN}, 1")
    e(f"v_readfirstlane_b32 s{sTAG}, v14")
    e("s_nop 3")
    e(f"s_cmp_lg_u32 s{sTAG}, 0")
    e("s_cbranch_scc1 L_TAG_OK")
    e(f"s_cmp_gt_u32 s{sSPIN}, {opt.spin}")
    e("s_cbranch_scc1 L_TAG_OK")
    e(f"buffer_load_dword v14, v15, {srd(S_DBG)}, 0 offen sc1")
    e("s_branch L_TAG_LOOP")
    a.lab("L_TAG_OK")
    e(f"v_mov_b32 v15, {LDS_TAG}")
    e(f"ds_write_b32 v15, v14")
    if opt.lfirst:
        e("s_branch L_B1")
        comp = a.lines[i_comp:i_load]; load = a.lines[i_load:]
        a.lines = a.lines[:i_comp] + load + comp
    a.lab("L_B1")
    a.vm = []; a.lg = []
    e("s_waitcnt lgkmcnt(0)")
    e("s_barrier")
    stamp("B1")
    e(f"v_mov_b32 v15, {LDS_TAG}")
    e(f"ds_read_b32 v14, v15")
    e(f"s_mul_i32 s{sT2}, s{sTAU}, {REG}")
    e(f"v_add_u32 v13, s{sT2}, v{vL16}")
    for h in range(2):
        e(f"ds_read_b128 {vr(QF+4*h,4)}, v13 offset:{8192+h*1024}")

    def kread(h, extra=0): e(f"ds_read_b128 {vr(KF+4*h,4)}, v{vK} offset:{h*1024+extra}")
    def vreads(h, extra=0):
        e(f"s_mov_b64 exec, s[{sVM}:{sVM+1}]")
        for s in range(2):
            e(f"ds_read_b128 {vr(VF+8*h+4*s,4)}, v{vK} offset:{2048+s*1024+h*256+extra}")
        e("s_mov_b64 exec, -1")
    def seg(h, prev, nxt, kx=0, vx=0):
        o = 1 - h
        S = SS + 16 * h; O = OA + 16 * h
        ex = lambda i: e(f"v_exp_f32 v{S+i}, v{S+i}")
        ex(0); ex(1)
        if prev: mfma(OA + 16 * o, VF + 8 * o + 4, PP + 4, OA + 16 * o)
        ex(2); ex(3)
        if nxt: vreads(o, vx)
        ex(4); ex(5)
        if nxt:
            mfma(SS + 16 * o, KF + 4 * o, QF + 4 * o, "0")
            kread(o, kx)
        ex(6); ex(7)
        for i in range(4): e(cvt(PP + i, S + 2 * i, S + 2 * i + 1))
        ex(8)
        e(f"s_waitcnt lgkmcnt({3 if nxt else 0})")
        ex(9)
        mfma(O, VF + 8 * h, PP, O)
        for i in range(10, 16): ex(i)
        for i in range(4, 8): e(cvt(PP + i, S + 2 * i, S + 2 * i + 1))
    def part(name, first_s, rest_s, cnt_s, hook=None):
        MKx = MK if name == "OWN" or not opt.mke else MKE
        a.c(f"---- attention part {name} ----")
        e(f"v_add_u32 v{vK}, s{first_s}, v{vL16}")
        kread(0); kread(1)
        e(f"s_sub_u32 s{sT2}, s{rest_s}, s{first_s}")
        e(f"s_mov_b32 s{sCNT}, s{cnt_s}")
        e("s_waitcnt lgkmcnt(0)")
        if name == "OWN": e(f"v_readfirstlane_b32 s{sTAG}, v14")
        mfma(SS, KF, QF, MKx)
        mfma(SS + 16, KF + 4, QF + 4, MKx)
        vreads(0); vreads(1)
        e(f"v_add_u32 v{vK}, s{sT2}, v{vK}")
        kread(0); kread(1)
        e("s_waitcnt lgkmcnt(2)")
        seg(0, prev=False, nxt=False)
        if hook: hook()
        e(f"s_cmp_eq_u32 s{sCNT}, 0")
        e(f"s_cbranch_scc1 L_{name}_LAST")
        e(f"s_sub_u32 s{sCNT}, s{sCNT}, 1")
        a.lab(f"L_{name}_LOOP")
        seg(1, prev=True, nxt=True, kx=REG, vx=0)
        seg(0, prev=True, nxt=True, kx=REG, vx=0)
        e(f"v_add_u32 v{vK}, {REG}, v{vK}")
        e(f"s_sub_u32 s{sCNT}, s{sCNT}, 1")
        e(f"s_cbranch_scc0 L_{name}_LOOP")
        a.lab(f"L_{name}_LAST")
        seg(1, prev=True, nxt=False)
        e("s_nop 1")
        mfma(OA + 16, VF + 12, PP + 4, OA + 16)
    def kvflag():
        e("s_waitcnt vmcnt(0)")
        e(f"v_lshlrev_b32 v13, 2, v0")
        e(f"v_mov_b32 v14, s{sTAG}")
        e("s_mov_b64 exec, 3")
        e(f"buffer_store_dword v14, v13, {srd(S_WS)}, s{sKVO} offen sc1")
        e("s_mov_b64 exec, -1")
    a.vm = []
    e(f"s_mul_i32 s{sT0}, s{sTAU}, {REG}")
    e(f"s_mov_b32 s{sT1}, 0")
    def hook():
        e(f"s_cmp_ge_u32 s{sW}, 4")
        e("s_cbranch_scc1 L_KVF_DONE")
        kvflag()
        a.lab("L_KVF_DONE")
    if opt.prio == 2:
        e(f"s_cmp_lt_u32 s{sW}, 4")
        e("s_cbranch_scc1 L_PRIO_SKIP")
        e("s_setprio 1")
        a.lab("L_PRIO_SKIP")
    part("OWN", sT0, sT1, sTAU, hook=hook)
    stamp("own done")
    def gate_loads():
        if opt.gate4:
            e(f"s_and_b32 s{sT2}, s{sT3}, 3")
            e(f"s_sub_u32 s{sT3x}, 7, s{sT2}")
            e(f"s_cmp_lt_u32 s{sQ}, 2")
            e(f"s_cselect_b32 s{sT2}, s{sT2}, s{sT3x}")
            e(f"s_lshr_b32 s{sT3x}, s{sT3}, 2")
            e(f"s_lshl_b32 s{sT3x}, s{sT3x}, 3")
            e(f"s_add_u32 s{sT2}, s{sT2}, s{sT3x}")
            e(f"s_lshl_b32 s{sT2}, s{sT2}, 15")
            e(f"s_and_b32 s{sT3x}, s{sQ}, 1")
            e(f"s_lshl_b32 s{sT3x}, s{sT3x}, 14")
            e(f"s_add_u32 s{sT2}, s{sT2}, s{sT3x}")
            n = 16
        else:
            e(f"s_lshl_b32 s{sT2}, s{sTT3}, 15")
            e(f"s_lshl_b32 s{sT3x}, s{sQ}, 13")
            e(f"s_add_u32 s{sT2}, s{sT2}, s{sT3x}")
            n = 8
        e(f"buffer_load_dwordx4 {vr(GW,4)}, v{vL16}, {srd(S_GW)}, 0 offen")
        for i in range(n):
            e(f"buffer_load_dwordx4 {vr(GX+4*i,4)}, v{vL16}, {srd(S_X)}, s{sT2} offen offset:{(i&3)*1024}")
            if (i & 3) == 3 and i < n - 1: e(f"s_add_u32 s{sT2}, s{sT2}, 4096")
    def prefill():
        if not opt.sent: return
        for i in range(4): e(f"v_mov_b32 v{128+i}, -1")
        e(f"s_lshl_b32 s{sT2}, s{sTT}, 1")
        e(f"s_add_u32 s{sT2}, s{sT2}, s{sBR}")
        e(f"s_lshl_b32 s{sT2}, s{sT2}, 5")
        e(f"s_lshl_b32 s{sT3x}, s{sHG}, 1")
        e(f"s_add_u32 s{sT2}, s{sT2}, s{sT3x}")
        e(f"s_lshl_b32 s{sT2}, s{sT2}, 10")
        e(f"s_add_u32 s{sT2}, s{sT2}, {WS_O}")
        for h in range(2):
            e(f"buffer_store_dwordx4 v[128:131], v{vL16}, {srd(S_WS)}, s{sT2} offen offset:{h*1024} sc1")
    def wo_voff():
        e(f"v_lshrrev_b32 v13, 3, v0")
        e(f"v_lshlrev_b32 v13, 10, v13")
        e(f"v_bfe_u32 v15, v0, 4, 1")
        e(f"v_lshlrev_b32 v15, 2, v15")
        e(f"v_xor_b32 v15, v15, v0")
        e(f"v_and_b32 v15, 7, v15")
        e(f"v_lshl_add_u32 v14, v15, 4, v13")
    def wo_dma(S, heads, kh, ldsaddr):
        for i in heads:
            sg, cst = ldsaddr(i)
            for hf in range(2):
                e(f"s_add_u32 s{sT3x}, s{sT5}, {(256*kh + 16*i + 8*hf)*1024}")
                e(f"s_add_u32 m0, s{sg}, {cst + hf*1024}")
                e("s_nop 0")
                e(f"buffer_load_dwordx4 v14, {srd(S)}, s{sT3x} offen lds")
    def wo_lin(S, sg, sl, n):
        e(f"s_mov_b32 m0, s{sl}")
        e("s_nop 0")
        for i in range(n):
            e(f"buffer_load_dwordx4 v14, {srd(S)}, s{sg} offen lds")
            if i < n - 1:
                e(f"s_add_u32 m0, m0, 1024")
                e(f"s_add_u32 s{sg}, s{sg}, 8192")
    def wo_early():
        wo_voff()
        e(f"s_lshl_b32 s{sT5}, s{sN3}, 7")
        e(f"s_and_b32 s{sT0}, s{sTAU}, 1")
        e(f"s_lshl_b32 s{sT0}, s{sT0}, 18")
        e(f"s_add_u32 s{sT0}, s{sT0}, s{sT5}")
        e(f"s_lshl_b32 s{sT1}, s{sTAU}, 14")
        e(f"s_add_u32 s{sT1}, s{sT1}, {LDS_A0}")
        lab = f"L_WE_{opt._n}"; opt._n += 1
        e(f"s_cmp_ge_u32 s{sTAU}, 2")
        e(f"s_cbranch_scc1 {lab}_B")
        e(f"s_mov_b32 s{sT4}, s{sT0}")
        wo_lin(S_WOA, sT4, sT1, 16)
        e(f"s_branch {lab}_E")
        a.lab(f"{lab}_B")
        e(f"s_mov_b32 s{sT4}, s{sT0}")
        wo_lin(S_WOB, sT4, sT1, 16)
        a.lab(f"{lab}_E")
    def halo_poll_load():
        n = opt._n; opt._n += 1
        e(f"s_sub_u32 s{sT2}, s{sC}, 1")
        e(f"s_lshl_b32 s{sT3x}, s{sT2}, 5")
        e(f"s_add_u32 s{sT3x}, s{sT3x}, s{sBH}")
        e(f"s_lshl_b32 s{sT3x}, s{sT3x}, 7")
        e(f"s_lshl_b32 s{sT4}, s{sTAU}, 3")
        e(f"s_add_u32 s{sT3x}, s{sT3x}, s{sT4}")
        e(f"s_add_u32 s{sT3x}, s{sT3x}, {WS_KVF}")
        e(f"v_and_b32 v13, 1, v0")
        e(f"v_lshlrev_b32 v13, 2, v13")
        e(f"s_mov_b32 s{sSPIN}, 0")
        a.lab(f"L_KVF_LOOP{n}")
        e(f"buffer_load_dword v15, v13, {srd(S_WS)}, s{sT3x} offen sc1")
        e(f"s_add_u32 s{sSPIN}, s{sSPIN}, 1")
        e("s_waitcnt vmcnt(0)")
        e(f"v_cmp_ne_u32 vcc, s{sTAG}, v15")
        e(f"s_cmp_gt_u32 s{sSPIN}, {opt.spin}")
        e(f"s_cbranch_scc1 L_KVF_OK{n}")
        e(f"s_cbranch_vccnz L_KVF_LOOP{n}")
        a.lab(f"L_KVF_OK{n}")
        stamp("roleA")
        e(f"s_lshl_b32 s{sT3x}, s{sBH}, 6")
        e(f"s_lshl_b32 s{sT2}, s{sT2}, 3")
        e(f"s_add_u32 s{sT3x}, s{sT3x}, s{sT2}")
        e(f"s_lshl_b32 s{sT2}, s{sTAU}, 1")
        e(f"s_add_u32 s{sT3x}, s{sT3x}, s{sT2}")
        e(f"s_lshl_b32 s{sT3x}, s{sT3x}, 12")
        e(f"s_add_u32 s{sT3x}, s{sT3x}, {WS_KV}")
        for j in range(2):
            for i in range(4):
                e(f"buffer_load_dwordx4 {vr(HT+16*j+4*i,4)}, v{vL16}, {srd(S_WS)}, s{sT3x} offen offset:{i*1024} sc1")
            if j < 1: e(f"s_add_u32 s{sT3x}, s{sT3x}, 4096")
    def halo_write(younger):
        e(f"s_mul_i32 s{sT2}, s{sTAU}, {2*REG}")
        e(f"s_add_u32 s{sT2}, s{sT2}, 4096")
        e(f"v_add_u32 v13, s{sT2}, v{vL16}")
        for j in range(2):
            e(f"s_waitcnt vmcnt({younger+4-4*j})")
            for i in range(4):
                e(f"ds_write_b128 v13, {vr(HT+16*j+4*i,4)} offset:{j*REG+i*1024}")
    opt._n = 0
    ool = []
    NE = 16
    NG = 0 if opt.gate4 else 9
    e(f"s_cmp_gt_u32 s{sTAU}, 3")
    e("s_cbranch_scc0 L_ROLE_LO")
    if opt.sent == 2: prefill()
    if not opt.ool: e("s_branch L_HALO_BAR")
    i_ool3 = len(a.lines)
    a.lab("L_ROLE_LO")
    if opt.mke:
        e(f"s_mov_b32 s{sT2}, 0xff800000")
        for r in range(16): e(f"v_xor_b32 v{MKE+r}, s{sT2}, v{MK+r}")
    e(f"s_cmp_eq_u32 s{sC}, 0")
    e("s_cbranch_scc1 L_ROLE_C0")
    e(f"s_cmp_gt_u32 s{sTAU}, 1")
    e("s_cbranch_scc1 L_ROLE_HI")
    wo_early()
    halo_poll_load()
    if not opt.gate4: gate_loads()
    halo_write(NG)
    e("s_waitcnt lgkmcnt(0)")
    stamp("roleB")
    e("s_branch L_HALO_BAR")
    a.lab("L_ROLE_HI")
    halo_poll_load()
    wo_early()
    if not opt.gate4: gate_loads()
    halo_write(NE + NG)
    e(f"s_waitcnt vmcnt({NG}) lgkmcnt(0)")
    stamp("roleB")
    e("s_branch L_HALO_BAR")
    a.lab("L_ROLE_C0")
    wo_early()
    if not opt.gate4: gate_loads()
    e(f"s_waitcnt vmcnt({NG})")
    if opt.ool:
        e("s_branch L_HALO_BAR")
        ool.append(a.lines[i_ool3:]); del a.lines[i_ool3:]
    a.lab("L_HALO_BAR")
    if not opt.mke:
        e(f"s_mov_b32 s{sT2}, 0xff800000")
        for r in range(16): e(f"v_xor_b32 v{MK+r}, s{sT2}, v{MK+r}")
    e("s_barrier")
    stamp("B2")
    e(f"s_cmp_ge_u32 s{sTAU}, 4")
    e("s_cbranch_scc1 L_LATE_S")
    prefill()
    i_ool1 = len(a.lines)
    if not opt.ool: e("s_branch L_LATE_E")
    a.lab("L_LATE_S")
    if opt.warm in (4, 6, 7):
        assert not opt.rep
        e(f"s_cmp_eq_u32 s{sW}, 4"); e("s_cbranch_scc0 L_FW_E")
        e(f"s_lshl_b32 s{sT2}, s{sC}, 5"); e(f"s_lshr_b32 s{sT3x}, s{sBH}, 3"); e(f"s_add_u32 s{sT2}, s{sT2}, s{sT3x}")
        e(f"s_lshl_b32 s{sT2}, s{sT2}, 7"); e(f"s_add_u32 s{sT2}, s{sT2}, {WS_OF}")
        e(f"v_lshlrev_b32 v13, 9, v0"); e(f"v_add_u32 v13, s{sT2}, v13")
        e("s_mov_b64 exec, 0xff")
        e(f"buffer_load_dword v215, v13, {srd(S_WS)}, 0 offen sc1")
        e("s_mov_b64 exec, -1")
        e(f"s_lshr_b32 s{sT2}, s{sT3}, 2"); e(f"s_lshl_b32 s{sT2}, s{sT2}, 3"); e(f"s_and_b32 s{sT3x}, s{sT3}, 3")
        e(f"s_add_u32 s{sT0}, s{sT2}, s{sT3x}"); e(f"s_sub_u32 s{sT3x}, 7, s{sT3x}"); e(f"s_add_u32 s{sT1}, s{sT2}, s{sT3x}")
        e(f"s_lshl_b32 s{sT0}, s{sT0}, 9"); e(f"s_lshl_b32 s{sT1}, s{sT1}, 9")
        e(f"s_add_u32 s{sT0}, s{sT0}, {WS_OF}"); e(f"s_add_u32 s{sT1}, s{sT1}, {WS_OF}")
        e(f"v_lshlrev_b32 v13, 7, v0")
        e("s_mov_b64 exec, 15")
        e(f"buffer_load_dword v215, v13, {srd(S_WS)}, s{sT0} offen sc1")
        e(f"buffer_load_dword v214, v13, {srd(S_WS)}, s{sT1} offen sc1")
        e("s_mov_b64 exec, -1")
        a.lab("L_FW_E")
        if opt.warm == 7:
            e(f"s_cmp_eq_u32 s{sW}, 5"); e("s_cbranch_scc0 L_FW_F")
            e(f"s_lshr_b32 s{sT2}, s{sT3}, 2"); e(f"s_lshl_b32 s{sT2}, s{sT2}, 3"); e(f"s_and_b32 s{sT3x}, s{sT3}, 3")
            e(f"s_add_u32 s{sT0}, s{sT2}, s{sT3x}"); e(f"s_sub_u32 s{sT3x}, 7, s{sT3x}"); e(f"s_add_u32 s{sT1}, s{sT2}, s{sT3x}")
            e(f"s_sub_u32 s{sT1}, s{sT1}, s{sT0}"); e(f"s_sub_u32 s{sT1}, s{sT1}, 1"); e(f"s_lshl_b32 s{sT1}, s{sT1}, 15")
            e(f"s_lshl_b32 s{sT0}, s{sT0}, 15"); e(f"s_lshl_b32 s{sT3x}, s{sN3}, 7"); e(f"s_add_u32 s{sT0}, s{sT0}, s{sT3x}")
            e(f"v_lshlrev_b32 v13, 10, v0"); e(f"v_lshrrev_b32 v15, 5, v0"); e(f"v_mul_lo_u32 v15, v15, s{sT1}"); e(f"v_add_u32 v13, v13, v15")
            e(f"buffer_load_dword v215, v13, {srd(S_OUT)}, s{sT0} offen")
            a.lab("L_FW_F")
    wo_voff()
    e(f"s_sub_u32 s{sT2}, 7, s{sTAU}")
    e(f"s_lshl_b32 s{sT5}, s{sN3}, 7")
    e(f"s_and_b32 s{sT0}, s{sT2}, 1")
    e(f"s_lshl_b32 s{sT0}, s{sT0}, 18")
    e(f"s_add_u32 s{sT0}, s{sT0}, s{sT5}")
    e(f"s_add_u32 s{sT0}, s{sT0}, {128*1024}")
    e(f"s_mul_i32 s{sT1}, s{sT2}, {2*REG}")
    def late(S):
        for (reg, slot) in ((0, 8192), (1, 8192), (0, 0), (1, 0)):
            e(f"s_add_u32 s{sT3x}, s{sT1}, {reg*REG + slot}")
            wo_lin(S, sT0, sT3x, 4)
            e(f"s_add_u32 s{sT0}, s{sT0}, 8192")
    e(f"s_cmp_ge_u32 s{sT2}, 2")
    e("s_cbranch_scc1 L_LATE_B")
    late(S_WOA)
    e("s_branch L_LATE_G")
    a.lab("L_LATE_B")
    late(S_WOB)
    a.lab("L_LATE_G")
    gate_loads()
    if opt.prio: e("s_setprio 1")
    if opt.ool:
        e("s_branch L_LATE_E")
        ool.append(a.lines[i_ool1:]); del a.lines[i_ool1:]
    a.lab("L_LATE_E")
    e(f"s_cmp_eq_u32 s{sC}, 0")
    e("s_cbranch_scc1 L_P2_EPI")
    e(f"s_mul_i32 s{sT0}, s{sTAU}, {REG}")
    e(f"s_add_u32 s{sT0}, s{sT0}, 4096")
    e(f"s_add_u32 s{sT1}, s{sT0}, {REG}")
    e(f"s_sub_u32 s{sT4}, 7, s{sTAU}")
    part("HALO", sT0, sT1, sT4)
    a.lab("L_P2_EPI")
    stamp("attn done")
    lo, hi = f32bits(2.0 ** -64), f32bits(2.0 ** 64)
    e(f"s_mov_b32 s{sT0}, {hex(lo)}")
    e(f"s_mov_b32 s{sT1}, {hex(hi)}")
    e(f"s_lshl_b32 s{sKVO}, s{sTT}, 1")
    e(f"s_add_u32 s{sKVO}, s{sKVO}, s{sBR}")
    e(f"s_lshl_b32 s{sKVO}, s{sKVO}, 5")
    e(f"s_lshl_b32 s{sT3x}, s{sHG}, 1")
    e(f"s_add_u32 s{sKVO}, s{sKVO}, s{sT3x}")
    e(f"s_lshl_b32 s{sKVO}, s{sKVO}, 10")
    e(f"s_add_u32 s{sKVO}, s{sKVO}, {WS_O}")
    e(f"s_lshl_b32 s{sT2}, s{sTT}, 2")
    e(f"s_lshr_b32 s{sT3x}, s{sBH}, 3")
    e(f"s_add_u32 s{sT2}, s{sT2}, s{sT3x}")
    e(f"s_lshl_b32 s{sT2}, s{sT2}, {10 if opt.rep else 7}")
    e(f"s_and_b32 s{sT3x}, s{sBH}, 7")
    e(f"s_lshl_b32 s{sT3x}, s{sT3x}, 2")
    e(f"s_add_u32 s{sT2}, s{sT2}, s{sT3x}")
    e(f"s_add_u32 s{sOFA}, s{sT2}, {WS_OF}")
    e("s_nop 2")
    if opt.fallback:
        for h in range(2):
            O = OA + 16 * h
            e(f"v_mul_f32 v13, 0, v{O}")
            for i in range(1, 8): e(f"v_fmac_f32 v13, 0, v{O+i}")
            e(f"v_cmp_nle_f32 vcc, s{sT0}, v{O+8}")
            e(f"s_mov_b64 s[74:75], vcc")
            e(f"v_cmp_nge_f32 vcc, s{sT1}, v{O+8}")
            e("s_or_b64 s[74:75], s[74:75], vcc")
            e(f"v_cmp_u_f32 vcc, v13, v13")
            e("s_or_b64 s[74:75], s[74:75], vcc")
            e("s_cmp_lg_u64 s[74:75], 0")
            e(f"s_cselect_b32 s{sT2}, {1<<h}, 0")
            e(f"s_or_b32 s{sFAIL}, s{sFAIL}, s{sT2}")
        if opt.forcefb: e(f"s_or_b32 s{sFAIL}, s{sFAIL}, {opt.forcefb}")
        e(f"s_cmp_lg_u32 s{sFAIL}, 0")
        e("s_cbranch_scc1 L_FB_ENTRY")
        a.lab("L_NOFB")
    else:
        e("s_nop 7")
    if opt.sent:
        e(f"s_cmp_ge_u32 s{sW}, 4")
        e("s_cbranch_scc1 L_NOSENT0")
        e("s_waitcnt vmcnt(0)")
        e("s_branch L_NOSENT")
        a.lab("L_NOSENT0")
        if opt.sent == 2: e("s_waitcnt vmcnt(25)")
        a.lab("L_NOSENT")
    for h in range(2):
        e(f"v_rcp_f32 v{13+h}, v{OA+16*h+8}")
    for h in range(2):
        O = OA + 16 * h
        for i in range(8): e(f"v_mul_f32 v{O+i}, v{O+i}, v{13+h}")
        for i in range(4): e(cvt(O + 8 + i, O + 2 * i, O + 2 * i + 1))
        if opt.sent:
            for i in range(4): e(f"v_min_u32 v{O+8+i}, -2, v{O+8+i}")
        e(f"buffer_store_dwordx4 {vr(O+8,4)}, v{vL16}, {srd(S_WS)}, s{sKVO} offen offset:{h*1024} sc1")
    if opt.sent:
        if opt.sent != 2:
            e(f"s_cmp_ge_u32 s{sW}, 4")
            e("s_cbranch_scc1 L_NOHINT")
        e(f"v_lshlrev_b32 v13, 7, v0")
        e(f"v_mov_b32 v14, s{sTAG}")
        e(f"s_mov_b64 exec, {'0xff' if opt.rep else 1}")
        e(f"buffer_store_dword v14, v13, {srd(S_WS)}, s{sOFA} offen sc1")
        e("s_mov_b64 exec, -1")
        stamp("O published")
        a.lab("L_NOHINT")
    WF3, OF3, AC3 = 16, 144, 208
    e(f"v_lshrrev_b32 v1, 5, v0")
    e(f"v_lshlrev_b32 v1, 9, v1")
    e(f"v_bfe_u32 v2, v0, 2, 2")
    e(f"v_lshl_add_u32 v1, v2, 7, v1")
    e(f"v_bfe_u32 v2, v0, 3, 1")
    e(f"v_lshl_add_u32 v1, v2, 6, v1")
    e(f"v_bfe_u32 v2, v0, 4, 1")
    e(f"v_lshl_add_u32 v1, v2, 5, v1")
    e(f"v_and_b32 v2, 3, v0")
    e(f"v_lshl_add_u32 v1, v2, 3, v1")
    e(f"s_lshl_b32 s{sT2}, s{sQ}, 14")
    e(f"s_add_u32 s{sT2}, s{sT2}, {LDS_A0}")
    e(f"s_mul_i32 s{sT3x}, s{sQ}, {2*REG}")
    e(f"v_xor_b32 v2, 64, v1")
    vA = [244, 245]; vB = [246, 247]
    e(f"v_add_u32 v{vA[0]}, s{sT2}, v1")
    e(f"v_add_u32 v{vA[1]}, s{sT2}, v2")
    e(f"v_add_u32 v{vB[0]}, s{sT3x}, v1")
    e(f"v_add_u32 v{vB[1]}, s{sT3x}, v2")
    def trw(i):
        for ct in range(2):
            for u in range(2):
                if i < 8: ad, off = vA[ct], i * 2048
                elif i < 12: ad, off = vB[ct], ((i - 8) >> 1) * REG + 8192 + ((i - 8) & 1) * 2048
                else: ad, off = vB[ct], ((i - 12) >> 1) * REG + ((i - 12) & 1) * 2048
                e(f"ds_read_b64_tr_b16 {vr(WF3+8*i+4*ct+2*u,2)}, v{ad} offset:{off+u*1024}")
    for i in range(8): trw(i)
    e(f"s_lshl_b32 s{sT1}, s{sTT3}, 2")
    e(f"s_add_u32 s{sT1}, s{sT1}, s{sQ}")
    if opt.rep:
        e(f"s_lshl_b32 s{sT1}, s{sT1}, 3")
        e(f"s_add_u32 s{sT1}, s{sT1}, s{sN3}")
    e(f"s_lshl_b32 s{sT1}, s{sT1}, 7")
    e(f"s_add_u32 s{sT1}, s{sT1}, {WS_OF}")
    e(f"s_lshl_b32 s{sT0}, s{sTT3}, 1")
    e(f"s_add_u32 s{sT0}, s{sT0}, s{sB3}")
    e(f"s_lshl_b32 s{sT0}, s{sT0}, 5")
    e(f"s_lshl_b32 s{sT3x}, s{sKH}, 4")
    e(f"s_add_u32 s{sT0}, s{sT0}, s{sT3x}")
    e(f"s_lshl_b32 s{sT0}, s{sT0}, 10")
    e(f"s_add_u32 s{sT0}, s{sT0}, {WS_O}")
    def oflag(wait=True):
        e(f"v_lshlrev_b32 v13, 7, v0")
        e(f"v_mov_b32 v14, s{sTAG}")
        if wait: e("s_waitcnt vmcnt(0)")
        e(f"s_mov_b64 exec, {'0xff' if opt.rep else 1}")
        e(f"buffer_store_dword v14, v13, {srd(S_WS)}, s{sOFA} offen sc1")
        e("s_mov_b64 exec, -1")
        stamp("O published")
    GR = 236
    def gate_round(gx, g_out, g1_out):
        for i in range(8): e(f"v_mov_b32 v{GA+i}, 0")
        for d in range(4):
            for i in range(8):
                e(f"v_dot2_f32_bf16 v{GA+i}, v{gx+4*i+d}, v{GW+d}, v{GA+i}")
        e("s_nop 4")
        for i in range(4): e(f"v_permlane32_swap_b32 v{GA+i}, v{GA+4+i}")
        for i in range(4): e(f"v_add_f32 v{GA+i}, v{GA+i}, v{GA+4+i}")
        e("s_nop 1")
        for i in range(2): e(f"v_permlane16_swap_b32 v{GA+i}, v{GA+2+i}")
        for i in range(2): e(f"v_add_f32 v{GA+i}, v{GA+i}, v{GA+2+i}")
        e("s_nop 1")
        for i in range(2): e(f"v_add_f32_dpp v{GA+i}, v{GA+i}, v{GA+i} row_ror:8 row_mask:0xf bank_mask:0xf")
        e("s_nop 1")
        e(f"v_mov_b32_dpp v{GA}, v{GA+1} quad_perm:[0,1,2,3] row_mask:0xf bank_mask:0xc")
        e("s_nop 1")
        e(f"v_add_f32_dpp v15, v{GA}, v{GA} quad_perm:[1,0,3,2] row_mask:0xf bank_mask:0xf")
        e("s_nop 1")
        e("v_add_f32_dpp v15, v15, v15 quad_perm:[2,3,0,1] row_mask:0xf bank_mask:0xf")
        e("s_nop 1")
        e("v_add_f32_dpp v15, v15, v15 row_half_mirror row_mask:0xf bank_mask:0xf")
        e("v_cvt_pk_bf16_f32 v15, v15, v15")
        e("v_and_b32 v15, 0xffff0000, v15")
        e(f"v_mul_f32 v15, {hex(f32bits(-math.log2(math.e)))}, v15")
        e("v_exp_f32 v15, v15")
        e("s_nop 0")
        e("v_add_f32 v15, 1.0, v15")
        e("v_rcp_f32 v15, v15")
        e("s_nop 0")
        e("v_cvt_pk_bf16_f32 v15, v15, v15")
        e(f"v_and_b32 v{g_out}, 0xffff0000, v15")
        e(f"v_sub_f32 v15, 1.0, v{g_out}")
        e("v_cvt_pk_bf16_f32 v15, v15, v15")
        e(f"v_and_b32 v{g1_out}, 0xffff0000, v15")
    def gate():
        if opt.gate4:
            gate_round(GX, GR, GR + 1); gate_round(GX + 32, GR + 2, GR + 3)
        else:
            gate_round(GX, GR, GR + 1)
    def gate_write():
        e(f"v_lshrrev_b32 v15, 3, v0")
        if opt.gate4:
            e(f"s_lshl_b32 s{sT2}, s{sQ}, 4")
        else:
            e(f"s_lshl_b32 s{sT2}, s{sW}, 3")
        e(f"v_add_u32 v15, s{sT2}, v15")
        e(f"v_lshlrev_b32 v15, 2, v15")
        e(f"ds_write_b32 v15, v{GR} offset:{LDS_GATE}")
        e(f"ds_write_b32 v15, v{GR+1} offset:{LDS_GATE+256}")
        if opt.gate4:
            e(f"ds_write_b32 v15, v{GR+2} offset:{LDS_GATE+32}")
            e(f"ds_write_b32 v15, v{GR+3} offset:{LDS_GATE+256+32}")
    def poll(name, first_issued, sleep):
        e(f"s_mov_b32 s{sSPIN}, 0")
        if not first_issued:
            e(f"buffer_load_dword v14, v13, {srd(S_WS)}, s{sT1} offen sc1")
        a.lab(f"L_OF_LOOP{name}")
        e("s_waitcnt vmcnt(0)")
        e(f"v_cmp_ne_u32 vcc, s{sTAG}, v14")
        e(f"s_add_u32 s{sSPIN}, s{sSPIN}, 1")
        e(f"s_cbranch_vccz L_OF_OK{name}")
        e(f"s_cmp_gt_u32 s{sSPIN}, {opt.spin}")
        e(f"s_cbranch_scc1 L_OF_OK{name}")
        if sleep: e(f"s_sleep {sleep}")
        e(f"buffer_load_dword v14, v13, {srd(S_WS)}, s{sT1} offen sc1")
        e(f"s_branch L_OF_LOOP{name}")
        a.lab(f"L_OF_OK{name}")
    def oloads(mod="sc1"):
        for i in range(16):
            e(f"buffer_load_dwordx4 {vr(OF3+4*i,4)}, v{vL16}, {srd(S_WS)}, s{sT0} offen offset:{(i&3)*1024} {mod}")
            if (i & 3) == 3 and i < 15: e(f"s_add_u32 s{sT0}, s{sT0}, 4096")
    def p3mfma(i0, i1):
        for i in range(i0, i1):
            e(f"s_waitcnt vmcnt({15-i})")
            for ct in range(2):
                mfma(AC3 + 16 * ct, WF3 + 8 * i + 4 * ct, OF3 + 4 * i, "0" if i == 0 else AC3 + 16 * ct)
    def late_part(gw=True):
        if gw: gate_write()
        for i in range(8, 16): trw(i)
    def p3mfma2():
        if opt.sent:
            e(f"s_mov_b32 s{sSPIN}, 0")
            a.lab("L_P3_RETRY")
            e("v_mov_b32 v15, 0")
        for i in range(16):
            if i == 8: e("s_waitcnt lgkmcnt(0)")
            e(f"s_waitcnt vmcnt({15-i})")
            for ct in range(2):
                mfma(AC3 + 16 * ct, WF3 + 8 * i + 4 * ct, OF3 + 4 * i, "0" if i == 0 else AC3 + 16 * ct)
                if opt.sent: e(f"v_max3_u32 v15, v15, v{OF3+4*i+2*ct}, v{OF3+4*i+2*ct+1}")
        if opt.sent:
            e("v_cmp_eq_u32 vcc, -1, v15")
            e(f"s_add_u32 s{sSPIN}, s{sSPIN}, 1")
            e("s_cbranch_vccz L_P3_DONE")
            e(f"s_cmp_gt_u32 s{sSPIN}, {opt.spin}")
            e("s_cbranch_scc1 L_P3_DONE")
            e(f"s_sub_u32 s{sT0}, s{sT0}, 12288")
            e("s_nop 7")
            oloads()
            e("s_branch L_P3_RETRY")
            a.lab("L_P3_DONE")
    e(f"s_cmp_eq_u32 s{sTQ}, 0")
    if opt.ool:
        e("s_cbranch_scc0 L_P3_EARLY")
        i_ool2 = len(a.lines)
        a.lab("L_P3_EARLY")
    else:
        e("s_cbranch_scc1 L_P3_LATE")
    if opt.sent == 2: e("s_waitcnt vmcnt(3)")
    else: oflag()
    if opt.prio: e("s_setprio 0")
    if opt.early == 0:
        gate()
        e(f"v_and_b32 v13, 7, v0")
        e(f"v_lshlrev_b32 v13, 2, v13")
        e(f"buffer_load_dword v14, v13, {srd(S_WS)}, s{sT1} offen sc1")
        e("s_waitcnt lgkmcnt(0)")
        e("s_barrier")
        stamp("B3")
        poll("E", True, opt.sleep)
        stamp("O flags seen")
        oloads(opt.omod)
        late_part()
    else:
        e(f"v_and_b32 v13, 7, v0")
        e(f"v_lshlrev_b32 v13, 2, v13")
        e(f"buffer_load_dword v14, v13, {srd(S_WS)}, s{sT1} offen sc1")
        gate()
        for i in range(8, 16): trw(i)
        poll("E", True, opt.sleep)
        stamp("O flags seen")
        oloads(opt.omod)
        e("s_waitcnt lgkmcnt(0)")
        e("s_barrier")
        stamp("B3")
        gate_write()
    e("s_branch L_P3_J")
    if opt.ool:
        ool.append(a.lines[i_ool2:]); del a.lines[i_ool2:]
    a.lab("L_P3_LATE")
    if opt.sent:
        e(f"v_and_b32 v13, 7, v0")
        e(f"v_lshlrev_b32 v13, 2, v13")
        e(f"buffer_load_dword v14, v13, {srd(S_WS)}, s{sT1} offen sc1")
        if not opt.gate4: gate()
        e("s_waitcnt lgkmcnt(0)")
        e("s_barrier")
        stamp("B3")
    else:
        e("s_waitcnt vmcnt(2)")
        gate()
        oflag()
        e(f"v_and_b32 v13, 7, v0")
        e(f"v_lshlrev_b32 v13, 2, v13")
        e(f"buffer_load_dword v14, v13, {srd(S_WS)}, s{sT1} offen sc1")
        e("s_waitcnt lgkmcnt(0)")
        e("s_barrier")
        stamp("B3")
    late_part(not opt.gate4)
    poll("L", True, 0)
    stamp("O flags seen")
    oloads(opt.omod)
    a.lab("L_P3_J")
    if opt.fullrow:
        e(f"s_lshl_b32 s{sT2}, s{sTQ}, 15")
        e(f"s_lshl_b32 s{sT3x}, s{sQ}, 11")
        e(f"s_add_u32 s{sT3x}, s{sT3x}, s{sT2}")
        e(f"s_add_u32 s{sT3x}, s{sT3x}, {LDS_RB}")
        e(f"v_and_b32 v4, 31, v0")
        e(f"v_lshrrev_b32 v5, 5, v0")
        e(f"v_lshlrev_b32 v5, 9, v5")
        e(f"v_add_u32 v5, s{sT3x}, v5")
        for c in range(4):
            e(f"v_add_u32 v6, {4*c}, v4" if c else "v_mov_b32 v6, v4")
            e(f"v_and_b32 v6, 31, v6")
            e(f"v_lshl_add_u32 v{8+c}, v6, 4, v5")
        e(f"v_lshrrev_b32 v4, 3, v0")
        e(f"s_lshl_b32 s{sT3x}, s{sQ}, 3")
        e(f"v_add_u32 v4, s{sT3x}, v4")
        e(f"v_and_b32 v5, 7, v0")
        e(f"v_and_b32 v6, 3, v5")
        e(f"v_lshl_add_u32 v6, v6, 2, v4")
        e(f"v_and_b32 v6, 31, v6")
        e(f"v_lshlrev_b32 v6, 4, v6")
        e(f"v_lshrrev_b32 v7, 1, v5")
        e(f"v_lshl_add_u32 v6, v7, 13, v6")
        e(f"v_and_b32 v7, 1, v5")
        e(f"v_lshl_add_u32 v6, v7, 10, v6")
        e(f"s_add_u32 s{sT2}, s{sT2}, {LDS_RB}")
        e(f"v_add_u32 v2, s{sT2}, v6")
    p3mfma2()
    stamp("P3 mfma")
    if opt.fullrow:
        e(f"s_lshl_b32 s{sT2}, s{sTQ}, 5")
        e(f"v_add_u32 v3, s{sT2}, v4")
        e(f"v_lshlrev_b32 v3, 2, v3")
        e(f"v_lshlrev_b32 v4, 10, v4")
        e(f"v_lshl_add_u32 v4, v5, 4, v4")
        e(f"s_lshl_b32 s{sT2}, s{sTT3}, 15")
        e(f"s_lshl_b32 s{sT3x}, s{sN3}, 7")
        e(f"s_add_u32 s{sT2}, s{sT2}, s{sT3x}")
        e("s_nop 1")
        for qq in range(4):
            for hf in range(2):
                c = (2 * qq + hf) & 3
                e(f"ds_write_b128 v{8+c}, {vr(AC3+8*qq+4*hf,4)} offset:{qq*8192+hf*1024}")
        e("s_waitcnt lgkmcnt(0)")
        e("s_barrier")
        R = 144
        e(f"ds_read_b32 v5, v3 offset:{LDS_GATE}")
        e(f"ds_read_b32 v6, v3 offset:{LDS_GATE+256}")
        for src in range(4):
            for hh in range(2):
                e(f"ds_read_b128 {vr(R+8*src+4*hh,4)}, v2 offset:{src*2048+hh*512}")
        e("s_waitcnt lgkmcnt(4)")
        for i in range(8): e(f"v_add_f32 v{R+i}, v{R+i}, v{R+8+i}")
        for i in range(8): e(f"v_mul_f32 v{R+i}, v{R+i}, v5")
        e("s_waitcnt lgkmcnt(0)")
        for i in range(8): e(f"v_add_f32 v{R+16+i}, v{R+16+i}, v{R+24+i}")
        for i in range(8): e(f"v_fmac_f32 v{R+i}, v{R+16+i}, v6")
        for i in range(4): e(cvt(R + 32 + i, R + 2 * i, R + 2 * i + 1))
        e(f"buffer_store_dwordx4 {vr(R+32,4)}, v4, {srd(S_OUT)}, s{sT2} offen {opt.outmod}")
    else:
        e(f"s_lshl_b32 s{sT2}, s{sTQ}, 15")
        e(f"s_lshl_b32 s{sT3x}, s{sQ}, 11")
        e(f"s_add_u32 s{sT3x}, s{sT3x}, s{sT2}")
        e(f"s_add_u32 s{sT3x}, s{sT3x}, {LDS_RB}")
        e(f"v_add_u32 v1, s{sT3x}, v{vL16}")
        e(f"s_lshl_b32 s{sT3x}, s{sQ}, 13")
        e(f"s_add_u32 s{sT3x}, s{sT3x}, s{sT2}")
        e(f"s_add_u32 s{sT3x}, s{sT3x}, {LDS_RB}")
        e(f"v_add_u32 v2, s{sT3x}, v{vL16}")
        e(f"v_and_b32 v4, 31, v0")
        e(f"s_lshl_b32 s{sT2}, s{sTQ}, 5")
        e(f"v_add_u32 v3, s{sT2}, v4")
        e(f"v_lshlrev_b32 v3, 2, v3")
        e(f"v_lshlrev_b32 v4, 10, v4")
        e(f"v_lshrrev_b32 v5, 5, v0")
        e(f"v_lshl_add_u32 v4, v5, 4, v4")
        e(f"s_lshl_b32 s{sT2}, s{sTT3}, 15")
        e(f"s_lshl_b32 s{sT3x}, s{sN3}, 7")
        e(f"s_add_u32 s{sT2}, s{sT2}, s{sT3x}")
        e(f"s_lshl_b32 s{sT3x}, s{sQ}, 5")
        e(f"s_add_u32 s{sT2}, s{sT2}, s{sT3x}")
        e("s_nop 1")
        for qq in range(4):
            for hf in range(2):
                e(f"ds_write_b128 v1, {vr(AC3+8*qq+4*hf,4)} offset:{qq*8192+hf*1024}")
        e("s_waitcnt lgkmcnt(0)")
        e("s_barrier")
        R = 144
        e(f"ds_read_b32 v5, v3 offset:{LDS_GATE}")
        e(f"ds_read_b32 v6, v3 offset:{LDS_GATE+256}")
        for src in range(4):
            for hf in range(2):
                e(f"ds_read_b128 {vr(R+8*src+4*hf,4)}, v2 offset:{src*2048+hf*1024}")
        e("s_waitcnt lgkmcnt(4)")
        for i in range(8): e(f"v_add_f32 v{R+i}, v{R+i}, v{R+8+i}")
        for i in range(8): e(f"v_mul_f32 v{R+i}, v{R+i}, v5")
        e("s_waitcnt lgkmcnt(0)")
        for i in range(8): e(f"v_add_f32 v{R+16+i}, v{R+16+i}, v{R+24+i}")
        for i in range(8): e(f"v_fmac_f32 v{R+i}, v{R+16+i}, v6")
        for i in range(4): e(cvt(R + 32 + i, R + 2 * i, R + 2 * i + 1))
        e("s_nop 1")
        e(f"v_permlane32_swap_b32 v{R+32}, v{R+34}")
        e(f"v_permlane32_swap_b32 v{R+33}, v{R+35}")
        e(f"buffer_store_dwordx4 {vr(R+32,4)}, v4, {srd(S_OUT)}, s{sT2} offen {opt.outmod}")
    if STAMPS:
        stamp("end")
        e(f"s_memtime s[{sTM}:{sTM+1}]")
        e("s_waitcnt lgkmcnt(0)")
        e(f"s_sub_u32 s{STREG[nst[0]]}, s{sTM}, s100")
        nst[0] += 1
        opt.stamp_names.append("CYCLES")
        n = nst[0]
        e(f"s_lshl_b32 s{sT2}, s2, 3")
        e(f"s_add_u32 s{sT2}, s{sT2}, s{sW}")
        e(f"s_lshl_b32 s{sT2}, s{sT2}, 7")
        e(f"s_add_u32 s{sT2}, s{sT2}, {WS_STAMP}")
        e("v_mov_b32 v13, 0")
        e("s_mov_b64 exec, 1")
        for i in range(n):
            e(f"v_mov_b32 v14, s{STREG[i]}")
            e(f"buffer_store_dword v14, v13, {srd(S_WS)}, s{sT2} offen offset:{4*i}")
            e("s_nop 0")
        e("s_mov_b64 exec, -1")
    e("s_waitcnt vmcnt(0)")
    a.lab("L_END")
    e("s_endpgm")
    for blk in ool: a.lines += blk
    if opt.fallback:
        a.lab("L_FB_ENTRY")
        fallback(a, opt, dict(SS=SS, PP=PP, KF=KF, MK=MK, OA=OA, QF=QF, vL16=vL16, HT=144))
        e("s_branch L_NOFB")
    a.lab("L_CODE_END")
    return a

def fallback(a, opt, R):
    e = a.e
    SS, PP, KF, MK, OA, QF, vL16, HT = (R[k] for k in "SS PP KF MK OA QF vL16 HT".split())
    TQ = 64; TM = 68; TB = 69; TO = 144; TV = 192; TC = 176
    S = SS
    sHH, sPASS, sPART, sTILE, sN = sH, 40, 41, 42, 43
    def mfma(D, A, B, C): e(mfma_s(D, A, B, C))
    a.c("==== fallback: true max ====")
    e(f"s_lshl_b32 s{sT2}, s{sC}, 5")
    e(f"s_add_u32 s{sT2}, s{sT2}, s{sBH}")
    e(f"s_lshl_b32 s{sT2}, s{sT2}, 7")
    e(f"s_add_u32 s{sT2}, s{sT2}, {WS_KVF}")
    e(f"v_and_b32 v13, 7, v0")
    e(f"v_lshlrev_b32 v13, 2, v13")
    e(f"s_mov_b32 s{sSPIN}, 0")
    a.lab("L_FB_FLAG")
    e(f"buffer_load_dword v14, v13, {srd(S_WS)}, s{sT2} offen sc1")
    e(f"s_add_u32 s{sSPIN}, s{sSPIN}, 1")
    e("s_waitcnt vmcnt(0)")
    e(f"v_cmp_ne_u32 vcc, s{sTAG}, v14")
    e(f"s_cmp_gt_u32 s{sSPIN}, {opt.spin}")
    e("s_cbranch_scc1 L_FB_FLAG_OK")
    e("s_cbranch_vccnz L_FB_FLAG")
    a.lab("L_FB_FLAG_OK")
    e(f"s_mov_b32 s{sHH}, 0")
    a.lab("L_FB_H")
    e(f"s_lshr_b32 s{sT2}, s{sFAIL}, s{sHH}")
    e(f"s_and_b32 s{sT2}, s{sT2}, 1")
    e(f"s_cmp_eq_u32 s{sT2}, 0")
    e("s_cbranch_scc1 L_FB_NEXT")
    e(f"s_cmp_eq_u32 s{sHH}, 0")
    e("s_cbranch_scc0 L_FB_Q1")
    for i in range(4): e(f"v_mov_b32 v{TQ+i}, v{QF+i}")
    e("s_branch L_FB_Q2")
    a.lab("L_FB_Q1")
    for i in range(4): e(f"v_mov_b32 v{TQ+i}, v{QF+4+i}")
    a.lab("L_FB_Q2")
    e(f"v_mov_b32 v{TM}, 0xff800000")
    for i in range(16): e(f"v_mov_b32 v{TO+i}, 0")
    for i in range(8): e(f"v_mov_b32 v{TV+i}, 0x3f803f80")
    e(f"s_mov_b32 s{sPASS}, 0")
    a.lab("L_FB_PASS")
    e(f"s_mov_b32 s{sPART}, 0")
    a.lab("L_FB_PART")
    e(f"s_cmp_eq_u32 s{sPART}, 0")
    e(f"s_cselect_b32 s{sTILE}, 0, s{sTAU}")
    e(f"s_cselect_b32 s{sN}, s{sTAU}, 7")
    a.lab("L_FB_TILE")
    e(f"s_cmp_eq_u32 s{sTILE}, s{sTAU}")
    e("s_cbranch_scc1 L_FB_MASK")
    for i in range(16): e(f"v_mov_b32 v{TC+i}, 0")
    e("s_branch L_FB_C")
    a.lab("L_FB_MASK")
    e(f"v_and_b32 v13, 31, v0")
    e(f"v_lshrrev_b32 v14, 5, v0")
    e(f"v_lshlrev_b32 v14, 2, v14")
    e(f"v_sub_u32 v13, v13, v14")
    e(f"s_cmp_eq_u32 s{sPART}, 0")
    e(f"s_cselect_b32 s{sT2}, 0, 0xff800000")
    for r in range(16):
        kk = (r & 3) + 8 * (r >> 2)
        e(f"v_subrev_u32 v{TC+r}, {kk}, v13")
        e(f"v_ashrrev_i32 v{TC+r}, 31, v{TC+r}")
        e(f"v_and_b32 v{TC+r}, 0xff800000, v{TC+r}")
        e(f"v_xor_b32 v{TC+r}, s{sT2}, v{TC+r}")
    a.lab("L_FB_C")
    e(f"s_sub_u32 s{sT2}, s{sC}, s{sPART}")
    e(f"s_lshl_b32 s{sT2}, s{sT2}, 3")
    e(f"s_add_u32 s{sT2}, s{sT2}, s{sTILE}")
    e(f"s_lshl_b32 s{sT3x}, s{sBH}, 6")
    e(f"s_add_u32 s{sT2}, s{sT2}, s{sT3x}")
    e(f"s_lshl_b32 s{sT2}, s{sT2}, 12")
    e(f"s_add_u32 s{sT2}, s{sT2}, {WS_KV}")
    e(f"s_lshl_b32 s{sT3x}, s{sHH}, 10")
    e(f"s_add_u32 s{sT3x}, s{sT3x}, s{sT2}")
    e(f"buffer_load_dwordx4 {vr(KF,4)}, v{vL16}, {srd(S_WS)}, s{sT3x} offen sc1")
    e(f"s_lshl_b32 s{sT3x}, s{sHH}, 8")
    e(f"s_add_u32 s{sT3x}, s{sT3x}, s{sT2}")
    e(f"s_mov_b64 exec, s[{sVM}:{sVM+1}]")
    e(f"buffer_load_dwordx4 {vr(TV,4)}, v{vL16}, {srd(S_WS)}, s{sT3x} offen offset:2048 sc1")
    e(f"buffer_load_dwordx4 {vr(TV+4,4)}, v{vL16}, {srd(S_WS)}, s{sT3x} offen offset:3072 sc1")
    e("s_mov_b64 exec, -1")
    e("s_waitcnt vmcnt(0)")
    mfma(S, KF, TQ, TC)
    e("s_nop 7"); e("s_nop 7")
    e(f"s_cmp_eq_u32 s{sPASS}, 0")
    e("s_cbranch_scc0 L_FB_P2")
    for i in range(8): e(f"v_max3_f32 v{TM}, v{TM}, v{S+2*i}, v{S+2*i+1}")
    e("s_branch L_FB_TNEXT")
    a.lab("L_FB_P2")
    for i in range(16): e(f"v_sub_f32 v{S+i}, v{S+i}, v{TM}")
    for i in range(16): e(f"v_exp_f32 v{S+i}, v{S+i}")
    e("s_nop 0")
    for i in range(8): e(cvt(PP + i, S + 2 * i, S + 2 * i + 1))
    e("s_nop 1")
    mfma(TO, TV, PP, TO)
    mfma(TO, TV + 4, PP + 4, TO)
    e("s_nop 7"); e("s_nop 7")
    a.lab("L_FB_TNEXT")
    e(f"s_add_u32 s{sTILE}, s{sTILE}, 1")
    e(f"s_cmp_le_u32 s{sTILE}, s{sN}")
    e("s_cbranch_scc1 L_FB_TILE")
    e(f"s_cmp_eq_u32 s{sC}, 0")
    e("s_cbranch_scc1 L_FB_PDONE")
    e(f"s_add_u32 s{sPART}, s{sPART}, 1")
    e(f"s_cmp_lt_u32 s{sPART}, 2")
    e("s_cbranch_scc1 L_FB_PART")
    a.lab("L_FB_PDONE")
    e(f"s_cmp_eq_u32 s{sPASS}, 0")
    e("s_cbranch_scc0 L_FB_STORE")
    e(f"v_mov_b32 v{TB}, v{TM}")
    e("s_nop 1")
    e(f"v_permlane32_swap_b32 v{TM}, v{TB}")
    e("s_nop 1")
    e(f"v_max_f32 v{TM}, v{TM}, v{TB}")
    e(f"s_mov_b32 s{sPASS}, 1")
    e("s_branch L_FB_PASS")
    a.lab("L_FB_STORE")
    e(f"s_cmp_eq_u32 s{sHH}, 0")
    e("s_cbranch_scc0 L_FB_S1")
    for i in range(16): e(f"v_mov_b32 v{OA+i}, v{TO+i}")
    e("s_branch L_FB_NEXT")
    a.lab("L_FB_S1")
    for i in range(16): e(f"v_mov_b32 v{OA+16+i}, v{TO+i}")
    a.lab("L_FB_NEXT")
    e(f"s_add_u32 s{sHH}, s{sHH}, 1")
    e(f"s_cmp_lt_u32 s{sHH}, 2")
    e("s_cbranch_scc1 L_FB_H")

def build(opt):
    opt.stamp_names = []
    a = gen(opt)
    hdr = []
    ref = open("gated_mix__sliding_block__sliding_block__prompt.s.ref").read().split("\n")
    for l in ref:
        if l.startswith("; Override launch geometry"): break
        hdr.append(l)
    hdr += """;
; Fused gated mix of two sliding-window attention branches, one launch, 256 workgroups of 8 waves (one per CU).
; (Assembly emitted by the author's own generator script.)
;   workgroup = (branch, head pair, chunk of 256 tokens)
;   phase 1  QKV projection: waves 4..7 stream x / W chunks into LDS (LDS-DMA), waves 0..3 run the MFMAs;
;            K / V fragment images go to LDS and to d_ws (halo for the next chunk)
;   phase 2  windowed attention, S^T = K Q^T per 32x32 tile, exp2 without a shift, row sums through a ones row of V^T;
;            a run-time range check on the row sums / accumulators falls back to a true-max recomputation (L_FB_ENTRY)
;   phase 3  output projection of both branches for a 64x64 output tile + sigmoid gate mix
;   hand-offs between workgroups: sc1 stores + tagged flags in d_ws (tag = word 0 of d_ws + 1, broadcast through d_debug)""".split("\n")
    hdr.append(f"; @launch grid=(256,1,1) block=(512,1,1) lds={LDS_TOTAL}")
    hdr.append('.amdgcn_target "amdgcn-amd-amdhsa--gfx950"')
    hdr.append(".text")
    hdr.append(f".globl {KNAME}")
    hdr.append(".p2align 8")
    hdr.append(f".type {KNAME},@function")
    tail = f""".section .rodata,"a"
.p2align 6
.amdhsa_kernel {KNAME}
  .amdhsa_next_free_vgpr 256
  .amdhsa_next_free_sgpr 102
  .amdhsa_accum_offset 256
  .amdhsa_group_segment_fixed_size 0
  .amdhsa_kernarg_size 80
  .amdhsa_user_sgpr_count 2
  .amdhsa_user_sgpr_kernarg_segment_ptr 1
  .amdhsa_system_sgpr_workgroup_id_x 1
  .amdhsa_float_denorm_mode_32 3
.end_amdhsa_kernel
"""
    return "\n".join(hdr) + "\n" + a.text() + tail

def parse(argv=None):
    p = argparse.ArgumentParser()
    p.add_argument("-o", default="gated_mix__sliding_block__sliding_block__prompt.s")
    p.add_argument("--stamps", type=int, default=0)
    p.add_argument("--codepf", type=int, default=2)
    p.add_argument("--pace", type=float, default=1.6)
    p.add_argument("--rot", type=int, default=1)
    p.add_argument("--padtest", type=int, default=0)
    p.add_argument("--fullrow", type=int, default=1)
    p.add_argument("--lprio", type=int, default=0)
    p.add_argument("--wsbase", type=int, default=0)
    p.add_argument("--xtouch", type=int, default=0)
    p.add_argument("--ool", type=int, default=1)
    p.add_argument("--tlb", type=int, default=1)
    p.add_argument("--gate4", type=int, default=0)
    p.add_argument("--wostride", type=int, default=64)
    p.add_argument("--tagearly", type=int, default=0)
    p.add_argument("--gwpf", type=int, default=1)
    p.add_argument("--mke", type=int, default=1)
    p.add_argument("--forcefb", type=int, default=0)
    p.add_argument("--early", type=int, default=0)
    p.add_argument("--lfirst", type=int, default=1)
    p.add_argument("--omod", default="sc1")
    p.add_argument("--rep", type=int, default=0)
    p.add_argument("--warm", type=int, default=6)
    p.add_argument("--sent", type=int, default=1)
    p.add_argument("--tailopt", type=int, default=1)
    p.add_argument("--eorder", type=int, default=1)
    p.add_argument("--prio", type=int, default=1)
    p.add_argument("--sleep", type=int, default=0)
    p.add_argument("--pf", type=int, default=0)
    p.add_argument("--bar0", type=int, default=1)
    p.add_argument("--dbg", type=int, default=0)
    p.add_argument("--cyc", type=int, default=0)
    p.add_argument("--wopf", type=int, default=1)
    p.add_argument("--fallback", type=int, default=1)
    p.add_argument("--spin", type=int, default=20000)
    p.add_argument("--outmod", default="")
    return p.parse_args(argv)

if __name__ == "__main__":
    opt = parse()
    s = build(opt)
    open(opt.o, "w").write(s)
    if opt.stamps:
        open(opt.o + ".stamps", "w").write("\n".join(opt.stamp_names))
    print("wrote", opt.o, len(s), "bytes")
```

```python
import sys, argparse, math, struct

KNAME = "gated_mix__sliding_block__sliding_block__prompt_kernel"

WS_NONCE = 0
WS_OF = 0x10000
WS_KVF = 0x4000
WS_KV = 0x100000
WS_O = 0x1000000
WS_STAMP = 0x1800000
WS_SIZE = 0x2000000

REG = 12288
LDS_W = 8 * REG
WPART = 24576
LDS_TOTAL = 163840
LDS_A0, LDS_A1 = 98304, 131072
LDS_GATE = 4096
LDS_RB = 98304

S_X, S_W, S_WOA, S_WOB, S_WS, S_OUT, S_GW, S_DBG = 8, 12, 16, 20, 24, 28, 32, 36
sW, sTAU, sC, sBH, sBR, sHG, sTT, sT3, sN3, sTAG, sJ = 60, 61, 62, 63, 64, 65, 66, 67, 68, 69, 70
sT0, sT1, sT2, sT3x, sT4, sT5 = 71, 72, 73, 74, 75, 76
sCNT, sSPIN, sFAIL = 77, 80, 81
sVM = 78
sKVO = 82
sH = 83
STREG = list(range(84, 98)) + [3, 6, 7, 46, 47]
sTM = 98
sXB, sWG, sWL = 40, 41, 42

def srd(b): return f"s[{b}:{b+3}]"
def vr(b, n=1): return f"v{b}" if n == 1 else f"v[{b}:{b+n-1}]"

class Asm:
    def __init__(self):
        self.lines = []; self.vm = []; self.lg = []
    def e(self, s): self.lines.append("  " + s)
    def c(self, s): self.lines.append("  ; " + s)
    def lab(self, s): self.lines.append(s + ":")
    def vmop(self, s, tag): self.e(s); self.vm.append(tag)
    def lgop(self, s, tag): self.e(s); self.lg.append(tag)
    def _n(self, q, tag, mx):
        idx = max(i for i, t in enumerate(q) if t == tag)
        return min(len(q) - 1 - idx, mx)
    def vmwait(self, tag):
        if tag not in self.vm: return
        n = self._n(self.vm, tag, 63)
        self.e(f"s_waitcnt vmcnt({n})")
        self.vm = self.vm[len(self.vm) - n:] if n > 0 else []
    def lgwait(self, tag):
        if tag not in self.lg: return
        n = self._n(self.lg, tag, 15)
        self.e(f"s_waitcnt lgkmcnt({n})")
        self.lg = self.lg[len(self.lg) - n:] if n > 0 else []
    def vmall(self): self.e("s_waitcnt vmcnt(0)"); self.vm = []
    def lgall(self): self.e("s_waitcnt lgkmcnt(0)"); self.lg = []
    def text(self): return "\n".join(self.lines) + "\n"

def f32bits(x): return struct.unpack("<I", struct.pack("<f", x))[0]
def mfma_s(D, A, B, C):
    cs = C if isinstance(C, str) else vr(C, 16)
    return f"v_mfma_f32_32x32x16_bf16 {vr(D,16)}, {vr(A,4)}, {vr(B,4)}, {cs}"
def cvt(dst, s0, s1): return f"v_cvt_pk_bf16_f32 v{dst}, v{s0}, v{s1}"

def gen(opt):
    a = Asm()
    e = a.e
    mfma = lambda D, A, B, C: e(mfma_s(D, A, B, C))
    STAMPS = opt.stamps
    nst = [0]
    def stamp(name, inner=False):
        if not STAMPS: return
        if STAMPS == 4 and not inner:
            if name in ("entry", "first data", "gemm done", "B1", "B2", "attn done", "B3", "end"):
                opt.cyc = 0; stamp(name, True)
                if name not in ("entry", "end"):
                    opt.cyc = 1; stamp(name + " cyc", True); opt.cyc = 0
            return
        if STAMPS == 3 and name in ("own done", "B2", "attn done", "O published", "B3", "B4", "O flags seen", "P3 mfma", "roleA", "roleB"): return
        if STAMPS == 2 and name in ("own done", "B2", "attn done", "O published", "B3", "B4", "O flags seen", "P3 mfma"): return
        if name in opt.stamp_names:
            i = opt.stamp_names.index(name)
            e("s_waitcnt lgkmcnt(0)")
            e(f"{'s_memtime' if opt.cyc else 's_memrealtime'} s[{sTM}:{sTM+1}]")
            e("s_waitcnt lgkmcnt(0)")
            e(f"s_mov_b32 s{STREG[i]}, s{sTM}")
            return
        i = nst[0]; nst[0] += 1
        assert i < len(STREG)
        a.c(f"stamp {i}: {name}")
        e("s_waitcnt lgkmcnt(0)"); a.lg = []
        e(f"{'s_memtime' if opt.cyc else 's_memrealtime'} s[{sTM}:{sTM+1}]")
        e("s_waitcnt lgkmcnt(0)")
        e(f"s_mov_b32 s{STREG[i]}, s{sTM}")
        opt.stamp_names.append(name)

    vXO = 1; vXR = 5; vWO = 9; vWR = 10; vL16 = 12
    XF = 16
    WF = 80
    ACC = 116
    def AQ(x): return ACC + 48 * x
    def AK(x): return ACC + 48 * x + 16
    def AV(x): return ACC + 48 * x + 32
    def XFr(lc, x, s): return XF + 8 * ((4 * lc + s) % 6) + 4 * x
    def WFr(t, m): return WF + 12 * (t % 3) + 4 * m
    OA = 216; QF = 248; MK = 64; VF = 32
    SS = 160; PP = 48; KF = 56; HT = 64
    vK = 1
    vD = 13
    GX, GW, GA = (80 if opt.gate4 else 96), 208, 212
    WSLOT = 12288
    MKE = 144
    TKA, TKB, TVA, TVB, TQA, TQB = 248, 4, ACC + 16, ACC + 64, ACC + 32, ACC + 80
    LDS_TAG = 8192 + 2048

    a.lab(KNAME)
    e("s_cmp_ge_u32 s2, 256")
    e("s_cbranch_scc1 L_END")
    if STAMPS:
        e("s_memtime s[100:101]")
        stamp("entry")
    e("s_getpc_b64 s[4:5]")
    a.lab("L_PC")
    e("s_load_dwordx4 s[40:43], s[0:1], 0")
    e("s_load_dwordx4 s[48:51], s[0:1], 32")
    e("v_lshlrev_b32 v13, 6, v0")
    e("s_load_dwordx2 s[44:45], s[0:1], 16")
    e("s_load_dwordx4 s[52:55], s[0:1], 48")
    e("s_load_dwordx4 s[56:59], s[0:1], 64")
    e("v_min_u32 v13, L_CODE_END-L_PC-4, v13")
    if opt.codepf == 1:
        e(f"global_load_dword v213, v13, s[4:5]")
    if opt.codepf == 2:
        e("s_cmp_ge_u32 s2, 16")
        e("s_cbranch_scc1 L_CPF_E")
        e("v_lshlrev_b32 v13, 7, v0")
        e("v_min_u32 v13, L_CODE_END-L_PC-4, v13")
        e(f"global_load_dword v213, v13, s[4:5]")
        a.lab("L_CPF_E")
    e("v_lshrrev_b32 v15, 6, v0")
    e("v_and_b32 v0, 63, v0")
    e(f"s_and_b32 s{sT0}, s2, 7")
    e(f"v_readfirstlane_b32 s{sW}, v15")
    e(f"s_lshr_b32 s{sJ}, s2, 3")
    e(f"s_and_b32 s{sT1}, s{sT0}, 1")
    e(f"s_lshl_b32 s{sT1}, s{sT1}, 2")
    e(f"s_and_b32 s{sT2}, s{sJ}, 3")
    e(f"s_add_u32 s{sC}, s{sT1}, s{sT2}")
    e(f"s_lshr_b32 s{sT1}, s{sT0}, 1")
    e(f"s_lshl_b32 s{sT1}, s{sT1}, 3")
    e(f"s_lshr_b32 s{sN3}, s{sJ}, 2")
    e(f"s_add_u32 s{sBH}, s{sT1}, s{sN3}")
    e(f"s_lshr_b32 s{sBR}, s{sBH}, 4")
    e(f"s_and_b32 s{sHG}, s{sBH}, 15")
    e(f"s_lshl_b32 s{sT3}, s{sT0}, 2")
    e(f"s_add_u32 s{sT3}, s{sT3}, s{sT2}")
    e(f"s_sub_u32 s{sT1}, 11, s{sW}")
    e(f"s_cmp_lt_u32 s{sW}, 4")
    e(f"s_cselect_b32 s{sTAU}, s{sW}, s{sT1}")
    e(f"s_lshl_b32 s{sTT}, s{sC}, 3")
    e(f"s_add_u32 s{sTT}, s{sTT}, s{sTAU}")
    e(f"v_lshlrev_b32 v{vL16}, 4, v0")
    def mk(b, lo, hi, size):
        e(f"s_mov_b32 s{b}, s{lo}"); e(f"s_mov_b32 s{b+1}, s{hi}")
        e(f"s_mov_b32 s{b+2}, {size}"); e(f"s_mov_b32 s{b+3}, 0x00020000")
    def mk_w():
        e(f"s_cmp_eq_u32 s{sBR}, 0")
        e(f"s_cselect_b32 s{S_W}, s42, s48")
        e(f"s_cselect_b32 s{S_W+1}, s43, s49")
        e(f"s_mov_b32 s{S_W+2}, 1572864"); e(f"s_mov_b32 s{S_W+3}, 0x00020000")
    def mk_rest():
        if opt.wsbase:
            e(f"s_add_u32 s58, s58, {opt.wsbase}")
            e(f"s_addc_u32 s59, s59, 0")
        mk(S_WS, 58, 59, WS_SIZE)
        mk(S_DBG, 56, 57, 256)
        mk(S_OUT, 54, 55, 2097152)
        mk(S_GW, 52, 53, 1024)
        mk(S_WOA, 44, 45, 524288)
        mk(S_WOB, 50, 51, 524288)
        e(f"s_mov_b32 s{sVM}, 0x0000ffff")
        e(f"s_mov_b32 s{sVM+1}, 0x0000ffff")
        e(f"s_mov_b32 s{sFAIL}, 0")
        p3_ids()
    sTQ, sQ, sB3, sKH, sTT3, sOFA = 44, 45, 48, 49, 50, 51
    def p3_ids():
        e(f"s_lshr_b32 s{sTQ}, s{sW}, 2")
        e(f"s_and_b32 s{sQ}, s{sW}, 3")
        e(f"s_lshr_b32 s{sB3}, s{sQ}, 1")
        e(f"s_and_b32 s{sKH}, s{sQ}, 1")
        e(f"s_and_b32 s{sT2}, s{sT3}, 3")
        e(f"s_sub_u32 s{sT3x}, 7, s{sT2}")
        e(f"s_cmp_eq_u32 s{sTQ}, 0")
        e(f"s_cselect_b32 s{sT2}, s{sT2}, s{sT3x}")
        e(f"s_lshr_b32 s{sTT3}, s{sT3}, 2")
        e(f"s_lshl_b32 s{sTT3}, s{sTT3}, 3")
        e(f"s_add_u32 s{sTT3}, s{sTT3}, s{sT2}")
    def mask_list():
        q = [f"v_and_b32 v{vD}, 31, v0", f"v_lshrrev_b32 v{vD+2}, 5, v0", f"v_lshlrev_b32 v{vD+2}, 2, v{vD+2}", f"v_sub_u32 v{vD}, v{vD}, v{vD+2}"]
        for r in range(16):
            kk = (r & 3) + 8 * (r >> 2)
            q += [f"v_subrev_u32 v{MK+r}, {kk}, v{vD}", f"v_ashrrev_i32 v{MK+r}, 31, v{MK+r}", f"v_and_b32 v{MK+r}, 0xff800000, v{MK+r}"]
        return q
    def ones_list():
        return [f"v_mov_b32 v{VF+i}, 0x3f803f80" for i in range(16)]
    def init_list():
        return mask_list() + ones_list()
    if opt.lfirst:
        e(f"s_cmp_lt_u32 s{sW}, 4")
        e("s_cbranch_scc1 L_COMPUTE")
    else:
        e(f"s_cmp_ge_u32 s{sW}, 4")
        e("s_cbranch_scc1 L_LOADER")
    i_comp = len(a.lines)
    a.lab("L_COMPUTE")

    SXB = sT4
    e(f"s_mul_i32 s{SXB}, s{sW}, {2*REG}")
    e(f"v_and_b32 v13, 31, v0")
    e(f"v_lshrrev_b32 v15, 5, v0")
    e(f"v_bfe_u32 v{vXR+1}, v13, 1, 3")
    e(f"v_xor_b32 v15, v15, v{vXR+1}")
    e(f"v_lshlrev_b32 v15, 4, v15")
    e(f"v_lshl_add_u32 v15, v13, 7, v15")
    e(f"v_add_u32 v{vXR}, s{SXB}, v15")
    for s_ in range(1, 4):
        e(f"v_xor_b32 v{vXR+s_}, {s_<<5}, v{vXR}")
    e(f"v_lshrrev_b32 v13, 5, v0")
    e(f"v_lshlrev_b32 v13, 9, v13")
    e(f"v_bfe_u32 v15, v0, 2, 2")
    e(f"v_lshl_add_u32 v13, v15, 6, v13")
    e(f"v_bfe_u32 v15, v0, 4, 1")
    e(f"v_lshl_add_u32 v13, v15, 5, v13")
    e(f"v_and_b32 v15, 3, v0")
    e(f"v_lshl_add_u32 v13, v15, 3, v13")
    e(f"v_add_u32 v{vWR}, {LDS_W}, v13")
    for i in range(32): e(f"v_mov_b32 v{OA+i}, 0")
    for l in mask_list(): e(l)
    e("s_waitcnt lgkmcnt(0)")
    mk(S_X, 40, 41, 2097152)
    mk_w()
    if opt.xtouch:
        e(f"s_lshl_b32 s{sT2}, s{sC}, 18")
        e(f"v_mov_b32 v13, 0")
        e("s_mov_b64 exec, 1")
        e(f"s_cmp_eq_u32 s{sW}, 0"); e("s_cbranch_scc0 L_XT1")
        e(f"buffer_load_dword v214, v13, {srd(S_X)}, s{sT2} offen")
        a.lab("L_XT1")
        e("s_mov_b64 exec, -1")
    mk_rest()
    stamp("issued")
    def xread1(lc, x, s_):
        a.lgop(f"ds_read_b128 {vr(XFr(lc,x,s_),4)}, v{vXR+s_} offset:{x*REG+(lc%3)*4096}", f"xr{lc}_{s_}")
    def wread1(t, m, u):
        lc = t >> 2
        a.lgop(f"ds_read_b64_tr_b16 {vr(WFr(t,m)+2*u,2)}, v{vWR} offset:{(lc%3)*WSLOT+m*4096+(t&3)*1024+u*256}", f"wf{t}")
    e("s_barrier")
    stamp("first data")
    mfma_full = mfma
    if opt.dbg == 16:
        def mfma(D, A, B, C):
            for h in range(2):
                cs = C if isinstance(C, str) else vr(C + 4 * h, 4)
                e(f"v_mfma_f32_16x16x32_bf16 {vr(D + 4*h, 4)}, {vr(A,4)}, {vr(B,4)}, {cs}")
    if opt.dbg == 17:
        def mfma(D, A, B, C): pass
    for m in range(3):
        for u in range(2): wread1(0, m, u)
    for x in range(2): xread1(0, x, 0)
    for m in range(3):
        for u in range(2): wread1(1, m, u)
    for s_ in range(1, 4):
        for x in range(2): xread1(0, x, s_)
    initq = ones_list()
    NT = 29 if opt.tailopt else 32
    def gstep(t):
        lc, s_ = t >> 2, t & 3
        if opt.stamps == 2 and t in (4, 8, 12, 16, 20, 24, 28): stamp(f"t{t}")
        if s_ == 2 and lc <= 6:
            a.lgall()
            e("s_barrier")
        a.lgwait(f"wf{t}")
        a.lgwait(f"xr{lc}_{s_}")
        R = [(t + 2, m, u) for m in range(3) for u in range(2)] if t + 2 < 32 else []
        X = [(lc + 1, x, 2 * (s_ - 2) + k) for k in range(2) for x in range(2)] if (s_ >= 2 and lc <= 6) else []
        C = (lambda r: "0") if t == 0 else (lambda r: r)
        xa, xb = XFr(lc, 0, s_), XFr(lc, 1, s_)
        def ini(n):
            if t >= 28:
                for _ in range(n):
                    if initq: e(initq.pop(0))
        mfma(AK(0), WFr(t, 0), xa, C(AK(0)))
        for r in R[0:2]: wread1(*r)
        ini(3)
        mfma(AK(1), WFr(t, 0), xb, C(AK(1)))
        for r in R[2:4]: wread1(*r)
        ini(3)
        mfma(AV(0), xa, WFr(t, 1), C(AV(0)))
        for r in R[4:6]: wread1(*r)
        ini(3)
        mfma(AV(1), xb, WFr(t, 1), C(AV(1)))
        for x in X[0:2]: xread1(*x)
        ini(3)
        mfma(AQ(0), WFr(t, 2), xa, C(AQ(0)))
        for x in X[2:4]: xread1(*x)
        ini(3)
        mfma(AQ(1), WFr(t, 2), xb, C(AQ(1)))
        ini(3)
    if opt.gloop:
        assert opt.tailopt and opt.stamps != 2
        for t in range(4): gstep(t)
        e(f"s_mov_b32 s{sCNT}, 1")
        lg0 = list(a.lg)
        a.lab("L_GEMM_LOOP")
        for t in range(4, 16): gstep(t)
        def shift(tag):
            if tag.startswith("wf"): return f"wf{int(tag[2:]) + 12}"
            lc_, s2 = tag[2:].split("_"); return f"xr{int(lc_) + 3}_{s2}"
        assert [shift(x) for x in lg0] == a.lg, (lg0, a.lg)
        e(f"s_sub_u32 s{sCNT}, s{sCNT}, 1")
        e("s_cbranch_scc0 L_GEMM_LOOP")
        a.lg = [shift(x) for x in a.lg]
        gstep(28)
    else:
        for t in range(NT): gstep(t)
    if not opt.tailopt:
        while initq: e(initq.pop(0))
    e(f"s_lshl_b32 s{sKVO}, s{sBH}, 6")
    e(f"s_lshl_b32 s{sT2}, s{sC}, 3")
    e(f"s_add_u32 s{sKVO}, s{sKVO}, s{sT2}")
    e(f"s_lshl_b32 s{sT2}, s{sW}, 1")
    e(f"s_add_u32 s{sKVO}, s{sKVO}, s{sT2}")
    e(f"s_lshl_b32 s{sKVO}, s{sKVO}, 12")
    e(f"s_add_u32 s{sKVO}, s{sKVO}, {WS_KV}")
    e(f"s_add_u32 s{sT1}, s{sKVO}, 4096")
    e(f"v_add_u32 v{vK}, s{SXB}, v{vL16}")
    cq = 0.25 * math.log2(math.e)
    e(f"s_mov_b32 s{sT2}, {hex(f32bits(cq))}")
    def k_epi(x, T):
        so = sKVO if x == 0 else sT1
        L = [("e", cvt(T + i, AK(x) + 2 * i, AK(x) + 2 * i + 1)) for i in range(8)]
        L += [("vm", f"buffer_store_dwordx4 {vr(T+4*i,4)}, v{vL16}, {srd(S_WS)}, s{so} offen offset:{i*1024} sc1") for i in range(2)]
        L += [("lg", f"ds_write_b128 v{vK}, {vr(T+4*i,4)} offset:{x*REG+i*1024}") for i in range(2)]
        return L
    def v_epi(x, T):
        so = sKVO if x == 0 else sT1
        L = [("e", cvt(T + i, AV(x) + 2 * i, AV(x) + 2 * i + 1)) for i in range(8)]
        L += [("vm", f"buffer_store_dwordx4 {vr(T+4*i,4)}, v{vL16}, {srd(S_WS)}, s{so} offen offset:{(2+i)*1024} sc1") for i in range(2)]
        L += [("lg", f"ds_write_b128 v{vK}, {vr(T+4*i,4)} offset:{x*REG+(2+i)*1024}") for i in range(2)]
        return L
    def q_epi(x, T):
        L = [("e", f"v_mul_f32 v{AQ(x)+i}, s{sT2}, v{AQ(x)+i}") for i in range(16)]
        L += [("e", cvt(T + i, AQ(x) + 2 * i, AQ(x) + 2 * i + 1)) for i in range(8)]
        L += [("lg", f"ds_write_b128 v{vK}, {vr(T+4*h,4)} offset:{x*REG+8192+h*1024}") for h in range(2)]
        return L
    def emit(items):
        for k, l in items:
            if k == "e": e(l)
            elif k == "vm": a.vmop(l, "kvs")
            else: a.lgop(l, "kvw")
    if opt.tailopt:
        for m in range(3):
            for u in range(2): wread1(31, m, u)
        xs = {t: (XFr(7, 0, t & 3), XFr(7, 1, t & 3)) for t in (29, 30, 31)}
        a.lgwait("wf30")
        for t in (29, 30):
            for x in range(2):
                mfma(AK(x), WFr(t, 0), xs[t][x], AK(x))
                for _ in range(8):
                    if initq: e(initq.pop(0))
        a.lgwait("wf31")
        for x in range(2):
            mfma(AK(x), WFr(31, 0), xs[31][x], AK(x))
            for _ in range(8):
                if initq: e(initq.pop(0))
        while initq: e(initq.pop(0))
        vm_ = [(x, t) for t in (29, 30, 31) for x in range(2)]
        ke = k_epi(0, TKA) + k_epi(1, TKB)
        for n, (x, t) in enumerate(vm_):
            mfma(AV(x), xs[t][x], WFr(t, 1), AV(x))
            if n == 1: e("s_nop 7"); e("s_nop 1")
            if n >= 2: emit(ke[:5]); del ke[:5]
        ve = v_epi(0, TVA) + v_epi(1, TVB)
        qm_ = [(x, t) for t in (29, 30, 31) for x in range(2)]
        for n, (x, t) in enumerate(qm_):
            mfma(AQ(x), WFr(t, 2), xs[t][x], AQ(x))
            if ke: emit(ke[:6]); del ke[:6]
            elif n >= 2: emit(ve[:6]); del ve[:6]
        emit(ke)
        stamp("gemm done")
        e("s_nop 3")
        emit(ve)
        e("s_nop 7")
        emit(q_epi(0, TQA)); emit(q_epi(1, TQB))
    else:
        stamp("gemm done")
        e("s_nop 7")
        emit(k_epi(0, TKA)); emit(k_epi(1, TKB)); emit(v_epi(0, TVA)); emit(v_epi(1, TVB))
        emit(q_epi(0, TQA)); emit(q_epi(1, TQB))
    mfma = mfma_full
    e(f"s_lshl_b32 s{sKVO}, s{sC}, 5")
    e(f"s_add_u32 s{sKVO}, s{sKVO}, s{sBH}")
    e(f"s_lshl_b32 s{sKVO}, s{sKVO}, 7")
    e(f"s_lshl_b32 s{sT3x}, s{sW}, 3")
    e(f"s_add_u32 s{sKVO}, s{sKVO}, s{sT3x}")
    e(f"s_add_u32 s{sKVO}, s{sKVO}, {WS_KVF}")
    if not opt.lfirst: e("s_branch L_B1")
    i_load = len(a.lines)

    a.lab("L_LOADER")
    a.vm = []; a.lg = []
    if opt.lprio: e(f"s_setprio {opt.lprio}")
    sU, SXB2, SWG = sT5, sT4, sH
    e(f"s_sub_u32 s{sU}, s{sW}, 4")
    for _ in range(opt.padtest // 8): e("s_add_u32 s3, s3, 0x12345")
    e(f"v_lshrrev_b32 v13, 2, v0")
    e(f"v_mul_u32_u24 v13, 3072, v13")
    e(f"v_and_b32 v15, 3, v0")
    e(f"v_lshl_add_u32 v13, v15, 4, v13")
    e(f"s_lshl_b32 s{sT1}, s{sHG}, 6")
    e(f"v_add_u32 v{vWO}, s{sT1}, v13")
    e(f"v_lshrrev_b32 v13, 3, v0")
    e(f"v_lshlrev_b32 v13, 10, v13")
    e(f"s_lshl_b32 s{sT1}, s{sC}, 3")
    e(f"s_lshl_b32 s{sT2}, s{sU}, 1")
    e(f"s_add_u32 s{sT1}, s{sT1}, s{sT2}")
    e(f"s_lshl_b32 s{sT1}, s{sT1}, 15")
    e(f"v_add_u32 v13, s{sT1}, v13")
    e(f"v_lshrrev_b32 v15, 4, v0")
    e(f"v_xor_b32 v15, v15, v0")
    e(f"v_and_b32 v15, 7, v15")
    e(f"v_lshl_add_u32 v{vXO}, v15, 4, v13")
    e(f"v_xor_b32 v{vXO+1}, 64, v{vXO}")
    e(f"v_add_u32 v{vXO+2}, 14336, v{vXO}")
    e(f"v_add_u32 v{vXO+3}, 21504, v{vXO+1}")
    e(f"v_add_u32 v{vXO+1}, 7168, v{vXO+1}")
    e(f"s_and_b32 s{sT1}, s{sJ}, 3")
    e(f"s_add_u32 s{sT1}, s{sT1}, s{sN3}")
    if opt.rot == 2:
        e(f"s_and_b32 s{sT0}, s{sT1}, 1")
        e(f"s_lshl_b32 s{sT0}, s{sT0}, 2")
    elif opt.rot == 3:
        e(f"s_and_b32 s{sT0}, s{sJ}, 3")
        e(f"s_lshl_b32 s{sT0}, s{sT0}, 1")
        e(f"s_add_u32 s{sT0}, s{sT0}, s{sN3}")
        e(f"s_and_b32 s{sT0}, s{sT0}, 7")
    else:
        e(f"s_and_b32 s{sT0}, s{sT1}, {3 if opt.rot else 0}")
        e(f"s_lshl_b32 s{sT0}, s{sT0}, 1")
    e("s_waitcnt lgkmcnt(0)")
    mk_w()
    mk(S_X, 40, 41, 2097152)
    SWL, sXK, sWP = 40, 41, 42
    e(f"s_mul_i32 s{SXB2}, s{sU}, {2*REG}")
    e(f"s_mul_i32 s{SWG}, s{sU}, {16*3072}")
    e(f"s_lshl_b32 s{SWL}, s{sU}, 10")
    e(f"s_add_u32 s{SWL}, s{SWL}, {LDS_W}")
    e(f"s_lshl_b32 s{sXK}, s{sT0}, 7")
    MCOL = {0: 1, 1: 2, 2: 0}
    def wo_pf():
        n = 1 if opt.wostride == 128 else 2
        e(f"s_and_b32 s{sT2}, s{sJ}, 15")
        e(f"s_lshl_b32 s{sT2}, s{sT2}, 15")
        e(f"s_lshl_b32 s{sT3x}, s{sU}, 13")
        e(f"s_add_u32 s{sT2}, s{sT2}, s{sT3x}")
        e(f"v_lshlrev_b32 v15, {7 if n == 1 else 6}, v0")
        e(f"s_cmp_lt_u32 s{sJ}, 16")
        e("s_cbranch_scc1 L_WOPF_A")
        e(f"buffer_load_dword v213, v15, {srd(S_WOB)}, s{sT2} offen")
        if n == 2:
            e(f"s_add_u32 s{sT2}, s{sT2}, 4096")
            e(f"buffer_load_dword v214, v15, {srd(S_WOB)}, s{sT2} offen")
        e("s_branch L_WOPF_E")
        a.lab("L_WOPF_A")
        e(f"buffer_load_dword v213, v15, {srd(S_WOA)}, s{sT2} offen")
        if n == 2:
            e(f"s_add_u32 s{sT2}, s{sT2}, 4096")
            e(f"buffer_load_dword v214, v15, {srd(S_WOA)}, s{sT2} offen")
        a.lab("L_WOPF_E")
        a.vm += ["wopf"] * n
    def issue(lc):
        if lc > 0:
            e(f"s_add_u32 s{sXK}, s{sXK}, 128")
            e(f"s_and_b32 s{sXK}, s{sXK}, 1023")
        e(f"s_mul_i32 s{sWP}, s{sXK}, 1536")
        e(f"s_add_u32 s{sWP}, s{sWP}, s{SWG}")
        for m in range(3):
            e(f"s_add_u32 m0, s{SWL}, {(lc%3)*WSLOT + m*4096}")
            e(f"s_add_u32 s{sT3x}, s{sWP}, {MCOL[m]*1024}")
            a.vmop(f"buffer_load_dwordx4 v{vWO}, {srd(S_W)}, s{sT3x} offen lds", f"c{lc}")
        for b in range(2):
            e(f"s_add_u32 m0, s{SXB2}, {b*REG + (lc%3)*4096}")
            e(f"s_add_u32 s{sT3x}, s{sXK}, {b*32768}")
            for i in range(4):
                a.vmop(f"buffer_load_dwordx4 v{vXO+i}, {srd(S_X)}, s{sT3x} offen offset:{i*1024} lds", f"c{lc}")
    def tlb_warm2():
        e(f"s_lshr_b32 s{sT0}, s{sT3}, 2"); e(f"s_lshl_b32 s{sT0}, s{sT0}, 3"); e(f"s_and_b32 s{sT1}, s{sT3}, 3")
        e(f"s_sub_u32 s{sT2}, 7, s{sT1}"); e(f"s_add_u32 s{sT1}, s{sT1}, s{sT0}"); e(f"s_add_u32 s{sT0}, s{sT2}, s{sT0}")
        e(f"s_cmp_eq_u32 s{sU}, 0"); e("s_cbranch_scc0 L_TX1")
        e(f"s_lshl_b32 s{sT2}, s{sC}, 19"); e(f"s_lshl_b32 s{sT3x}, s{sBR}, 15"); e(f"s_add_u32 s{sT2}, s{sT2}, s{sT3x}"); e(f"s_add_u32 s{sT2}, s{sT2}, {WS_O}")
        e(f"v_and_b32 v13, 7, v0"); e(f"v_lshlrev_b32 v13, 16, v13"); e(f"v_add_u32 v13, s{sT2}, v13")
        e(f"s_lshl_b32 s{sT2}, s{sT1}, 16"); e(f"s_add_u32 s{sT2}, s{sT2}, {WS_O}"); e(f"v_writelane_b32 v13, s{sT2}, 8")
        e(f"s_lshl_b32 s{sT2}, s{sT0}, 16"); e(f"s_add_u32 s{sT2}, s{sT2}, {WS_O}"); e(f"v_writelane_b32 v13, s{sT2}, 9")
        e(f"s_lshl_b32 s{sT2}, s{sBH}, 6"); e(f"s_lshl_b32 s{sT3x}, s{sC}, 3"); e(f"s_add_u32 s{sT2}, s{sT2}, s{sT3x}")
        e(f"s_lshl_b32 s{sT2}, s{sT2}, 12"); e(f"s_add_u32 s{sT2}, s{sT2}, {WS_KV}"); e(f"v_writelane_b32 v13, s{sT2}, 10")
        e(f"s_sub_u32 s{sT2}, s{sT2}, 32768"); e(f"s_max_u32 s{sT2}, s{sT2}, {WS_KV}"); e(f"v_writelane_b32 v13, s{sT2}, 11")
        e(f"s_mov_b32 s{sT2}, {WS_OF}"); e(f"v_writelane_b32 v13, s{sT2}, 12")
        e("s_mov_b64 exec, 0x1fff")
        e(f"buffer_load_dword v215, v13, {srd(S_WS)}, 0 offen sc1")
        e(f"buffer_load_dword v214, v13, {srd(S_WS)}, 0 offen offset:128 sc1")
        e("s_branch L_TXE")
        a.lab("L_TX1")
        e(f"s_cmp_eq_u32 s{sU}, 1"); e("s_cbranch_scc0 L_TX2")
        e(f"s_lshl_b32 s{sT2}, s{sT1}, 15"); e(f"v_mov_b32 v13, s{sT2}"); e(f"s_lshl_b32 s{sT2}, s{sT0}, 15"); e(f"v_writelane_b32 v13, s{sT2}, 1")
        e("s_mov_b64 exec, 3")
        e(f"buffer_load_dword v215, v13, {srd(S_OUT)}, 0 offen")
        e(f"v_mov_b32 v13, 0")
        e(f"buffer_load_dword v214, v13, {srd(S_DBG)}, 0 offen sc1")
        e("s_branch L_TXE")
        a.lab("L_TX2")
        e(f"s_cmp_eq_u32 s{sU}, 2"); e("s_cbranch_scc0 L_TX3")
        e(f"v_and_b32 v13, 7, v0"); e(f"v_lshlrev_b32 v13, 16, v13")
        e("s_mov_b64 exec, 0xff")
        e(f"buffer_load_dword v215, v13, {srd(S_WOA)}, 0 offen")
        e(f"buffer_load_dword v214, v13, {srd(S_WOB)}, 0 offen")
        e("s_branch L_TXE")
        a.lab("L_TX3")
        e(f"s_lshl_b32 s{sT2}, s{sT1}, 15"); e(f"v_mov_b32 v13, s{sT2}"); e(f"s_lshl_b32 s{sT2}, s{sT0}, 15"); e(f"v_writelane_b32 v13, s{sT2}, 1")
        e("s_mov_b64 exec, 3")
        e(f"buffer_load_dword v215, v13, {srd(S_X)}, 0 offen")
        e(f"v_mov_b32 v13, 0")
        e(f"buffer_load_dword v214, v13, {srd(S_GW)}, 0 offen")
        a.lab("L_TXE")
        e("s_mov_b64 exec, -1")
        a.vm += ["warm", "warm"]
    def tlb_warm():
        e(f"s_cmp_eq_u32 s{sU}, 0"); e("s_cbranch_scc0 L_TW1")
        e(f"s_lshl_b32 s{sT2}, s{sBH}, 6"); e(f"s_lshl_b32 s{sT3x}, s{sC}, 3"); e(f"s_add_u32 s{sT2}, s{sT2}, s{sT3x}")
        e(f"s_lshl_b32 s{sT2}, s{sT2}, 12"); e(f"s_add_u32 s{sT2}, s{sT2}, {WS_KV}")
        e(f"v_mov_b32 v13, {WS_OF}")
        e(f"v_writelane_b32 v13, s{sT2}, 1")
        e(f"s_lshl_b32 s{sT2}, s{sC}, 19"); e(f"s_add_u32 s{sT2}, s{sT2}, {WS_O}")
        e(f"v_writelane_b32 v13, s{sT2}, 2")
        e(f"s_lshr_b32 s{sT2}, s{sT3}, 2"); e(f"s_lshl_b32 s{sT2}, s{sT2}, 19"); e(f"s_add_u32 s{sT2}, s{sT2}, {WS_O}")
        e(f"v_writelane_b32 v13, s{sT2}, 3")
        e("s_mov_b64 exec, 15")
        e(f"buffer_load_dword v215, v13, {srd(S_WS)}, 0 offen sc1")
        e(f"buffer_load_dword v214, v13, {srd(S_WS)}, 0 offen offset:128 sc1")
        e("s_mov_b64 exec, -1")
        e("s_branch L_TWE")
        a.lab("L_TW1")
        e(f"s_cmp_eq_u32 s{sU}, 1"); e("s_cbranch_scc0 L_TW2")
        e(f"s_lshr_b32 s{sT2}, s{sT3}, 2"); e(f"s_lshl_b32 s{sT2}, s{sT2}, 18")
        e(f"v_mov_b32 v13, 0")
        e("s_mov_b64 exec, 1")
        e(f"buffer_load_dword v215, v13, {srd(S_OUT)}, s{sT2} offen")
        e(f"buffer_load_dword v214, v13, {srd(S_DBG)}, 0 offen sc1")
        e("s_mov_b64 exec, -1")
        e("s_branch L_TWE")
        a.lab("L_TW2")
        e(f"s_cmp_eq_u32 s{sU}, 2"); e("s_cbranch_scc0 L_TW3")
        e(f"v_mov_b32 v13, 0")
        e("s_mov_b64 exec, 1")
        e(f"buffer_load_dword v215, v13, {srd(S_WOA)}, 0 offen")
        e(f"buffer_load_dword v214, v13, {srd(S_WOB)}, 0 offen")
        e("s_mov_b64 exec, -1")
        e("s_branch L_TWE")
        a.lab("L_TW3")
        e(f"v_mov_b32 v13, 0")
        e("s_mov_b64 exec, 1")
        e(f"buffer_load_dword v215, v13, {srd(S_GW)}, 0 offen")
        e(f"buffer_load_dword v214, v13, {srd(S_GW)}, 0 offen offset:128")
        e("s_mov_b64 exec, -1")
        a.lab("L_TWE")
        a.vm += ["warm", "warm"]
    issue(0)
    issue(1)
    mk_rest()
    if opt.warm == 2: tlb_warm()
    e(f"s_or_b32 s{sT1}, s2, s{sU}")
    e(f"s_cmp_lg_u32 s{sT1}, 0")
    e("s_cbranch_scc1 L_NONCE_SKIP0")
    e(f"v_mov_b32 v13, 0")
    e(f"buffer_load_dword v14, v13, {srd(S_WS)}, 0 offen sc1")
    a.lab("L_NONCE_SKIP0")
    stamp("issued")
    a.vmwait("c0")
    e("s_barrier")
    stamp("first data")
    issue(2)
    if opt.warm == 3 or opt.tlb == 1: tlb_warm()
    if opt.tlb == 2: tlb_warm2()
    if opt.warm in (5, 6, 7):
        if opt.warm in (6, 7): e("s_branch L_F5_2")
        e(f"s_cmp_eq_u32 s{sU}, 0"); e("s_cbranch_scc0 L_F5_1")
        e(f"s_lshl_b32 s{sT2}, s{sC}, 5"); e(f"s_lshr_b32 s{sT3x}, s{sBH}, 3"); e(f"s_add_u32 s{sT2}, s{sT2}, s{sT3x}")
        e(f"s_lshl_b32 s{sT2}, s{sT2}, 7"); e(f"s_add_u32 s{sT2}, s{sT2}, {WS_OF}")
        e(f"v_and_b32 v13, 7, v0"); e(f"v_lshlrev_b32 v13, 9, v13")
        e("s_mov_b64 exec, 0xff")
        e(f"buffer_load_dword v215, v13, {srd(S_WS)}, s{sT2} offen sc1")
        e("s_branch L_F5_E")
        a.lab("L_F5_1")
        e(f"s_cmp_eq_u32 s{sU}, 1"); e("s_cbranch_scc0 L_F5_2")
        e(f"s_lshr_b32 s{sT2}, s{sT3}, 2"); e(f"s_lshl_b32 s{sT2}, s{sT2}, 3"); e(f"s_and_b32 s{sT3x}, s{sT3}, 3")
        e(f"s_add_u32 s{sT0}, s{sT2}, s{sT3x}"); e(f"s_sub_u32 s{sT3x}, 7, s{sT3x}"); e(f"s_add_u32 s{sT1}, s{sT2}, s{sT3x}")
        e(f"s_lshl_b32 s{sT0}, s{sT0}, 9"); e(f"s_lshl_b32 s{sT1}, s{sT1}, 9"); e(f"s_sub_u32 s{sT1}, s{sT1}, s{sT0}")
        e(f"s_sub_u32 s{sT1}, s{sT1}, 512"); e(f"s_add_u32 s{sT0}, s{sT0}, {WS_OF}")
        e(f"v_and_b32 v13, 7, v0"); e(f"v_lshlrev_b32 v13, 7, v13"); e(f"v_bfe_u32 v15, v0, 2, 1"); e(f"v_mul_lo_u32 v15, v15, s{sT1}"); e(f"v_add_u32 v13, v13, v15")
        e("s_mov_b64 exec, 0xff")
        e(f"buffer_load_dword v215, v13, {srd(S_WS)}, s{sT0} offen sc1")
        e("s_branch L_F5_E")
        a.lab("L_F5_2")
        if opt.gwpf:
            e(f"s_cmp_eq_u32 s{sU}, 3"); e("s_cbranch_scc0 L_F5_3")
            e(f"v_and_b32 v13, 7, v0"); e(f"v_lshlrev_b32 v13, 7, v13")
            e("s_mov_b64 exec, 0xff")
            e(f"buffer_load_dword v215, v13, {srd(S_GW)}, 0 offen")
            e("s_branch L_F5_E")
            a.lab("L_F5_3")
        e(f"s_lshl_b32 s{sT2}, s{sC}, 5"); e(f"s_add_u32 s{sT2}, s{sT2}, s{sBH}"); e(f"s_lshl_b32 s{sT2}, s{sT2}, 7"); e(f"s_add_u32 s{sT2}, s{sT2}, {WS_KVF - 4096}")
        e(f"v_and_b32 v13, 1, v0"); e(f"v_lshlrev_b32 v13, 12, v13")
        e("s_mov_b64 exec, 3")
        e(f"buffer_load_dword v215, v13, {srd(S_WS)}, s{sT2} offen sc1")
        a.lab("L_F5_E")
        e("s_mov_b64 exec, -1")
        a.vm += ["warm"]
    e(f"s_or_b32 s{sT1}, s2, s{sU}")
    e(f"s_cmp_lg_u32 s{sT1}, 0")
    e("s_cbranch_scc1 L_NONCE_SKIP1")
    e("s_waitcnt vmcnt(11)")
    e(f"v_readfirstlane_b32 s{sT2}, v14")
    e(f"v_mov_b32 v13, 0")
    e("s_nop 3")
    e(f"s_add_u32 s{sT2}, s{sT2}, 1")
    e(f"s_max_u32 s{sT2}, s{sT2}, 1")
    e(f"v_mov_b32 v14, s{sT2}")
    e(f"buffer_store_dword v14, v13, {srd(S_DBG)}, 0 offen sc1")
    e(f"buffer_store_dword v14, v13, {srd(S_WS)}, 0 offen sc1")
    a.lab("L_NONCE_SKIP1")
    a.vmwait("c1")
    e("s_barrier")
    for j in range(6):
        if j + 3 <= 7: issue(j + 3)
        if j + 3 == 7:
            if opt.tagearly:
                e(f"v_mov_b32 v13, 0")
                a.vmop(f"buffer_load_dword v14, v13, {srd(S_DBG)}, 0 offen sc1", "tag")
            if opt.wopf == 1: wo_pf()
            if opt.warm == 1:
                lab = "L_WARM"
                e(f"s_cmp_eq_u32 s{sU}, 0"); e(f"s_cbranch_scc0 {lab}1")
                e(f"s_lshl_b32 s{sT2}, s{sC}, 5"); e(f"s_lshr_b32 s{sT3x}, s{sBH}, 3"); e(f"s_add_u32 s{sT2}, s{sT2}, s{sT3x}")
                e(f"s_lshl_b32 s{sT2}, s{sT2}, 10"); e(f"s_add_u32 s{sT2}, s{sT2}, {WS_OF}")
                e(f"v_lshrrev_b32 v13, 3, v0"); e(f"v_lshlrev_b32 v13, 12, v13"); e(f"v_and_b32 v15, 7, v0"); e(f"v_lshl_add_u32 v13, v15, 7, v13")
                e(f"buffer_load_dword v215, v13, {srd(S_WS)}, s{sT2} offen sc1")
                e(f"s_branch {lab}E")
                a.lab(f"{lab}1")
                e(f"s_cmp_eq_u32 s{sU}, 1"); e(f"s_cbranch_scc0 {lab}2")
                e(f"s_lshl_b32 s{sT2}, s{sC}, 4"); e(f"s_add_u32 s{sT2}, s{sT2}, s{sBR}"); e(f"s_lshl_b32 s{sT2}, s{sT2}, 5")
                e(f"s_lshl_b32 s{sT3x}, s{sHG}, 1"); e(f"s_add_u32 s{sT2}, s{sT2}, s{sT3x}"); e(f"s_lshl_b32 s{sT2}, s{sT2}, 10")
                e(f"s_add_u32 s{sT2}, s{sT2}, {WS_O}")
                e(f"v_lshrrev_b32 v13, 3, v0"); e(f"v_lshlrev_b32 v13, 16, v13"); e(f"v_and_b32 v15, 7, v0"); e(f"v_lshl_add_u32 v13, v15, 8, v13")
                e(f"buffer_load_dword v215, v13, {srd(S_WS)}, s{sT2} offen sc1")
                e(f"s_branch {lab}E")
                a.lab(f"{lab}2")
                e(f"s_cmp_eq_u32 s{sU}, 2"); e(f"s_cbranch_scc0 {lab}3")
                e(f"s_lshl_b32 s{sT2}, s{sC}, 5"); e(f"s_add_u32 s{sT2}, s{sT2}, s{sBH}"); e(f"s_lshl_b32 s{sT2}, s{sT2}, 7")
                e(f"s_add_u32 s{sT2}, s{sT2}, {WS_KVF}")
                e(f"v_mov_b32 v13, 0")
                e(f"buffer_load_dword v215, v13, {srd(S_WS)}, s{sT2} offen sc1")
                e(f"s_branch {lab}E")
                a.lab(f"{lab}3")
                e(f"s_lshr_b32 s{sT2}, s{sT3}, 2"); e(f"s_lshl_b32 s{sT2}, s{sT2}, 18"); e(f"s_lshl_b32 s{sT3x}, s{sN3}, 7"); e(f"s_add_u32 s{sT2}, s{sT2}, s{sT3x}")
                e(f"v_lshlrev_b32 v13, 12, v0")
                e(f"buffer_load_dword v215, v13, {srd(S_OUT)}, s{sT2} offen")
                a.lab(f"{lab}E")
                a.vm += ["warm"]
        if j + 2 <= 7: a.vmwait(f"c{j+2}")
        e("s_barrier")
    stamp("gemm done")
    if opt.lprio: e("s_setprio 0")
    if opt.wopf == 2: wo_pf()
    for l in init_list(): e(l)
    for i in range(32): e(f"v_mov_b32 v{OA+i}, 0")
    if opt.mke:
        e(f"s_mov_b32 s{sT2}, 0xff800000")
        for r in range(16): e(f"v_xor_b32 v{MKE+r}, s{sT2}, v{MK+r}")
    e(f"s_cmp_lg_u32 s{sU}, 0")
    e("s_cbranch_scc1 L_B1")
    e(f"s_mov_b32 s{sSPIN}, 0")
    e(f"v_mov_b32 v15, 0")
    if not opt.tagearly:
        e(f"buffer_load_dword v14, v15, {srd(S_DBG)}, 0 offen sc1")
    else:
        a.vmwait("tag")
        e("s_branch L_TAG_CHK")
    a.lab("L_TAG_LOOP")
    e("s_waitcnt vmcnt(0)")
    a.lab("L_TAG_CHK")
    e(f"s_add_u32 s{sSPIN}, s{sSPIN}, 1")
    e(f"v_readfirstlane_b32 s{sTAG}, v14")
    e("s_nop 3")
    e(f"s_cmp_lg_u32 s{sTAG}, 0")
    e("s_cbranch_scc1 L_TAG_OK")
    e(f"s_cmp_gt_u32 s{sSPIN}, {opt.spin}")
    e("s_cbranch_scc1 L_TAG_OK")
    e(f"buffer_load_dword v14, v15, {srd(S_DBG)}, 0 offen sc1")
    e("s_branch L_TAG_LOOP")
    a.lab("L_TAG_OK")
    e(f"v_mov_b32 v15, {LDS_TAG}")
    e(f"ds_write_b32 v15, v14")
    if opt.lfirst:
        e("s_branch L_B1")
        comp = a.lines[i_comp:i_load]; load = a.lines[i_load:]
        a.lines = a.lines[:i_comp] + load + comp
    a.lab("L_B1")
    a.vm = []; a.lg = []
    e("s_waitcnt lgkmcnt(0)")
    e("s_barrier")
    stamp("B1")
    e(f"v_mov_b32 v15, {LDS_TAG}")
    e(f"ds_read_b32 v14, v15")
    e(f"s_mul_i32 s{sT2}, s{sTAU}, {REG}")
    e(f"v_add_u32 v13, s{sT2}, v{vL16}")
    for h in range(2):
        e(f"ds_read_b128 {vr(QF+4*h,4)}, v13 offset:{8192+h*1024}")

    def kread(h, extra=0): e(f"ds_read_b128 {vr(KF+4*h,4)}, v{vK} offset:{h*1024+extra}")
    def vreads(h, extra=0):
        e(f"s_mov_b64 exec, s[{sVM}:{sVM+1}]")
        for s in range(2):
            e(f"ds_read_b128 {vr(VF+8*h+4*s,4)}, v{vK} offset:{2048+s*1024+h*256+extra}")
        e("s_mov_b64 exec, -1")
    def seg(h, prev, nxt, kx=0, vx=0):
        o = 1 - h
        S = SS + 16 * h; O = OA + 16 * h
        ex = lambda i: e(f"v_exp_f32 v{S+i}, v{S+i}")
        ex(0); ex(1)
        if prev: mfma(OA + 16 * o, VF + 8 * o + 4, PP + 4, OA + 16 * o)
        ex(2); ex(3)
        if nxt: vreads(o, vx)
        ex(4); ex(5)
        if nxt:
            mfma(SS + 16 * o, KF + 4 * o, QF + 4 * o, "0")
            kread(o, kx)
        ex(6); ex(7)
        for i in range(4): e(cvt(PP + i, S + 2 * i, S + 2 * i + 1))
        ex(8)
        e(f"s_waitcnt lgkmcnt({3 if nxt else 0})")
        ex(9)
        mfma(O, VF + 8 * h, PP, O)
        for i in range(10, 16): ex(i)
        for i in range(4, 8): e(cvt(PP + i, S + 2 * i, S + 2 * i + 1))
    def part(name, first_s, rest_s, cnt_s, hook=None):
        MKx = MK if name == "OWN" or not opt.mke else MKE
        a.c(f"---- attention part {name} ----")
        e(f"v_add_u32 v{vK}, s{first_s}, v{vL16}")
        kread(0); kread(1)
        e(f"s_sub_u32 s{sT2}, s{rest_s}, s{first_s}")
        e(f"s_mov_b32 s{sCNT}, s{cnt_s}")
        e("s_waitcnt lgkmcnt(0)")
        if name == "OWN": e(f"v_readfirstlane_b32 s{sTAG}, v14")
        mfma(SS, KF, QF, MKx)
        mfma(SS + 16, KF + 4, QF + 4, MKx)
        vreads(0); vreads(1)
        e(f"v_add_u32 v{vK}, s{sT2}, v{vK}")
        kread(0); kread(1)
        e("s_waitcnt lgkmcnt(2)")
        seg(0, prev=False, nxt=False)
        if hook: hook()
        e(f"s_cmp_eq_u32 s{sCNT}, 0")
        e(f"s_cbranch_scc1 L_{name}_LAST")
        e(f"s_sub_u32 s{sCNT}, s{sCNT}, 1")
        a.lab(f"L_{name}_LOOP")
        seg(1, prev=True, nxt=True, kx=REG, vx=0)
        seg(0, prev=True, nxt=True, kx=REG, vx=0)
        e(f"v_add_u32 v{vK}, {REG}, v{vK}")
        e(f"s_sub_u32 s{sCNT}, s{sCNT}, 1")
        e(f"s_cbranch_scc0 L_{name}_LOOP")
        a.lab(f"L_{name}_LAST")
        seg(1, prev=True, nxt=False)
        e("s_nop 1")
        mfma(OA + 16, VF + 12, PP + 4, OA + 16)
    def kvflag():
        e("s_waitcnt vmcnt(0)")
        e(f"v_lshlrev_b32 v13, 2, v0")
        e(f"v_mov_b32 v14, s{sTAG}")
        e("s_mov_b64 exec, 3")
        e(f"buffer_store_dword v14, v13, {srd(S_WS)}, s{sKVO} offen sc1")
        e("s_mov_b64 exec, -1")
    a.vm = []
    e(f"s_mul_i32 s{sT0}, s{sTAU}, {REG}")
    e(f"s_mov_b32 s{sT1}, 0")
    def hook():
        e(f"s_cmp_ge_u32 s{sW}, 4")
        e("s_cbranch_scc1 L_KVF_DONE")
        kvflag()
        a.lab("L_KVF_DONE")
    if opt.prio == 2:
        e(f"s_cmp_lt_u32 s{sW}, 4")
        e("s_cbranch_scc1 L_PRIO_SKIP")
        e("s_setprio 1")
        a.lab("L_PRIO_SKIP")
    part("OWN", sT0, sT1, sTAU, hook=hook)
    stamp("own done")
    def gate_loads():
        if opt.gate4:
            e(f"s_and_b32 s{sT2}, s{sT3}, 3")
            e(f"s_sub_u32 s{sT3x}, 7, s{sT2}")
            e(f"s_cmp_lt_u32 s{sQ}, 2")
            e(f"s_cselect_b32 s{sT2}, s{sT2}, s{sT3x}")
            e(f"s_lshr_b32 s{sT3x}, s{sT3}, 2")
            e(f"s_lshl_b32 s{sT3x}, s{sT3x}, 3")
            e(f"s_add_u32 s{sT2}, s{sT2}, s{sT3x}")
            e(f"s_lshl_b32 s{sT2}, s{sT2}, 15")
            e(f"s_and_b32 s{sT3x}, s{sQ}, 1")
            e(f"s_lshl_b32 s{sT3x}, s{sT3x}, 14")
            e(f"s_add_u32 s{sT2}, s{sT2}, s{sT3x}")
            n = 16
        else:
            e(f"s_lshl_b32 s{sT2}, s{sTT3}, 15")
            e(f"s_lshl_b32 s{sT3x}, s{sQ}, 13")
            e(f"s_add_u32 s{sT2}, s{sT2}, s{sT3x}")
            n = 8
        e(f"buffer_load_dwordx4 {vr(GW,4)}, v{vL16}, {srd(S_GW)}, 0 offen")
        for i in range(n):
            e(f"buffer_load_dwordx4 {vr(GX+4*i,4)}, v{vL16}, {srd(S_X)}, s{sT2} offen offset:{(i&3)*1024}")
            if (i & 3) == 3 and i < n - 1: e(f"s_add_u32 s{sT2}, s{sT2}, 4096")
    def prefill():
        if not opt.sent: return
        for i in range(4): e(f"v_mov_b32 v{128+i}, -1")
        e(f"s_lshl_b32 s{sT2}, s{sTT}, 1")
        e(f"s_add_u32 s{sT2}, s{sT2}, s{sBR}")
        e(f"s_lshl_b32 s{sT2}, s{sT2}, 5")
        e(f"s_lshl_b32 s{sT3x}, s{sHG}, 1")
        e(f"s_add_u32 s{sT2}, s{sT2}, s{sT3x}")
        e(f"s_lshl_b32 s{sT2}, s{sT2}, 10")
        e(f"s_add_u32 s{sT2}, s{sT2}, {WS_O}")
        for h in range(2):
            e(f"buffer_store_dwordx4 v[128:131], v{vL16}, {srd(S_WS)}, s{sT2} offen offset:{h*1024} sc1")
    def wo_voff():
        e(f"v_lshrrev_b32 v13, 3, v0")
        e(f"v_lshlrev_b32 v13, 10, v13")
        e(f"v_bfe_u32 v15, v0, 4, 1")
        e(f"v_lshlrev_b32 v15, 2, v15")
        e(f"v_xor_b32 v15, v15, v0")
        e(f"v_and_b32 v15, 7, v15")
        e(f"v_lshl_add_u32 v14, v15, 4, v13")
    def wo_dma(S, heads, kh, ldsaddr):
        for i in heads:
            sg, cst = ldsaddr(i)
            for hf in range(2):
                e(f"s_add_u32 s{sT3x}, s{sT5}, {(256*kh + 16*i + 8*hf)*1024}")
                e(f"s_add_u32 m0, s{sg}, {cst + hf*1024}")
                e("s_nop 0")
                e(f"buffer_load_dwordx4 v14, {srd(S)}, s{sT3x} offen lds")
    def wo_lin(S, sg, sl, n):
        e(f"s_mov_b32 m0, s{sl}")
        e("s_nop 0")
        for i in range(n):
            e(f"buffer_load_dwordx4 v14, {srd(S)}, s{sg} offen lds")
            if i < n - 1:
                e(f"s_add_u32 m0, m0, 1024")
                e(f"s_add_u32 s{sg}, s{sg}, 8192")
    def wo_early():
        wo_voff()
        e(f"s_lshl_b32 s{sT5}, s{sN3}, 7")
        e(f"s_and_b32 s{sT0}, s{sTAU}, 1")
        e(f"s_lshl_b32 s{sT0}, s{sT0}, 18")
        e(f"s_add_u32 s{sT0}, s{sT0}, s{sT5}")
        e(f"s_lshl_b32 s{sT1}, s{sTAU}, 14")
        e(f"s_add_u32 s{sT1}, s{sT1}, {LDS_A0}")
        lab = f"L_WE_{opt._n}"; opt._n += 1
        e(f"s_cmp_ge_u32 s{sTAU}, 2")
        e(f"s_cbranch_scc1 {lab}_B")
        e(f"s_mov_b32 s{sT4}, s{sT0}")
        wo_lin(S_WOA, sT4, sT1, 16)
        e(f"s_branch {lab}_E")
        a.lab(f"{lab}_B")
        e(f"s_mov_b32 s{sT4}, s{sT0}")
        wo_lin(S_WOB, sT4, sT1, 16)
        a.lab(f"{lab}_E")
    def halo_poll_load():
        n = opt._n; opt._n += 1
        e(f"s_sub_u32 s{sT2}, s{sC}, 1")
        e(f"s_lshl_b32 s{sT3x}, s{sT2}, 5")
        e(f"s_add_u32 s{sT3x}, s{sT3x}, s{sBH}")
        e(f"s_lshl_b32 s{sT3x}, s{sT3x}, 7")
        e(f"s_lshl_b32 s{sT4}, s{sTAU}, 3")
        e(f"s_add_u32 s{sT3x}, s{sT3x}, s{sT4}")
        e(f"s_add_u32 s{sT3x}, s{sT3x}, {WS_KVF}")
        e(f"v_and_b32 v13, 1, v0")
        e(f"v_lshlrev_b32 v13, 2, v13")
        e(f"s_mov_b32 s{sSPIN}, 0")
        a.lab(f"L_KVF_LOOP{n}")
        e(f"buffer_load_dword v15, v13, {srd(S_WS)}, s{sT3x} offen sc1")
        e(f"s_add_u32 s{sSPIN}, s{sSPIN}, 1")
        e("s_waitcnt vmcnt(0)")
        e(f"v_cmp_ne_u32 vcc, s{sTAG}, v15")
        e(f"s_cmp_gt_u32 s{sSPIN}, {opt.spin}")
        e(f"s_cbranch_scc1 L_KVF_OK{n}")
        e(f"s_cbranch_vccnz L_KVF_LOOP{n}")
        a.lab(f"L_KVF_OK{n}")
        stamp("roleA")
        e(f"s_lshl_b32 s{sT3x}, s{sBH}, 6")
        e(f"s_lshl_b32 s{sT2}, s{sT2}, 3")
        e(f"s_add_u32 s{sT3x}, s{sT3x}, s{sT2}")
        e(f"s_lshl_b32 s{sT2}, s{sTAU}, 1")
        e(f"s_add_u32 s{sT3x}, s{sT3x}, s{sT2}")
        e(f"s_lshl_b32 s{sT3x}, s{sT3x}, 12")
        e(f"s_add_u32 s{sT3x}, s{sT3x}, {WS_KV}")
        for j in range(2):
            for i in range(4):
                e(f"buffer_load_dwordx4 {vr(HT+16*j+4*i,4)}, v{vL16}, {srd(S_WS)}, s{sT3x} offen offset:{i*1024} sc1")
            if j < 1: e(f"s_add_u32 s{sT3x}, s{sT3x}, 4096")
    def halo_write(younger):
        e(f"s_mul_i32 s{sT2}, s{sTAU}, {2*REG}")
        e(f"s_add_u32 s{sT2}, s{sT2}, 4096")
        e(f"v_add_u32 v13, s{sT2}, v{vL16}")
        for j in range(2):
            e(f"s_waitcnt vmcnt({younger+4-4*j})")
            for i in range(4):
                e(f"ds_write_b128 v13, {vr(HT+16*j+4*i,4)} offset:{j*REG+i*1024}")
    opt._n = 0
    ool = []
    NE = 16
    NG = 0 if opt.gate4 else 9
    e(f"s_cmp_gt_u32 s{sTAU}, 3")
    e("s_cbranch_scc0 L_ROLE_LO")
    if opt.sent == 2: prefill()
    if not opt.ool: e("s_branch L_HALO_BAR")
    i_ool3 = len(a.lines)
    a.lab("L_ROLE_LO")
    if opt.mke:
        e(f"s_mov_b32 s{sT2}, 0xff800000")
        for r in range(16): e(f"v_xor_b32 v{MKE+r}, s{sT2}, v{MK+r}")
    e(f"s_cmp_eq_u32 s{sC}, 0")
    e("s_cbranch_scc1 L_ROLE_C0")
    e(f"s_cmp_gt_u32 s{sTAU}, 1")
    e("s_cbranch_scc1 L_ROLE_HI")
    wo_early()
    halo_poll_load()
    if not opt.gate4: gate_loads()
    halo_write(NG)
    e("s_waitcnt lgkmcnt(0)")
    stamp("roleB")
    e("s_branch L_HALO_BAR")
    a.lab("L_ROLE_HI")
    halo_poll_load()
    wo_early()
    if not opt.gate4: gate_loads()
    halo_write(NE + NG)
    e(f"s_waitcnt vmcnt({NG}) lgkmcnt(0)")
    stamp("roleB")
    e("s_branch L_HALO_BAR")
    a.lab("L_ROLE_C0")
    wo_early()
    if not opt.gate4: gate_loads()
    e(f"s_waitcnt vmcnt({NG})")
    if opt.ool:
        e("s_branch L_HALO_BAR")
        ool.append(a.lines[i_ool3:]); del a.lines[i_ool3:]
    a.lab("L_HALO_BAR")
    if not opt.mke:
        e(f"s_mov_b32 s{sT2}, 0xff800000")
        for r in range(16): e(f"v_xor_b32 v{MK+r}, s{sT2}, v{MK+r}")
    e("s_barrier")
    stamp("B2")
    e(f"s_cmp_ge_u32 s{sTAU}, 4")
    e("s_cbranch_scc1 L_LATE_S")
    prefill()
    i_ool1 = len(a.lines)
    if not opt.ool: e("s_branch L_LATE_E")
    a.lab("L_LATE_S")
    if opt.warm in (4, 6, 7):
        assert not opt.rep
        e(f"s_cmp_eq_u32 s{sW}, 4"); e("s_cbranch_scc0 L_FW_E")
        e(f"s_lshl_b32 s{sT2}, s{sC}, 5"); e(f"s_lshr_b32 s{sT3x}, s{sBH}, 3"); e(f"s_add_u32 s{sT2}, s{sT2}, s{sT3x}")
        e(f"s_lshl_b32 s{sT2}, s{sT2}, 7"); e(f"s_add_u32 s{sT2}, s{sT2}, {WS_OF}")
        e(f"v_lshlrev_b32 v13, 9, v0"); e(f"v_add_u32 v13, s{sT2}, v13")
        e("s_mov_b64 exec, 0xff")
        e(f"buffer_load_dword v215, v13, {srd(S_WS)}, 0 offen sc1")
        e("s_mov_b64 exec, -1")
        e(f"s_lshr_b32 s{sT2}, s{sT3}, 2"); e(f"s_lshl_b32 s{sT2}, s{sT2}, 3"); e(f"s_and_b32 s{sT3x}, s{sT3}, 3")
        e(f"s_add_u32 s{sT0}, s{sT2}, s{sT3x}"); e(f"s_sub_u32 s{sT3x}, 7, s{sT3x}"); e(f"s_add_u32 s{sT1}, s{sT2}, s{sT3x}")
        e(f"s_lshl_b32 s{sT0}, s{sT0}, 9"); e(f"s_lshl_b32 s{sT1}, s{sT1}, 9")
        e(f"s_add_u32 s{sT0}, s{sT0}, {WS_OF}"); e(f"s_add_u32 s{sT1}, s{sT1}, {WS_OF}")
        e(f"v_lshlrev_b32 v13, 7, v0")
        e("s_mov_b64 exec, 15")
        e(f"buffer_load_dword v215, v13, {srd(S_WS)}, s{sT0} offen sc1")
        e(f"buffer_load_dword v214, v13, {srd(S_WS)}, s{sT1} offen sc1")
        e("s_mov_b64 exec, -1")
        a.lab("L_FW_E")
        if opt.warm == 7:
            e(f"s_cmp_eq_u32 s{sW}, 5"); e("s_cbranch_scc0 L_FW_F")
            e(f"s_lshr_b32 s{sT2}, s{sT3}, 2"); e(f"s_lshl_b32 s{sT2}, s{sT2}, 3"); e(f"s_and_b32 s{sT3x}, s{sT3}, 3")
            e(f"s_add_u32 s{sT0}, s{sT2}, s{sT3x}"); e(f"s_sub_u32 s{sT3x}, 7, s{sT3x}"); e(f"s_add_u32 s{sT1}, s{sT2}, s{sT3x}")
            e(f"s_sub_u32 s{sT1}, s{sT1}, s{sT0}"); e(f"s_sub_u32 s{sT1}, s{sT1}, 1"); e(f"s_lshl_b32 s{sT1}, s{sT1}, 15")
            e(f"s_lshl_b32 s{sT0}, s{sT0}, 15"); e(f"s_lshl_b32 s{sT3x}, s{sN3}, 7"); e(f"s_add_u32 s{sT0}, s{sT0}, s{sT3x}")
            e(f"v_lshlrev_b32 v13, 10, v0"); e(f"v_lshrrev_b32 v15, 5, v0"); e(f"v_mul_lo_u32 v15, v15, s{sT1}"); e(f"v_add_u32 v13, v13, v15")
            e(f"buffer_load_dword v215, v13, {srd(S_OUT)}, s{sT0} offen")
            a.lab("L_FW_F")
    wo_voff()
    e(f"s_sub_u32 s{sT2}, 7, s{sTAU}")
    e(f"s_lshl_b32 s{sT5}, s{sN3}, 7")
    e(f"s_and_b32 s{sT0}, s{sT2}, 1")
    e(f"s_lshl_b32 s{sT0}, s{sT0}, 18")
    e(f"s_add_u32 s{sT0}, s{sT0}, s{sT5}")
    e(f"s_add_u32 s{sT0}, s{sT0}, {128*1024}")
    e(f"s_mul_i32 s{sT1}, s{sT2}, {2*REG}")
    def late(S):
        for (reg, slot) in ((0, 8192), (1, 8192), (0, 0), (1, 0)):
            e(f"s_add_u32 s{sT3x}, s{sT1}, {reg*REG + slot}")
            wo_lin(S, sT0, sT3x, 4)
            e(f"s_add_u32 s{sT0}, s{sT0}, 8192")
    e(f"s_cmp_ge_u32 s{sT2}, 2")
    e("s_cbranch_scc1 L_LATE_B")
    late(S_WOA)
    e("s_branch L_LATE_G")
    a.lab("L_LATE_B")
    late(S_WOB)
    a.lab("L_LATE_G")
    gate_loads()
    if opt.prio: e("s_setprio 1")
    if opt.ool:
        e("s_branch L_LATE_E")
        ool.append(a.lines[i_ool1:]); del a.lines[i_ool1:]
    a.lab("L_LATE_E")
    e(f"s_cmp_eq_u32 s{sC}, 0")
    e("s_cbranch_scc1 L_P2_EPI")
    e(f"s_mul_i32 s{sT0}, s{sTAU}, {REG}")
    e(f"s_add_u32 s{sT0}, s{sT0}, 4096")
    e(f"s_add_u32 s{sT1}, s{sT0}, {REG}")
    e(f"s_sub_u32 s{sT4}, 7, s{sTAU}")
    part("HALO", sT0, sT1, sT4)
    a.lab("L_P2_EPI")
    stamp("attn done")
    lo, hi = f32bits(2.0 ** -64), f32bits(2.0 ** 64)
    e(f"s_mov_b32 s{sT0}, {hex(lo)}")
    e(f"s_mov_b32 s{sT1}, {hex(hi)}")
    e(f"s_lshl_b32 s{sKVO}, s{sTT}, 1")
    e(f"s_add_u32 s{sKVO}, s{sKVO}, s{sBR}")
    e(f"s_lshl_b32 s{sKVO}, s{sKVO}, 5")
    e(f"s_lshl_b32 s{sT3x}, s{sHG}, 1")
    e(f"s_add_u32 s{sKVO}, s{sKVO}, s{sT3x}")
    e(f"s_lshl_b32 s{sKVO}, s{sKVO}, 10")
    e(f"s_add_u32 s{sKVO}, s{sKVO}, {WS_O}")
    e(f"s_lshl_b32 s{sT2}, s{sTT}, 2")
    e(f"s_lshr_b32 s{sT3x}, s{sBH}, 3")
    e(f"s_add_u32 s{sT2}, s{sT2}, s{sT3x}")
    e(f"s_lshl_b32 s{sT2}, s{sT2}, {10 if opt.rep else 7}")
    e(f"s_and_b32 s{sT3x}, s{sBH}, 7")
    e(f"s_lshl_b32 s{sT3x}, s{sT3x}, 2")
    e(f"s_add_u32 s{sT2}, s{sT2}, s{sT3x}")
    e(f"s_add_u32 s{sOFA}, s{sT2}, {WS_OF}")
    e("s_nop 2")
    if opt.fallback:
        for h in range(2):
            O = OA + 16 * h
            e(f"v_mul_f32 v13, 0, v{O}")
            for i in range(1, 8): e(f"v_fmac_f32 v13, 0, v{O+i}")
            e(f"v_cmp_nle_f32 vcc, s{sT0}, v{O+8}")
            e(f"s_mov_b64 s[74:75], vcc")
            e(f"v_cmp_nge_f32 vcc, s{sT1}, v{O+8}")
            e("s_or_b64 s[74:75], s[74:75], vcc")
            e(f"v_cmp_u_f32 vcc, v13, v13")
            e("s_or_b64 s[74:75], s[74:75], vcc")
            e("s_cmp_lg_u64 s[74:75], 0")
            e(f"s_cselect_b32 s{sT2}, {1<<h}, 0")
            e(f"s_or_b32 s{sFAIL}, s{sFAIL}, s{sT2}")
        if opt.forcefb: e(f"s_or_b32 s{sFAIL}, s{sFAIL}, {opt.forcefb}")
        e(f"s_cmp_lg_u32 s{sFAIL}, 0")
        e("s_cbranch_scc1 L_FB_ENTRY")
        a.lab("L_NOFB")
    else:
        e("s_nop 7")
    if opt.sent:
        e(f"s_cmp_ge_u32 s{sW}, 4")
        e("s_cbranch_scc1 L_NOSENT0")
        e("s_waitcnt vmcnt(0)")
        e("s_branch L_NOSENT")
        a.lab("L_NOSENT0")
        if opt.sent == 2: e("s_waitcnt vmcnt(25)")
        a.lab("L_NOSENT")
    for h in range(2):
        e(f"v_rcp_f32 v{13+h}, v{OA+16*h+8}")
    for h in range(2):
        O = OA + 16 * h
        for i in range(8): e(f"v_mul_f32 v{O+i}, v{O+i}, v{13+h}")
        for i in range(4): e(cvt(O + 8 + i, O + 2 * i, O + 2 * i + 1))
        if opt.sent:
            for i in range(4): e(f"v_min_u32 v{O+8+i}, -2, v{O+8+i}")
        e(f"buffer_store_dwordx4 {vr(O+8,4)}, v{vL16}, {srd(S_WS)}, s{sKVO} offen offset:{h*1024} sc1")
    if opt.sent:
        if opt.sent != 2:
            e(f"s_cmp_ge_u32 s{sW}, 4")
            e("s_cbranch_scc1 L_NOHINT")
        e(f"v_lshlrev_b32 v13, 7, v0")
        e(f"v_mov_b32 v14, s{sTAG}")
        e(f"s_mov_b64 exec, {'0xff' if opt.rep else 1}")
        e(f"buffer_store_dword v14, v13, {srd(S_WS)}, s{sOFA} offen sc1")
        e("s_mov_b64 exec, -1")
        stamp("O published")
        a.lab("L_NOHINT")
    WF3, OF3, AC3 = 16, 144, 208
    e(f"v_lshrrev_b32 v1, 5, v0")
    e(f"v_lshlrev_b32 v1, 9, v1")
    e(f"v_bfe_u32 v2, v0, 2, 2")
    e(f"v_lshl_add_u32 v1, v2, 7, v1")
    e(f"v_bfe_u32 v2, v0, 3, 1")
    e(f"v_lshl_add_u32 v1, v2, 6, v1")
    e(f"v_bfe_u32 v2, v0, 4, 1")
    e(f"v_lshl_add_u32 v1, v2, 5, v1")
    e(f"v_and_b32 v2, 3, v0")
    e(f"v_lshl_add_u32 v1, v2, 3, v1")
    e(f"s_lshl_b32 s{sT2}, s{sQ}, 14")
    e(f"s_add_u32 s{sT2}, s{sT2}, {LDS_A0}")
    e(f"s_mul_i32 s{sT3x}, s{sQ}, {2*REG}")
    e(f"v_xor_b32 v2, 64, v1")
    vA = [244, 245]; vB = [246, 247]
    e(f"v_add_u32 v{vA[0]}, s{sT2}, v1")
    e(f"v_add_u32 v{vA[1]}, s{sT2}, v2")
    e(f"v_add_u32 v{vB[0]}, s{sT3x}, v1")
    e(f"v_add_u32 v{vB[1]}, s{sT3x}, v2")
    def trw(i):
        for ct in range(2):
            for u in range(2):
                if i < 8: ad, off = vA[ct], i * 2048
                elif i < 12: ad, off = vB[ct], ((i - 8) >> 1) * REG + 8192 + ((i - 8) & 1) * 2048
                else: ad, off = vB[ct], ((i - 12) >> 1) * REG + ((i - 12) & 1) * 2048
                e(f"ds_read_b64_tr_b16 {vr(WF3+8*i+4*ct+2*u,2)}, v{ad} offset:{off+u*1024}")
    for i in range(8): trw(i)
    e(f"s_lshl_b32 s{sT1}, s{sTT3}, 2")
    e(f"s_add_u32 s{sT1}, s{sT1}, s{sQ}")
    if opt.rep:
        e(f"s_lshl_b32 s{sT1}, s{sT1}, 3")
        e(f"s_add_u32 s{sT1}, s{sT1}, s{sN3}")
    e(f"s_lshl_b32 s{sT1}, s{sT1}, 7")
    e(f"s_add_u32 s{sT1}, s{sT1}, {WS_OF}")
    e(f"s_lshl_b32 s{sT0}, s{sTT3}, 1")
    e(f"s_add_u32 s{sT0}, s{sT0}, s{sB3}")
    e(f"s_lshl_b32 s{sT0}, s{sT0}, 5")
    e(f"s_lshl_b32 s{sT3x}, s{sKH}, 4")
    e(f"s_add_u32 s{sT0}, s{sT0}, s{sT3x}")
    e(f"s_lshl_b32 s{sT0}, s{sT0}, 10")
    e(f"s_add_u32 s{sT0}, s{sT0}, {WS_O}")
    def oflag(wait=True):
        e(f"v_lshlrev_b32 v13, 7, v0")
        e(f"v_mov_b32 v14, s{sTAG}")
        if wait: e("s_waitcnt vmcnt(0)")
        e(f"s_mov_b64 exec, {'0xff' if opt.rep else 1}")
        e(f"buffer_store_dword v14, v13, {srd(S_WS)}, s{sOFA} offen sc1")
        e("s_mov_b64 exec, -1")
        stamp("O published")
    GR = 236
    def gate_round(gx, g_out, g1_out):
        for i in range(8): e(f"v_mov_b32 v{GA+i}, 0")
        for d in range(4):
            for i in range(8):
                e(f"v_dot2_f32_bf16 v{GA+i}, v{gx+4*i+d}, v{GW+d}, v{GA+i}")
        e("s_nop 4")
        for i in range(4): e(f"v_permlane32_swap_b32 v{GA+i}, v{GA+4+i}")
        for i in range(4): e(f"v_add_f32 v{GA+i}, v{GA+i}, v{GA+4+i}")
        e("s_nop 1")
        for i in range(2): e(f"v_permlane16_swap_b32 v{GA+i}, v{GA+2+i}")
        for i in range(2): e(f"v_add_f32 v{GA+i}, v{GA+i}, v{GA+2+i}")
        e("s_nop 1")
        for i in range(2): e(f"v_add_f32_dpp v{GA+i}, v{GA+i}, v{GA+i} row_ror:8 row_mask:0xf bank_mask:0xf")
        e("s_nop 1")
        e(f"v_mov_b32_dpp v{GA}, v{GA+1} quad_perm:[0,1,2,3] row_mask:0xf bank_mask:0xc")
        e("s_nop 1")
        e(f"v_add_f32_dpp v15, v{GA}, v{GA} quad_perm:[1,0,3,2] row_mask:0xf bank_mask:0xf")
        e("s_nop 1")
        e("v_add_f32_dpp v15, v15, v15 quad_perm:[2,3,0,1] row_mask:0xf bank_mask:0xf")
        e("s_nop 1")
        e("v_add_f32_dpp v15, v15, v15 row_half_mirror row_mask:0xf bank_mask:0xf")
        e("v_cvt_pk_bf16_f32 v15, v15, v15")
        e("v_and_b32 v15, 0xffff0000, v15")
        e(f"v_mul_f32 v15, {hex(f32bits(-math.log2(math.e)))}, v15")
        e("v_exp_f32 v15, v15")
        e("s_nop 0")
        e("v_add_f32 v15, 1.0, v15")
        e("v_rcp_f32 v15, v15")
        e("s_nop 0")
        e("v_cvt_pk_bf16_f32 v15, v15, v15")
        e(f"v_and_b32 v{g_out}, 0xffff0000, v15")
        e(f"v_sub_f32 v15, 1.0, v{g_out}")
        e("v_cvt_pk_bf16_f32 v15, v15, v15")
        e(f"v_and_b32 v{g1_out}, 0xffff0000, v15")
    def gate():
        if opt.gate4:
            gate_round(GX, GR, GR + 1); gate_round(GX + 32, GR + 2, GR + 3)
        else:
            gate_round(GX, GR, GR + 1)
    def gate_write():
        e(f"v_lshrrev_b32 v15, 3, v0")
        if opt.gate4:
            e(f"s_lshl_b32 s{sT2}, s{sQ}, 4")
        else:
            e(f"s_lshl_b32 s{sT2}, s{sW}, 3")
        e(f"v_add_u32 v15, s{sT2}, v15")
        e(f"v_lshlrev_b32 v15, 2, v15")
        e(f"ds_write_b32 v15, v{GR} offset:{LDS_GATE}")
        e(f"ds_write_b32 v15, v{GR+1} offset:{LDS_GATE+256}")
        if opt.gate4:
            e(f"ds_write_b32 v15, v{GR+2} offset:{LDS_GATE+32}")
            e(f"ds_write_b32 v15, v{GR+3} offset:{LDS_GATE+256+32}")
    def poll(name, first_issued, sleep):
        e(f"s_mov_b32 s{sSPIN}, 0")
        if not first_issued:
            e(f"buffer_load_dword v14, v13, {srd(S_WS)}, s{sT1} offen sc1")
        a.lab(f"L_OF_LOOP{name}")
        e("s_waitcnt vmcnt(0)")
        e(f"v_cmp_ne_u32 vcc, s{sTAG}, v14")
        e(f"s_add_u32 s{sSPIN}, s{sSPIN}, 1")
        e(f"s_cbranch_vccz L_OF_OK{name}")
        e(f"s_cmp_gt_u32 s{sSPIN}, {opt.spin}")
        e(f"s_cbranch_scc1 L_OF_OK{name}")
        if sleep: e(f"s_sleep {sleep}")
        e(f"buffer_load_dword v14, v13, {srd(S_WS)}, s{sT1} offen sc1")
        e(f"s_branch L_OF_LOOP{name}")
        a.lab(f"L_OF_OK{name}")
    def oloads(mod="sc1"):
        for i in range(16):
            e(f"buffer_load_dwordx4 {vr(OF3+4*i,4)}, v{vL16}, {srd(S_WS)}, s{sT0} offen offset:{(i&3)*1024} {mod}")
            if (i & 3) == 3 and i < 15: e(f"s_add_u32 s{sT0}, s{sT0}, 4096")
    def p3mfma(i0, i1):
        for i in range(i0, i1):
            e(f"s_waitcnt vmcnt({15-i})")
            for ct in range(2):
                mfma(AC3 + 16 * ct, WF3 + 8 * i + 4 * ct, OF3 + 4 * i, "0" if i == 0 else AC3 + 16 * ct)
    def late_part(gw=True):
        if gw: gate_write()
        for i in range(8, 16): trw(i)
    def p3mfma2():
        if opt.sent:
            e(f"s_mov_b32 s{sSPIN}, 0")
            a.lab("L_P3_RETRY")
            e("v_mov_b32 v15, 0")
        for i in range(16):
            if i == 8: e("s_waitcnt lgkmcnt(0)")
            e(f"s_waitcnt vmcnt({15-i})")
            for ct in range(2):
                mfma(AC3 + 16 * ct, WF3 + 8 * i + 4 * ct, OF3 + 4 * i, "0" if i == 0 else AC3 + 16 * ct)
                if opt.sent: e(f"v_max3_u32 v15, v15, v{OF3+4*i+2*ct}, v{OF3+4*i+2*ct+1}")
        if opt.sent:
            e("v_cmp_eq_u32 vcc, -1, v15")
            e(f"s_add_u32 s{sSPIN}, s{sSPIN}, 1")
            e("s_cbranch_vccz L_P3_DONE")
            e(f"s_cmp_gt_u32 s{sSPIN}, {opt.spin}")
            e("s_cbranch_scc1 L_P3_DONE")
            e(f"s_sub_u32 s{sT0}, s{sT0}, 12288")
            e("s_nop 7")
            oloads()
            e("s_branch L_P3_RETRY")
            a.lab("L_P3_DONE")
    e(f"s_cmp_eq_u32 s{sTQ}, 0")
    if opt.ool:
        e("s_cbranch_scc0 L_P3_EARLY")
        i_ool2 = len(a.lines)
        a.lab("L_P3_EARLY")
    else:
        e("s_cbranch_scc1 L_P3_LATE")
    if opt.sent == 2: e("s_waitcnt vmcnt(3)")
    else: oflag()
    if opt.prio: e("s_setprio 0")
    if opt.early == 0:
        gate()
        e(f"v_and_b32 v13, 7, v0")
        e(f"v_lshlrev_b32 v13, 2, v13")
        e(f"buffer_load_dword v14, v13, {srd(S_WS)}, s{sT1} offen sc1")
        e("s_waitcnt lgkmcnt(0)")
        e("s_barrier")
        stamp("B3")
        poll("E", True, opt.sleep)
        stamp("O flags seen")
        oloads(opt.omod)
        late_part()
    else:
        e(f"v_and_b32 v13, 7, v0")
        e(f"v_lshlrev_b32 v13, 2, v13")
        e(f"buffer_load_dword v14, v13, {srd(S_WS)}, s{sT1} offen sc1")
        gate()
        for i in range(8, 16): trw(i)
        poll("E", True, opt.sleep)
        stamp("O flags seen")
        oloads(opt.omod)
        e("s_waitcnt lgkmcnt(0)")
        e("s_barrier")
        stamp("B3")
        gate_write()
    e("s_branch L_P3_J")
    if opt.ool:
        ool.append(a.lines[i_ool2:]); del a.lines[i_ool2:]
    a.lab("L_P3_LATE")
    if opt.sent:
        e(f"v_and_b32 v13, 7, v0")
        e(f"v_lshlrev_b32 v13, 2, v13")
        e(f"buffer_load_dword v14, v13, {srd(S_WS)}, s{sT1} offen sc1")
        if not opt.gate4: gate()
        e("s_waitcnt lgkmcnt(0)")
        e("s_barrier")
        stamp("B3")
    else:
        e("s_waitcnt vmcnt(2)")
        gate()
        oflag()
        e(f"v_and_b32 v13, 7, v0")
        e(f"v_lshlrev_b32 v13, 2, v13")
        e(f"buffer_load_dword v14, v13, {srd(S_WS)}, s{sT1} offen sc1")
        e("s_waitcnt lgkmcnt(0)")
        e("s_barrier")
        stamp("B3")
    late_part(not opt.gate4)
    poll("L", True, 0)
    stamp("O flags seen")
    oloads(opt.omod)
    a.lab("L_P3_J")
    if opt.fullrow:
        e(f"s_lshl_b32 s{sT2}, s{sTQ}, 15")
        e(f"s_lshl_b32 s{sT3x}, s{sQ}, 11")
        e(f"s_add_u32 s{sT3x}, s{sT3x}, s{sT2}")
        e(f"s_add_u32 s{sT3x}, s{sT3x}, {LDS_RB}")
        e(f"v_and_b32 v4, 31, v0")
        e(f"v_lshrrev_b32 v5, 5, v0")
        e(f"v_lshlrev_b32 v5, 9, v5")
        e(f"v_add_u32 v5, s{sT3x}, v5")
        for c in range(4):
            e(f"v_add_u32 v6, {4*c}, v4" if c else "v_mov_b32 v6, v4")
            e(f"v_and_b32 v6, 31, v6")
            e(f"v_lshl_add_u32 v{8+c}, v6, 4, v5")
        e(f"v_lshrrev_b32 v4, 3, v0")
        e(f"s_lshl_b32 s{sT3x}, s{sQ}, 3")
        e(f"v_add_u32 v4, s{sT3x}, v4")
        e(f"v_and_b32 v5, 7, v0")
        e(f"v_and_b32 v6, 3, v5")
        e(f"v_lshl_add_u32 v6, v6, 2, v4")
        e(f"v_and_b32 v6, 31, v6")
        e(f"v_lshlrev_b32 v6, 4, v6")
        e(f"v_lshrrev_b32 v7, 1, v5")
        e(f"v_lshl_add_u32 v6, v7, 13, v6")
        e(f"v_and_b32 v7, 1, v5")
        e(f"v_lshl_add_u32 v6, v7, 10, v6")
        e(f"s_add_u32 s{sT2}, s{sT2}, {LDS_RB}")
        e(f"v_add_u32 v2, s{sT2}, v6")
    p3mfma2()
    stamp("P3 mfma")
    if opt.fullrow:
        e(f"s_lshl_b32 s{sT2}, s{sTQ}, 5")
        e(f"v_add_u32 v3, s{sT2}, v4")
        e(f"v_lshlrev_b32 v3, 2, v3")
        e(f"v_lshlrev_b32 v4, 10, v4")
        e(f"v_lshl_add_u32 v4, v5, 4, v4")
        e(f"s_lshl_b32 s{sT2}, s{sTT3}, 15")
        e(f"s_lshl_b32 s{sT3x}, s{sN3}, 7")
        e(f"s_add_u32 s{sT2}, s{sT2}, s{sT3x}")
        e("s_nop 1")
        for qq in range(4):
            for hf in range(2):
                c = (2 * qq + hf) & 3
                e(f"ds_write_b128 v{8+c}, {vr(AC3+8*qq+4*hf,4)} offset:{qq*8192+hf*1024}")
        e("s_waitcnt lgkmcnt(0)")
        e("s_barrier")
        R = 144
        e(f"ds_read_b32 v5, v3 offset:{LDS_GATE}")
        e(f"ds_read_b32 v6, v3 offset:{LDS_GATE+256}")
        for src in range(4):
            for hh in range(2):
                e(f"ds_read_b128 {vr(R+8*src+4*hh,4)}, v2 offset:{src*2048+hh*512}")
        e("s_waitcnt lgkmcnt(4)")
        for i in range(8): e(f"v_add_f32 v{R+i}, v{R+i}, v{R+8+i}")
        for i in range(8): e(f"v_mul_f32 v{R+i}, v{R+i}, v5")
        e("s_waitcnt lgkmcnt(0)")
        for i in range(8): e(f"v_add_f32 v{R+16+i}, v{R+16+i}, v{R+24+i}")
        for i in range(8): e(f"v_fmac_f32 v{R+i}, v{R+16+i}, v6")
        for i in range(4): e(cvt(R + 32 + i, R + 2 * i, R + 2 * i + 1))
        e(f"buffer_store_dwordx4 {vr(R+32,4)}, v4, {srd(S_OUT)}, s{sT2} offen {opt.outmod}")
    else:
        e(f"s_lshl_b32 s{sT2}, s{sTQ}, 15")
        e(f"s_lshl_b32 s{sT3x}, s{sQ}, 11")
        e(f"s_add_u32 s{sT3x}, s{sT3x}, s{sT2}")
        e(f"s_add_u32 s{sT3x}, s{sT3x}, {LDS_RB}")
        e(f"v_add_u32 v1, s{sT3x}, v{vL16}")
        e(f"s_lshl_b32 s{sT3x}, s{sQ}, 13")
        e(f"s_add_u32 s{sT3x}, s{sT3x}, s{sT2}")
        e(f"s_add_u32 s{sT3x}, s{sT3x}, {LDS_RB}")
        e(f"v_add_u32 v2, s{sT3x}, v{vL16}")
        e(f"v_and_b32 v4, 31, v0")
        e(f"s_lshl_b32 s{sT2}, s{sTQ}, 5")
        e(f"v_add_u32 v3, s{sT2}, v4")
        e(f"v_lshlrev_b32 v3, 2, v3")
        e(f"v_lshlrev_b32 v4, 10, v4")
        e(f"v_lshrrev_b32 v5, 5, v0")
        e(f"v_lshl_add_u32 v4, v5, 4, v4")
        e(f"s_lshl_b32 s{sT2}, s{sTT3}, 15")
        e(f"s_lshl_b32 s{sT3x}, s{sN3}, 7")
        e(f"s_add_u32 s{sT2}, s{sT2}, s{sT3x}")
        e(f"s_lshl_b32 s{sT3x}, s{sQ}, 5")
        e(f"s_add_u32 s{sT2}, s{sT2}, s{sT3x}")
        e("s_nop 1")
        for qq in range(4):
            for hf in range(2):
                e(f"ds_write_b128 v1, {vr(AC3+8*qq+4*hf,4)} offset:{qq*8192+hf*1024}")
        e("s_waitcnt lgkmcnt(0)")
        e("s_barrier")
        R = 144
        e(f"ds_read_b32 v5, v3 offset:{LDS_GATE}")
        e(f"ds_read_b32 v6, v3 offset:{LDS_GATE+256}")
        for src in range(4):
            for hf in range(2):
                e(f"ds_read_b128 {vr(R+8*src+4*hf,4)}, v2 offset:{src*2048+hf*1024}")
        e("s_waitcnt lgkmcnt(4)")
        for i in range(8): e(f"v_add_f32 v{R+i}, v{R+i}, v{R+8+i}")
        for i in range(8): e(f"v_mul_f32 v{R+i}, v{R+i}, v5")
        e("s_waitcnt lgkmcnt(0)")
        for i in range(8): e(f"v_add_f32 v{R+16+i}, v{R+16+i}, v{R+24+i}")
        for i in range(8): e(f"v_fmac_f32 v{R+i}, v{R+16+i}, v6")
        for i in range(4): e(cvt(R + 32 + i, R + 2 * i, R + 2 * i + 1))
        e("s_nop 1")
        e(f"v_permlane32_swap_b32 v{R+32}, v{R+34}")
        e(f"v_permlane32_swap_b32 v{R+33}, v{R+35}")
        e(f"buffer_store_dwordx4 {vr(R+32,4)}, v4, {srd(S_OUT)}, s{sT2} offen {opt.outmod}")
    if STAMPS:
        stamp("end")
        e(f"s_memtime s[{sTM}:{sTM+1}]")
        e("s_waitcnt lgkmcnt(0)")
        e(f"s_sub_u32 s{STREG[nst[0]]}, s{sTM}, s100")
        nst[0] += 1
        opt.stamp_names.append("CYCLES")
        n = nst[0]
        e(f"s_lshl_b32 s{sT2}, s2, 3")
        e(f"s_add_u32 s{sT2}, s{sT2}, s{sW}")
        e(f"s_lshl_b32 s{sT2}, s{sT2}, 7")
        e(f"s_add_u32 s{sT2}, s{sT2}, {WS_STAMP}")
        e("v_mov_b32 v13, 0")
        e("s_mov_b64 exec, 1")
        for i in range(n):
            e(f"v_mov_b32 v14, s{STREG[i]}")
            e(f"buffer_store_dword v14, v13, {srd(S_WS)}, s{sT2} offen offset:{4*i}")
            e("s_nop 0")
        e("s_mov_b64 exec, -1")
    e("s_waitcnt vmcnt(0)")
    a.lab("L_END")
    e("s_endpgm")
    for blk in ool: a.lines += blk
    if opt.fallback:
        a.lab("L_FB_ENTRY")
        fallback(a, opt, dict(SS=SS, PP=PP, KF=KF, MK=MK, OA=OA, QF=QF, vL16=vL16, HT=144))
        e("s_branch L_NOFB")
    a.lab("L_CODE_END")
    return a

def fallback(a, opt, R):
    e = a.e
    SS, PP, KF, MK, OA, QF, vL16, HT = (R[k] for k in "SS PP KF MK OA QF vL16 HT".split())
    TQ = 64; TM = 68; TB = 69; TO = 144; TV = 192; TC = 176
    S = SS
    sHH, sPASS, sPART, sTILE, sN = sH, 40, 41, 42, 43
    def mfma(D, A, B, C): e(mfma_s(D, A, B, C))
    a.c("==== fallback: true max ====")
    e(f"s_lshl_b32 s{sT2}, s{sC}, 5")
    e(f"s_add_u32 s{sT2}, s{sT2}, s{sBH}")
    e(f"s_lshl_b32 s{sT2}, s{sT2}, 7")
    e(f"s_add_u32 s{sT2}, s{sT2}, {WS_KVF}")
    e(f"v_and_b32 v13, 7, v0")
    e(f"v_lshlrev_b32 v13, 2, v13")
    e(f"s_mov_b32 s{sSPIN}, 0")
    a.lab("L_FB_FLAG")
    e(f"buffer_load_dword v14, v13, {srd(S_WS)}, s{sT2} offen sc1")
    e(f"s_add_u32 s{sSPIN}, s{sSPIN}, 1")
    e("s_waitcnt vmcnt(0)")
    e(f"v_cmp_ne_u32 vcc, s{sTAG}, v14")
    e(f"s_cmp_gt_u32 s{sSPIN}, {opt.spin}")
    e("s_cbranch_scc1 L_FB_FLAG_OK")
    e("s_cbranch_vccnz L_FB_FLAG")
    a.lab("L_FB_FLAG_OK")
    e(f"s_mov_b32 s{sHH}, 0")
    a.lab("L_FB_H")
    e(f"s_lshr_b32 s{sT2}, s{sFAIL}, s{sHH}")
    e(f"s_and_b32 s{sT2}, s{sT2}, 1")
    e(f"s_cmp_eq_u32 s{sT2}, 0")
    e("s_cbranch_scc1 L_FB_NEXT")
    e(f"s_cmp_eq_u32 s{sHH}, 0")
    e("s_cbranch_scc0 L_FB_Q1")
    for i in range(4): e(f"v_mov_b32 v{TQ+i}, v{QF+i}")
    e("s_branch L_FB_Q2")
    a.lab("L_FB_Q1")
    for i in range(4): e(f"v_mov_b32 v{TQ+i}, v{QF+4+i}")
    a.lab("L_FB_Q2")
    e(f"v_mov_b32 v{TM}, 0xff800000")
    for i in range(16): e(f"v_mov_b32 v{TO+i}, 0")
    for i in range(8): e(f"v_mov_b32 v{TV+i}, 0x3f803f80")
    e(f"s_mov_b32 s{sPASS}, 0")
    a.lab("L_FB_PASS")
    e(f"s_mov_b32 s{sPART}, 0")
    a.lab("L_FB_PART")
    e(f"s_cmp_eq_u32 s{sPART}, 0")
    e(f"s_cselect_b32 s{sTILE}, 0, s{sTAU}")
    e(f"s_cselect_b32 s{sN}, s{sTAU}, 7")
    a.lab("L_FB_TILE")
    e(f"s_cmp_eq_u32 s{sTILE}, s{sTAU}")
    e("s_cbranch_scc1 L_FB_MASK")
    for i in range(16): e(f"v_mov_b32 v{TC+i}, 0")
    e("s_branch L_FB_C")
    a.lab("L_FB_MASK")
    e(f"v_and_b32 v13, 31, v0")
    e(f"v_lshrrev_b32 v14, 5, v0")
    e(f"v_lshlrev_b32 v14, 2, v14")
    e(f"v_sub_u32 v13, v13, v14")
    e(f"s_cmp_eq_u32 s{sPART}, 0")
    e(f"s_cselect_b32 s{sT2}, 0, 0xff800000")
    for r in range(16):
        kk = (r & 3) + 8 * (r >> 2)
        e(f"v_subrev_u32 v{TC+r}, {kk}, v13")
        e(f"v_ashrrev_i32 v{TC+r}, 31, v{TC+r}")
        e(f"v_and_b32 v{TC+r}, 0xff800000, v{TC+r}")
        e(f"v_xor_b32 v{TC+r}, s{sT2}, v{TC+r}")
    a.lab("L_FB_C")
    e(f"s_sub_u32 s{sT2}, s{sC}, s{sPART}")
    e(f"s_lshl_b32 s{sT2}, s{sT2}, 3")
    e(f"s_add_u32 s{sT2}, s{sT2}, s{sTILE}")
    e(f"s_lshl_b32 s{sT3x}, s{sBH}, 6")
    e(f"s_add_u32 s{sT2}, s{sT2}, s{sT3x}")
    e(f"s_lshl_b32 s{sT2}, s{sT2}, 12")
    e(f"s_add_u32 s{sT2}, s{sT2}, {WS_KV}")
    e(f"s_lshl_b32 s{sT3x}, s{sHH}, 10")
    e(f"s_add_u32 s{sT3x}, s{sT3x}, s{sT2}")
    e(f"buffer_load_dwordx4 {vr(KF,4)}, v{vL16}, {srd(S_WS)}, s{sT3x} offen sc1")
    e(f"s_lshl_b32 s{sT3x}, s{sHH}, 8")
    e(f"s_add_u32 s{sT3x}, s{sT3x}, s{sT2}")
    e(f"s_mov_b64 exec, s[{sVM}:{sVM+1}]")
    e(f"buffer_load_dwordx4 {vr(TV,4)}, v{vL16}, {srd(S_WS)}, s{sT3x} offen offset:2048 sc1")
    e(f"buffer_load_dwordx4 {vr(TV+4,4)}, v{vL16}, {srd(S_WS)}, s{sT3x} offen offset:3072 sc1")
    e("s_mov_b64 exec, -1")
    e("s_waitcnt vmcnt(0)")
    mfma(S, KF, TQ, TC)
    e("s_nop 7"); e("s_nop 7")
    e(f"s_cmp_eq_u32 s{sPASS}, 0")
    e("s_cbranch_scc0 L_FB_P2")
    for i in range(8): e(f"v_max3_f32 v{TM}, v{TM}, v{S+2*i}, v{S+2*i+1}")
    e("s_branch L_FB_TNEXT")
    a.lab("L_FB_P2")
    for i in range(16): e(f"v_sub_f32 v{S+i}, v{S+i}, v{TM}")
    for i in range(16): e(f"v_exp_f32 v{S+i}, v{S+i}")
    e("s_nop 0")
    for i in range(8): e(cvt(PP + i, S + 2 * i, S + 2 * i + 1))
    e("s_nop 1")
    mfma(TO, TV, PP, TO)
    mfma(TO, TV + 4, PP + 4, TO)
    e("s_nop 7"); e("s_nop 7")
    a.lab("L_FB_TNEXT")
    e(f"s_add_u32 s{sTILE}, s{sTILE}, 1")
    e(f"s_cmp_le_u32 s{sTILE}, s{sN}")
    e("s_cbranch_scc1 L_FB_TILE")
    e(f"s_cmp_eq_u32 s{sC}, 0")
    e("s_cbranch_scc1 L_FB_PDONE")
    e(f"s_add_u32 s{sPART}, s{sPART}, 1")
    e(f"s_cmp_lt_u32 s{sPART}, 2")
    e("s_cbranch_scc1 L_FB_PART")
    a.lab("L_FB_PDONE")
    e(f"s_cmp_eq_u32 s{sPASS}, 0")
    e("s_cbranch_scc0 L_FB_STORE")
    e(f"v_mov_b32 v{TB}, v{TM}")
    e("s_nop 1")
    e(f"v_permlane32_swap_b32 v{TM}, v{TB}")
    e("s_nop 1")
    e(f"v_max_f32 v{TM}, v{TM}, v{TB}")
    e(f"s_mov_b32 s{sPASS}, 1")
    e("s_branch L_FB_PASS")
    a.lab("L_FB_STORE")
    e(f"s_cmp_eq_u32 s{sHH}, 0")
    e("s_cbranch_scc0 L_FB_S1")
    for i in range(16): e(f"v_mov_b32 v{OA+i}, v{TO+i}")
    e("s_branch L_FB_NEXT")
    a.lab("L_FB_S1")
    for i in range(16): e(f"v_mov_b32 v{OA+16+i}, v{TO+i}")
    a.lab("L_FB_NEXT")
    e(f"s_add_u32 s{sHH}, s{sHH}, 1")
    e(f"s_cmp_lt_u32 s{sHH}, 2")
    e("s_cbranch_scc1 L_FB_H")

def build(opt):
    opt.stamp_names = []
    a = gen(opt)
    hdr = []
    ref = open("gated_mix__sliding_block__sliding_block__prompt.s.ref").read().split("\n")
    for l in ref:
        if l.startswith("; Override launch geometry"): break
        hdr.append(l)
    hdr += """;
; Fused gated mix of two sliding-window attention branches, one launch, 256 workgroups of 8 waves (one per CU).
; (Assembly emitted by the author's own generator script.)
;   workgroup = (branch, head pair, chunk of 256 tokens)
;   phase 1  QKV projection: waves 4..7 stream x / W chunks into LDS (LDS-DMA), waves 0..3 run the MFMAs;
;            K / V fragment images go to LDS and to d_ws (halo for the next chunk)
;   phase 2  windowed attention, S^T = K Q^T per 32x32 tile, exp2 without a shift, row sums through a ones row of V^T;
;            a run-time range check on the row sums / accumulators falls back to a true-max recomputation (L_FB_ENTRY)
;   phase 3  output projection of both branches for a 64x64 output tile + sigmoid gate mix
;   hand-offs between workgroups: sc1 stores + tagged flags in d_ws (tag = word 0 of d_ws + 1, broadcast through d_debug)""".split("\n")
    hdr.append(f"; @launch grid=(256,1,1) block=(512,1,1) lds={LDS_TOTAL}")
    hdr.append('.amdgcn_target "amdgcn-amd-amdhsa--gfx950"')
    hdr.append(".text")
    hdr.append(f".globl {KNAME}")
    hdr.append(".p2align 8")
    hdr.append(f".type {KNAME},@function")
    tail = f""".section .rodata,"a"
.p2align 6
.amdhsa_kernel {KNAME}
  .amdhsa_next_free_vgpr 256
  .amdhsa_next_free_sgpr 102
  .amdhsa_accum_offset 256
  .amdhsa_group_segment_fixed_size 0
  .amdhsa_kernarg_size 80
  .amdhsa_user_sgpr_count 2
  .amdhsa_user_sgpr_kernarg_segment_ptr 1
  .amdhsa_system_sgpr_workgroup_id_x 1
  .amdhsa_float_denorm_mode_32 3
.end_amdhsa_kernel
"""
    return "\n".join(hdr) + "\n" + a.text() + tail

def parse(argv=None):
    p = argparse.ArgumentParser()
    p.add_argument("-o", default="gated_mix__sliding_block__sliding_block__prompt.s")
    p.add_argument("--stamps", type=int, default=0)
    p.add_argument("--codepf", type=int, default=2)
    p.add_argument("--pace", type=float, default=1.6)
    p.add_argument("--rot", type=int, default=1)
    p.add_argument("--gloop", type=int, default=1)
    p.add_argument("--padtest", type=int, default=0)
    p.add_argument("--fullrow", type=int, default=1)
    p.add_argument("--lprio", type=int, default=0)
    p.add_argument("--wsbase", type=int, default=0)
    p.add_argument("--xtouch", type=int, default=0)
    p.add_argument("--ool", type=int, default=1)
    p.add_argument("--tlb", type=int, default=1)
    p.add_argument("--gate4", type=int, default=0)
    p.add_argument("--wostride", type=int, default=64)
    p.add_argument("--tagearly", type=int, default=0)
    p.add_argument("--gwpf", type=int, default=1)
    p.add_argument("--mke", type=int, default=1)
    p.add_argument("--forcefb", type=int, default=0)
    p.add_argument("--early", type=int, default=0)
    p.add_argument("--lfirst", type=int, default=1)
    p.add_argument("--omod", default="sc1")
    p.add_argument("--rep", type=int, default=0)
    p.add_argument("--warm", type=int, default=6)
    p.add_argument("--sent", type=int, default=1)
    p.add_argument("--tailopt", type=int, default=1)
    p.add_argument("--eorder", type=int, default=1)
    p.add_argument("--prio", type=int, default=1)
    p.add_argument("--sleep", type=int, default=0)
    p.add_argument("--pf", type=int, default=0)
    p.add_argument("--bar0", type=int, default=1)
    p.add_argument("--dbg", type=int, default=0)
    p.add_argument("--cyc", type=int, default=0)
    p.add_argument("--wopf", type=int, default=1)
    p.add_argument("--fallback", type=int, default=1)
    p.add_argument("--spin", type=int, default=20000)
    p.add_argument("--outmod", default="")
    return p.parse_args(argv)

if __name__ == "__main__":
    opt = parse()
    s = build(opt)
    open(opt.o, "w").write(s)
    if opt.stamps:
        open(opt.o + ".stamps", "w").write("\n".join(opt.stamp_names))
    print("wrote", opt.o, len(s), "bytes")
```
